```python
import torch

def _softmax(x, axis=-1):
    return torch.softmax(x, dim=axis)
def _gelu(x):
    return torch.nn.functional.gelu(x, approximate="tanh")
def _silu(x):
    return torch.nn.functional.silu(x)
def _sigmoid(x):
    return torch.sigmoid(x)
def _layernorm(x, axis=-1, eps=1e-5):
    m = x.mean(dim=axis, keepdim=True)
    v = x.var(dim=axis, keepdim=True, unbiased=False)
    return (x - m) / torch.sqrt(v + eps)
def _scatter_add(tgt, idx, src, axis=0):
    return tgt.clone().index_add_(axis, idx, src)
def _segment_sum(src, seg, n):
    out = torch.zeros((n,) + src.shape[1:], dtype=src.dtype)
    return out.index_add_(0, seg, src)
def _pad(x, pw):
    flat = tuple(v for pair in reversed(pw) for v in pair)
    return torch.nn.functional.pad(x, flat)

kernel_name = 'gather_scatter__graph_attention_gat__graph'

def setup_inputs():

    _w = (lambda a: (lambda t: t.to(torch.bfloat16) if t.is_floating_point() else t)(torch.as_tensor(a)))
    N, deg, D = 10000, 16, 256
    H = 4
    E = N * deg
    return {
        "x": _w((lambda *s: torch.randn(*s, dtype=torch.bfloat16) * 0.4)(N, D) * 0.1),
        "src": _w((lambda lo, hi, *s: torch.randint(lo, hi, s))(0, N, E).to(torch.int64)),
        "dst": _w((lambda lo, hi, *s: torch.randint(lo, hi, s))(0, N, E).to(torch.int64)),
        "w": _w((lambda *s: torch.randn(*s, dtype=torch.bfloat16) * 1.6)(H, D, D) * (1.0 / D ** 0.5)),
        "a_src": _w((lambda *s: torch.randn(*s, dtype=torch.bfloat16) * 1.6)(H, D) * 0.1),
        "a_dst": _w((lambda *s: torch.randn(*s, dtype=torch.bfloat16) * 1.6)(H, D) * 0.1),
    }

def reference(x, src, dst, w, a_src, a_dst):
    N, D = x.shape
    H = w.shape[0]
    h = torch.einsum('nd,hdf->nhf', x, w)
    hs = h[src]
    hd = h[dst]
    e = torch.einsum('ehf,hf->eh', hs, a_src) + torch.einsum('ehf,hf->eh', hd, a_dst)
    e = torch.where(e > 0, e, 0.2 * e)
    exp_e = torch.exp(e)
    denom = _segment_sum(exp_e, dst, N) + 1e-9
    alpha = exp_e / denom[dst]
    out = _segment_sum(alpha[:, :, None] * hs, dst, N)
    return out.mean(1)
```

```python
import sys, argparse

N = 10000; E = 160000; TILE = 40; NT = 250; G = 64; CH = 2500
WS_SLOTS = 0
WS_WF = 0x200000
WS_V = 0x280000
WS_BYTES = 0x281000
WS_STAMP = 0x300000
REGSZ = 17408; UNIT = 8704; PAIR = 1088; RROW = 2080
AGG1 = 8 * REGSZ
LISTS = AGG1 + 8 * RROW
LSZ = 704
TBUF = LISTS + 8 * LSZ
CNT = TBUF + 768
OVF = CNT + 64
LDS_MAIN = CNT + 128
CAPA = 128; CAPB = 48
SENT_LIST = 0x7FFFFE3F
LOG2E = 0x3FB8AA3B


class Asm:
    def __init__(self):
        self.lines = []
    def __call__(self, s=""):
        for l in s.split("\n"):
            self.lines.append(l)
    def label(self, n):
        self.lines.append(n + ":")
    def text(self):
        return "\n".join(self.lines) + "\n"


def vr(a, n=1):
    return f"v{a}" if n == 1 else f"v[{a}:{a+n-1}]"
def sr(a, n=1):
    return f"s{a}" if n == 1 else f"s[{a}:{a+n-1}]"


def srd(A, d, base, nbytes):
    A(f"    s_mov_b32 s{d}, s{base}")
    A(f"    s_mov_b32 s{d+1}, s{base+1}")
    A(f"    s_mov_b32 s{d+2}, {nbytes}")
    A(f"    s_mov_b32 s{d+3}, 0x00020000")


def gen_prep(A, opt):
    K = "gat_prep_kernel"
    A(f".globl {K}\n.p2align 8\n.type {K},@function\n{K}:")
    A("    s_cmp_ge_u32 s2, 96")
    A("    s_cbranch_scc1 PREP_END")
    A("    s_load_dwordx4 s[4:7], s[0:1], 8")
    A("    s_load_dwordx2 s[8:9], s[0:1], 24       ; w")
    A("    s_load_dwordx4 s[12:15], s[0:1], 32")
    A("    s_load_dwordx2 s[10:11], s[0:1], 64     ; ws")
    A("    s_cmp_ge_u32 s2, 64")
    A("    s_cbranch_scc1 PREP_W")
    A("    v_lshlrev_b32 v1, 4, v0")
    for i in range(4):
        A(f"    v_mov_b32 v{4+i}, -1")
    A("    v_lshlrev_b32 v2, 2, v0")
    A("    v_mov_b32 v3, 0")
    for r in range(4):
        A(f"    ds_write_b128 v1, v[4:7] offset:{10240*r}")
    A("    ds_write_b32 v2, v3 offset:40960")
    A("    s_mul_i32 s28, s2, 10000")
    A("    v_add_u32 v2, s28, v1")
    A("    s_waitcnt lgkmcnt(0)")
    srd(A, 16, 4, E * 4)
    srd(A, 20, 6, E * 4)
    srd(A, 24, 10, WS_BYTES)
    A("    buffer_load_dwordx4 v[8:11], v2, s[20:23], 0 offen      ; dst")
    A("    buffer_load_dwordx4 v[12:15], v2, s[16:19], 0 offen     ; src")
    A("    s_barrier")
    A("    v_cmp_gt_u32 vcc, 625, v0")
    A("    s_mov_b32 s29, 52429")
    A("    v_mov_b32 v3, 1")
    A("    v_mov_b32 v28, 32000")
    A("    s_and_saveexec_b64 s[30:31], vcc")
    A("    s_waitcnt vmcnt(0)")
    for i in range(4):
        A(f"    v_mul_u32_u24 v{16+i}, s29, v{8+i}")
        A(f"    v_lshrrev_b32 v{16+i}, 21, v{16+i}       ; tile")
        A(f"    v_mul_u32_u24 v4, 40, v{16+i}")
        A(f"    v_sub_u32 v4, v{8+i}, v4")
        A(f"    v_lshl_or_b32 v{12+i}, v{12+i}, 9, v4    ; entry")
        A(f"    v_lshlrev_b32 v{20+i}, 2, v{16+i}")
        A(f"    ds_add_rtn_u32 v{24+i}, v{20+i}, v3 offset:40960")
    A("    s_waitcnt lgkmcnt(0)")
    for i in range(4):
        A(f"    v_lshlrev_b32 v4, 7, v{16+i}")
        A(f"    v_cmp_gt_u32 vcc, 32, v{24+i}")
        A(f"    v_lshl_add_u32 v4, v{24+i}, 2, v4")
        A(f"    s_nop 0")
        A(f"    v_cndmask_b32 v4, v28, v4, vcc")
        A(f"    ds_write_b32 v4, v{12+i}")
    A("    s_mov_b64 exec, s[30:31]")
    A("    s_waitcnt lgkmcnt(0)")
    A("    s_barrier")
    A("    s_lshl_b32 s28, s2, 7                    ; chunk*128")
    A("    v_and_b32 v2, 7, v0                      ; part (640 % 8 == 0)")
    A("    v_lshrrev_b32 v3, 3, v0")
    A("    v_lshlrev_b32 v29, 2, v3")
    for r in range(4):
        A(f"    ds_read_b128 v[{8+4*r}:{11+4*r}], v1 offset:{10240*r}")
        A(f"    ds_read_b32 v{24+r}, v29 offset:{40960 + 320*r}")
    A("    v_lshlrev_b32 v4, 4, v2")
    A("    v_lshl_add_u32 v4, v3, 13, v4")
    A("    v_add_u32 v4, s28, v4")
    A("    v_cmp_eq_u32 s[32:33], 7, v2")
    A("    v_cmp_gt_u32 vcc, 80, v0")
    A("    s_mov_b64 s[34:35], vcc")
    A("    v_mov_b32 v5, 0x7ffffff0")
    A("    v_mov_b32 v6, -2")
    A("    s_waitcnt lgkmcnt(0)")
    for r in range(4):
        A(f"    v_cmp_lt_u32 vcc, 32, v{24+r}")
        A(f"    s_and_b64 vcc, vcc, s[32:33]")
        if r < 3:
            A(f"    v_add_u32 v7, {80*8192*r}, v4")
        else:
            A(f"    v_add_u32 v7, {80*8192*r}, v4")
            A(f"    v_cndmask_b32 v7, v5, v7, s[34:35]")
        A(f"    s_nop 0")
        A(f"    v_cndmask_b32 v{11+4*r}, v{11+4*r}, v6, vcc")
        A(f"    buffer_store_dwordx4 v[{8+4*r}:{11+4*r}], v7, s[24:27], 0 offen")
    A("    s_endpgm")
    A.label("PREP_W")
    A("    s_sub_u32 s28, s2, 64                    ; ks")
    A("    v_lshrrev_b32 v1, 6, v0")
    A("    s_waitcnt lgkmcnt(0)")
    A("    v_readfirstlane_b32 s29, v1              ; wave")
    srd(A, 16, 8, 524288)
    srd(A, 24, 10, WS_BYTES)
    srd(A, 20, 12, 2048)
    srd(A, 32, 14, 2048)
    A("    s_cmp_ge_u32 s29, 8")
    A("    s_cbranch_scc1 PREP_V")
    A("    s_lshl_b32 s30, s28, 14                  ; ks*16384 = h*131072 + u*16384")
    A("    v_lshrrev_b32 v1, 7, v0                  ; g")
    A("    v_and_b32 v2, 127, v0                    ; fp")
    A("    v_lshlrev_b32 v3, 11, v1")
    A("    v_lshl_add_u32 v3, v2, 2, v3             ; g*2048 + fp*4")
    A("    v_add_u32 v4, 8192, v3")
    for j in range(4):
        A(f"    buffer_load_dword v{8+j}, v3, s[16:19], s30 offen offset:{512*j}")
    for j in range(4):
        A(f"    buffer_load_dword v{12+j}, v4, s[16:19], s30 offen offset:{512*j}")
    A("    v_lshrrev_b32 v5, 4, v2")
    A("    v_lshlrev_b32 v5, 16, v5")
    A("    v_bfe_u32 v6, v2, 1, 1")
    A("    v_lshl_add_u32 v5, v6, 10, v5")
    A("    v_lshl_add_u32 v5, v1, 8, v5             ; 16g*16")
    A("    v_bfe_u32 v6, v2, 2, 2")
    A("    v_lshl_add_u32 v5, v6, 6, v5             ; 4*gi*16")
    A("    v_and_b32 v6, 1, v2")
    A("    v_lshl_add_u32 v5, v6, 5, v5             ; 2*(fp&1)*16")
    A("    s_lshl_b32 s31, s28, 11")
    A(f"    s_add_u32 s31, s31, {WS_WF}")
    A("    s_mov_b32 s36, 0x05040100")
    A("    s_mov_b32 s37, 0x07060302")
    A("    s_waitcnt vmcnt(0)")
    for i in range(4):
        A(f"    v_perm_b32 v{16+i}, v{9+2*i}, v{8+2*i}, s36")
        A(f"    v_perm_b32 v{20+i}, v{9+2*i}, v{8+2*i}, s37")
    A("    buffer_store_dwordx4 v[16:19], v5, s[24:27], s31 offen")
    A("    buffer_store_dwordx4 v[20:23], v5, s[24:27], s31 offen offset:16")
    A("    s_endpgm")
    A.label("PREP_V")
    A("    s_lshl_b32 s30, s28, 1")
    A("    s_add_u32 s30, s30, s29")
    A("    s_sub_u32 s30, s30, 8")
    A("    s_lshr_b32 s31, s30, 4                   ; h")
    A("    v_and_b32 v1, 63, v0")
    A("    v_and_b32 v2, 15, v1                     ; i / c")
    A("    v_lshrrev_b32 v3, 4, v1                  ; g")
    A("    v_lshlrev_b32 v4, 9, v2")
    A("    v_lshl_add_u32 v4, v3, 4, v4             ; i*512 + g*16")
    A("    s_lshl_b32 s36, s30, 13")
    A("    v_lshlrev_b32 v5, 4, v3                  ; g*16")
    A("    s_lshl_b32 s37, s31, 9                   ; h*512")
    for kk in range(8):
        A(f"    buffer_load_dwordx4 v[{8+4*kk}:{11+4*kk}], v4, s[16:19], s36 offen offset:{64*kk}")
    for kk in range(8):
        A(f"    buffer_load_dwordx4 v[{40+4*kk}:{43+4*kk}], v5, s[20:23], s37 offen offset:{64*kk}")
    for kk in range(8):
        A(f"    buffer_load_dwordx4 v[{72+4*kk}:{75+4*kk}], v5, s[32:35], s37 offen offset:{64*kk}")
    A("    s_waitcnt vmcnt(8)")
    for kk in range(8):
        c = "0" if kk == 0 else "v[104:107]"
        A(f"    v_mfma_f32_16x16x32_bf16 v[104:107], v[{8+4*kk}:{11+4*kk}], v[{40+4*kk}:{43+4*kk}], {c}")
    A("    s_waitcnt vmcnt(0)")
    for kk in range(8):
        c = "0" if kk == 0 else "v[108:111]"
        A(f"    v_mfma_f32_16x16x32_bf16 v[108:111], v[{8+4*kk}:{11+4*kk}], v[{72+4*kk}:{75+4*kk}], {c}")
    A("    s_lshl_b32 s36, s30, 5")
    A(f"    s_add_u32 s36, s36, {WS_V}")
    A("    v_lshlrev_b32 v6, 3, v3")
    A("    v_cmp_eq_u32 vcc, 0, v2")
    A(f"    s_mov_b32 s38, {LOG2E}")
    A("    s_nop 7")
    for r in range(8):
        A(f"    v_mul_f32 v{104+r}, s38, v{104+r}")
    A("    v_cvt_pk_bf16_f32 v112, v104, v105")
    A("    v_cvt_pk_bf16_f32 v113, v106, v107")
    A("    v_cvt_pk_bf16_f32 v114, v108, v109")
    A("    v_cvt_pk_bf16_f32 v115, v110, v111")
    A("    s_and_saveexec_b64 s[40:41], vcc")
    A("    buffer_store_dwordx2 v[112:113], v6, s[24:27], s36 offen")
    A("    buffer_store_dwordx2 v[114:115], v6, s[24:27], s36 offen offset:2048")
    A.label("PREP_END")
    A("    s_endpgm")


V_TID = 0; V_DMAC = 1; V_SADDR = 2; V_TE = 3; V_TO = 4; V_G16 = 5; V_H4 = 6; V_TGT = 7; V_T = 8
V_TGTA = 9; V_TA = 10; V_TMP = 11; V_PT = 12; V_ONES = 14; V_E = 16; V_D = 20; V_S = 28; V_DEN = 32
V_X = 36; V_C = 40; V_G = 41; V_L = 42; V_TMP2 = 43; V_TMP3 = 44; V_WOFF = 45
V_SCR = 64; V_V = 96; V_ACC = 128; V_W0 = 192
V_ACC2 = 40
S_X = 4; S_WS = 8; S_OUT = 12; S_SRC = 16; S_DST = 20
S_W = 24; S_TILE = 2; S_NA = 25; S_NB = 26; S_NU = 27; S_P = 28; S_PTR = 29; S_M0 = 30; S_DELTA = 31
S_MSK = 32
S_HI = 40
S_T0 = 41; S_T1 = 42; S_T2 = 43; S_ABASE = 44; S_REG = 45; S_P2 = 46; S_EX = 48
S_C02 = 50


def emit_dma_issue(A, interleave=None):
    for q in range(8):
        A(f"    v_and_or_b32 v{V_D+q}, v{V_D+q}, s{S_HI}, v{V_DMAC}")
        if q == 0:
            A(f"    s_mov_b32 m0, s{S_M0}")
        else:
            A(f"    s_add_u32 m0, s{S_M0}, {PAIR*q}")
        if interleave:
            interleave(q)
        else:
            A("    s_nop 0")
        A(f"    buffer_load_dwordx4 v{V_D+q}, s[{S_X}:{S_X+3}], 0 offen lds")


def emit_dma_entry_reads(A, addr_v):
    for i in range(4):
        A(f"    ds_read2_b32 v[{V_D+2*i}:{V_D+2*i+1}], v{addr_v} offset0:{4*i} offset1:{4*i+2}")


def emit_unit_front(A):
    A(f"    v_add_u32 v{V_TMP}, s{S_PTR}, v{V_G16}")
    A(f"    v_add_u32 v{V_TMP2}, s{S_P2}, v{V_H4}")
    A(f"    ds_read_b128 v[{V_E}:{V_E+3}], v{V_TMP}")
    emit_dma_entry_reads(A, V_TMP2)
    for kk in range(8):
        A(f"    ds_read_b128 v[{V_SCR+4*kk}:{V_SCR+4*kk+3}], v{V_SADDR} offset:{64*kk}")
    for kk in range(8):
        A(f"    s_waitcnt lgkmcnt({7+kk})")
        c = "0" if kk == 0 else f"v[{V_S}:{V_S+3}]"
        A(f"    v_mfma_f32_16x16x32_bf16 v[{V_S}:{V_S+3}], v[{V_SCR+4*kk}:{V_SCR+4*kk+3}], v[{V_V+4*kk}:{V_V+4*kk+3}], {c}")
        A(f"    ds_read_b64_tr_b16 v[{V_SCR+4*kk}:{V_SCR+4*kk+1}], v{V_TE} offset:{64*kk}")
        A(f"    ds_read_b64_tr_b16 v[{V_SCR+4*kk+2}:{V_SCR+4*kk+3}], v{V_TO} offset:{64*kk+32}")
    for r in range(4):
        A(f"    v_cmp_eq_u32_sdwa s[{S_MSK+2*r}:{S_MSK+2*r+1}], v{V_E+r}, v{V_TGT} src0_sel:BYTE_0 src1_sel:DWORD")
    A("    s_nop 3")
    for r in range(4):
        A(f"    v_add_f32 v{V_X+r}, v{V_S+r}, v{V_T}")
    for r in range(4):
        A(f"    v_mul_f32 v{V_E+r}, s{S_C02}, v{V_X+r}")
    for r in range(4):
        A(f"    v_max_f32 v{V_X+r}, v{V_X+r}, v{V_E+r}")
    for r in range(4):
        A(f"    v_exp_f32 v{V_X+r}, v{V_X+r}")
    for r in range(4):
        A(f"    v_cndmask_b32 v{V_X+r}, 0, v{V_X+r}, s[{S_MSK+2*r}:{S_MSK+2*r+1}]")
    A(f"    v_cvt_pk_bf16_f32 v{V_PT}, v{V_X}, v{V_X+1}")
    A(f"    v_cvt_pk_bf16_f32 v{V_PT+1}, v{V_X+2}, v{V_X+3}")
    A("    s_waitcnt lgkmcnt(0)")
    A("    s_nop 0")
    A(f"    v_mfma_f32_16x16x16_bf16 v[{V_DEN}:{V_DEN+3}], v[{V_ONES}:{V_ONES+1}], v[{V_PT}:{V_PT+1}], v[{V_DEN}:{V_DEN+3}]")


def agg_mfma(A, ft):
    A(f"    v_mfma_f32_16x16x16_bf16 v[{V_ACC+4*ft}:{V_ACC+4*ft+3}], v[{V_SCR+2*ft}:{V_SCR+2*ft+1}], v[{V_PT}:{V_PT+1}], v[{V_ACC+4*ft}:{V_ACC+4*ft+3}]")


def emit_finalize(A, stage, addr_e, addr_o, after_pair=None):
    A("    s_nop 7")
    A(f"    v_add_f32 v{V_TMP}, 0x3089705f, v{V_DEN}        ; + 1e-9")
    A(f"    v_rcp_f32 v{V_TMP}, v{V_TMP}")
    A("    s_nop 0")
    A(f"    v_mul_f32 v{V_TMP}, 0x3e800000, v{V_TMP}")
    for u in range(8):
        for half in range(2):
            ft = 2 * u + half
            a = V_ACC + 4 * ft
            for r in range(4):
                A(f"    v_mul_f32 v{a+r}, v{V_TMP}, v{a+r}")
            sq = stage + 4 * (u & 3)
            A(f"    v_cvt_pk_bf16_f32 v{sq+2*half}, v{a}, v{a+1}")
            A(f"    v_cvt_pk_bf16_f32 v{sq+2*half+1}, v{a+2}, v{a+3}")
        ad = addr_e if u % 2 == 0 else addr_o
        A(f"    ds_write_b128 v{ad}, v[{sq}:{sq+3}] offset:{64*u}")
        if after_pair:
            after_pair(u)


def w_load(A, ks, dst):
    A(f"    s_mov_b32 s{S_T0}, {WS_WF + ks*2048}")
    A(f"    buffer_load_dwordx4 v[{dst}:{dst+3}], v{V_WOFF}, s[{S_WS}:{S_WS+3}], s{S_T0} offen")
    A(f"    buffer_load_dwordx4 v[{dst+4}:{dst+7}], v{V_WOFF}, s[{S_WS}:{S_WS+3}], s{S_T0} offen offset:1024")


def gen_main(A, opt):
    K = "gather_scatter__graph_attention_gat__graph_kernel"
    A(f".globl {K}\n.p2align 8\n.type {K},@function\n{K}:")
    A(f"    s_cmp_ge_u32 s2, {NT}")
    A("    s_cbranch_scc1 MAIN_END")
    A("    s_load_dwordx2 s[52:53], s[0:1], 0       ; x")
    A("    s_load_dwordx4 s[56:59], s[0:1], 8")
    A("    s_load_dwordx2 s[54:55], s[0:1], 48      ; out")
    A("    s_load_dwordx2 s[60:61], s[0:1], 64      ; ws")
    A(f"    v_and_b32 v{V_L}, 63, v0")
    A(f"    v_lshrrev_b32 v{V_TMP}, 6, v0")
    A(f"    v_and_b32 v{V_C}, 15, v{V_L}")
    A(f"    v_readfirstlane_b32 s{S_W}, v{V_TMP}")
    A(f"    v_lshrrev_b32 v{V_G}, 4, v{V_L}")
    A(f"    v_mov_b32 v16, {hex(SENT_LIST)}")
    A(f"    v_mov_b32 v17, v16\n    v_mov_b32 v18, v16\n    v_mov_b32 v19, v16")
    A(f"    v_lshlrev_b32 v20, 4, v0")
    A(f"    v_add_u32 v21, {LISTS}, v20")
    A(f"    v_cmp_gt_u32 vcc, 352, v0")
    A(f"    v_mov_b32 v22, 0")
    A(f"    v_lshlrev_b32 v23, 2, v0")
    A(f"    v_add_u32 v23, {CNT}, v23")
    A(f"    s_and_saveexec_b64 s[{S_EX}:{S_EX+1}], vcc")
    A(f"    s_cbranch_execz MAIN_NOCNT")
    A(f"    ds_write_b128 v21, v[16:19]")
    A(f"    v_cmp_gt_u32 vcc, 32, v0")
    A(f"    s_and_b64 exec, exec, vcc")
    A(f"    s_cbranch_execz MAIN_NOCNT")
    A(f"    ds_write_b32 v23, v22")
    A.label("MAIN_NOCNT")
    A(f"    s_mov_b64 exec, s[{S_EX}:{S_EX+1}]")
    A("    s_waitcnt lgkmcnt(0)")
    srd(A, S_X, 52, N * 512)
    srd(A, S_WS, 60, WS_BYTES)
    srd(A, S_OUT, 54, N * 512)
    srd(A, S_SRC, 56, E * 4)
    srd(A, S_DST, 58, E * 4)
    A(f"    s_lshl_b32 s{S_T0}, s2, 13")
    A(f"    buffer_load_dwordx4 v[16:19], v20, s[{S_WS}:{S_WS+3}], s{S_T0} offen")
    A(f"    v_and_b32 v{V_TMP}, 3, v{V_C}")
    A(f"    v_lshlrev_b32 v{V_TMP}, 9, v{V_TMP}")
    A(f"    v_lshl_add_u32 v{V_TMP2}, v{V_G}, 4, v{V_TMP}")
    A(f"    s_mov_b32 s{S_T1}, {WS_V}")
    A(f"    s_cmp_ge_u32 s{S_W}, 3")
    A("    s_cbranch_scc1 MAIN_NOT")
    A(f"    s_mul_i32 s{S_T0}, s2, {TILE*512}")
    A(f"    s_lshl_b32 s{S_T2}, s{S_W}, 13            ; 16 rows * 512")
    A(f"    s_add_u32 s{S_T0}, s{S_T0}, s{S_T2}")
    A(f"    v_lshlrev_b32 v{V_TMP3}, 9, v{V_C}")
    A(f"    v_lshl_add_u32 v{V_TMP3}, v{V_G}, 4, v{V_TMP3}")
    for kk in range(8):
        A(f"    buffer_load_dwordx4 v[{V_SCR+4*kk}:{V_SCR+4*kk+3}], v{V_TMP3}, s[{S_X}:{S_X+3}], s{S_T0} offen offset:{64*kk}")
    A(f"    s_mov_b32 s{S_T2}, {WS_V+2048}")
    for kk in range(8):
        A(f"    buffer_load_dwordx4 v[{V_ACC+4*kk}:{V_ACC+4*kk+3}], v{V_TMP2}, s[{S_WS}:{S_WS+3}], s{S_T2} offen offset:{64*kk}")
    A.label("MAIN_NOT")
    for kk in range(8):
        A(f"    buffer_load_dwordx4 v[{V_V+4*kk}:{V_V+4*kk+3}], v{V_TMP2}, s[{S_WS}:{S_WS+3}], s{S_T1} offen offset:{64*kk}")
    A(f"    v_lshlrev_b32 v{V_WOFF}, 4, v{V_L}")
    A(f"    s_lshl_b32 s{S_T0}, s{S_W}, 16")
    A(f"    v_add_u32 v{V_WOFF}, s{S_T0}, v{V_WOFF}")
    for ks in range(8):
        w_load(A, ks, V_W0 + 8 * ks)
    A(f"    s_mul_i32 s{S_REG}, s{S_W}, {REGSZ}")
    A(f"    v_and_b32 v{V_TMP}, 31, v{V_L}")
    A(f"    v_lshlrev_b32 v{V_TMP}, 4, v{V_TMP}")
    A(f"    v_lshrrev_b32 v{V_TMP2}, 5, v{V_L}")
    A(f"    v_lshlrev_b32 v{V_H4}, 2, v{V_TMP2}")
    A(f"    v_lshlrev_b32 v{V_TMP2}, 5, v{V_TMP2}")
    A(f"    v_xor_b32 v{V_DMAC}, v{V_TMP}, v{V_TMP2}")
    A(f"    v_lshlrev_b32 v{V_G16}, 4, v{V_G}")
    A(f"    v_lshrrev_b32 v{V_TMP}, 1, v{V_C}")
    A(f"    v_mul_u32_u24 v{V_SADDR}, {PAIR}, v{V_TMP}")
    A(f"    v_and_b32 v{V_TMP}, 1, v{V_C}")
    A(f"    v_lshl_add_u32 v{V_SADDR}, v{V_TMP}, 9, v{V_SADDR}")
    A(f"    v_lshrrev_b32 v{V_TMP2}, 1, v{V_G}")
    A(f"    v_xor_b32 v{V_TMP}, v{V_TMP}, v{V_TMP2}")
    A(f"    v_lshl_add_u32 v{V_SADDR}, v{V_TMP}, 5, v{V_SADDR}")
    A(f"    v_and_b32 v{V_TMP}, 1, v{V_G}")
    A(f"    v_lshl_add_u32 v{V_SADDR}, v{V_TMP}, 4, v{V_SADDR}")
    A(f"    v_add_u32 v{V_SADDR}, s{S_REG}, v{V_SADDR}")
    A(f"    v_lshrrev_b32 v{V_TMP}, 2, v{V_C}")
    A(f"    v_lshl_add_u32 v{V_TMP}, v{V_G}, 2, v{V_TMP}      ; row")
    A(f"    v_lshrrev_b32 v{V_TMP2}, 1, v{V_TMP}")
    A(f"    v_mul_u32_u24 v{V_TE}, {PAIR}, v{V_TMP2}")
    A(f"    v_and_b32 v{V_TMP}, 1, v{V_TMP}                  ; hi")
    A(f"    v_lshl_add_u32 v{V_TE}, v{V_TMP}, 9, v{V_TE}")
    A(f"    v_and_b32 v{V_TMP2}, 3, v{V_C}")
    A(f"    v_lshl_add_u32 v{V_TE}, v{V_TMP2}, 3, v{V_TE}")
    A(f"    v_add_u32 v{V_TE}, s{S_REG}, v{V_TE}")
    A(f"    v_lshlrev_b32 v{V_TMP}, 5, v{V_TMP}              ; 32*hi")
    A(f"    v_sub_u32 v{V_TO}, v{V_TE}, v{V_TMP}")
    A(f"    v_add_u32 v{V_TE}, v{V_TE}, v{V_TMP}")
    A(f"    v_mov_b32 v{V_ONES}, 0x3f803f80")
    A(f"    v_mov_b32 v{V_ONES+1}, 0x3f803f80")
    A(f"    s_mov_b32 s{S_HI}, 0xfffffe00")
    A(f"    s_mov_b32 s{S_C02}, 0x3e4ccccd")
    A(f"    s_mul_i32 s{S_ABASE}, s{S_W}, {LSZ}")
    A(f"    s_add_u32 s{S_ABASE}, s{S_ABASE}, {LISTS+192}")
    A("    s_barrier")
    A("    s_waitcnt vmcnt(24)")
    EN = 16
    NN = 20; WV = 24; RK = 28; BS = 32
    A(f"    v_mov_b32 v36, 1")
    A(f"    s_mov_b64 s[62:63], 0")
    for i in range(4):
        A(f"    v_and_b32 v{NN+i}, 63, v{EN+i}")
        A(f"    v_cmp_eq_u32 vcc, -2, v{EN+i}")
        A(f"    s_or_b64 s[62:63], s[62:63], vcc")
        A(f"    v_cmp_gt_u32 s[{64+2*i}:{65+2*i}], 40, v{NN+i}       ; valid")
        A(f"    v_cmp_le_u32 s[{72+2*i}:{73+2*i}], 32, v{NN+i}       ; group B")
        A(f"    v_lshrrev_b32 v37, 2, v{NN+i}")
        A(f"    v_subrev_u32 v38, 32, v{NN+i}")
        A(f"    v_subrev_u32 v39, 24, v{NN+i}")
        A(f"    v_cndmask_b32 v{WV+i}, v37, v38, s[{72+2*i}:{73+2*i}]")
        A(f"    v_cndmask_b32 v37, v37, v39, s[{72+2*i}:{73+2*i}]")
        A(f"    v_lshlrev_b32 v{BS+i}, 2, v37")
        A(f"    v_add_u32 v{BS+i}, {CNT}, v{BS+i}")
    for i in range(4):
        A(f"    s_mov_b64 exec, s[{64+2*i}:{65+2*i}]")
        A(f"    ds_add_rtn_u32 v{RK+i}, v{BS+i}, v36")
    A("    s_mov_b64 exec, -1")
    A(f"    s_mov_b32 s{S_T0}, {LSZ}")
    A(f"    v_mov_b32 v37, {LISTS+192}")
    for i in range(4):
        A(f"    v_mad_u32_u24 v{BS+i}, v{WV+i}, s{S_T0}, v37")
    A("    s_waitcnt lgkmcnt(0)")
    for i in range(4):
        A(f"    v_lshlrev_b32 v37, 2, v{RK+i}")
        A(f"    v_sub_u32 v38, -4, v37")
        A(f"    v_mov_b32 v39, {CAPA}")
        A(f"    v_cndmask_b32 v37, v37, v38, s[{72+2*i}:{73+2*i}]")
        A(f"    v_cndmask_b32 v39, v39, {CAPB}, s[{72+2*i}:{73+2*i}]")
        A(f"    v_add_u32 v{BS+i}, v{BS+i}, v37")
        A(f"    v_cmp_lt_u32 vcc, v{RK+i}, v39")
        A(f"    s_andn2_b64 s[80:81], s[{64+2*i}:{65+2*i}], vcc")
        A(f"    s_or_b64 s[62:63], s[62:63], s[80:81]")
        A(f"    s_and_b64 exec, s[{64+2*i}:{65+2*i}], vcc")
        A(f"    ds_write_b32 v{BS+i}, v{EN+i}")
        A(f"    s_mov_b64 exec, -1")
    A(f"    s_cmp_eq_u64 s[62:63], 0")
    A(f"    s_cbranch_scc1 MAIN_NOOVF")
    A(f"    v_mov_b32 v37, {OVF}")
    A(f"    ds_write_b32 v37, v36")
    A.label("MAIN_NOOVF")
    A(f"    s_cmp_ge_u32 s{S_W}, 3")
    A("    s_cbranch_scc1 MAIN_NOT2")
    for kk in range(8):
        c = "0" if kk == 0 else f"v[{V_S}:{V_S+3}]"
        A(f"    v_mfma_f32_16x16x32_bf16 v[{V_S}:{V_S+3}], v[{V_SCR+4*kk}:{V_SCR+4*kk+3}], v[{V_ACC+4*kk}:{V_ACC+4*kk+3}], {c}")
    A(f"    s_lshl_b32 s{S_T0}, s{S_W}, 8")
    A(f"    s_add_u32 s{S_T0}, s{S_T0}, {TBUF}")
    A(f"    v_lshlrev_b32 v37, 6, v{V_G}")
    A(f"    v_lshl_add_u32 v37, v{V_C}, 2, v37")
    A(f"    v_add_u32 v37, s{S_T0}, v37")
    A(f"    v_cmp_gt_u32 vcc, 4, v{V_C}")
    A(f"    s_nop 4")
    A(f"    s_and_saveexec_b64 s[{S_EX}:{S_EX+1}], vcc")
    for r in range(4):
        A(f"    ds_write_b32 v37, v{V_S+r} offset:{16*r}")
    A(f"    s_mov_b64 exec, s[{S_EX}:{S_EX+1}]")
    A.label("MAIN_NOT2")
    for i in range(64):
        A(f"    v_mov_b32 v{V_ACC+i}, 0")
    for i in range(4):
        A(f"    v_mov_b32 v{V_DEN+i}, 0")
    A("    s_waitcnt lgkmcnt(0)")
    A("    s_barrier")
    A(f"    s_lshl_b32 s{S_T0}, s{S_W}, 2")
    A(f"    s_add_u32 s{S_T0}, s{S_T0}, {CNT}")
    A(f"    v_mov_b32 v16, s{S_T0}")
    A(f"    v_mov_b32 v17, {OVF}")
    A(f"    ds_read_b32 v18, v16                     ; cntA")
    A(f"    ds_read_b32 v19, v16 offset:32           ; cntB")
    A(f"    ds_read_b32 v20, v17")
    A(f"    s_lshl_b32 s{S_T0}, s{S_W}, 6")
    A(f"    s_add_u32 s{S_T0}, s{S_T0}, {TBUF}")
    A(f"    v_lshlrev_b32 v21, 2, v{V_C}")
    A(f"    v_add_u32 v21, s{S_T0}, v21")
    A(f"    ds_read_b32 v{V_TA}, v21")
    A(f"    s_lshl_b32 s{S_T0}, s{S_W}, 4")
    A(f"    s_add_u32 s{S_T0}, s{S_T0}, {TBUF+512}")
    A(f"    v_and_b32 v21, 3, v{V_C}")
    A(f"    v_lshlrev_b32 v21, 2, v21")
    A(f"    v_add_u32 v21, s{S_T0}, v21")
    A(f"    ds_read_b32 v{V_T}, v21")
    A(f"    v_lshrrev_b32 v21, 2, v{V_C}")
    A(f"    s_lshl_b32 s{S_T0}, s{S_W}, 2")
    A(f"    v_add_u32 v{V_TGTA}, s{S_T0}, v21")
    A(f"    s_add_u32 s{S_T0}, s{S_W}, 32")
    A(f"    v_mov_b32 v{V_TGT}, s{S_T0}")
    A("    s_waitcnt lgkmcnt(0)")
    A(f"    v_readfirstlane_b32 s{S_NA}, v18")
    A(f"    v_readfirstlane_b32 s{S_NB}, v19")
    A(f"    v_readfirstlane_b32 s{S_T0}, v20")
    A("    s_nop 3")
    A(f"    s_cmp_lg_u32 s{S_T0}, 0")
    A("    s_cbranch_scc1 MAIN_SLOW")
    A(f"    s_add_u32 s{S_NA}, s{S_NA}, 15")
    A(f"    s_lshr_b32 s{S_NA}, s{S_NA}, 4")
    A(f"    s_add_u32 s{S_NB}, s{S_NB}, 15")
    A(f"    s_lshr_b32 s{S_NB}, s{S_NB}, 4")
    A(f"    s_add_u32 s{S_NU}, s{S_NA}, s{S_NB}")
    A(f"    s_lshl_b32 s{S_T0}, s{S_NB}, 6")
    A(f"    s_sub_u32 s{S_PTR}, s{S_ABASE}, s{S_T0}")
    A(f"    s_mov_b32 s{S_P}, 0")
    A(f"    s_cmp_eq_u32 s{S_NU}, 0")
    A("    s_cbranch_scc1 MAIN_LOOP")
    A(f"    v_add_u32 v{V_TMP2}, s{S_PTR}, v{V_H4}")
    emit_dma_entry_reads(A, V_TMP2)
    A(f"    s_mov_b32 s{S_M0}, s{S_REG}")
    A("    s_waitcnt lgkmcnt(0)")
    emit_dma_issue(A)
    A(f"    s_cmp_eq_u32 s{S_NU}, 1")
    A("    s_cbranch_scc1 MAIN_PRO_DONE")
    A(f"    v_add_u32 v{V_TMP2}, 64, v{V_TMP2}")
    emit_dma_entry_reads(A, V_TMP2)
    A(f"    s_add_u32 s{S_M0}, s{S_REG}, {UNIT}")
    A("    s_waitcnt lgkmcnt(0)")
    emit_dma_issue(A)
    A.label("MAIN_PRO_DONE")
    A(f"    s_mov_b32 s{S_M0}, s{S_REG}")
    A(f"    s_mov_b32 s{S_DELTA}, {UNIT}")
    A.label("MAIN_LOOP")
    A(f"    s_cmp_eq_u32 s{S_P}, s{S_NB}")
    A("    s_cbranch_scc1 MAIN_FINB")
    A.label("MAIN_LOOP2")
    A(f"    s_cmp_ge_u32 s{S_P}, s{S_NU}")
    A("    s_cbranch_scc1 MAIN_DONE")
    A(f"    s_add_u32 s{S_T0}, s{S_P}, 1")
    A(f"    s_add_u32 s{S_P2}, s{S_PTR}, 128")
    A(f"    s_cmp_lt_u32 s{S_T0}, s{S_NU}")
    A("    s_cbranch_scc1 MAIN_W8")
    A("    s_waitcnt vmcnt(0)")
    A("    s_branch MAIN_GO")
    A.label("MAIN_W8")
    A("    s_waitcnt vmcnt(8)")
    A.label("MAIN_GO")
    emit_unit_front(A)
    A(f"    s_add_u32 s{S_T0}, s{S_P}, 2")
    A(f"    s_cmp_lt_u32 s{S_T0}, s{S_NU}")
    A("    s_cbranch_scc0 MAIN_NODMA")
    def il(q):
        agg_mfma(A, 2 * q)
        agg_mfma(A, 2 * q + 1)
    emit_dma_issue(A, interleave=il)
    A("    s_branch MAIN_NEXT")
    A.label("MAIN_NODMA")
    for ft in range(16):
        agg_mfma(A, ft)
    A.label("MAIN_NEXT")
    A(f"    v_add_u32 v{V_SADDR}, s{S_DELTA}, v{V_SADDR}")
    A(f"    v_add_u32 v{V_TE}, s{S_DELTA}, v{V_TE}")
    A(f"    v_add_u32 v{V_TO}, s{S_DELTA}, v{V_TO}")
    A(f"    s_add_u32 s{S_M0}, s{S_M0}, s{S_DELTA}")
    A(f"    s_sub_u32 s{S_DELTA}, 0, s{S_DELTA}")
    A(f"    s_add_u32 s{S_P}, s{S_P}, 1")
    A(f"    s_add_u32 s{S_PTR}, s{S_PTR}, 64")
    A("    s_branch MAIN_LOOP")

    def fin_addr(A, ve, vo, base_expr):
        A(f"    v_and_b32 v{V_TMP2}, 3, v{V_C}                ; h")
        A(f"    v_lshl_add_u32 v{ve}, v{V_TMP2}, 9, v{ve}")
        A(f"    v_and_b32 v{V_TMP3}, 1, v{V_TMP2}")
        A(f"    v_xor_b32 v{V_TMP3}, v{V_TMP3}, v{V_G}")
        A(f"    v_lshl_add_u32 v{ve}, v{V_TMP3}, 4, v{ve}")
        A(f"    v_lshrrev_b32 v{V_TMP2}, 1, v{V_TMP2}")
        A(f"    v_lshlrev_b32 v{V_TMP2}, 6, v{V_TMP2}          ; 64*h1")
        A(f"    v_sub_u32 v{vo}, v{ve}, v{V_TMP2}")
        A(f"    v_add_u32 v{ve}, v{ve}, v{V_TMP2}")

    def emit_finb(A):
        A(f"    s_mul_i32 s{S_T0}, s{S_W}, {RROW}")
        A(f"    s_add_u32 s{S_T0}, s{S_T0}, {AGG1}")
        A(f"    v_mov_b32 v46, s{S_T0}")
        fin_addr(A, 46, 47, None)
        A(f"    v_cmp_gt_u32 vcc, 4, v{V_C}")
        A(f"    s_and_saveexec_b64 s[{S_EX}:{S_EX+1}], vcc")
        emit_finalize(A, V_SCR, 46, 47)
        A(f"    s_mov_b64 exec, s[{S_EX}:{S_EX+1}]")
        for i in range(64):
            A(f"    v_mov_b32 v{V_ACC+i}, 0")
        for i in range(4):
            A(f"    v_mov_b32 v{V_DEN+i}, 0")
        A(f"    v_mov_b32 v{V_TGT}, v{V_TGTA}")
        A(f"    v_mov_b32 v{V_T}, v{V_TA}")

    A.label("MAIN_FINB")
    emit_finb(A)
    A("    s_branch MAIN_LOOP2")

    def emit_fina(A, with_w=True):
        A(f"    s_and_b32 s{S_T0}, s{S_W}, 1")
        A(f"    s_lshl_b32 s{S_T0}, s{S_T0}, 7")
        A(f"    s_add_u32 s{S_T0}, s{S_T0}, s{S_REG}")
        A(f"    v_lshrrev_b32 v46, 2, v{V_C}")
        A(f"    v_mul_u32_u24 v46, {RROW}, v46")
        A(f"    v_add_u32 v46, s{S_T0}, v46")
        fin_addr(A, 46, 47, None)

    A.label("MAIN_DONE")
    for k in range(8):
        w_load(A, 8 + k, V_SCR + 8 * k)
    emit_fina(A)
    emit_finalize(A, 12, 46, 47, after_pair=lambda u: w_load(A, 16 + u, V_ACC + 8 * u))
    A.label("MAIN_GEMM2")
    A(f"    v_lshrrev_b32 v{V_TMP}, 2, v{V_C}                 ; w'")
    A(f"    v_mul_u32_u24 v1, {REGSZ}, v{V_TMP}")
    A(f"    v_and_b32 v{V_TMP}, 1, v{V_TMP}")
    A(f"    v_lshl_add_u32 v1, v{V_TMP}, 7, v1")
    A(f"    v_and_b32 v{V_TMP}, 3, v{V_C}")
    A(f"    v_mul_u32_u24 v{V_TMP}, {RROW}, v{V_TMP}")
    A(f"    v_add_u32 v1, v1, v{V_TMP}")
    A(f"    v_and_b32 v{V_TMP}, 7, v{V_C}")
    A(f"    v_mul_u32_u24 v5, {RROW}, v{V_TMP}")
    A(f"    v_add_u32 v5, {AGG1}, v5")
    A(f"    v_lshlrev_b32 v{V_TMP}, 4, v{V_G}                 ; g*16")
    A(f"    v_xor_b32 v{V_TMP2}, 16, v{V_TMP}                 ; (g^1)*16")
    A(f"    v_add_u32 v2, v1, v{V_TMP2}")
    A(f"    v_add_u32 v1, v1, v{V_TMP}")
    A(f"    v_add_u32 v3, {4*REGSZ}, v1")
    A(f"    v_add_u32 v4, {4*REGSZ}, v2")
    A(f"    v_add_u32 v6, v5, v{V_TMP2}")
    A(f"    v_add_u32 v5, v5, v{V_TMP}")
    A(f"    s_mul_i32 s{S_T0}, s2, {TILE*512}")
    A(f"    s_lshl_b32 s{S_T1}, s{S_W}, 6")
    A(f"    s_add_u32 s{S_T0}, s{S_T0}, s{S_T1}")
    A(f"    v_lshlrev_b32 v8, 9, v{V_C}")
    A(f"    v_lshl_add_u32 v8, v{V_G}, 4, v8")
    A(f"    v_add_u32 v8, s{S_T0}, v8")
    A(f"    v_add_u32 v9, {16*512}, v8")
    A(f"    v_add_u32 v10, {32*512}, v8")
    A(f"    v_mov_b32 v{V_TMP}, 0x7ffffff0")
    A(f"    v_cmp_gt_u32 vcc, 8, v{V_C}")
    A(f"    v_mov_b32 v7, v{V_WOFF}")
    A(f"    s_nop 0")
    A(f"    v_cndmask_b32 v10, v{V_TMP}, v10, vcc")
    for i in range(24):
        A(f"    v_mov_b32 v{V_ACC2+i}, 0")
    A("    s_waitcnt lgkmcnt(0)")
    A("    s_barrier")
    BR = 12
    def b_reads(ks):
        h = ks >> 3; u = ks & 7; h0 = h & 1; h1 = h >> 1
        imm = h * 512 + ((u ^ h1) * 64)
        st = BR + 12 * (ks & 1)
        for T in range(3):
            A(f"    ds_read_b128 v[{st+4*T}:{st+4*T+3}], v{1+2*T+h0} offset:{imm}")
    def w_load2(ks, dst):
        A(f"    s_mov_b32 s{S_T0}, {WS_WF + ks*2048}")
        A(f"    buffer_load_dwordx4 v[{dst}:{dst+3}], v7, s[{S_WS}:{S_WS+3}], s{S_T0} offen")
        A(f"    buffer_load_dwordx4 v[{dst+4}:{dst+7}], v7, s[{S_WS}:{S_WS+3}], s{S_T0} offen offset:1024")
    b_reads(0)
    A("    s_waitcnt vmcnt(32)")
    for ks in range(32):
        if ks + 1 < 32:
            b_reads(ks + 1)
        s = ks >> 3; k = ks & 7
        wbase = [V_W0, V_SCR, V_ACC, V_W0][s] + 8 * k
        if s == 1:
            A(f"    s_waitcnt vmcnt({46-2*k}) lgkmcnt(3)")
        elif s == 2:
            A(f"    s_waitcnt vmcnt({30-2*k}) lgkmcnt(3)")
        elif s == 3:
            A(f"    s_waitcnt vmcnt({14-2*k}) lgkmcnt({3 if ks < 31 else 0})")
        else:
            A(f"    s_waitcnt lgkmcnt(3)")
        st = BR + 12 * (ks & 1)
        for T in range(3):
            for t in range(2):
                a = V_ACC2 + 4 * (2 * T + t)
                A(f"    v_mfma_f32_16x16x32_bf16 v[{a}:{a+3}], v[{wbase+4*t}:{wbase+4*t+3}], v[{st+4*T}:{st+4*T+3}], v[{a}:{a+3}]")
        if s == 0:
            w_load2(24 + k, V_W0 + 8 * k)
    A("    s_nop 7")
    for T in range(3):
        a0 = V_ACC2 + 4 * (2 * T); a1 = a0 + 4
        st = 12 + 4 * T
        A(f"    v_cvt_pk_bf16_f32 v{st}, v{a0}, v{a0+1}")
        A(f"    v_cvt_pk_bf16_f32 v{st+1}, v{a0+2}, v{a0+3}")
        A(f"    v_cvt_pk_bf16_f32 v{st+2}, v{a1}, v{a1+1}")
        A(f"    v_cvt_pk_bf16_f32 v{st+3}, v{a1+2}, v{a1+3}")
        A(f"    buffer_store_dwordx4 v[{st}:{st+3}], v{8+T}, s[{S_OUT}:{S_OUT+3}], 0 offen")
    A("    s_endpgm")

    A.label("MAIN_SLOW")
    gen_slow(A, emit_finb, emit_fina)
    A.label("MAIN_END")
    A("    s_endpgm")


def gen_slow(A, emit_finb, emit_fina):
    S_GRP = 62; S_POS = 63; S_CNT = 64; S_LO = 65; S_HIB = 66; S_BASE = 67
    A("    s_waitcnt vmcnt(0)")
    A(f"    s_mul_i32 s{S_BASE}, s2, {TILE}")
    A(f"    s_mov_b32 s{S_GRP}, 0")
    A(f"    s_mov_b32 s{S_M0}, s{S_REG}")
    A(f"    v_lshlrev_b32 v48, 2, v{V_L}              ; lane*4")
    A.label("SLOW_GROUP")
    A(f"    s_add_u32 s{S_LO}, s{S_W}, 32")
    A(f"    s_add_u32 s{S_HIB}, s{S_LO}, 1")
    A(f"    s_cmp_eq_u32 s{S_GRP}, 0")
    A("    s_cbranch_scc1 SLOW_RANGE")
    A(f"    s_lshl_b32 s{S_LO}, s{S_W}, 2")
    A(f"    s_add_u32 s{S_HIB}, s{S_LO}, 4")
    A.label("SLOW_RANGE")
    A(f"    s_mov_b32 s{S_POS}, 0")
    A.label("SLOW_REFILL")
    A(f"    v_mov_b32 v49, {hex(SENT_LIST)}")
    A(f"    v_add_u32 v50, s{S_ABASE}, v48")
    A(f"    ds_write_b32 v50, v49")
    A(f"    ds_write_b32 v50, v49 offset:256")
    A(f"    s_mov_b32 s{S_CNT}, 0")
    A.label("SLOW_SCAN")
    A(f"    s_cmp_ge_u32 s{S_POS}, {E*4}")
    A("    s_cbranch_scc1 SLOW_FLUSH")
    A(f"    s_cmp_gt_u32 s{S_CNT}, 64")
    A("    s_cbranch_scc1 SLOW_FLUSH")
    A(f"    buffer_load_dword v50, v48, s[{S_DST}:{S_DST+3}], s{S_POS} offen")
    A(f"    buffer_load_dword v51, v48, s[{S_SRC}:{S_SRC+3}], s{S_POS} offen")
    A(f"    s_add_u32 s{S_POS}, s{S_POS}, 256")
    A("    s_waitcnt vmcnt(0)")
    A(f"    v_subrev_u32 v50, s{S_BASE}, v50")
    A(f"    v_cmp_le_u32 s[68:69], s{S_LO}, v50")
    A(f"    v_cmp_gt_u32 vcc, s{S_HIB}, v50")
    A(f"    s_and_b64 vcc, vcc, s[68:69]")
    A(f"    v_lshl_or_b32 v51, v51, 9, v50")
    A(f"    s_nop 0")
    A(f"    v_mbcnt_lo_u32_b32 v52, vcc_lo, 0")
    A(f"    v_mbcnt_hi_u32_b32 v52, vcc_hi, v52")
    A(f"    v_add_u32 v52, s{S_CNT}, v52")
    A(f"    v_lshlrev_b32 v52, 2, v52")
    A(f"    v_add_u32 v52, s{S_ABASE}, v52")
    A(f"    s_bcnt1_i32_b64 s{S_T0}, vcc")
    A(f"    s_add_u32 s{S_CNT}, s{S_CNT}, s{S_T0}")
    A(f"    s_and_saveexec_b64 s[{S_EX}:{S_EX+1}], vcc")
    A(f"    ds_write_b32 v52, v51")
    A(f"    s_mov_b64 exec, s[{S_EX}:{S_EX+1}]")
    A("    s_branch SLOW_SCAN")
    A.label("SLOW_FLUSH")
    A(f"    s_add_u32 s{S_NU}, s{S_CNT}, 15")
    A(f"    s_lshr_b32 s{S_NU}, s{S_NU}, 4")
    A(f"    s_mov_b32 s{S_P}, 0")
    A(f"    s_mov_b32 s{S_PTR}, s{S_ABASE}")
    A("    s_waitcnt lgkmcnt(0)")
    A.label("SLOW_UNIT")
    A(f"    s_cmp_ge_u32 s{S_P}, s{S_NU}")
    A("    s_cbranch_scc1 SLOW_UNITS_DONE")
    A(f"    v_add_u32 v{V_TMP2}, s{S_PTR}, v{V_H4}")
    emit_dma_entry_reads(A, V_TMP2)
    A("    s_waitcnt lgkmcnt(0)")
    emit_dma_issue(A)
    A(f"    s_mov_b32 s{S_P2}, s{S_PTR}")
    A("    s_waitcnt vmcnt(0)")
    emit_unit_front(A)
    for ft in range(16):
        agg_mfma(A, ft)
    A(f"    s_add_u32 s{S_P}, s{S_P}, 1")
    A(f"    s_add_u32 s{S_PTR}, s{S_PTR}, 64")
    A("    s_branch SLOW_UNIT")
    A.label("SLOW_UNITS_DONE")
    A(f"    s_cmp_lt_u32 s{S_POS}, {E*4}")
    A("    s_cbranch_scc1 SLOW_REFILL")
    A(f"    s_cmp_eq_u32 s{S_GRP}, 1")
    A("    s_cbranch_scc1 MAIN_DONE")
    emit_finb(A)
    A(f"    s_mov_b32 s{S_GRP}, 1")
    A("    s_branch SLOW_GROUP")


def kd(name, vgpr, sgpr):
    return f""".amdhsa_kernel {name}
  .amdhsa_next_free_vgpr {vgpr}
  .amdhsa_next_free_sgpr {sgpr}
  .amdhsa_accum_offset {((vgpr+3)//4)*4}
  .amdhsa_group_segment_fixed_size 0
  .amdhsa_kernarg_size 72
  .amdhsa_user_sgpr_count 2
  .amdhsa_user_sgpr_kernarg_segment_ptr 1
  .amdhsa_system_sgpr_workgroup_id_x 1
  .amdhsa_float_denorm_mode_32 3
.end_amdhsa_kernel
"""


HEADER = """; Kernarg layout for this problem (72 bytes, ptrs only, base s[0:1]):
"""


def main():
    ap = argparse.ArgumentParser()
    ap.add_argument("-o", default="gather_scatter__graph_attention_gat__graph.s")
    opt = ap.parse_args()
    A = Asm()
    A(HEADER.rstrip("\n"))
    A("; @launch kernel=gat_prep_kernel grid=(96,1,1) block=(640,1,1) lds=43520")
    A(f"; @launch kernel=gather_scatter__graph_attention_gat__graph_kernel grid=({NT},1,1) block=(512,1,1) lds={LDS_MAIN}")
    A('.amdgcn_target "amdgcn-amd-amdhsa--gfx950"')
    A(".text")
    gen_prep(A, opt)
    gen_main(A, opt)
    A('.section .rodata,"a"')
    A(".p2align 6")
    A(kd("gat_prep_kernel", 128, 48))
    A(".p2align 6")
    A(kd("gather_scatter__graph_attention_gat__graph_kernel", 256, 96))
    open(opt.o, "w").write(A.text())
    print("wrote", opt.o, len(A.lines), "lines")


if __name__ == "__main__":
    main()
```

```python
import sys, argparse

N = 10000; E = 160000; TILE = 40; NT = 250; G = 64; CH = 2500
WS_SLOTS = 0
WS_WF = 0x200000
WS_V = 0x280000
WS_BYTES = 0x281000
WS_STAMP = 0x300000
REGSZ = 17408; UNIT = 8704; PAIR = 1088; RROW = 2080
AGG1 = 8 * REGSZ
LISTS = AGG1 + 8 * RROW
LSZ = 704
TBUF = LISTS + 8 * LSZ
CNT = TBUF + 768
OVF = CNT + 64
LDS_MAIN = CNT + 128
CAPA = 128; CAPB = 48
SENT_LIST = 0x7FFFFE3F
LOG2E = 0x3FB8AA3B


class Asm:
    def __init__(self):
        self.lines = []
    def __call__(self, s=""):
        for l in s.split("\n"):
            self.lines.append(l)
    def label(self, n):
        self.lines.append(n + ":")
    def text(self):
        return "\n".join(self.lines) + "\n"


def vr(a, n=1):
    return f"v{a}" if n == 1 else f"v[{a}:{a+n-1}]"
def sr(a, n=1):
    return f"s{a}" if n == 1 else f"s[{a}:{a+n-1}]"


STAMPS = False
USTAMPS = False
_ul = [0]
def stamp(A, i):
    if STAMPS and not USTAMPS:
        A(f"    s_memrealtime s[{82+2*i}:{83+2*i}]")
def ustamp(A, p, i):
    if STAMPS and USTAMPS:
        _ul[0] += 1
        A(f"    s_cmp_eq_u32 s{S_P}, {p}")
        A(f"    s_cbranch_scc0 US_{_ul[0]}")
        A(f"    s_memtime s[{82+2*i}:{83+2*i}]")
        A.label(f"US_{_ul[0]}")
def ustamp0(A, i):
    if STAMPS and USTAMPS:
        A(f"    s_memtime s[{82+2*i}:{83+2*i}]")
def stamp_flush(A, wsbase, area, nwaves_shift, tidreg="v0"):
    if not STAMPS:
        return
    A("    s_waitcnt lgkmcnt(0)")
    A(f"    s_mov_b32 s76, s{wsbase}\n    s_mov_b32 s77, s{wsbase+1}\n    s_mov_b32 s78, 0x400000\n    s_mov_b32 s79, 0x00020000")
    A(f"    s_lshl_b32 s80, s2, 4")
    A(f"    s_add_u32 s80, s80, s100")
    A(f"    s_lshl_b32 s80, s80, 6")
    A(f"    s_add_u32 s80, s80, {WS_STAMP+area}")
    A("    s_mov_b64 exec, 1")
    A("    v_mov_b32 v1, 0")
    for i in range(9):
        A(f"    v_mov_b32 v2, s{82+2*i}")
        A(f"    buffer_store_dword v2, v1, s[76:79], s80 offen offset:{4*i}")
        A("    s_nop 1")


def srd(A, d, base, nbytes):
    A(f"    s_mov_b32 s{d}, s{base}")
    A(f"    s_mov_b32 s{d+1}, s{base+1}")
    A(f"    s_mov_b32 s{d+2}, {nbytes}")
    A(f"    s_mov_b32 s{d+3}, 0x00020000")


def gen_prep(A, opt):
    K = "gat_prep_kernel"
    A(f".globl {K}\n.p2align 8\n.type {K},@function\n{K}:")
    A("    s_cmp_ge_u32 s2, 96")
    A("    s_cbranch_scc1 PREP_END")
    stamp(A, 0)
    if STAMPS:
        A("    v_lshrrev_b32 v1, 6, v0\n    s_nop 1\n    v_readfirstlane_b32 s100, v1")
    A("    s_load_dwordx4 s[4:7], s[0:1], 8")
    A("    s_load_dwordx2 s[8:9], s[0:1], 24       ; w")
    A("    s_load_dwordx4 s[12:15], s[0:1], 32")
    A("    s_load_dwordx2 s[10:11], s[0:1], 64     ; ws")
    A("    s_cmp_ge_u32 s2, 64")
    A("    s_cbranch_scc1 PREP_W")
    A("    ; ---- edge bucketing: chunk s2 of 2500 edges -> slots[tile][chunk][32]")
    A("    v_lshlrev_b32 v1, 4, v0")
    for i in range(4):
        A(f"    v_mov_b32 v{4+i}, -1")
    A("    v_lshlrev_b32 v2, 2, v0")
    A("    v_mov_b32 v3, 0")
    for r in range(4):
        A(f"    ds_write_b128 v1, v[4:7] offset:{10240*r}")
    A("    ds_write_b32 v2, v3 offset:40960")
    A("    s_mul_i32 s28, s2, 10000")
    A("    v_add_u32 v2, s28, v1")
    A("    s_waitcnt lgkmcnt(0)")
    stamp(A, 1)
    srd(A, 16, 4, E * 4)
    srd(A, 20, 6, E * 4)
    srd(A, 24, 10, WS_BYTES)
    A("    buffer_load_dwordx4 v[8:11], v2, s[20:23], 0 offen      ; dst")
    A("    buffer_load_dwordx4 v[12:15], v2, s[16:19], 0 offen     ; src")
    A("    s_barrier")
    A("    v_cmp_gt_u32 vcc, 625, v0")
    A("    s_mov_b32 s29, 52429")
    A("    v_mov_b32 v3, 1")
    A("    v_mov_b32 v28, 32000")
    A("    s_and_saveexec_b64 s[30:31], vcc")
    A("    s_waitcnt vmcnt(0)")
    stamp(A, 2)
    for i in range(4):
        A(f"    v_mul_u32_u24 v{16+i}, s29, v{8+i}")
        A(f"    v_lshrrev_b32 v{16+i}, 21, v{16+i}       ; tile")
        A(f"    v_mul_u32_u24 v4, 40, v{16+i}")
        A(f"    v_sub_u32 v4, v{8+i}, v4")
        A(f"    v_lshl_or_b32 v{12+i}, v{12+i}, 9, v4    ; entry")
        A(f"    v_lshlrev_b32 v{20+i}, 2, v{16+i}")
        A(f"    ds_add_rtn_u32 v{24+i}, v{20+i}, v3 offset:40960")
    A("    s_waitcnt lgkmcnt(0)")
    for i in range(4):
        A(f"    v_lshlrev_b32 v4, 7, v{16+i}")
        A(f"    v_cmp_gt_u32 vcc, 32, v{24+i}")
        A(f"    v_lshl_add_u32 v4, v{24+i}, 2, v4")
        A(f"    s_nop 0")
        A(f"    v_cndmask_b32 v4, v28, v4, vcc")
        A(f"    ds_write_b32 v4, v{12+i}")
    A("    s_mov_b64 exec, s[30:31]")
    A("    s_waitcnt lgkmcnt(0)")
    A("    s_barrier")
    stamp(A, 3)
    A("    s_lshl_b32 s28, s2, 7                    ; chunk*128")
    A("    v_and_b32 v2, 7, v0                      ; part (640 % 8 == 0)")
    A("    v_lshrrev_b32 v3, 3, v0")
    A("    v_lshlrev_b32 v29, 2, v3")
    for r in range(4):
        A(f"    ds_read_b128 v[{8+4*r}:{11+4*r}], v1 offset:{10240*r}")
        A(f"    ds_read_b32 v{24+r}, v29 offset:{40960 + 320*r}")
    A("    v_lshlrev_b32 v4, 4, v2")
    A("    v_lshl_add_u32 v4, v3, 13, v4")
    A("    v_add_u32 v4, s28, v4")
    A("    v_cmp_eq_u32 s[32:33], 7, v2")
    A("    v_cmp_gt_u32 vcc, 80, v0")
    A("    s_mov_b64 s[34:35], vcc")
    A("    v_mov_b32 v5, 0x7ffffff0")
    A("    v_mov_b32 v6, -2")
    A("    s_waitcnt lgkmcnt(0)")
    for r in range(4):
        A(f"    v_cmp_lt_u32 vcc, 32, v{24+r}")
        A(f"    s_and_b64 vcc, vcc, s[32:33]")
        if r < 3:
            A(f"    v_add_u32 v7, {80*8192*r}, v4")
        else:
            A(f"    v_add_u32 v7, {80*8192*r}, v4")
            A(f"    v_cndmask_b32 v7, v5, v7, s[34:35]")
        A(f"    s_nop 0")
        A(f"    v_cndmask_b32 v{11+4*r}, v{11+4*r}, v6, vcc")
        A(f"    buffer_store_dwordx4 v[{8+4*r}:{11+4*r}], v7, s[24:27], 0 offen")
    stamp(A, 4)
    if STAMPS:
        A("    s_waitcnt vmcnt(0)")
    stamp(A, 5)
    stamp_flush(A, 10, 0x40000, 0)
    A("    s_endpgm")
    A.label("PREP_W")
    A("    s_sub_u32 s28, s2, 64                    ; ks")
    A("    v_lshrrev_b32 v1, 6, v0")
    A("    s_waitcnt lgkmcnt(0)")
    stamp(A, 1)
    A("    v_readfirstlane_b32 s29, v1              ; wave")
    srd(A, 16, 8, 524288)
    srd(A, 24, 10, WS_BYTES)
    srd(A, 20, 12, 2048)
    srd(A, 32, 14, 2048)
    A("    s_cmp_ge_u32 s29, 8")
    A("    s_cbranch_scc1 PREP_V")
    A("    s_lshl_b32 s30, s28, 14                  ; ks*16384 = h*131072 + u*16384")
    A("    v_lshrrev_b32 v1, 7, v0                  ; g")
    A("    v_and_b32 v2, 127, v0                    ; fp")
    A("    v_lshlrev_b32 v3, 11, v1")
    A("    v_lshl_add_u32 v3, v2, 2, v3             ; g*2048 + fp*4")
    A("    v_add_u32 v4, 8192, v3")
    for j in range(4):
        A(f"    buffer_load_dword v{8+j}, v3, s[16:19], s30 offen offset:{512*j}")
    for j in range(4):
        A(f"    buffer_load_dword v{12+j}, v4, s[16:19], s30 offen offset:{512*j}")
    A("    v_lshrrev_b32 v5, 4, v2")
    A("    v_lshlrev_b32 v5, 16, v5")
    A("    v_bfe_u32 v6, v2, 1, 1")
    A("    v_lshl_add_u32 v5, v6, 10, v5")
    A("    v_lshl_add_u32 v5, v1, 8, v5             ; 16g*16")
    A("    v_bfe_u32 v6, v2, 2, 2")
    A("    v_lshl_add_u32 v5, v6, 6, v5             ; 4*gi*16")
    A("    v_and_b32 v6, 1, v2")
    A("    v_lshl_add_u32 v5, v6, 5, v5             ; 2*(fp&1)*16")
    A("    s_lshl_b32 s31, s28, 11")
    A(f"    s_add_u32 s31, s31, {WS_WF}")
    A("    s_mov_b32 s36, 0x05040100")
    A("    s_mov_b32 s37, 0x07060302")
    A("    s_waitcnt vmcnt(0)")
    stamp(A, 2)
    for i in range(4):
        A(f"    v_perm_b32 v{16+i}, v{9+2*i}, v{8+2*i}, s36")
        A(f"    v_perm_b32 v{20+i}, v{9+2*i}, v{8+2*i}, s37")
    A("    buffer_store_dwordx4 v[16:19], v5, s[24:27], s31 offen")
    A("    buffer_store_dwordx4 v[20:23], v5, s[24:27], s31 offen offset:16")
    stamp(A, 4)
    if STAMPS:
        A("    s_waitcnt vmcnt(0)")
    stamp(A, 5)
    stamp_flush(A, 10, 0x40000, 0)
    A("    s_endpgm")
    A.label("PREP_V")
    A("    s_lshl_b32 s30, s28, 1")
    A("    s_add_u32 s30, s30, s29")
    A("    s_sub_u32 s30, s30, 8")
    A("    s_lshr_b32 s31, s30, 4                   ; h")
    A("    v_and_b32 v1, 63, v0")
    A("    v_and_b32 v2, 15, v1                     ; i / c")
    A("    v_lshrrev_b32 v3, 4, v1                  ; g")
    A("    v_lshlrev_b32 v4, 9, v2")
    A("    v_lshl_add_u32 v4, v3, 4, v4             ; i*512 + g*16")
    A("    s_lshl_b32 s36, s30, 13")
    A("    v_lshlrev_b32 v5, 4, v3                  ; g*16")
    A("    s_lshl_b32 s37, s31, 9                   ; h*512")
    for kk in range(8):
        A(f"    buffer_load_dwordx4 v[{8+4*kk}:{11+4*kk}], v4, s[16:19], s36 offen offset:{64*kk}")
    for kk in range(8):
        A(f"    buffer_load_dwordx4 v[{40+4*kk}:{43+4*kk}], v5, s[20:23], s37 offen offset:{64*kk}")
    for kk in range(8):
        A(f"    buffer_load_dwordx4 v[{72+4*kk}:{75+4*kk}], v5, s[32:35], s37 offen offset:{64*kk}")
    A("    s_waitcnt vmcnt(8)")
    for kk in range(8):
        c = "0" if kk == 0 else "v[104:107]"
        A(f"    v_mfma_f32_16x16x32_bf16 v[104:107], v[{8+4*kk}:{11+4*kk}], v[{40+4*kk}:{43+4*kk}], {c}")
    A("    s_waitcnt vmcnt(0)")
    for kk in range(8):
        c = "0" if kk == 0 else "v[108:111]"
        A(f"    v_mfma_f32_16x16x32_bf16 v[108:111], v[{8+4*kk}:{11+4*kk}], v[{72+4*kk}:{75+4*kk}], {c}")
    A("    s_lshl_b32 s36, s30, 5")
    A(f"    s_add_u32 s36, s36, {WS_V}")
    A("    v_lshlrev_b32 v6, 3, v3")
    A("    v_cmp_eq_u32 vcc, 0, v2")
    A(f"    s_mov_b32 s38, {LOG2E}")
    A("    s_nop 7")
    for r in range(8):
        A(f"    v_mul_f32 v{104+r}, s38, v{104+r}")
    A("    v_cvt_pk_bf16_f32 v112, v104, v105")
    A("    v_cvt_pk_bf16_f32 v113, v106, v107")
    A("    v_cvt_pk_bf16_f32 v114, v108, v109")
    A("    v_cvt_pk_bf16_f32 v115, v110, v111")
    A("    s_and_saveexec_b64 s[40:41], vcc")
    A("    buffer_store_dwordx2 v[112:113], v6, s[24:27], s36 offen")
    A("    buffer_store_dwordx2 v[114:115], v6, s[24:27], s36 offen offset:2048")
    stamp(A, 4)
    if STAMPS:
        A("    s_waitcnt vmcnt(0)")
    stamp(A, 5)
    stamp_flush(A, 10, 0x40000, 0)
    A.label("PREP_END")
    A("    s_endpgm")


V_TID = 0; V_DMAC = 1; V_SADDR = 2; V_TE = 3; V_TO = 4; V_G16 = 5; V_H4 = 6; V_TGT = 7; V_T = 8
V_TGTA = 9; V_TA = 10; V_TMP = 11; V_PT = 12; V_ONES = 14; V_E = 16; V_D = 20; V_S = 28; V_DEN = 32
V_X = 36; V_C = 40; V_G = 41; V_L = 42; V_TMP2 = 43; V_TMP3 = 44; V_WOFF = 45
V_SCR = 64; V_V = 96; V_ACC = 128; V_W0 = 192
V_ACC2 = 40
S_X = 4; S_WS = 8; S_OUT = 12; S_SRC = 16; S_DST = 20
S_W = 24; S_TILE = 2; S_NA = 25; S_NB = 26; S_NU = 27; S_P = 28; S_PTR = 29; S_M0 = 30; S_DELTA = 31
S_MSK = 32
S_HI = 40
S_T0 = 41; S_T1 = 42; S_T2 = 43; S_ABASE = 44; S_REG = 45; S_P2 = 46; S_EX = 48
S_C02 = 50


def emit_dma_issue(A, interleave=None):
    for q in range(8):
        A(f"    v_and_or_b32 v{V_D+q}, v{V_D+q}, s{S_HI}, v{V_DMAC}")
        if q == 0:
            A(f"    s_mov_b32 m0, s{S_M0}")
        else:
            A(f"    s_add_u32 m0, s{S_M0}, {PAIR*q}")
        if interleave:
            interleave(q)
        else:
            A("    s_nop 0")
        A(f"    buffer_load_dwordx4 v{V_D+q}, s[{S_X}:{S_X+3}], 0 offen lds")


def emit_dma_entry_reads(A, addr_v):
    for i in range(4):
        A(f"    ds_read2_b32 v[{V_D+2*i}:{V_D+2*i+1}], v{addr_v} offset0:{4*i} offset1:{4*i+2}")


def emit_unit_front(A):
    A(f"    v_add_u32 v{V_TMP}, s{S_PTR}, v{V_G16}")
    A(f"    v_add_u32 v{V_TMP2}, s{S_P2}, v{V_H4}")
    A(f"    ds_read_b128 v[{V_E}:{V_E+3}], v{V_TMP}")
    emit_dma_entry_reads(A, V_TMP2)
    for kk in range(8):
        A(f"    ds_read_b128 v[{V_SCR+4*kk}:{V_SCR+4*kk+3}], v{V_SADDR} offset:{64*kk}")
    for kk in range(8):
        A(f"    s_waitcnt lgkmcnt({7+kk})")
        c = "0" if kk == 0 else f"v[{V_S}:{V_S+3}]"
        A(f"    v_mfma_f32_16x16x32_bf16 v[{V_S}:{V_S+3}], v[{V_SCR+4*kk}:{V_SCR+4*kk+3}], v[{V_V+4*kk}:{V_V+4*kk+3}], {c}")
        A(f"    ds_read_b64_tr_b16 v[{V_SCR+4*kk}:{V_SCR+4*kk+1}], v{V_TE} offset:{64*kk}")
        A(f"    ds_read_b64_tr_b16 v[{V_SCR+4*kk+2}:{V_SCR+4*kk+3}], v{V_TO} offset:{64*kk+32}")
    for r in range(4):
        A(f"    v_cmp_eq_u32_sdwa s[{S_MSK+2*r}:{S_MSK+2*r+1}], v{V_E+r}, v{V_TGT} src0_sel:BYTE_0 src1_sel:DWORD")
    A("    s_nop 3")
    for r in range(4):
        A(f"    v_add_f32 v{V_X+r}, v{V_S+r}, v{V_T}")
    for r in range(4):
        A(f"    v_mul_f32 v{V_E+r}, s{S_C02}, v{V_X+r}")
    for r in range(4):
        A(f"    v_max_f32 v{V_X+r}, v{V_X+r}, v{V_E+r}")
    for r in range(4):
        A(f"    v_exp_f32 v{V_X+r}, v{V_X+r}")
    for r in range(4):
        A(f"    v_cndmask_b32 v{V_X+r}, 0, v{V_X+r}, s[{S_MSK+2*r}:{S_MSK+2*r+1}]")
    A(f"    v_cvt_pk_bf16_f32 v{V_PT}, v{V_X}, v{V_X+1}")
    A(f"    v_cvt_pk_bf16_f32 v{V_PT+1}, v{V_X+2}, v{V_X+3}")
    A("    s_waitcnt lgkmcnt(0)")
    A("    s_nop 0")
    A(f"    v_mfma_f32_16x16x16_bf16 v[{V_DEN}:{V_DEN+3}], v[{V_ONES}:{V_ONES+1}], v[{V_PT}:{V_PT+1}], v[{V_DEN}:{V_DEN+3}]")


def agg_mfma(A, ft):
    A(f"    v_mfma_f32_16x16x16_bf16 v[{V_ACC+4*ft}:{V_ACC+4*ft+3}], v[{V_SCR+2*ft}:{V_SCR+2*ft+1}], v[{V_PT}:{V_PT+1}], v[{V_ACC+4*ft}:{V_ACC+4*ft+3}]")


def emit_finalize(A, stage, addr_e, addr_o, after_pair=None):
    A("    s_nop 7")
    A(f"    v_add_f32 v{V_TMP}, 0x3089705f, v{V_DEN}        ; + 1e-9")
    A(f"    v_rcp_f32 v{V_TMP}, v{V_TMP}")
    A("    s_nop 0")
    A(f"    v_mul_f32 v{V_TMP}, 0x3e800000, v{V_TMP}")
    for u in range(8):
        for half in range(2):
            ft = 2 * u + half
            a = V_ACC + 4 * ft
            for r in range(4):
                A(f"    v_mul_f32 v{a+r}, v{V_TMP}, v{a+r}")
            sq = stage + 4 * (u & 3)
            A(f"    v_cvt_pk_bf16_f32 v{sq+2*half}, v{a}, v{a+1}")
            A(f"    v_cvt_pk_bf16_f32 v{sq+2*half+1}, v{a+2}, v{a+3}")
        ad = addr_e if u % 2 == 0 else addr_o
        A(f"    ds_write_b128 v{ad}, v[{sq}:{sq+3}] offset:{64*u}")
        if after_pair:
            after_pair(u)


def w_load(A, ks, dst):
    A(f"    s_mov_b32 s{S_T0}, {WS_WF + ks*2048}")
    A(f"    buffer_load_dwordx4 v[{dst}:{dst+3}], v{V_WOFF}, s[{S_WS}:{S_WS+3}], s{S_T0} offen")
    A(f"    buffer_load_dwordx4 v[{dst+4}:{dst+7}], v{V_WOFF}, s[{S_WS}:{S_WS+3}], s{S_T0} offen offset:1024")


def gen_main(A, opt):
    K = "gather_scatter__graph_attention_gat__graph_kernel"
    VLDS = AGG1
    A(f".globl {K}\n.p2align 8\n.type {K},@function\n{K}:")
    A(f"    s_cmp_ge_u32 s2, {NT}")
    A("    s_cbranch_scc1 MAIN_END")
    stamp(A, 0)
    A("    s_load_dwordx2 s[52:53], s[0:1], 0       ; x")
    A("    s_load_dwordx2 s[60:61], s[0:1], 64      ; ws")
    A("    s_load_dwordx2 s[54:55], s[0:1], 48      ; out")
    A("    s_load_dwordx4 s[56:59], s[0:1], 8")
    A(f"    v_and_b32 v{V_L}, 63, v0")
    A(f"    v_lshrrev_b32 v{V_TMP}, 6, v0")
    A(f"    v_and_b32 v{V_C}, 15, v{V_L}")
    A(f"    v_readfirstlane_b32 s{S_W}, v{V_TMP}")
    A(f"    v_lshrrev_b32 v{V_G}, 4, v{V_L}")
    A(f"    v_lshlrev_b32 v20, 4, v0                 ; tid*16")
    A(f"    v_and_b32 v{V_TMP}, 31, v{V_L}")
    A(f"    v_lshlrev_b32 v{V_TMP}, 4, v{V_TMP}")
    A(f"    v_lshrrev_b32 v{V_TMP2}, 5, v{V_L}")
    A(f"    v_lshlrev_b32 v{V_H4}, 2, v{V_TMP2}")
    A(f"    v_lshlrev_b32 v21, 9, v{V_TMP2}          ; hi*512")
    A(f"    v_lshlrev_b32 v{V_TMP2}, 5, v{V_TMP2}")
    A(f"    v_xor_b32 v{V_DMAC}, v{V_TMP}, v{V_TMP2}")
    A(f"    v_add_u32 v21, v21, v{V_DMAC}")
    A(f"    v_lshlrev_b32 v{V_WOFF}, 4, v{V_L}       ; lane*16")
    A(f"    s_mul_i32 s{S_REG}, s{S_W}, {REGSZ}")
    A("    s_waitcnt lgkmcnt(0)")
    stamp(A, 1)
    if STAMPS:
        A(f"    s_mov_b32 s100, s{S_W}")
    srd(A, S_WS, 60, WS_BYTES)
    srd(A, S_X, 52, N * 512)
    A(f"    s_lshl_b32 s{S_T0}, s2, 13")
    A(f"    buffer_load_dwordx4 v[16:19], v20, s[{S_WS}:{S_WS+3}], s{S_T0} offen")
    A(f"    s_cmp_ge_u32 s{S_W}, 4")
    A("    s_cbranch_scc1 MAIN_NOV")
    A(f"    s_lshl_b32 s{S_T0}, s{S_W}, 10")
    A(f"    s_add_u32 s{S_T0}, s{S_T0}, {WS_V}")
    A(f"    buffer_load_dwordx4 v[24:27], v{V_WOFF}, s[{S_WS}:{S_WS+3}], s{S_T0} offen")
    A("    s_branch MAIN_NOT")
    A.label("MAIN_NOV")
    A(f"    s_cmp_lt_u32 s{S_W}, 5")
    A("    s_cbranch_scc1 MAIN_NOT")
    A(f"    s_mul_i32 s{S_T0}, s2, {TILE*512}")
    A(f"    s_sub_u32 s{S_T2}, s{S_W}, 5")
    A(f"    s_lshl_b32 s{S_T2}, s{S_T2}, 13           ; 16 rows * 512")
    A(f"    s_add_u32 s{S_T0}, s{S_T0}, s{S_T2}")
    for q in range(8):
        A(f"    s_add_u32 m0, s{S_REG}, {PAIR*q}")
        A(f"    s_add_u32 s{S_T1}, s{S_T0}, {1024*q}")
        A(f"    buffer_load_dwordx4 v21, s[{S_X}:{S_X+3}], s{S_T1} offen lds")
    A.label("MAIN_NOT")
    NTOUCH = 0
    if opt.touch:
        NTOUCH = 2
        A(f"    s_lshr_b32 s{S_T0}, s2, 3")
        A(f"    s_and_b32 s{S_T0}, s{S_T0}, 31")
        A(f"    s_lshl_b32 s{S_T0}, s{S_T0}, 14")
        A(f"    s_lshl_b32 s{S_T1}, s{S_W}, 11")
        A(f"    s_add_u32 s{S_T0}, s{S_T0}, s{S_T1}")
        A(f"    s_add_u32 s{S_T0}, s{S_T0}, {WS_WF}")
        A(f"    buffer_load_dwordx4 v[48:51], v{V_WOFF}, s[{S_WS}:{S_WS+3}], s{S_T0} offen")
        A(f"    buffer_load_dwordx4 v[52:55], v{V_WOFF}, s[{S_WS}:{S_WS+3}], s{S_T0} offen offset:1024")
    A(f"    s_lshl_b32 s{S_T0}, s{S_W}, 16")
    A(f"    v_add_u32 v{V_WOFF}, s{S_T0}, v{V_WOFF}")
    NW0 = 0
    if opt.wpos == "A":
        for ks in range(8):
            w_load(A, ks, V_W0 + 8 * ks)
        NW0 = 16
    srd(A, S_OUT, 54, N * 512)
    srd(A, S_SRC, 56, E * 4)
    srd(A, S_DST, 58, E * 4)
    A(f"    v_mov_b32 v28, {hex(SENT_LIST)}")
    A(f"    v_mov_b32 v29, v28\n    v_mov_b32 v30, v28\n    v_mov_b32 v31, v28")
    A(f"    v_add_u32 v22, {LISTS}, v20")
    A(f"    v_cmp_gt_u32 vcc, 352, v0")
    A(f"    v_mov_b32 v32, 0")
    A(f"    v_lshlrev_b32 v23, 2, v0")
    A(f"    v_add_u32 v23, {CNT}, v23")
    A(f"    s_and_saveexec_b64 s[{S_EX}:{S_EX+1}], vcc")
    A(f"    s_cbranch_execz MAIN_NOCNT")
    A(f"    ds_write_b128 v22, v[28:31]")
    A(f"    v_cmp_gt_u32 vcc, 32, v0")
    A(f"    s_and_b64 exec, exec, vcc")
    A(f"    s_cbranch_execz MAIN_NOCNT")
    A(f"    ds_write_b32 v23, v32")
    A.label("MAIN_NOCNT")
    A(f"    s_mov_b64 exec, s[{S_EX}:{S_EX+1}]")
    A(f"    v_lshlrev_b32 v{V_G16}, 4, v{V_G}")
    A(f"    v_lshrrev_b32 v{V_TMP}, 1, v{V_C}")
    A(f"    v_mul_u32_u24 v{V_SADDR}, {PAIR}, v{V_TMP}")
    A(f"    v_and_b32 v{V_TMP}, 1, v{V_C}")
    A(f"    v_lshl_add_u32 v{V_SADDR}, v{V_TMP}, 9, v{V_SADDR}")
    A(f"    v_lshrrev_b32 v{V_TMP2}, 1, v{V_G}")
    A(f"    v_xor_b32 v{V_TMP}, v{V_TMP}, v{V_TMP2}")
    A(f"    v_lshl_add_u32 v{V_SADDR}, v{V_TMP}, 5, v{V_SADDR}")
    A(f"    v_and_b32 v{V_TMP}, 1, v{V_G}")
    A(f"    v_lshl_add_u32 v{V_SADDR}, v{V_TMP}, 4, v{V_SADDR}")
    A(f"    v_add_u32 v{V_SADDR}, s{S_REG}, v{V_SADDR}")
    A(f"    v_lshrrev_b32 v{V_TMP}, 2, v{V_C}")
    A(f"    v_lshl_add_u32 v{V_TMP}, v{V_G}, 2, v{V_TMP}      ; row")
    A(f"    v_lshrrev_b32 v{V_TMP2}, 1, v{V_TMP}")
    A(f"    v_mul_u32_u24 v{V_TE}, {PAIR}, v{V_TMP2}")
    A(f"    v_and_b32 v{V_TMP}, 1, v{V_TMP}                  ; hi")
    A(f"    v_lshl_add_u32 v{V_TE}, v{V_TMP}, 9, v{V_TE}")
    A(f"    v_and_b32 v{V_TMP2}, 3, v{V_C}")
    A(f"    v_lshl_add_u32 v{V_TE}, v{V_TMP2}, 3, v{V_TE}")
    A(f"    v_add_u32 v{V_TE}, s{S_REG}, v{V_TE}")
    A(f"    v_lshlrev_b32 v{V_TMP}, 5, v{V_TMP}              ; 32*hi")
    A(f"    v_sub_u32 v{V_TO}, v{V_TE}, v{V_TMP}")
    A(f"    v_add_u32 v{V_TE}, v{V_TE}, v{V_TMP}")
    A(f"    v_mov_b32 v{V_ONES}, 0x3f803f80")
    A(f"    v_mov_b32 v{V_ONES+1}, 0x3f803f80")
    A(f"    s_mov_b32 s{S_HI}, 0xfffffe00")
    A(f"    s_mov_b32 s{S_C02}, 0x3e4ccccd")
    A(f"    s_mul_i32 s{S_ABASE}, s{S_W}, {LSZ}")
    A(f"    s_add_u32 s{S_ABASE}, s{S_ABASE}, {LISTS+192}")
    A(f"    v_and_b32 v{V_TMP}, 3, v{V_C}")
    A(f"    v_mul_u32_u24 v{V_TMP3}, 576, v{V_TMP}")
    A(f"    v_lshl_add_u32 v{V_TMP3}, v{V_G}, 4, v{V_TMP3}")
    A(f"    v_add_u32 v{V_TMP3}, {VLDS}, v{V_TMP3}")
    A(f"    v_lshrrev_b32 v{V_TMP}, 5, v{V_L}")
    A(f"    s_lshl_b32 s{S_T0}, s{S_W}, 1")
    A(f"    v_add_u32 v{V_TMP}, s{S_T0}, v{V_TMP}")
    A(f"    v_mul_u32_u24 v22, 576, v{V_TMP}")
    A(f"    v_and_b32 v{V_TMP}, 31, v{V_L}")
    A(f"    v_lshl_add_u32 v22, v{V_TMP}, 4, v22")
    A(f"    v_add_u32 v22, {VLDS}, v22")
    A(f"    s_waitcnt vmcnt({NTOUCH+NW0})")
    stamp(A, 2)
    A(f"    s_cmp_ge_u32 s{S_W}, 4")
    A("    s_cbranch_scc1 MAIN_NOV2")
    A(f"    ds_write_b128 v22, v[24:27]")
    A.label("MAIN_NOV2")
    A("    s_waitcnt lgkmcnt(0)")
    A("    s_barrier")
    for kk in range(8):
        A(f"    ds_read_b128 v[{V_V+4*kk}:{V_V+4*kk+3}], v{V_TMP3} offset:{64*kk}")
    A(f"    s_cmp_lt_u32 s{S_W}, 5")
    A("    s_cbranch_scc1 MAIN_NOT1")
    for kk in range(8):
        A(f"    ds_read_b128 v[{V_ACC+4*kk}:{V_ACC+4*kk+3}], v{V_TMP3} offset:{4*576+64*kk}")
    for kk in range(8):
        A(f"    ds_read_b128 v[{V_SCR+4*kk}:{V_SCR+4*kk+3}], v{V_SADDR} offset:{64*kk}")
    A.label("MAIN_NOT1")
    EN = 16
    NN = 20; WV = 24; RK = 28; BS = 32
    A(f"    v_mov_b32 v36, 1")
    A(f"    s_mov_b64 s[62:63], 0")
    for i in range(4):
        A(f"    v_and_b32 v{NN+i}, 63, v{EN+i}")
        A(f"    v_cmp_eq_u32 vcc, -2, v{EN+i}")
        A(f"    s_or_b64 s[62:63], s[62:63], vcc")
        A(f"    v_cmp_gt_u32 s[{64+2*i}:{65+2*i}], 40, v{NN+i}       ; valid")
        A(f"    v_cmp_le_u32 s[{72+2*i}:{73+2*i}], 32, v{NN+i}       ; group B")
        A(f"    v_lshrrev_b32 v37, 2, v{NN+i}")
        A(f"    v_subrev_u32 v38, 32, v{NN+i}")
        A(f"    v_subrev_u32 v39, 24, v{NN+i}")
        A(f"    v_cndmask_b32 v{WV+i}, v37, v38, s[{72+2*i}:{73+2*i}]")
        A(f"    v_cndmask_b32 v37, v37, v39, s[{72+2*i}:{73+2*i}]")
        A(f"    v_lshlrev_b32 v{BS+i}, 2, v37")
        A(f"    v_add_u32 v{BS+i}, {CNT}, v{BS+i}")
    for i in range(4):
        A(f"    s_mov_b64 exec, s[{64+2*i}:{65+2*i}]")
        A(f"    ds_add_rtn_u32 v{RK+i}, v{BS+i}, v36")
    A("    s_mov_b64 exec, -1")
    A(f"    s_mov_b32 s{S_T0}, {LSZ}")
    A(f"    v_mov_b32 v37, {LISTS+192}")
    for i in range(4):
        A(f"    v_mad_u32_u24 v{BS+i}, v{WV+i}, s{S_T0}, v37")
    A("    s_waitcnt lgkmcnt(0)")
    for i in range(4):
        A(f"    v_lshlrev_b32 v37, 2, v{RK+i}")
        A(f"    v_sub_u32 v38, -4, v37")
        A(f"    v_mov_b32 v39, {CAPA}")
        A(f"    v_cndmask_b32 v37, v37, v38, s[{72+2*i}:{73+2*i}]")
        A(f"    v_cndmask_b32 v39, v39, {CAPB}, s[{72+2*i}:{73+2*i}]")
        A(f"    v_add_u32 v{BS+i}, v{BS+i}, v37")
        A(f"    v_cmp_lt_u32 vcc, v{RK+i}, v39")
        A(f"    s_andn2_b64 s[80:81], s[{64+2*i}:{65+2*i}], vcc")
        A(f"    s_or_b64 s[62:63], s[62:63], s[80:81]")
        A(f"    s_and_b64 exec, s[{64+2*i}:{65+2*i}], vcc")
        A(f"    ds_write_b32 v{BS+i}, v{EN+i}")
        A(f"    s_mov_b64 exec, -1")
    A(f"    s_cmp_eq_u64 s[62:63], 0")
    A(f"    s_cbranch_scc1 MAIN_NOOVF")
    A(f"    v_mov_b32 v37, {OVF}")
    A(f"    ds_write_b32 v37, v36")
    A.label("MAIN_NOOVF")
    A(f"    s_cmp_lt_u32 s{S_W}, 5")
    A("    s_cbranch_scc1 MAIN_NOT2")
    for kk in range(8):
        c = "0" if kk == 0 else f"v[{V_S}:{V_S+3}]"
        A(f"    v_mfma_f32_16x16x32_bf16 v[{V_S}:{V_S+3}], v[{V_SCR+4*kk}:{V_SCR+4*kk+3}], v[{V_ACC+4*kk}:{V_ACC+4*kk+3}], {c}")
    A(f"    s_sub_u32 s{S_T0}, s{S_W}, 5")
    A(f"    s_lshl_b32 s{S_T0}, s{S_T0}, 8")
    A(f"    s_add_u32 s{S_T0}, s{S_T0}, {TBUF}")
    A(f"    v_lshlrev_b32 v37, 6, v{V_G}")
    A(f"    v_lshl_add_u32 v37, v{V_C}, 2, v37")
    A(f"    v_add_u32 v37, s{S_T0}, v37")
    A(f"    v_cmp_gt_u32 vcc, 4, v{V_C}")
    A(f"    s_nop 4")
    A(f"    s_and_saveexec_b64 s[{S_EX}:{S_EX+1}], vcc")
    for r in range(4):
        A(f"    ds_write_b32 v37, v{V_S+r} offset:{16*r}")
    A(f"    s_mov_b64 exec, s[{S_EX}:{S_EX+1}]")
    A.label("MAIN_NOT2")
    A("    s_waitcnt lgkmcnt(0)")
    A("    s_barrier")
    stamp(A, 3)
    A(f"    s_lshl_b32 s{S_T0}, s{S_W}, 2")
    A(f"    s_add_u32 s{S_T0}, s{S_T0}, {CNT}")
    A(f"    v_mov_b32 v16, s{S_T0}")
    A(f"    v_mov_b32 v17, {OVF}")
    A(f"    ds_read_b32 v18, v16                     ; cntA")
    A(f"    ds_read_b32 v19, v16 offset:32           ; cntB")
    A(f"    ds_read_b32 v20, v17")
    A(f"    s_lshl_b32 s{S_T0}, s{S_W}, 6")
    A(f"    s_add_u32 s{S_T0}, s{S_T0}, {TBUF}")
    A(f"    v_lshlrev_b32 v21, 2, v{V_C}")
    A(f"    v_add_u32 v21, s{S_T0}, v21")
    A(f"    ds_read_b32 v{V_TA}, v21")
    A(f"    s_lshl_b32 s{S_T0}, s{S_W}, 4")
    A(f"    s_add_u32 s{S_T0}, s{S_T0}, {TBUF+512}")
    A(f"    v_and_b32 v21, 3, v{V_C}")
    A(f"    v_lshlrev_b32 v21, 2, v21")
    A(f"    v_add_u32 v21, s{S_T0}, v21")
    A(f"    ds_read_b32 v{V_T}, v21")
    A(f"    v_lshrrev_b32 v21, 2, v{V_C}")
    A(f"    s_lshl_b32 s{S_T0}, s{S_W}, 2")
    A(f"    v_add_u32 v{V_TGTA}, s{S_T0}, v21")
    A(f"    s_add_u32 s{S_T0}, s{S_W}, 32")
    A(f"    v_mov_b32 v{V_TGT}, s{S_T0}")
    A("    s_waitcnt lgkmcnt(0)")
    A(f"    v_readfirstlane_b32 s{S_NA}, v18")
    A(f"    v_readfirstlane_b32 s{S_NB}, v19")
    A(f"    v_readfirstlane_b32 s{S_T0}, v20")
    for i in range(4):
        A(f"    v_mov_b32 v{V_DEN+i}, 0")
    A(f"    s_cmp_lg_u32 s{S_T0}, 0")
    A("    s_cbranch_scc1 MAIN_SLOW")
    A(f"    s_add_u32 s{S_NA}, s{S_NA}, 15")
    A(f"    s_lshr_b32 s{S_NA}, s{S_NA}, 4")
    A(f"    s_add_u32 s{S_NB}, s{S_NB}, 15")
    A(f"    s_lshr_b32 s{S_NB}, s{S_NB}, 4")
    A(f"    s_add_u32 s{S_NU}, s{S_NA}, s{S_NB}")
    A(f"    s_lshl_b32 s{S_T0}, s{S_NB}, 6")
    A(f"    s_sub_u32 s{S_PTR}, s{S_ABASE}, s{S_T0}")
    A(f"    s_mov_b32 s{S_P}, 0")
    A(f"    s_mov_b32 s{S_M0}, s{S_REG}")
    A(f"    s_mov_b32 s{S_DELTA}, {UNIT}")
    A(f"    s_cmp_eq_u32 s{S_NU}, 0")
    A("    s_cbranch_scc1 MAIN_PRO_DONE")
    A(f"    v_add_u32 v{V_TMP2}, s{S_PTR}, v{V_H4}")
    emit_dma_entry_reads(A, V_TMP2)
    A("    s_waitcnt lgkmcnt(0)")
    emit_dma_issue(A)
    A(f"    s_cmp_eq_u32 s{S_NU}, 1")
    A("    s_cbranch_scc1 MAIN_PRO_DONE")
    A(f"    v_add_u32 v{V_TMP2}, 64, v{V_TMP2}")
    emit_dma_entry_reads(A, V_TMP2)
    A(f"    s_add_u32 s{S_M0}, s{S_REG}, {UNIT}")
    A("    s_waitcnt lgkmcnt(0)")
    emit_dma_issue(A)
    A(f"    s_mov_b32 s{S_M0}, s{S_REG}")
    A.label("MAIN_PRO_DONE")
    for i in range(64):
        A(f"    v_mov_b32 v{V_ACC+i}, 0")
    if opt.wpos == "B":
        for ks in range(8):
            w_load(A, ks, V_W0 + 8 * ks)
    stamp(A, 4)
    ustamp0(A, 8)
    A.label("MAIN_LOOP")
    A(f"    s_cmp_eq_u32 s{S_P}, s{S_NB}")
    A("    s_cbranch_scc1 MAIN_FINB")
    A.label("MAIN_LOOP2")
    A(f"    s_cmp_ge_u32 s{S_P}, s{S_NU}")
    A("    s_cbranch_scc1 MAIN_DONE")
    ustamp(A, opt.up, 0)
    ustamp(A, opt.up+1, 4)
    A(f"    s_add_u32 s{S_T0}, s{S_P}, 1")
    A(f"    s_add_u32 s{S_P2}, s{S_PTR}, 128")
    A(f"    s_cmp_lt_u32 s{S_T0}, s{S_NU}")
    A("    s_cbranch_scc1 MAIN_W8")
    if opt.wpos == "B":
        A(f"    s_cmp_lt_u32 s{S_P}, 2")
        A("    s_cbranch_scc0 MAIN_W0")
        A("    s_waitcnt vmcnt(16)")
        A("    s_branch MAIN_GO")
        A.label("MAIN_W0")
    A("    s_waitcnt vmcnt(0)")
    A("    s_branch MAIN_GO")
    A.label("MAIN_W8")
    if opt.wpos == "B":
        A(f"    s_cmp_lt_u32 s{S_P}, 2")
        A("    s_cbranch_scc0 MAIN_W8B")
        A("    s_waitcnt vmcnt(24)")
        A("    s_branch MAIN_GO")
        A.label("MAIN_W8B")
    A("    s_waitcnt vmcnt(8)")
    A.label("MAIN_GO")
    ustamp(A, opt.up, 1)
    ustamp(A, opt.up+1, 5)
    emit_unit_front(A)
    ustamp(A, opt.up, 2)
    ustamp(A, opt.up+1, 6)
    A(f"    s_add_u32 s{S_T0}, s{S_P}, 2")
    A(f"    s_cmp_lt_u32 s{S_T0}, s{S_NU}")
    A("    s_cbranch_scc0 MAIN_NODMA")
    def il(q):
        agg_mfma(A, 2 * q)
        agg_mfma(A, 2 * q + 1)
    emit_dma_issue(A, interleave=il)
    A("    s_branch MAIN_NEXT")
    A.label("MAIN_NODMA")
    for ft in range(16):
        agg_mfma(A, ft)
    A.label("MAIN_NEXT")
    ustamp(A, opt.up, 3)
    ustamp(A, opt.up+1, 7)
    A(f"    v_add_u32 v{V_SADDR}, s{S_DELTA}, v{V_SADDR}")
    A(f"    v_add_u32 v{V_TE}, s{S_DELTA}, v{V_TE}")
    A(f"    v_add_u32 v{V_TO}, s{S_DELTA}, v{V_TO}")
    A(f"    s_add_u32 s{S_M0}, s{S_M0}, s{S_DELTA}")
    A(f"    s_sub_u32 s{S_DELTA}, 0, s{S_DELTA}")
    A(f"    s_add_u32 s{S_P}, s{S_P}, 1")
    A(f"    s_add_u32 s{S_PTR}, s{S_PTR}, 64")
    A("    s_branch MAIN_LOOP")

    def fin_addr(A, ve, vo, base_expr):
        A(f"    v_and_b32 v{V_TMP2}, 3, v{V_C}                ; h")
        A(f"    v_lshl_add_u32 v{ve}, v{V_TMP2}, 9, v{ve}")
        A(f"    v_and_b32 v{V_TMP3}, 1, v{V_TMP2}")
        A(f"    v_xor_b32 v{V_TMP3}, v{V_TMP3}, v{V_G}")
        A(f"    v_lshl_add_u32 v{ve}, v{V_TMP3}, 4, v{ve}")
        A(f"    v_lshrrev_b32 v{V_TMP2}, 1, v{V_TMP2}")
        A(f"    v_lshlrev_b32 v{V_TMP2}, 6, v{V_TMP2}          ; 64*h1")
        A(f"    v_sub_u32 v{vo}, v{ve}, v{V_TMP2}")
        A(f"    v_add_u32 v{ve}, v{ve}, v{V_TMP2}")

    def emit_finb(A):
        A(f"    s_mul_i32 s{S_T0}, s{S_W}, {RROW}")
        A(f"    s_add_u32 s{S_T0}, s{S_T0}, {AGG1}")
        A(f"    v_mov_b32 v46, s{S_T0}")
        fin_addr(A, 46, 47, None)
        A(f"    v_cmp_gt_u32 vcc, 4, v{V_C}")
        A(f"    s_and_saveexec_b64 s[{S_EX}:{S_EX+1}], vcc")
        emit_finalize(A, V_SCR, 46, 47)
        A(f"    s_mov_b64 exec, s[{S_EX}:{S_EX+1}]")
        for i in range(64):
            A(f"    v_mov_b32 v{V_ACC+i}, 0")
        for i in range(4):
            A(f"    v_mov_b32 v{V_DEN+i}, 0")
        A(f"    v_mov_b32 v{V_TGT}, v{V_TGTA}")
        A(f"    v_mov_b32 v{V_T}, v{V_TA}")

    A.label("MAIN_FINB")
    emit_finb(A)
    A("    s_branch MAIN_LOOP2")

    def emit_fina(A, with_w=True):
        A(f"    s_and_b32 s{S_T0}, s{S_W}, 1")
        A(f"    s_lshl_b32 s{S_T0}, s{S_T0}, 7")
        A(f"    s_add_u32 s{S_T0}, s{S_T0}, s{S_REG}")
        A(f"    v_lshrrev_b32 v46, 2, v{V_C}")
        A(f"    v_mul_u32_u24 v46, {RROW}, v46")
        A(f"    v_add_u32 v46, s{S_T0}, v46")
        fin_addr(A, 46, 47, None)

    A.label("MAIN_DONE")
    stamp(A, 5)
    emit_fina(A)
    emit_finalize(A, 12, 46, 47, after_pair=lambda u: w_load(A, 8 + u, V_SCR + 8 * u))
    A.label("MAIN_GEMM2")
    A(f"    v_lshrrev_b32 v{V_TMP}, 2, v{V_C}                 ; w'")
    A(f"    v_mul_u32_u24 v1, {REGSZ}, v{V_TMP}")
    A(f"    v_and_b32 v{V_TMP}, 1, v{V_TMP}")
    A(f"    v_lshl_add_u32 v1, v{V_TMP}, 7, v1")
    A(f"    v_and_b32 v{V_TMP}, 3, v{V_C}")
    A(f"    v_mul_u32_u24 v{V_TMP}, {RROW}, v{V_TMP}")
    A(f"    v_add_u32 v1, v1, v{V_TMP}")
    A(f"    v_and_b32 v{V_TMP}, 7, v{V_C}")
    A(f"    v_mul_u32_u24 v5, {RROW}, v{V_TMP}")
    A(f"    v_add_u32 v5, {AGG1}, v5")
    A(f"    v_lshlrev_b32 v{V_TMP}, 4, v{V_G}                 ; g*16")
    A(f"    v_xor_b32 v{V_TMP2}, 16, v{V_TMP}                 ; (g^1)*16")
    A(f"    v_add_u32 v2, v1, v{V_TMP2}")
    A(f"    v_add_u32 v1, v1, v{V_TMP}")
    A(f"    v_add_u32 v3, {4*REGSZ}, v1")
    A(f"    v_add_u32 v4, {4*REGSZ}, v2")
    A(f"    v_add_u32 v6, v5, v{V_TMP2}")
    A(f"    v_add_u32 v5, v5, v{V_TMP}")
    A(f"    s_mul_i32 s{S_T0}, s2, {TILE*512}")
    A(f"    s_lshl_b32 s{S_T1}, s{S_W}, 6")
    A(f"    s_add_u32 s{S_T0}, s{S_T0}, s{S_T1}")
    A(f"    v_lshlrev_b32 v8, 9, v{V_C}")
    A(f"    v_lshl_add_u32 v8, v{V_G}, 4, v8")
    A(f"    v_add_u32 v8, s{S_T0}, v8")
    A(f"    v_add_u32 v9, {16*512}, v8")
    A(f"    v_add_u32 v10, {32*512}, v8")
    A(f"    v_mov_b32 v{V_TMP}, 0x7ffffff0")
    A(f"    v_cmp_gt_u32 vcc, 8, v{V_C}")
    A(f"    v_mov_b32 v7, v{V_WOFF}")
    A(f"    s_nop 0")
    A(f"    v_cndmask_b32 v10, v{V_TMP}, v10, vcc")
    for i in range(24):
        A(f"    v_mov_b32 v{V_ACC2+i}, 0")
    A("    s_waitcnt lgkmcnt(0)")
    A("    s_barrier")
    stamp(A, 6)
    BR = 12
    def b_reads(ks):
        h = ks >> 3; u = ks & 7; h0 = h & 1; h1 = h >> 1
        imm = h * 512 + ((u ^ h1) * 64)
        st = BR + 12 * (ks & 1)
        for T in range(3):
            A(f"    ds_read_b128 v[{st+4*T}:{st+4*T+3}], v{1+2*T+h0} offset:{imm}")
    def w_load2(ks, dst):
        A(f"    s_mov_b32 s{S_T0}, {WS_WF + ks*2048}")
        A(f"    buffer_load_dwordx4 v[{dst}:{dst+3}], v7, s[{S_WS}:{S_WS+3}], s{S_T0} offen")
        A(f"    buffer_load_dwordx4 v[{dst+4}:{dst+7}], v7, s[{S_WS}:{S_WS+3}], s{S_T0} offen offset:1024")
    b_reads(0)
    q = [("s1", k) for k in range(8) for _ in range(2)]
    def wait_for(tag):
        idx = max(i for i, t in enumerate(q) if t == tag)
        return len(q) - 1 - idx
    issue_at = {}
    for k in range(8):
        issue_at.setdefault(k, []).append(("s2", k))
        issue_at.setdefault(8 + 2 * k, []).append(("s3", k))
    A("    s_waitcnt vmcnt(16)")
    for ks in range(32):
        if ks + 1 < 32:
            b_reads(ks + 1)
        s_ = ks >> 3; k = ks & 7
        wbase = [V_W0, V_SCR, V_ACC, V_W0][s_] + 8 * k
        lg = 3 if ks < 31 else 0
        if s_ == 0:
            A(f"    s_waitcnt lgkmcnt({lg})")
        else:
            n = wait_for((f"s{s_}", k))
            A(f"    s_waitcnt vmcnt({n}) lgkmcnt({lg})")
        st = BR + 12 * (ks & 1)
        for T in range(3):
            for t in range(2):
                a = V_ACC2 + 4 * (2 * T + t)
                A(f"    v_mfma_f32_16x16x32_bf16 v[{a}:{a+3}], v[{wbase+4*t}:{wbase+4*t+3}], v[{st+4*T}:{st+4*T+3}], v[{a}:{a+3}]")
        for (tag, kk) in issue_at.get(ks, []):
            if tag == "s2":
                w_load2(16 + kk, V_ACC + 8 * kk)
            else:
                w_load2(24 + kk, V_W0 + 8 * kk)
            q.append((tag, kk)); q.append((tag, kk))
    stamp(A, 7)
    A("    s_nop 7")
    for T in range(3):
        a0 = V_ACC2 + 4 * (2 * T); a1 = a0 + 4
        st = 12 + 4 * T
        A(f"    v_cvt_pk_bf16_f32 v{st}, v{a0}, v{a0+1}")
        A(f"    v_cvt_pk_bf16_f32 v{st+1}, v{a0+2}, v{a0+3}")
        A(f"    v_cvt_pk_bf16_f32 v{st+2}, v{a1}, v{a1+1}")
        A(f"    v_cvt_pk_bf16_f32 v{st+3}, v{a1+2}, v{a1+3}")
        A(f"    buffer_store_dwordx4 v[{st}:{st+3}], v{8+T}, s[{S_OUT}:{S_OUT+3}], 0 offen")
    if STAMPS:
        A("    s_waitcnt vmcnt(0)")
    stamp(A, 8)
    stamp_flush(A, 60, 0, 0)
    A("    s_endpgm")

    A.label("MAIN_SLOW")
    gen_slow(A, opt, emit_finb, emit_fina)
    A.label("MAIN_END")
    A("    s_endpgm")


def gen_slow(A, opt, emit_finb, emit_fina):
    S_GRP = 62; S_POS = 63; S_CNT = 64; S_LO = 65; S_HIB = 66; S_BASE = 67
    for i in range(64):
        A(f"    v_mov_b32 v{V_ACC+i}, 0")
    if opt.wpos == "B":
        for ks in range(8):
            w_load(A, ks, V_W0 + 8 * ks)
    A("    s_waitcnt vmcnt(0)")
    A(f"    s_mul_i32 s{S_BASE}, s2, {TILE}")
    A(f"    s_mov_b32 s{S_GRP}, 0")
    A(f"    s_mov_b32 s{S_M0}, s{S_REG}")
    A(f"    v_lshlrev_b32 v48, 2, v{V_L}              ; lane*4")
    A.label("SLOW_GROUP")
    A(f"    s_add_u32 s{S_LO}, s{S_W}, 32")
    A(f"    s_add_u32 s{S_HIB}, s{S_LO}, 1")
    A(f"    s_cmp_eq_u32 s{S_GRP}, 0")
    A("    s_cbranch_scc1 SLOW_RANGE")
    A(f"    s_lshl_b32 s{S_LO}, s{S_W}, 2")
    A(f"    s_add_u32 s{S_HIB}, s{S_LO}, 4")
    A.label("SLOW_RANGE")
    A(f"    s_mov_b32 s{S_POS}, 0")
    A.label("SLOW_REFILL")
    A(f"    v_mov_b32 v49, {hex(SENT_LIST)}")
    A(f"    v_add_u32 v50, s{S_ABASE}, v48")
    A(f"    ds_write_b32 v50, v49")
    A(f"    ds_write_b32 v50, v49 offset:256")
    A(f"    s_mov_b32 s{S_CNT}, 0")
    A.label("SLOW_SCAN")
    A(f"    s_cmp_ge_u32 s{S_POS}, {E*4}")
    A("    s_cbranch_scc1 SLOW_FLUSH")
    A(f"    s_cmp_gt_u32 s{S_CNT}, 64")
    A("    s_cbranch_scc1 SLOW_FLUSH")
    A(f"    buffer_load_dword v50, v48, s[{S_DST}:{S_DST+3}], s{S_POS} offen")
    A(f"    buffer_load_dword v51, v48, s[{S_SRC}:{S_SRC+3}], s{S_POS} offen")
    A(f"    s_add_u32 s{S_POS}, s{S_POS}, 256")
    A("    s_waitcnt vmcnt(0)")
    A(f"    v_subrev_u32 v50, s{S_BASE}, v50")
    A(f"    v_cmp_le_u32 s[68:69], s{S_LO}, v50")
    A(f"    v_cmp_gt_u32 vcc, s{S_HIB}, v50")
    A(f"    s_and_b64 vcc, vcc, s[68:69]")
    A(f"    v_lshl_or_b32 v51, v51, 9, v50")
    A(f"    s_nop 0")
    A(f"    v_mbcnt_lo_u32_b32 v52, vcc_lo, 0")
    A(f"    v_mbcnt_hi_u32_b32 v52, vcc_hi, v52")
    A(f"    v_add_u32 v52, s{S_CNT}, v52")
    A(f"    v_lshlrev_b32 v52, 2, v52")
    A(f"    v_add_u32 v52, s{S_ABASE}, v52")
    A(f"    s_bcnt1_i32_b64 s{S_T0}, vcc")
    A(f"    s_add_u32 s{S_CNT}, s{S_CNT}, s{S_T0}")
    A(f"    s_and_saveexec_b64 s[{S_EX}:{S_EX+1}], vcc")
    A(f"    ds_write_b32 v52, v51")
    A(f"    s_mov_b64 exec, s[{S_EX}:{S_EX+1}]")
    A("    s_branch SLOW_SCAN")
    A.label("SLOW_FLUSH")
    A(f"    s_add_u32 s{S_NU}, s{S_CNT}, 15")
    A(f"    s_lshr_b32 s{S_NU}, s{S_NU}, 4")
    A(f"    s_mov_b32 s{S_P}, 0")
    A(f"    s_mov_b32 s{S_PTR}, s{S_ABASE}")
    A("    s_waitcnt lgkmcnt(0)")
    A.label("SLOW_UNIT")
    A(f"    s_cmp_ge_u32 s{S_P}, s{S_NU}")
    A("    s_cbranch_scc1 SLOW_UNITS_DONE")
    A(f"    v_add_u32 v{V_TMP2}, s{S_PTR}, v{V_H4}")
    emit_dma_entry_reads(A, V_TMP2)
    A("    s_waitcnt lgkmcnt(0)")
    emit_dma_issue(A)
    A(f"    s_mov_b32 s{S_P2}, s{S_PTR}")
    A("    s_waitcnt vmcnt(0)")
    emit_unit_front(A)
    for ft in range(16):
        agg_mfma(A, ft)
    A(f"    s_add_u32 s{S_P}, s{S_P}, 1")
    A(f"    s_add_u32 s{S_PTR}, s{S_PTR}, 64")
    A("    s_branch SLOW_UNIT")
    A.label("SLOW_UNITS_DONE")
    A(f"    s_cmp_lt_u32 s{S_POS}, {E*4}")
    A("    s_cbranch_scc1 SLOW_REFILL")
    A(f"    s_cmp_eq_u32 s{S_GRP}, 1")
    A("    s_cbranch_scc1 MAIN_DONE")
    emit_finb(A)
    A(f"    s_mov_b32 s{S_GRP}, 1")
    A("    s_branch SLOW_GROUP")


def kd(name, vgpr, sgpr):
    return f""".amdhsa_kernel {name}
  .amdhsa_next_free_vgpr {vgpr}
  .amdhsa_next_free_sgpr {sgpr}
  .amdhsa_accum_offset {((vgpr+3)//4)*4}
  .amdhsa_group_segment_fixed_size 0
  .amdhsa_kernarg_size 72
  .amdhsa_user_sgpr_count 2
  .amdhsa_user_sgpr_kernarg_segment_ptr 1
  .amdhsa_system_sgpr_workgroup_id_x 1
  .amdhsa_float_denorm_mode_32 3
.end_amdhsa_kernel
"""


HEADER = """; Kernarg layout for this problem (72 bytes, ptrs only, base s[0:1]):
"""


def main():
    ap = argparse.ArgumentParser()
    ap.add_argument("-o", default="gather_scatter__graph_attention_gat__graph.s")
    ap.add_argument("--stamps", action="store_true")
    ap.add_argument("--ustamps", action="store_true")
    ap.add_argument("--up", type=int, default=1)
    ap.add_argument("--wpos", default="B")
    ap.add_argument("--touch", type=int, default=1)
    opt = ap.parse_args()
    global STAMPS, USTAMPS
    STAMPS = opt.stamps
    USTAMPS = opt.ustamps
    A = Asm()
    A(HEADER.rstrip("\n"))
    A("; @launch kernel=gat_prep_kernel grid=(96,1,1) block=(640,1,1) lds=43520")
    A(f"; @launch kernel=gather_scatter__graph_attention_gat__graph_kernel grid=({NT},1,1) block=(512,1,1) lds={LDS_MAIN}")
    A('.amdgcn_target "amdgcn-amd-amdhsa--gfx950"')
    A(".text")
    gen_prep(A, opt)
    gen_main(A, opt)
    A('.section .rodata,"a"')
    A(".p2align 6")
    A(kd("gat_prep_kernel", 128, 102 if STAMPS else 48))
    A(".p2align 6")
    A(kd("gather_scatter__graph_attention_gat__graph_kernel", 256, 102 if STAMPS else 96))
    open(opt.o, "w").write(A.text())
    print("wrote", opt.o, len(A.lines), "lines")


if __name__ == "__main__":
    main()
```

```python
import sys, argparse

N = 10000; E = 160000; TILE = 40; NT = 250; G = 64; CH = 2500
WS_SLOTS = 0
WS_WF = 0x200000
WS_V = 0x280000
WS_BYTES = 0x281000
WS_STAMP = 0x300000
REGSZ = 17408; UNIT = 8704; PAIR = 1088; RROW = 2080
AGG1 = 8 * REGSZ
LISTS = AGG1 + 8 * RROW
LSZ = 704
TBUF = LISTS + 8 * LSZ
CNT = TBUF + 768
OVF = CNT + 64
LDS_MAIN = CNT + 128
CAPA = 128; CAPB = 48
SENT_LIST = 0x7FFFFE3F
LOG2E = 0x3FB8AA3B


class Asm:
    def __init__(self):
        self.lines = []
    def __call__(self, s=""):
        for l in s.split("\n"):
            self.lines.append(l)
    def label(self, n):
        self.lines.append(n + ":")
    def text(self):
        return "\n".join(self.lines) + "\n"


def vr(a, n=1):
    return f"v{a}" if n == 1 else f"v[{a}:{a+n-1}]"
def sr(a, n=1):
    return f"s{a}" if n == 1 else f"s[{a}:{a+n-1}]"


STAMPS = False
USTAMPS = False
_ul = [0]
def stamp(A, i):
    if STAMPS and not USTAMPS:
        A(f"    s_memrealtime s[{82+2*i}:{83+2*i}]")
def ustamp(A, p, i):
    if STAMPS and USTAMPS:
        _ul[0] += 1
        A(f"    s_cmp_eq_u32 s{S_P}, {p}")
        A(f"    s_cbranch_scc0 US_{_ul[0]}")
        A(f"    s_memtime s[{82+2*i}:{83+2*i}]")
        A.label(f"US_{_ul[0]}")
def ustamp0(A, i):
    if STAMPS and USTAMPS:
        A(f"    s_memtime s[{82+2*i}:{83+2*i}]")
DBGSTAMP = False
def dbg_flush(A, idxs, slot0, back):
    A("    s_waitcnt lgkmcnt(0)")
    A("    s_load_dwordx2 s[76:77], s[0:1], 56")
    A("    s_waitcnt lgkmcnt(0)")
    A(f"    s_sub_u32 s76, s76, {back}")
    A(f"    s_subb_u32 s77, s77, 0")
    A("    s_mov_b32 s78, 256\n    s_mov_b32 s79, 0x00020000")
    A("    s_mov_b64 exec, 1")
    A("    v_mov_b32 v1, 0")
    A(f"    s_not_b32 s80, s82")
    A(f"    v_mov_b32 v2, s80")
    A(f"    buffer_atomic_umax v2, v1, s[76:79], 0 offen offset:{4*slot0}")
    A("    s_nop 1")
    for j, i in enumerate(idxs):
        A(f"    v_mov_b32 v2, s{82+2*i}")
        A(f"    buffer_atomic_umax v2, v1, s[76:79], 0 offen offset:{4*(slot0+1+j)}")
        A("    s_nop 1")
def stamp_flush(A, wsbase, area, nwaves_shift, tidreg="v0"):
    if not STAMPS:
        return
    if DBGSTAMP:
        if area:
            dbg_flush(A, [0, 5], 0, 0)
        else:
            dbg_flush(A, [0, 2, 3, 4, 5, 6, 7, 8], 3, 512)
        return
    A("    s_waitcnt lgkmcnt(0)")
    A(f"    s_mov_b32 s76, s{wsbase}\n    s_mov_b32 s77, s{wsbase+1}\n    s_mov_b32 s78, 0x400000\n    s_mov_b32 s79, 0x00020000")
    A(f"    s_lshl_b32 s80, s2, 4")
    A(f"    s_add_u32 s80, s80, s100")
    A(f"    s_lshl_b32 s80, s80, 6")
    A(f"    s_add_u32 s80, s80, {WS_STAMP+area}")
    A("    s_mov_b64 exec, 1")
    A("    v_mov_b32 v1, 0")
    for i in range(9):
        A(f"    v_mov_b32 v2, s{82+2*i}")
        A(f"    buffer_store_dword v2, v1, s[76:79], s80 offen offset:{4*i}")
        A("    s_nop 1")


def srd(A, d, base, nbytes):
    A(f"    s_mov_b32 s{d}, s{base}")
    A(f"    s_mov_b32 s{d+1}, s{base+1}")
    A(f"    s_mov_b32 s{d+2}, {nbytes}")
    A(f"    s_mov_b32 s{d+3}, 0x00020000")


def gen_prep(A, opt):
    K = "gat_prep_kernel"
    A(f".globl {K}\n.p2align 8\n.type {K},@function\n{K}:")
    A("    s_cmp_ge_u32 s2, 96")
    A("    s_cbranch_scc1 PREP_END")
    stamp(A, 0)
    if STAMPS:
        A("    v_lshrrev_b32 v1, 6, v0\n    s_nop 1\n    v_readfirstlane_b32 s100, v1")
    A("    s_load_dwordx4 s[4:7], s[0:1], 8")
    A("    s_load_dwordx2 s[8:9], s[0:1], 24       ; w")
    A("    s_load_dwordx4 s[12:15], s[0:1], 32")
    A("    s_load_dwordx2 s[10:11], s[0:1], 64     ; ws")
    A("    s_cmp_ge_u32 s2, 64")
    A("    s_cbranch_scc1 PREP_W")
    A("    ; ---- edge bucketing: chunk s2 of 2500 edges -> slots[tile][chunk][32]")
    A("    v_lshlrev_b32 v1, 4, v0")
    for i in range(4):
        A(f"    v_mov_b32 v{4+i}, -1")
    A("    v_lshlrev_b32 v2, 2, v0")
    A("    v_mov_b32 v3, 0")
    for r in range(4):
        A(f"    ds_write_b128 v1, v[4:7] offset:{10240*r}")
    A("    ds_write_b32 v2, v3 offset:40960")
    A("    s_mul_i32 s28, s2, 10000")
    A("    v_add_u32 v2, s28, v1")
    A("    s_waitcnt lgkmcnt(0)")
    stamp(A, 1)
    srd(A, 16, 4, E * 4)
    srd(A, 20, 6, E * 4)
    srd(A, 24, 10, WS_BYTES)
    A("    buffer_load_dwordx4 v[8:11], v2, s[20:23], 0 offen      ; dst")
    A("    buffer_load_dwordx4 v[12:15], v2, s[16:19], 0 offen     ; src")
    A("    s_barrier")
    A("    v_cmp_gt_u32 vcc, 625, v0")
    A("    s_mov_b32 s29, 52429")
    A("    v_mov_b32 v3, 1")
    A("    v_mov_b32 v28, 32000")
    A("    s_and_saveexec_b64 s[30:31], vcc")
    A("    s_waitcnt vmcnt(0)")
    stamp(A, 2)
    for i in range(4):
        A(f"    v_mul_u32_u24 v{16+i}, s29, v{8+i}")
        A(f"    v_lshrrev_b32 v{16+i}, 21, v{16+i}       ; tile")
        A(f"    v_mul_u32_u24 v4, 40, v{16+i}")
        A(f"    v_sub_u32 v4, v{8+i}, v4")
        A(f"    v_lshl_or_b32 v{12+i}, v{12+i}, 9, v4    ; entry")
        A(f"    v_lshlrev_b32 v{20+i}, 2, v{16+i}")
        A(f"    ds_add_rtn_u32 v{24+i}, v{20+i}, v3 offset:40960")
    A("    s_waitcnt lgkmcnt(0)")
    for i in range(4):
        A(f"    v_lshlrev_b32 v4, 7, v{16+i}")
        A(f"    v_cmp_gt_u32 vcc, 32, v{24+i}")
        A(f"    v_lshl_add_u32 v4, v{24+i}, 2, v4")
        A(f"    s_nop 0")
        A(f"    v_cndmask_b32 v4, v28, v4, vcc")
        A(f"    ds_write_b32 v4, v{12+i}")
    A("    s_mov_b64 exec, s[30:31]")
    A("    s_waitcnt lgkmcnt(0)")
    A("    s_barrier")
    stamp(A, 3)
    A("    s_lshl_b32 s28, s2, 7                    ; chunk*128")
    A("    v_and_b32 v2, 7, v0                      ; part (640 % 8 == 0)")
    A("    v_lshrrev_b32 v3, 3, v0")
    A("    v_lshlrev_b32 v29, 2, v3")
    for r in range(4):
        A(f"    ds_read_b128 v[{8+4*r}:{11+4*r}], v1 offset:{10240*r}")
        A(f"    ds_read_b32 v{24+r}, v29 offset:{40960 + 320*r}")
    A("    v_lshlrev_b32 v4, 4, v2")
    A("    v_lshl_add_u32 v4, v3, 13, v4")
    A("    v_add_u32 v4, s28, v4")
    A("    v_cmp_eq_u32 s[32:33], 7, v2")
    A("    v_cmp_gt_u32 vcc, 80, v0")
    A("    s_mov_b64 s[34:35], vcc")
    A("    v_mov_b32 v5, 0x7ffffff0")
    A("    v_mov_b32 v6, -2")
    A("    s_waitcnt lgkmcnt(0)")
    for r in range(4):
        A(f"    v_cmp_lt_u32 vcc, 32, v{24+r}")
        A(f"    s_and_b64 vcc, vcc, s[32:33]")
        if r < 3:
            A(f"    v_add_u32 v7, {80*8192*r}, v4")
        else:
            A(f"    v_add_u32 v7, {80*8192*r}, v4")
            A(f"    v_cndmask_b32 v7, v5, v7, s[34:35]")
        A(f"    s_nop 0")
        A(f"    v_cndmask_b32 v{11+4*r}, v{11+4*r}, v6, vcc")
        A(f"    buffer_store_dwordx4 v[{8+4*r}:{11+4*r}], v7, s[24:27], 0 offen")
    stamp(A, 4)
    if STAMPS:
        A("    s_waitcnt vmcnt(0)")
    stamp(A, 5)
    stamp_flush(A, 10, 0x40000, 0)
    A("    s_endpgm")
    A.label("PREP_W")
    A("    s_sub_u32 s28, s2, 64                    ; ks")
    A("    v_lshrrev_b32 v1, 6, v0")
    A("    s_waitcnt lgkmcnt(0)")
    stamp(A, 1)
    A("    v_readfirstlane_b32 s29, v1              ; wave")
    srd(A, 16, 8, 524288)
    srd(A, 24, 10, WS_BYTES)
    srd(A, 20, 12, 2048)
    srd(A, 32, 14, 2048)
    A("    s_cmp_ge_u32 s29, 8")
    A("    s_cbranch_scc1 PREP_V")
    A("    s_lshl_b32 s30, s28, 14                  ; ks*16384 = h*131072 + u*16384")
    A("    v_lshrrev_b32 v1, 7, v0                  ; g")
    A("    v_and_b32 v2, 127, v0                    ; fp")
    A("    v_lshlrev_b32 v3, 11, v1")
    A("    v_lshl_add_u32 v3, v2, 2, v3             ; g*2048 + fp*4")
    A("    v_add_u32 v4, 8192, v3")
    for j in range(4):
        A(f"    buffer_load_dword v{8+j}, v3, s[16:19], s30 offen offset:{512*j}")
    for j in range(4):
        A(f"    buffer_load_dword v{12+j}, v4, s[16:19], s30 offen offset:{512*j}")
    A("    v_lshrrev_b32 v5, 4, v2")
    A("    v_lshlrev_b32 v5, 16, v5")
    A("    v_bfe_u32 v6, v2, 1, 1")
    A("    v_lshl_add_u32 v5, v6, 10, v5")
    A("    v_lshl_add_u32 v5, v1, 8, v5             ; 16g*16")
    A("    v_bfe_u32 v6, v2, 2, 2")
    A("    v_lshl_add_u32 v5, v6, 6, v5             ; 4*gi*16")
    A("    v_and_b32 v6, 1, v2")
    A("    v_lshl_add_u32 v5, v6, 5, v5             ; 2*(fp&1)*16")
    A("    s_lshl_b32 s31, s28, 11")
    A(f"    s_add_u32 s31, s31, {WS_WF}")
    A("    s_mov_b32 s36, 0x05040100")
    A("    s_mov_b32 s37, 0x07060302")
    A("    s_waitcnt vmcnt(0)")
    stamp(A, 2)
    for i in range(4):
        A(f"    v_perm_b32 v{16+i}, v{9+2*i}, v{8+2*i}, s36")
        A(f"    v_perm_b32 v{20+i}, v{9+2*i}, v{8+2*i}, s37")
    A("    buffer_store_dwordx4 v[16:19], v5, s[24:27], s31 offen")
    A("    buffer_store_dwordx4 v[20:23], v5, s[24:27], s31 offen offset:16")
    stamp(A, 4)
    if STAMPS:
        A("    s_waitcnt vmcnt(0)")
    stamp(A, 5)
    stamp_flush(A, 10, 0x40000, 0)
    A("    s_endpgm")
    A.label("PREP_V")
    A("    s_lshl_b32 s30, s28, 1")
    A("    s_add_u32 s30, s30, s29")
    A("    s_sub_u32 s30, s30, 8")
    A("    s_lshr_b32 s31, s30, 4                   ; h")
    A("    v_and_b32 v1, 63, v0")
    A("    v_and_b32 v2, 15, v1                     ; i / c")
    A("    v_lshrrev_b32 v3, 4, v1                  ; g")
    A("    v_lshlrev_b32 v4, 9, v2")
    A("    v_lshl_add_u32 v4, v3, 4, v4             ; i*512 + g*16")
    A("    s_lshl_b32 s36, s30, 13")
    A("    v_lshlrev_b32 v5, 4, v3                  ; g*16")
    A("    s_lshl_b32 s37, s31, 9                   ; h*512")
    for kk in range(8):
        A(f"    buffer_load_dwordx4 v[{8+4*kk}:{11+4*kk}], v4, s[16:19], s36 offen offset:{64*kk}")
    for kk in range(8):
        A(f"    buffer_load_dwordx4 v[{40+4*kk}:{43+4*kk}], v5, s[20:23], s37 offen offset:{64*kk}")
    for kk in range(8):
        A(f"    buffer_load_dwordx4 v[{72+4*kk}:{75+4*kk}], v5, s[32:35], s37 offen offset:{64*kk}")
    A("    s_waitcnt vmcnt(8)")
    for kk in range(8):
        c = "0" if kk == 0 else "v[104:107]"
        A(f"    v_mfma_f32_16x16x32_bf16 v[104:107], v[{8+4*kk}:{11+4*kk}], v[{40+4*kk}:{43+4*kk}], {c}")
    A("    s_waitcnt vmcnt(0)")
    for kk in range(8):
        c = "0" if kk == 0 else "v[108:111]"
        A(f"    v_mfma_f32_16x16x32_bf16 v[108:111], v[{8+4*kk}:{11+4*kk}], v[{72+4*kk}:{75+4*kk}], {c}")
    A("    s_lshl_b32 s36, s30, 5")
    A(f"    s_add_u32 s36, s36, {WS_V}")
    A("    v_lshlrev_b32 v6, 3, v3")
    A("    v_cmp_eq_u32 vcc, 0, v2")
    A(f"    s_mov_b32 s38, {LOG2E}")
    A("    s_nop 7")
    for r in range(8):
        A(f"    v_mul_f32 v{104+r}, s38, v{104+r}")
    A("    v_cvt_pk_bf16_f32 v112, v104, v105")
    A("    v_cvt_pk_bf16_f32 v113, v106, v107")
    A("    v_cvt_pk_bf16_f32 v114, v108, v109")
    A("    v_cvt_pk_bf16_f32 v115, v110, v111")
    A("    s_and_saveexec_b64 s[40:41], vcc")
    A("    buffer_store_dwordx2 v[112:113], v6, s[24:27], s36 offen")
    A("    buffer_store_dwordx2 v[114:115], v6, s[24:27], s36 offen offset:2048")
    stamp(A, 4)
    if STAMPS:
        A("    s_waitcnt vmcnt(0)")
    stamp(A, 5)
    stamp_flush(A, 10, 0x40000, 0)
    A.label("PREP_END")
    A("    s_endpgm")


V_TID = 0; V_DMAC = 1; V_SADDR = 2; V_TE = 3; V_TO = 4; V_G16 = 5; V_H4 = 6; V_TGT = 7; V_T = 8
V_TGTA = 9; V_TA = 10; V_TMP = 11; V_PT = 12; V_ONES = 14; V_E = 16; V_D = 20; V_S = 28; V_DEN = 32
V_X = 36; V_C = 40; V_G = 41; V_L = 42; V_TMP2 = 43; V_TMP3 = 44; V_WOFF = 45
V_SCR = 64; V_V = 96; V_ACC = 128; V_W0 = 192
V_ACC2 = 40
S_X = 4; S_WS = 8; S_OUT = 12; S_SRC = 16; S_DST = 20
S_W = 24; S_TILE = 2; S_NA = 25; S_NB = 26; S_NU = 27; S_P = 28; S_PTR = 29; S_M0 = 30; S_DELTA = 31
S_MSK = 32
S_HI = 40
S_T0 = 41; S_T1 = 42; S_T2 = 43; S_ABASE = 44; S_REG = 45; S_P2 = 46; S_EX = 48
S_C02 = 50


def emit_dma_issue(A, interleave=None):
    for q in range(8):
        A(f"    v_and_or_b32 v{V_D+q}, v{V_D+q}, s{S_HI}, v{V_DMAC}")
        if q == 0:
            A(f"    s_mov_b32 m0, s{S_M0}")
        else:
            A(f"    s_add_u32 m0, s{S_M0}, {PAIR*q}")
        if interleave:
            interleave(q)
        else:
            A("    s_nop 0")
        A(f"    buffer_load_dwordx4 v{V_D+q}, s[{S_X}:{S_X+3}], 0 offen lds")


def emit_dma_entry_reads(A, addr_v):
    for i in range(4):
        A(f"    ds_read2_b32 v[{V_D+2*i}:{V_D+2*i+1}], v{addr_v} offset0:{4*i} offset1:{4*i+2}")


def emit_unit_front(A):
    A(f"    v_add_u32 v{V_TMP}, s{S_PTR}, v{V_G16}")
    A(f"    v_add_u32 v{V_TMP2}, s{S_P2}, v{V_H4}")
    A(f"    ds_read_b128 v[{V_E}:{V_E+3}], v{V_TMP}")
    emit_dma_entry_reads(A, V_TMP2)
    for kk in range(8):
        A(f"    ds_read_b128 v[{V_SCR+4*kk}:{V_SCR+4*kk+3}], v{V_SADDR} offset:{64*kk}")
    for kk in range(8):
        A(f"    s_waitcnt lgkmcnt({7+kk})")
        c = "0" if kk == 0 else f"v[{V_S}:{V_S+3}]"
        A(f"    v_mfma_f32_16x16x32_bf16 v[{V_S}:{V_S+3}], v[{V_SCR+4*kk}:{V_SCR+4*kk+3}], v[{V_V+4*kk}:{V_V+4*kk+3}], {c}")
        A(f"    ds_read_b64_tr_b16 v[{V_SCR+4*kk}:{V_SCR+4*kk+1}], v{V_TE} offset:{64*kk}")
        A(f"    ds_read_b64_tr_b16 v[{V_SCR+4*kk+2}:{V_SCR+4*kk+3}], v{V_TO} offset:{64*kk+32}")
    for r in range(4):
        A(f"    v_cmp_eq_u32_sdwa s[{S_MSK+2*r}:{S_MSK+2*r+1}], v{V_E+r}, v{V_TGT} src0_sel:BYTE_0 src1_sel:DWORD")
    A("    s_nop 3")
    for r in range(4):
        A(f"    v_add_f32 v{V_X+r}, v{V_S+r}, v{V_T}")
    for r in range(4):
        A(f"    v_mul_f32 v{V_E+r}, s{S_C02}, v{V_X+r}")
    for r in range(4):
        A(f"    v_max_f32 v{V_X+r}, v{V_X+r}, v{V_E+r}")
    for r in range(4):
        A(f"    v_exp_f32 v{V_X+r}, v{V_X+r}")
    for r in range(4):
        A(f"    v_cndmask_b32 v{V_X+r}, 0, v{V_X+r}, s[{S_MSK+2*r}:{S_MSK+2*r+1}]")
    A(f"    v_cvt_pk_bf16_f32 v{V_PT}, v{V_X}, v{V_X+1}")
    A(f"    v_cvt_pk_bf16_f32 v{V_PT+1}, v{V_X+2}, v{V_X+3}")
    A("    s_waitcnt lgkmcnt(0)")
    A("    s_nop 0")
    A(f"    v_mfma_f32_16x16x16_bf16 v[{V_DEN}:{V_DEN+3}], v[{V_ONES}:{V_ONES+1}], v[{V_PT}:{V_PT+1}], v[{V_DEN}:{V_DEN+3}]")


def agg_mfma(A, ft):
    A(f"    v_mfma_f32_16x16x16_bf16 v[{V_ACC+4*ft}:{V_ACC+4*ft+3}], v[{V_SCR+2*ft}:{V_SCR+2*ft+1}], v[{V_PT}:{V_PT+1}], v[{V_ACC+4*ft}:{V_ACC+4*ft+3}]")


def emit_finalize(A, stage, addr_e, addr_o, after_pair=None):
    A("    s_nop 7")
    A(f"    v_add_f32 v{V_TMP}, 0x3089705f, v{V_DEN}        ; + 1e-9")
    A(f"    v_rcp_f32 v{V_TMP}, v{V_TMP}")
    A("    s_nop 0")
    A(f"    v_mul_f32 v{V_TMP}, 0x3e800000, v{V_TMP}")
    for u in range(8):
        for half in range(2):
            ft = 2 * u + half
            a = V_ACC + 4 * ft
            for r in range(4):
                A(f"    v_mul_f32 v{a+r}, v{V_TMP}, v{a+r}")
            sq = stage + 4 * (u & 3)
            A(f"    v_cvt_pk_bf16_f32 v{sq+2*half}, v{a}, v{a+1}")
            A(f"    v_cvt_pk_bf16_f32 v{sq+2*half+1}, v{a+2}, v{a+3}")
        ad = addr_e if u % 2 == 0 else addr_o
        A(f"    ds_write_b128 v{ad}, v[{sq}:{sq+3}] offset:{64*u}")
        if after_pair:
            after_pair(u)


def w_load(A, ks, dst):
    A(f"    s_mov_b32 s{S_T0}, {WS_WF + ks*2048}")
    A(f"    buffer_load_dwordx4 v[{dst}:{dst+3}], v{V_WOFF}, s[{S_WS}:{S_WS+3}], s{S_T0} offen")
    A(f"    buffer_load_dwordx4 v[{dst+4}:{dst+7}], v{V_WOFF}, s[{S_WS}:{S_WS+3}], s{S_T0} offen offset:1024")


def gen_main(A, opt):
    K = "gather_scatter__graph_attention_gat__graph_kernel"
    VLDS = AGG1
    A(f".globl {K}\n.p2align 8\n.type {K},@function\n{K}:")
    A(f"    s_cmp_ge_u32 s2, {NT}")
    A("    s_cbranch_scc1 MAIN_END")
    stamp(A, 0)
    A("    s_load_dwordx2 s[52:53], s[0:1], 0       ; x")
    A("    s_load_dwordx2 s[60:61], s[0:1], 64      ; ws")
    A("    s_load_dwordx2 s[54:55], s[0:1], 48      ; out")
    A("    s_load_dwordx4 s[56:59], s[0:1], 8")
    A(f"    v_and_b32 v{V_L}, 63, v0")
    A(f"    v_lshrrev_b32 v{V_TMP}, 6, v0")
    A(f"    v_and_b32 v{V_C}, 15, v{V_L}")
    A(f"    v_readfirstlane_b32 s{S_W}, v{V_TMP}")
    A(f"    v_lshrrev_b32 v{V_G}, 4, v{V_L}")
    A(f"    v_lshlrev_b32 v20, 4, v0                 ; tid*16")
    A(f"    v_and_b32 v{V_TMP}, 31, v{V_L}")
    A(f"    v_lshlrev_b32 v{V_TMP}, 4, v{V_TMP}")
    A(f"    v_lshrrev_b32 v{V_TMP2}, 5, v{V_L}")
    A(f"    v_lshlrev_b32 v{V_H4}, 2, v{V_TMP2}")
    A(f"    v_lshlrev_b32 v21, 9, v{V_TMP2}          ; hi*512")
    A(f"    v_lshlrev_b32 v{V_TMP2}, 5, v{V_TMP2}")
    A(f"    v_xor_b32 v{V_DMAC}, v{V_TMP}, v{V_TMP2}")
    A(f"    v_add_u32 v21, v21, v{V_DMAC}")
    A(f"    v_lshlrev_b32 v{V_WOFF}, 4, v{V_L}       ; lane*16")
    A(f"    s_mul_i32 s{S_REG}, s{S_W}, {REGSZ}")
    A("    s_waitcnt lgkmcnt(0)")
    stamp(A, 1)
    if STAMPS:
        A(f"    s_mov_b32 s100, s{S_W}")
    srd(A, S_WS, 60, WS_BYTES)
    srd(A, S_X, 52, N * 512)
    A(f"    s_lshl_b32 s{S_T0}, s2, 13")
    A(f"    buffer_load_dwordx4 v[16:19], v20, s[{S_WS}:{S_WS+3}], s{S_T0} offen")
    A(f"    s_cmp_ge_u32 s{S_W}, 4")
    A("    s_cbranch_scc1 MAIN_NOV")
    A(f"    s_lshl_b32 s{S_T0}, s{S_W}, 10")
    A(f"    s_add_u32 s{S_T0}, s{S_T0}, {WS_V}")
    A(f"    buffer_load_dwordx4 v[24:27], v{V_WOFF}, s[{S_WS}:{S_WS+3}], s{S_T0} offen")
    A("    s_branch MAIN_NOT")
    A.label("MAIN_NOV")
    A(f"    s_cmp_lt_u32 s{S_W}, 5")
    A("    s_cbranch_scc1 MAIN_NOT")
    A(f"    s_mul_i32 s{S_T0}, s2, {TILE*512}")
    A(f"    s_sub_u32 s{S_T2}, s{S_W}, 5")
    A(f"    s_lshl_b32 s{S_T2}, s{S_T2}, 13           ; 16 rows * 512")
    A(f"    s_add_u32 s{S_T0}, s{S_T0}, s{S_T2}")
    for q in range(8):
        A(f"    s_add_u32 m0, s{S_REG}, {PAIR*q}")
        A(f"    s_add_u32 s{S_T1}, s{S_T0}, {1024*q}")
        A(f"    buffer_load_dwordx4 v21, s[{S_X}:{S_X+3}], s{S_T1} offen lds")
    A.label("MAIN_NOT")
    NTOUCH = 0
    if opt.touch:
        NTOUCH = 2
        A(f"    s_lshr_b32 s{S_T0}, s2, 3")
        A(f"    s_and_b32 s{S_T0}, s{S_T0}, 31")
        A(f"    s_lshl_b32 s{S_T0}, s{S_T0}, 14")
        A(f"    s_lshl_b32 s{S_T1}, s{S_W}, 11")
        A(f"    s_add_u32 s{S_T0}, s{S_T0}, s{S_T1}")
        A(f"    s_add_u32 s{S_T0}, s{S_T0}, {WS_WF}")
        A(f"    buffer_load_dwordx4 v[48:51], v{V_WOFF}, s[{S_WS}:{S_WS+3}], s{S_T0} offen")
        A(f"    buffer_load_dwordx4 v[52:55], v{V_WOFF}, s[{S_WS}:{S_WS+3}], s{S_T0} offen offset:1024")
    A(f"    s_lshl_b32 s{S_T0}, s{S_W}, 16")
    A(f"    v_add_u32 v{V_WOFF}, s{S_T0}, v{V_WOFF}")
    NW0 = 0
    if opt.wpos == "A":
        for ks in range(8):
            w_load(A, ks, V_W0 + 8 * ks)
        NW0 = 16
    srd(A, S_OUT, 54, N * 512)
    srd(A, S_SRC, 56, E * 4)
    srd(A, S_DST, 58, E * 4)
    A(f"    v_mov_b32 v28, {hex(SENT_LIST)}")
    A(f"    v_mov_b32 v29, v28\n    v_mov_b32 v30, v28\n    v_mov_b32 v31, v28")
    A(f"    v_add_u32 v22, {LISTS}, v20")
    A(f"    v_cmp_gt_u32 vcc, 352, v0")
    A(f"    v_mov_b32 v32, 0")
    A(f"    v_lshlrev_b32 v23, 2, v0")
    A(f"    v_add_u32 v23, {CNT}, v23")
    A(f"    s_and_saveexec_b64 s[{S_EX}:{S_EX+1}], vcc")
    A(f"    s_cbranch_execz MAIN_NOCNT")
    A(f"    ds_write_b128 v22, v[28:31]")
    A(f"    v_cmp_gt_u32 vcc, 32, v0")
    A(f"    s_and_b64 exec, exec, vcc")
    A(f"    s_cbranch_execz MAIN_NOCNT")
    A(f"    ds_write_b32 v23, v32")
    A.label("MAIN_NOCNT")
    A(f"    s_mov_b64 exec, s[{S_EX}:{S_EX+1}]")
    A(f"    v_lshlrev_b32 v{V_G16}, 4, v{V_G}")
    A(f"    v_lshrrev_b32 v{V_TMP}, 1, v{V_C}")
    A(f"    v_mul_u32_u24 v{V_SADDR}, {PAIR}, v{V_TMP}")
    A(f"    v_and_b32 v{V_TMP}, 1, v{V_C}")
    A(f"    v_lshl_add_u32 v{V_SADDR}, v{V_TMP}, 9, v{V_SADDR}")
    A(f"    v_lshrrev_b32 v{V_TMP2}, 1, v{V_G}")
    A(f"    v_xor_b32 v{V_TMP}, v{V_TMP}, v{V_TMP2}")
    A(f"    v_lshl_add_u32 v{V_SADDR}, v{V_TMP}, 5, v{V_SADDR}")
    A(f"    v_and_b32 v{V_TMP}, 1, v{V_G}")
    A(f"    v_lshl_add_u32 v{V_SADDR}, v{V_TMP}, 4, v{V_SADDR}")
    A(f"    v_add_u32 v{V_SADDR}, s{S_REG}, v{V_SADDR}")
    A(f"    v_lshrrev_b32 v{V_TMP}, 2, v{V_C}")
    A(f"    v_lshl_add_u32 v{V_TMP}, v{V_G}, 2, v{V_TMP}      ; row")
    A(f"    v_lshrrev_b32 v{V_TMP2}, 1, v{V_TMP}")
    A(f"    v_mul_u32_u24 v{V_TE}, {PAIR}, v{V_TMP2}")
    A(f"    v_and_b32 v{V_TMP}, 1, v{V_TMP}                  ; hi")
    A(f"    v_lshl_add_u32 v{V_TE}, v{V_TMP}, 9, v{V_TE}")
    A(f"    v_and_b32 v{V_TMP2}, 3, v{V_C}")
    A(f"    v_lshl_add_u32 v{V_TE}, v{V_TMP2}, 3, v{V_TE}")
    A(f"    v_add_u32 v{V_TE}, s{S_REG}, v{V_TE}")
    A(f"    v_lshlrev_b32 v{V_TMP}, 5, v{V_TMP}              ; 32*hi")
    A(f"    v_sub_u32 v{V_TO}, v{V_TE}, v{V_TMP}")
    A(f"    v_add_u32 v{V_TE}, v{V_TE}, v{V_TMP}")
    A(f"    v_mov_b32 v{V_ONES}, 0x3f803f80")
    A(f"    v_mov_b32 v{V_ONES+1}, 0x3f803f80")
    A(f"    s_mov_b32 s{S_HI}, 0xfffffe00")
    A(f"    s_mov_b32 s{S_C02}, 0x3e4ccccd")
    A(f"    s_mul_i32 s{S_ABASE}, s{S_W}, {LSZ}")
    A(f"    s_add_u32 s{S_ABASE}, s{S_ABASE}, {LISTS+192}")
    A(f"    v_and_b32 v{V_TMP}, 3, v{V_C}")
    A(f"    v_mul_u32_u24 v{V_TMP3}, 576, v{V_TMP}")
    A(f"    v_lshl_add_u32 v{V_TMP3}, v{V_G}, 4, v{V_TMP3}")
    A(f"    v_add_u32 v{V_TMP3}, {VLDS}, v{V_TMP3}")
    A(f"    v_lshrrev_b32 v{V_TMP}, 5, v{V_L}")
    A(f"    s_lshl_b32 s{S_T0}, s{S_W}, 1")
    A(f"    v_add_u32 v{V_TMP}, s{S_T0}, v{V_TMP}")
    A(f"    v_mul_u32_u24 v22, 576, v{V_TMP}")
    A(f"    v_and_b32 v{V_TMP}, 31, v{V_L}")
    A(f"    v_lshl_add_u32 v22, v{V_TMP}, 4, v22")
    A(f"    v_add_u32 v22, {VLDS}, v22")
    A(f"    s_waitcnt vmcnt({NTOUCH+NW0})")
    stamp(A, 2)
    A(f"    s_cmp_ge_u32 s{S_W}, 4")
    A("    s_cbranch_scc1 MAIN_NOV2")
    A(f"    ds_write_b128 v22, v[24:27]")
    A.label("MAIN_NOV2")
    A("    s_waitcnt lgkmcnt(0)")
    A("    s_barrier")
    for kk in range(8):
        A(f"    ds_read_b128 v[{V_V+4*kk}:{V_V+4*kk+3}], v{V_TMP3} offset:{64*kk}")
    A(f"    s_cmp_lt_u32 s{S_W}, 5")
    A("    s_cbranch_scc1 MAIN_NOT1")
    for kk in range(8):
        A(f"    ds_read_b128 v[{V_ACC+4*kk}:{V_ACC+4*kk+3}], v{V_TMP3} offset:{4*576+64*kk}")
    for kk in range(8):
        A(f"    ds_read_b128 v[{V_SCR+4*kk}:{V_SCR+4*kk+3}], v{V_SADDR} offset:{64*kk}")
    A.label("MAIN_NOT1")
    EN = 16
    NN = 20; WV = 24; RK = 28; BS = 32
    A(f"    v_mov_b32 v36, 1")
    A(f"    s_mov_b64 s[62:63], 0")
    for i in range(4):
        A(f"    v_and_b32 v{NN+i}, 63, v{EN+i}")
        A(f"    v_cmp_eq_u32 vcc, -2, v{EN+i}")
        A(f"    s_or_b64 s[62:63], s[62:63], vcc")
        A(f"    v_cmp_gt_u32 s[{64+2*i}:{65+2*i}], 40, v{NN+i}       ; valid")
        A(f"    v_cmp_le_u32 s[{72+2*i}:{73+2*i}], 32, v{NN+i}       ; group B")
        A(f"    v_lshrrev_b32 v37, 2, v{NN+i}")
        A(f"    v_subrev_u32 v38, 32, v{NN+i}")
        A(f"    v_subrev_u32 v39, 24, v{NN+i}")
        A(f"    v_cndmask_b32 v{WV+i}, v37, v38, s[{72+2*i}:{73+2*i}]")
        A(f"    v_cndmask_b32 v37, v37, v39, s[{72+2*i}:{73+2*i}]")
        A(f"    v_lshlrev_b32 v{BS+i}, 2, v37")
        A(f"    v_add_u32 v{BS+i}, {CNT}, v{BS+i}")
    for i in range(4):
        A(f"    s_mov_b64 exec, s[{64+2*i}:{65+2*i}]")
        A(f"    ds_add_rtn_u32 v{RK+i}, v{BS+i}, v36")
    A("    s_mov_b64 exec, -1")
    A(f"    s_mov_b32 s{S_T0}, {LSZ}")
    A(f"    v_mov_b32 v37, {LISTS+192}")
    for i in range(4):
        A(f"    v_mad_u32_u24 v{BS+i}, v{WV+i}, s{S_T0}, v37")
    A("    s_waitcnt lgkmcnt(0)")
    for i in range(4):
        A(f"    v_lshlrev_b32 v37, 2, v{RK+i}")
        A(f"    v_sub_u32 v38, -4, v37")
        A(f"    v_mov_b32 v39, {CAPA}")
        A(f"    v_cndmask_b32 v37, v37, v38, s[{72+2*i}:{73+2*i}]")
        A(f"    v_cndmask_b32 v39, v39, {CAPB}, s[{72+2*i}:{73+2*i}]")
        A(f"    v_add_u32 v{BS+i}, v{BS+i}, v37")
        A(f"    v_cmp_lt_u32 vcc, v{RK+i}, v39")
        A(f"    s_andn2_b64 s[80:81], s[{64+2*i}:{65+2*i}], vcc")
        A(f"    s_or_b64 s[62:63], s[62:63], s[80:81]")
        A(f"    s_and_b64 exec, s[{64+2*i}:{65+2*i}], vcc")
        A(f"    ds_write_b32 v{BS+i}, v{EN+i}")
        A(f"    s_mov_b64 exec, -1")
    A(f"    s_cmp_eq_u64 s[62:63], 0")
    A(f"    s_cbranch_scc1 MAIN_NOOVF")
    A(f"    v_mov_b32 v37, {OVF}")
    A(f"    ds_write_b32 v37, v36")
    A.label("MAIN_NOOVF")
    A(f"    s_cmp_lt_u32 s{S_W}, 5")
    A("    s_cbranch_scc1 MAIN_NOT2")
    for kk in range(8):
        c = "0" if kk == 0 else f"v[{V_S}:{V_S+3}]"
        A(f"    v_mfma_f32_16x16x32_bf16 v[{V_S}:{V_S+3}], v[{V_SCR+4*kk}:{V_SCR+4*kk+3}], v[{V_ACC+4*kk}:{V_ACC+4*kk+3}], {c}")
    A(f"    s_sub_u32 s{S_T0}, s{S_W}, 5")
    A(f"    s_lshl_b32 s{S_T0}, s{S_T0}, 8")
    A(f"    s_add_u32 s{S_T0}, s{S_T0}, {TBUF}")
    A(f"    v_lshlrev_b32 v37, 6, v{V_G}")
    A(f"    v_lshl_add_u32 v37, v{V_C}, 2, v37")
    A(f"    v_add_u32 v37, s{S_T0}, v37")
    A(f"    v_cmp_gt_u32 vcc, 4, v{V_C}")
    A(f"    s_nop 4")
    A(f"    s_and_saveexec_b64 s[{S_EX}:{S_EX+1}], vcc")
    for r in range(4):
        A(f"    ds_write_b32 v37, v{V_S+r} offset:{16*r}")
    A(f"    s_mov_b64 exec, s[{S_EX}:{S_EX+1}]")
    A.label("MAIN_NOT2")
    A("    s_waitcnt lgkmcnt(0)")
    A("    s_barrier")
    stamp(A, 3)
    A(f"    s_lshl_b32 s{S_T0}, s{S_W}, 2")
    A(f"    s_add_u32 s{S_T0}, s{S_T0}, {CNT}")
    A(f"    v_mov_b32 v16, s{S_T0}")
    A(f"    v_mov_b32 v17, {OVF}")
    A(f"    ds_read_b32 v18, v16                     ; cntA")
    A(f"    ds_read_b32 v19, v16 offset:32           ; cntB")
    A(f"    ds_read_b32 v20, v17")
    A(f"    s_lshl_b32 s{S_T0}, s{S_W}, 6")
    A(f"    s_add_u32 s{S_T0}, s{S_T0}, {TBUF}")
    A(f"    v_lshlrev_b32 v21, 2, v{V_C}")
    A(f"    v_add_u32 v21, s{S_T0}, v21")
    A(f"    ds_read_b32 v{V_TA}, v21")
    A(f"    s_lshl_b32 s{S_T0}, s{S_W}, 4")
    A(f"    s_add_u32 s{S_T0}, s{S_T0}, {TBUF+512}")
    A(f"    v_and_b32 v21, 3, v{V_C}")
    A(f"    v_lshlrev_b32 v21, 2, v21")
    A(f"    v_add_u32 v21, s{S_T0}, v21")
    A(f"    ds_read_b32 v{V_T}, v21")
    A(f"    v_lshrrev_b32 v21, 2, v{V_C}")
    A(f"    s_lshl_b32 s{S_T0}, s{S_W}, 2")
    A(f"    v_add_u32 v{V_TGTA}, s{S_T0}, v21")
    A(f"    s_add_u32 s{S_T0}, s{S_W}, 32")
    A(f"    v_mov_b32 v{V_TGT}, s{S_T0}")
    A("    s_waitcnt lgkmcnt(0)")
    A(f"    v_readfirstlane_b32 s{S_NA}, v18")
    A(f"    v_readfirstlane_b32 s{S_NB}, v19")
    A(f"    v_readfirstlane_b32 s{S_T0}, v20")
    for i in range(4):
        A(f"    v_mov_b32 v{V_DEN+i}, 0")
    A(f"    s_cmp_lg_u32 s{S_T0}, 0")
    A("    s_cbranch_scc1 MAIN_SLOW")
    A(f"    s_add_u32 s{S_NA}, s{S_NA}, 15")
    A(f"    s_lshr_b32 s{S_NA}, s{S_NA}, 4")
    A(f"    s_add_u32 s{S_NB}, s{S_NB}, 15")
    A(f"    s_lshr_b32 s{S_NB}, s{S_NB}, 4")
    A(f"    s_add_u32 s{S_NU}, s{S_NA}, s{S_NB}")
    A(f"    s_lshl_b32 s{S_T0}, s{S_NB}, 6")
    A(f"    s_sub_u32 s{S_PTR}, s{S_ABASE}, s{S_T0}")
    A(f"    s_mov_b32 s{S_P}, 0")
    A(f"    s_mov_b32 s{S_M0}, s{S_REG}")
    A(f"    s_mov_b32 s{S_DELTA}, {UNIT}")
    A(f"    s_cmp_eq_u32 s{S_NU}, 0")
    A("    s_cbranch_scc1 MAIN_PRO_DONE")
    A(f"    v_add_u32 v{V_TMP2}, s{S_PTR}, v{V_H4}")
    emit_dma_entry_reads(A, V_TMP2)
    A("    s_waitcnt lgkmcnt(0)")
    emit_dma_issue(A)
    A(f"    s_cmp_eq_u32 s{S_NU}, 1")
    A("    s_cbranch_scc1 MAIN_PRO_DONE")
    A(f"    v_add_u32 v{V_TMP2}, 64, v{V_TMP2}")
    emit_dma_entry_reads(A, V_TMP2)
    A(f"    s_add_u32 s{S_M0}, s{S_REG}, {UNIT}")
    A("    s_waitcnt lgkmcnt(0)")
    emit_dma_issue(A)
    A(f"    s_mov_b32 s{S_M0}, s{S_REG}")
    A.label("MAIN_PRO_DONE")
    for i in range(64):
        A(f"    v_mov_b32 v{V_ACC+i}, 0")
    if opt.wpos == "B":
        for ks in range(8):
            w_load(A, ks, V_W0 + 8 * ks)
    stamp(A, 4)
    ustamp0(A, 8)
    A.label("MAIN_LOOP")
    A(f"    s_cmp_eq_u32 s{S_P}, s{S_NB}")
    A("    s_cbranch_scc1 MAIN_FINB")
    A.label("MAIN_LOOP2")
    A(f"    s_cmp_ge_u32 s{S_P}, s{S_NU}")
    A("    s_cbranch_scc1 MAIN_DONE")
    ustamp(A, opt.up, 0)
    ustamp(A, opt.up+1, 4)
    A(f"    s_add_u32 s{S_T0}, s{S_P}, 1")
    A(f"    s_add_u32 s{S_P2}, s{S_PTR}, 128")
    A(f"    s_cmp_lt_u32 s{S_T0}, s{S_NU}")
    A("    s_cbranch_scc1 MAIN_W8")
    if opt.wpos == "B":
        A(f"    s_cmp_lt_u32 s{S_P}, 2")
        A("    s_cbranch_scc0 MAIN_W0")
        A("    s_waitcnt vmcnt(16)")
        A("    s_branch MAIN_GO")
        A.label("MAIN_W0")
    A("    s_waitcnt vmcnt(0)")
    A("    s_branch MAIN_GO")
    A.label("MAIN_W8")
    if opt.wpos == "B":
        A(f"    s_cmp_lt_u32 s{S_P}, 2")
        A("    s_cbranch_scc0 MAIN_W8B")
        A("    s_waitcnt vmcnt(24)")
        A("    s_branch MAIN_GO")
        A.label("MAIN_W8B")
    A("    s_waitcnt vmcnt(8)")
    A.label("MAIN_GO")
    ustamp(A, opt.up, 1)
    ustamp(A, opt.up+1, 5)
    emit_unit_front(A)
    ustamp(A, opt.up, 2)
    ustamp(A, opt.up+1, 6)
    A(f"    s_add_u32 s{S_T0}, s{S_P}, 2")
    A(f"    s_cmp_lt_u32 s{S_T0}, s{S_NU}")
    A("    s_cbranch_scc0 MAIN_NODMA")
    def il(q):
        agg_mfma(A, 2 * q)
        agg_mfma(A, 2 * q + 1)
    emit_dma_issue(A, interleave=il)
    A("    s_branch MAIN_NEXT")
    A.label("MAIN_NODMA")
    for ft in range(16):
        agg_mfma(A, ft)
    A.label("MAIN_NEXT")
    ustamp(A, opt.up, 3)
    ustamp(A, opt.up+1, 7)
    A(f"    v_add_u32 v{V_SADDR}, s{S_DELTA}, v{V_SADDR}")
    A(f"    v_add_u32 v{V_TE}, s{S_DELTA}, v{V_TE}")
    A(f"    v_add_u32 v{V_TO}, s{S_DELTA}, v{V_TO}")
    A(f"    s_add_u32 s{S_M0}, s{S_M0}, s{S_DELTA}")
    A(f"    s_sub_u32 s{S_DELTA}, 0, s{S_DELTA}")
    A(f"    s_add_u32 s{S_P}, s{S_P}, 1")
    A(f"    s_add_u32 s{S_PTR}, s{S_PTR}, 64")
    A("    s_branch MAIN_LOOP")

    def fin_addr(A, ve, vo, base_expr):
        A(f"    v_and_b32 v{V_TMP2}, 3, v{V_C}                ; h")
        A(f"    v_lshl_add_u32 v{ve}, v{V_TMP2}, 9, v{ve}")
        A(f"    v_and_b32 v{V_TMP3}, 1, v{V_TMP2}")
        A(f"    v_xor_b32 v{V_TMP3}, v{V_TMP3}, v{V_G}")
        A(f"    v_lshl_add_u32 v{ve}, v{V_TMP3}, 4, v{ve}")
        A(f"    v_lshrrev_b32 v{V_TMP2}, 1, v{V_TMP2}")
        A(f"    v_lshlrev_b32 v{V_TMP2}, 6, v{V_TMP2}          ; 64*h1")
        A(f"    v_sub_u32 v{vo}, v{ve}, v{V_TMP2}")
        A(f"    v_add_u32 v{ve}, v{ve}, v{V_TMP2}")

    def emit_finb(A):
        A(f"    s_mul_i32 s{S_T0}, s{S_W}, {RROW}")
        A(f"    s_add_u32 s{S_T0}, s{S_T0}, {AGG1}")
        A(f"    v_mov_b32 v46, s{S_T0}")
        fin_addr(A, 46, 47, None)
        A(f"    v_cmp_gt_u32 vcc, 4, v{V_C}")
        A(f"    s_and_saveexec_b64 s[{S_EX}:{S_EX+1}], vcc")
        emit_finalize(A, V_SCR, 46, 47)
        A(f"    s_mov_b64 exec, s[{S_EX}:{S_EX+1}]")
        for i in range(64):
            A(f"    v_mov_b32 v{V_ACC+i}, 0")
        for i in range(4):
            A(f"    v_mov_b32 v{V_DEN+i}, 0")
        A(f"    v_mov_b32 v{V_TGT}, v{V_TGTA}")
        A(f"    v_mov_b32 v{V_T}, v{V_TA}")

    A.label("MAIN_FINB")
    emit_finb(A)
    A("    s_branch MAIN_LOOP2")

    def emit_fina(A, with_w=True):
        A(f"    s_and_b32 s{S_T0}, s{S_W}, 1")
        A(f"    s_lshl_b32 s{S_T0}, s{S_T0}, 7")
        A(f"    s_add_u32 s{S_T0}, s{S_T0}, s{S_REG}")
        A(f"    v_lshrrev_b32 v46, 2, v{V_C}")
        A(f"    v_mul_u32_u24 v46, {RROW}, v46")
        A(f"    v_add_u32 v46, s{S_T0}, v46")
        fin_addr(A, 46, 47, None)

    A.label("MAIN_DONE")
    stamp(A, 5)
    emit_fina(A)
    emit_finalize(A, 12, 46, 47, after_pair=lambda u: w_load(A, 8 + u, V_SCR + 8 * u))
    A.label("MAIN_GEMM2")
    A(f"    v_lshrrev_b32 v{V_TMP}, 2, v{V_C}                 ; w'")
    A(f"    v_mul_u32_u24 v1, {REGSZ}, v{V_TMP}")
    A(f"    v_and_b32 v{V_TMP}, 1, v{V_TMP}")
    A(f"    v_lshl_add_u32 v1, v{V_TMP}, 7, v1")
    A(f"    v_and_b32 v{V_TMP}, 3, v{V_C}")
    A(f"    v_mul_u32_u24 v{V_TMP}, {RROW}, v{V_TMP}")
    A(f"    v_add_u32 v1, v1, v{V_TMP}")
    A(f"    v_and_b32 v{V_TMP}, 7, v{V_C}")
    A(f"    v_mul_u32_u24 v5, {RROW}, v{V_TMP}")
    A(f"    v_add_u32 v5, {AGG1}, v5")
    A(f"    v_lshlrev_b32 v{V_TMP}, 4, v{V_G}                 ; g*16")
    A(f"    v_xor_b32 v{V_TMP2}, 16, v{V_TMP}                 ; (g^1)*16")
    A(f"    v_add_u32 v2, v1, v{V_TMP2}")
    A(f"    v_add_u32 v1, v1, v{V_TMP}")
    A(f"    v_add_u32 v3, {4*REGSZ}, v1")
    A(f"    v_add_u32 v4, {4*REGSZ}, v2")
    A(f"    v_add_u32 v6, v5, v{V_TMP2}")
    A(f"    v_add_u32 v5, v5, v{V_TMP}")
    A(f"    s_mul_i32 s{S_T0}, s2, {TILE*512}")
    A(f"    s_lshl_b32 s{S_T1}, s{S_W}, 6")
    A(f"    s_add_u32 s{S_T0}, s{S_T0}, s{S_T1}")
    A(f"    v_lshlrev_b32 v8, 9, v{V_C}")
    A(f"    v_lshl_add_u32 v8, v{V_G}, 4, v8")
    A(f"    v_add_u32 v8, s{S_T0}, v8")
    A(f"    v_add_u32 v9, {16*512}, v8")
    A(f"    v_add_u32 v10, {32*512}, v8")
    A(f"    v_mov_b32 v{V_TMP}, 0x7ffffff0")
    A(f"    v_cmp_gt_u32 vcc, 8, v{V_C}")
    A(f"    v_mov_b32 v7, v{V_WOFF}")
    A(f"    s_nop 0")
    A(f"    v_cndmask_b32 v10, v{V_TMP}, v10, vcc")
    for i in range(24):
        A(f"    v_mov_b32 v{V_ACC2+i}, 0")
    A("    s_waitcnt lgkmcnt(0)")
    A("    s_barrier")
    stamp(A, 6)
    BR = 12
    def b_reads(ks):
        h = ks >> 3; u = ks & 7; h0 = h & 1; h1 = h >> 1
        imm = h * 512 + ((u ^ h1) * 64)
        st = BR + 12 * (ks & 1)
        for T in range(3):
            A(f"    ds_read_b128 v[{st+4*T}:{st+4*T+3}], v{1+2*T+h0} offset:{imm}")
    def w_load2(ks, dst):
        A(f"    s_mov_b32 s{S_T0}, {WS_WF + ks*2048}")
        A(f"    buffer_load_dwordx4 v[{dst}:{dst+3}], v7, s[{S_WS}:{S_WS+3}], s{S_T0} offen")
        A(f"    buffer_load_dwordx4 v[{dst+4}:{dst+7}], v7, s[{S_WS}:{S_WS+3}], s{S_T0} offen offset:1024")
    b_reads(0)
    q = [("s1", k) for k in range(8) for _ in range(2)]
    def wait_for(tag):
        idx = max(i for i, t in enumerate(q) if t == tag)
        return len(q) - 1 - idx
    issue_at = {}
    for k in range(8):
        issue_at.setdefault(k, []).append(("s2", k))
        issue_at.setdefault(8 + 2 * k, []).append(("s3", k))
    A("    s_waitcnt vmcnt(16)")
    for ks in range(32):
        if ks + 1 < 32:
            b_reads(ks + 1)
        s_ = ks >> 3; k = ks & 7
        wbase = [V_W0, V_SCR, V_ACC, V_W0][s_] + 8 * k
        lg = 3 if ks < 31 else 0
        if s_ == 0:
            A(f"    s_waitcnt lgkmcnt({lg})")
        else:
            n = wait_for((f"s{s_}", k))
            A(f"    s_waitcnt vmcnt({n}) lgkmcnt({lg})")
        st = BR + 12 * (ks & 1)
        for T in range(3):
            for t in range(2):
                a = V_ACC2 + 4 * (2 * T + t)
                A(f"    v_mfma_f32_16x16x32_bf16 v[{a}:{a+3}], v[{wbase+4*t}:{wbase+4*t+3}], v[{st+4*T}:{st+4*T+3}], v[{a}:{a+3}]")
        for (tag, kk) in issue_at.get(ks, []):
            if tag == "s2":
                w_load2(16 + kk, V_ACC + 8 * kk)
            else:
                w_load2(24 + kk, V_W0 + 8 * kk)
            q.append((tag, kk)); q.append((tag, kk))
    stamp(A, 7)
    A("    s_nop 7")
    for T in range(3):
        a0 = V_ACC2 + 4 * (2 * T); a1 = a0 + 4
        st = 12 + 4 * T
        A(f"    v_cvt_pk_bf16_f32 v{st}, v{a0}, v{a0+1}")
        A(f"    v_cvt_pk_bf16_f32 v{st+1}, v{a0+2}, v{a0+3}")
        A(f"    v_cvt_pk_bf16_f32 v{st+2}, v{a1}, v{a1+1}")
        A(f"    v_cvt_pk_bf16_f32 v{st+3}, v{a1+2}, v{a1+3}")
        A(f"    buffer_store_dwordx4 v[{st}:{st+3}], v{8+T}, s[{S_OUT}:{S_OUT+3}], 0 offen")
    if STAMPS:
        A("    s_waitcnt vmcnt(0)")
    stamp(A, 8)
    stamp_flush(A, 60, 0, 0)
    A("    s_endpgm")

    A.label("MAIN_SLOW")
    gen_slow(A, opt, emit_finb, emit_fina)
    A.label("MAIN_END")
    A("    s_endpgm")


def gen_slow(A, opt, emit_finb, emit_fina):
    S_GRP = 62; S_POS = 63; S_CNT = 64; S_LO = 65; S_HIB = 66; S_BASE = 67
    for i in range(64):
        A(f"    v_mov_b32 v{V_ACC+i}, 0")
    if opt.wpos == "B":
        for ks in range(8):
            w_load(A, ks, V_W0 + 8 * ks)
    A("    s_waitcnt vmcnt(0)")
    A(f"    s_mul_i32 s{S_BASE}, s2, {TILE}")
    A(f"    s_mov_b32 s{S_GRP}, 0")
    A(f"    s_mov_b32 s{S_M0}, s{S_REG}")
    A(f"    v_lshlrev_b32 v48, 2, v{V_L}              ; lane*4")
    A.label("SLOW_GROUP")
    A(f"    s_add_u32 s{S_LO}, s{S_W}, 32")
    A(f"    s_add_u32 s{S_HIB}, s{S_LO}, 1")
    A(f"    s_cmp_eq_u32 s{S_GRP}, 0")
    A("    s_cbranch_scc1 SLOW_RANGE")
    A(f"    s_lshl_b32 s{S_LO}, s{S_W}, 2")
    A(f"    s_add_u32 s{S_HIB}, s{S_LO}, 4")
    A.label("SLOW_RANGE")
    A(f"    s_mov_b32 s{S_POS}, 0")
    A.label("SLOW_REFILL")
    A(f"    v_mov_b32 v49, {hex(SENT_LIST)}")
    A(f"    v_add_u32 v50, s{S_ABASE}, v48")
    A(f"    ds_write_b32 v50, v49")
    A(f"    ds_write_b32 v50, v49 offset:256")
    A(f"    s_mov_b32 s{S_CNT}, 0")
    A.label("SLOW_SCAN")
    A(f"    s_cmp_ge_u32 s{S_POS}, {E*4}")
    A("    s_cbranch_scc1 SLOW_FLUSH")
    A(f"    s_cmp_gt_u32 s{S_CNT}, 64")
    A("    s_cbranch_scc1 SLOW_FLUSH")
    A(f"    buffer_load_dword v50, v48, s[{S_DST}:{S_DST+3}], s{S_POS} offen")
    A(f"    buffer_load_dword v51, v48, s[{S_SRC}:{S_SRC+3}], s{S_POS} offen")
    A(f"    s_add_u32 s{S_POS}, s{S_POS}, 256")
    A("    s_waitcnt vmcnt(0)")
    A(f"    v_subrev_u32 v50, s{S_BASE}, v50")
    A(f"    v_cmp_le_u32 s[68:69], s{S_LO}, v50")
    A(f"    v_cmp_gt_u32 vcc, s{S_HIB}, v50")
    A(f"    s_and_b64 vcc, vcc, s[68:69]")
    A(f"    v_lshl_or_b32 v51, v51, 9, v50")
    A(f"    s_nop 0")
    A(f"    v_mbcnt_lo_u32_b32 v52, vcc_lo, 0")
    A(f"    v_mbcnt_hi_u32_b32 v52, vcc_hi, v52")
    A(f"    v_add_u32 v52, s{S_CNT}, v52")
    A(f"    v_lshlrev_b32 v52, 2, v52")
    A(f"    v_add_u32 v52, s{S_ABASE}, v52")
    A(f"    s_bcnt1_i32_b64 s{S_T0}, vcc")
    A(f"    s_add_u32 s{S_CNT}, s{S_CNT}, s{S_T0}")
    A(f"    s_and_saveexec_b64 s[{S_EX}:{S_EX+1}], vcc")
    A(f"    ds_write_b32 v52, v51")
    A(f"    s_mov_b64 exec, s[{S_EX}:{S_EX+1}]")
    A("    s_branch SLOW_SCAN")
    A.label("SLOW_FLUSH")
    A(f"    s_add_u32 s{S_NU}, s{S_CNT}, 15")
    A(f"    s_lshr_b32 s{S_NU}, s{S_NU}, 4")
    A(f"    s_mov_b32 s{S_P}, 0")
    A(f"    s_mov_b32 s{S_PTR}, s{S_ABASE}")
    A("    s_waitcnt lgkmcnt(0)")
    A.label("SLOW_UNIT")
    A(f"    s_cmp_ge_u32 s{S_P}, s{S_NU}")
    A("    s_cbranch_scc1 SLOW_UNITS_DONE")
    A(f"    v_add_u32 v{V_TMP2}, s{S_PTR}, v{V_H4}")
    emit_dma_entry_reads(A, V_TMP2)
    A("    s_waitcnt lgkmcnt(0)")
    emit_dma_issue(A)
    A(f"    s_mov_b32 s{S_P2}, s{S_PTR}")
    A("    s_waitcnt vmcnt(0)")
    emit_unit_front(A)
    for ft in range(16):
        agg_mfma(A, ft)
    A(f"    s_add_u32 s{S_P}, s{S_P}, 1")
    A(f"    s_add_u32 s{S_PTR}, s{S_PTR}, 64")
    A("    s_branch SLOW_UNIT")
    A.label("SLOW_UNITS_DONE")
    A(f"    s_cmp_lt_u32 s{S_POS}, {E*4}")
    A("    s_cbranch_scc1 SLOW_REFILL")
    A(f"    s_cmp_eq_u32 s{S_GRP}, 1")
    A("    s_cbranch_scc1 MAIN_DONE")
    emit_finb(A)
    A(f"    s_mov_b32 s{S_GRP}, 1")
    A("    s_branch SLOW_GROUP")


def kd(name, vgpr, sgpr):
    return f""".amdhsa_kernel {name}
  .amdhsa_next_free_vgpr {vgpr}
  .amdhsa_next_free_sgpr {sgpr}
  .amdhsa_accum_offset {((vgpr+3)//4)*4}
  .amdhsa_group_segment_fixed_size 0
  .amdhsa_kernarg_size 72
  .amdhsa_user_sgpr_count 2
  .amdhsa_user_sgpr_kernarg_segment_ptr 1
  .amdhsa_system_sgpr_workgroup_id_x 1
  .amdhsa_float_denorm_mode_32 3
.end_amdhsa_kernel
"""


HEADER = """; Kernarg layout for this problem (72 bytes, ptrs only, base s[0:1]):
"""


def main():
    ap = argparse.ArgumentParser()
    ap.add_argument("-o", default="gather_scatter__graph_attention_gat__graph.s")
    ap.add_argument("--stamps", action="store_true")
    ap.add_argument("--ustamps", action="store_true")
    ap.add_argument("--dbgstamp", action="store_true")
    ap.add_argument("--up", type=int, default=1)
    ap.add_argument("--wpos", default="B")
    ap.add_argument("--touch", type=int, default=1)
    opt = ap.parse_args()
    global STAMPS, USTAMPS, DBGSTAMP
    DBGSTAMP = opt.dbgstamp
    STAMPS = opt.stamps
    USTAMPS = opt.ustamps
    A = Asm()
    A(HEADER.rstrip("\n"))
    A("; @launch kernel=gat_prep_kernel grid=(96,1,1) block=(640,1,1) lds=43520")
    A(f"; @launch kernel=gather_scatter__graph_attention_gat__graph_kernel grid=({NT},1,1) block=(512,1,1) lds={LDS_MAIN}")
    A('.amdgcn_target "amdgcn-amd-amdhsa--gfx950"')
    A(".text")
    gen_prep(A, opt)
    gen_main(A, opt)
    A('.section .rodata,"a"')
    A(".p2align 6")
    A(kd("gat_prep_kernel", 128, 102 if STAMPS else 48))
    A(".p2align 6")
    A(kd("gather_scatter__graph_attention_gat__graph_kernel", 256, 102 if STAMPS else 96))
    open(opt.o, "w").write(A.text())
    print("wrote", opt.o, len(A.lines), "lines")


if __name__ == "__main__":
    main()
```

```python
import sys, argparse

N = 10000; E = 160000; TILE = 40; NT = 250; G = 64; CH = 2500
WS_SLOTS = 0
WS_WF = 0x200000
WS_V = 0x280000
WS_BYTES = 0x281000
WS_STAMP = 0x300000
REGSZ = 17408; UNIT = 8704; PAIR = 1088; RROW = 2080
AGG1 = 8 * REGSZ
LISTS = AGG1 + 8 * RROW
LSZ = 704
TBUF = LISTS + 8 * LSZ
CNT = TBUF + 768
OVF = CNT + 64
LDS_MAIN = CNT + 128
CAPA = 128; CAPB = 48
SENT_LIST = 0x7FFFFE3F
LOG2E = 0x3FB8AA3B


class Asm:
    def __init__(self):
        self.lines = []
    def __call__(self, s=""):
        for l in s.split("\n"):
            self.lines.append(l)
    def label(self, n):
        self.lines.append(n + ":")
    def text(self):
        return "\n".join(self.lines) + "\n"


def vr(a, n=1):
    return f"v{a}" if n == 1 else f"v[{a}:{a+n-1}]"
def sr(a, n=1):
    return f"s{a}" if n == 1 else f"s[{a}:{a+n-1}]"


STAMPS = False
USTAMPS = False
_ul = [0]
def stamp(A, i):
    if STAMPS and not USTAMPS:
        A(f"    s_memrealtime s[{82+2*i}:{83+2*i}]")
def ustamp(A, p, i):
    if STAMPS and USTAMPS:
        _ul[0] += 1
        A(f"    s_cmp_eq_u32 s{S_P}, {p}")
        A(f"    s_cbranch_scc0 US_{_ul[0]}")
        A(f"    s_memtime s[{82+2*i}:{83+2*i}]")
        A.label(f"US_{_ul[0]}")
def ustamp0(A, i):
    if STAMPS and USTAMPS:
        A(f"    s_memtime s[{82+2*i}:{83+2*i}]")
DBGSTAMP = False
def dbg_flush(A, idxs, slot0, back):
    A("    s_waitcnt lgkmcnt(0)")
    A("    s_load_dwordx2 s[76:77], s[0:1], 56")
    A("    s_waitcnt lgkmcnt(0)")
    A(f"    s_add_u32 s76, s76, {-back}")
    A(f"    s_addc_u32 s77, s77, 0")
    _ul[0] += 1
    A(f"    s_cmp_lg_u32 s100, 0")
    A(f"    s_cbranch_scc1 DBGSKIP_{_ul[0]}")
    A("    s_mov_b32 s78, 256\n    s_mov_b32 s79, 0x00020000")
    A("    s_mov_b64 exec, 1")
    A("    v_mov_b32 v1, 0")
    A(f"    s_not_b32 s80, s82")
    A(f"    v_mov_b32 v2, s80")
    A(f"    buffer_atomic_umax v2, v1, s[76:79], 0 offen offset:{4*slot0}")
    A("    s_nop 1")
    for j, i in enumerate(idxs):
        A(f"    v_mov_b32 v2, s{82+2*i}")
        A(f"    buffer_atomic_umax v2, v1, s[76:79], 0 offen offset:{4*(slot0+1+j)}")
        A("    s_nop 1")
    A.label(f"DBGSKIP_{_ul[0]}")
def stamp_flush(A, wsbase, area, nwaves_shift, tidreg="v0"):
    if not STAMPS:
        return
    if DBGSTAMP:
        if area:
            dbg_flush(A, [0, 5], 0, -512)
        else:
            dbg_flush(A, [0, 2, 3, 4, 5, 6, 7, 8], 3, 0)
        return
    A("    s_waitcnt lgkmcnt(0)")
    A(f"    s_mov_b32 s76, s{wsbase}\n    s_mov_b32 s77, s{wsbase+1}\n    s_mov_b32 s78, 0x400000\n    s_mov_b32 s79, 0x00020000")
    A(f"    s_lshl_b32 s80, s2, 4")
    A(f"    s_add_u32 s80, s80, s100")
    A(f"    s_lshl_b32 s80, s80, 6")
    A(f"    s_add_u32 s80, s80, {WS_STAMP+area}")
    A("    s_mov_b64 exec, 1")
    A("    v_mov_b32 v1, 0")
    for i in range(9):
        A(f"    v_mov_b32 v2, s{82+2*i}")
        A(f"    buffer_store_dword v2, v1, s[76:79], s80 offen offset:{4*i}")
        A("    s_nop 1")


def srd(A, d, base, nbytes):
    A(f"    s_mov_b32 s{d}, s{base}")
    A(f"    s_mov_b32 s{d+1}, s{base+1}")
    A(f"    s_mov_b32 s{d+2}, {nbytes}")
    A(f"    s_mov_b32 s{d+3}, 0x00020000")


def gen_prep(A, opt):
    K = "gat_prep_kernel"
    A(f".globl {K}\n.p2align 8\n.type {K},@function\n{K}:")
    A("    s_cmp_ge_u32 s2, 96")
    A("    s_cbranch_scc1 PREP_END")
    stamp(A, 0)
    if STAMPS:
        A("    v_lshrrev_b32 v1, 6, v0\n    s_nop 1\n    v_readfirstlane_b32 s100, v1")
    A("    s_load_dwordx4 s[4:7], s[0:1], 8")
    A("    s_load_dwordx2 s[8:9], s[0:1], 24       ; w")
    A("    s_load_dwordx4 s[12:15], s[0:1], 32")
    A("    s_load_dwordx2 s[10:11], s[0:1], 64     ; ws")
    A("    s_cmp_ge_u32 s2, 64")
    A("    s_cbranch_scc1 PREP_W")
    A("    ; ---- edge bucketing: chunk s2 of 2500 edges -> slots[tile][chunk][32]")
    A("    v_lshlrev_b32 v1, 4, v0")
    for i in range(4):
        A(f"    v_mov_b32 v{4+i}, -1")
    A("    v_lshlrev_b32 v2, 2, v0")
    A("    v_mov_b32 v3, 0")
    for r in range(4):
        A(f"    ds_write_b128 v1, v[4:7] offset:{10240*r}")
    A("    ds_write_b32 v2, v3 offset:40960")
    A("    s_mul_i32 s28, s2, 10000")
    A("    v_add_u32 v2, s28, v1")
    A("    s_waitcnt lgkmcnt(0)")
    stamp(A, 1)
    srd(A, 16, 4, E * 4)
    srd(A, 20, 6, E * 4)
    srd(A, 24, 10, WS_BYTES)
    A("    buffer_load_dwordx4 v[8:11], v2, s[20:23], 0 offen      ; dst")
    A("    buffer_load_dwordx4 v[12:15], v2, s[16:19], 0 offen     ; src")
    A("    s_barrier")
    A("    v_cmp_gt_u32 vcc, 625, v0")
    A("    s_mov_b32 s29, 52429")
    A("    v_mov_b32 v3, 1")
    A("    v_mov_b32 v28, 32000")
    A("    s_and_saveexec_b64 s[30:31], vcc")
    A("    s_waitcnt vmcnt(0)")
    stamp(A, 2)
    for i in range(4):
        A(f"    v_mul_u32_u24 v{16+i}, s29, v{8+i}")
        A(f"    v_lshrrev_b32 v{16+i}, 21, v{16+i}       ; tile")
        A(f"    v_mul_u32_u24 v4, 40, v{16+i}")
        A(f"    v_sub_u32 v4, v{8+i}, v4")
        A(f"    v_lshl_or_b32 v{12+i}, v{12+i}, 9, v4    ; entry")
        A(f"    v_lshlrev_b32 v{20+i}, 2, v{16+i}")
        A(f"    ds_add_rtn_u32 v{24+i}, v{20+i}, v3 offset:40960")
    A("    s_waitcnt lgkmcnt(0)")
    for i in range(4):
        A(f"    v_lshlrev_b32 v4, 7, v{16+i}")
        A(f"    v_cmp_gt_u32 vcc, 32, v{24+i}")
        A(f"    v_lshl_add_u32 v4, v{24+i}, 2, v4")
        A(f"    s_nop 0")
        A(f"    v_cndmask_b32 v4, v28, v4, vcc")
        A(f"    ds_write_b32 v4, v{12+i}")
    A("    s_mov_b64 exec, s[30:31]")
    A("    s_waitcnt lgkmcnt(0)")
    A("    s_barrier")
    stamp(A, 3)
    A("    s_lshl_b32 s28, s2, 7                    ; chunk*128")
    A("    v_and_b32 v2, 7, v0                      ; part (640 % 8 == 0)")
    A("    v_lshrrev_b32 v3, 3, v0")
    A("    v_lshlrev_b32 v29, 2, v3")
    for r in range(4):
        A(f"    ds_read_b128 v[{8+4*r}:{11+4*r}], v1 offset:{10240*r}")
        A(f"    ds_read_b32 v{24+r}, v29 offset:{40960 + 320*r}")
    A("    v_lshlrev_b32 v4, 4, v2")
    A("    v_lshl_add_u32 v4, v3, 13, v4")
    A("    v_add_u32 v4, s28, v4")
    A("    v_cmp_eq_u32 s[32:33], 7, v2")
    A("    v_cmp_gt_u32 vcc, 80, v0")
    A("    s_mov_b64 s[34:35], vcc")
    A("    v_mov_b32 v5, 0x7ffffff0")
    A("    v_mov_b32 v6, -2")
    A("    s_waitcnt lgkmcnt(0)")
    for r in range(4):
        A(f"    v_cmp_lt_u32 vcc, 32, v{24+r}")
        A(f"    s_and_b64 vcc, vcc, s[32:33]")
        if r < 3:
            A(f"    v_add_u32 v7, {80*8192*r}, v4")
        else:
            A(f"    v_add_u32 v7, {80*8192*r}, v4")
            A(f"    v_cndmask_b32 v7, v5, v7, s[34:35]")
        A(f"    s_nop 0")
        A(f"    v_cndmask_b32 v{11+4*r}, v{11+4*r}, v6, vcc")
        A(f"    buffer_store_dwordx4 v[{8+4*r}:{11+4*r}], v7, s[24:27], 0 offen")
    stamp(A, 4)
    if STAMPS:
        A("    s_waitcnt vmcnt(0)")
    stamp(A, 5)
    stamp_flush(A, 10, 0x40000, 0)
    A("    s_endpgm")
    A.label("PREP_W")
    A("    s_sub_u32 s28, s2, 64                    ; ks")
    A("    v_lshrrev_b32 v1, 6, v0")
    A("    s_waitcnt lgkmcnt(0)")
    stamp(A, 1)
    A("    v_readfirstlane_b32 s29, v1              ; wave")
    srd(A, 16, 8, 524288)
    srd(A, 24, 10, WS_BYTES)
    srd(A, 20, 12, 2048)
    srd(A, 32, 14, 2048)
    A("    s_cmp_ge_u32 s29, 8")
    A("    s_cbranch_scc1 PREP_V")
    A("    s_lshl_b32 s30, s28, 14                  ; ks*16384 = h*131072 + u*16384")
    A("    v_lshrrev_b32 v1, 7, v0                  ; g")
    A("    v_and_b32 v2, 127, v0                    ; fp")
    A("    v_lshlrev_b32 v3, 11, v1")
    A("    v_lshl_add_u32 v3, v2, 2, v3             ; g*2048 + fp*4")
    A("    v_add_u32 v4, 8192, v3")
    for j in range(4):
        A(f"    buffer_load_dword v{8+j}, v3, s[16:19], s30 offen offset:{512*j}")
    for j in range(4):
        A(f"    buffer_load_dword v{12+j}, v4, s[16:19], s30 offen offset:{512*j}")
    A("    v_lshrrev_b32 v5, 4, v2")
    A("    v_lshlrev_b32 v5, 16, v5")
    A("    v_bfe_u32 v6, v2, 1, 1")
    A("    v_lshl_add_u32 v5, v6, 10, v5")
    A("    v_lshl_add_u32 v5, v1, 8, v5             ; 16g*16")
    A("    v_bfe_u32 v6, v2, 2, 2")
    A("    v_lshl_add_u32 v5, v6, 6, v5             ; 4*gi*16")
    A("    v_and_b32 v6, 1, v2")
    A("    v_lshl_add_u32 v5, v6, 5, v5             ; 2*(fp&1)*16")
    A("    s_lshl_b32 s31, s28, 11")
    A(f"    s_add_u32 s31, s31, {WS_WF}")
    A("    s_mov_b32 s36, 0x05040100")
    A("    s_mov_b32 s37, 0x07060302")
    A("    s_waitcnt vmcnt(0)")
    stamp(A, 2)
    for i in range(4):
        A(f"    v_perm_b32 v{16+i}, v{9+2*i}, v{8+2*i}, s36")
        A(f"    v_perm_b32 v{20+i}, v{9+2*i}, v{8+2*i}, s37")
    A("    buffer_store_dwordx4 v[16:19], v5, s[24:27], s31 offen")
    A("    buffer_store_dwordx4 v[20:23], v5, s[24:27], s31 offen offset:16")
    stamp(A, 4)
    if STAMPS:
        A("    s_waitcnt vmcnt(0)")
    stamp(A, 5)
    stamp_flush(A, 10, 0x40000, 0)
    A("    s_endpgm")
    A.label("PREP_V")
    A("    s_lshl_b32 s30, s28, 1")
    A("    s_add_u32 s30, s30, s29")
    A("    s_sub_u32 s30, s30, 8")
    A("    s_lshr_b32 s31, s30, 4                   ; h")
    A("    v_and_b32 v1, 63, v0")
    A("    v_and_b32 v2, 15, v1                     ; i / c")
    A("    v_lshrrev_b32 v3, 4, v1                  ; g")
    A("    v_lshlrev_b32 v4, 9, v2")
    A("    v_lshl_add_u32 v4, v3, 4, v4             ; i*512 + g*16")
    A("    s_lshl_b32 s36, s30, 13")
    A("    v_lshlrev_b32 v5, 4, v3                  ; g*16")
    A("    s_lshl_b32 s37, s31, 9                   ; h*512")
    for kk in range(8):
        A(f"    buffer_load_dwordx4 v[{8+4*kk}:{11+4*kk}], v4, s[16:19], s36 offen offset:{64*kk}")
    for kk in range(8):
        A(f"    buffer_load_dwordx4 v[{40+4*kk}:{43+4*kk}], v5, s[20:23], s37 offen offset:{64*kk}")
    for kk in range(8):
        A(f"    buffer_load_dwordx4 v[{72+4*kk}:{75+4*kk}], v5, s[32:35], s37 offen offset:{64*kk}")
    A("    s_waitcnt vmcnt(8)")
    for kk in range(8):
        c = "0" if kk == 0 else "v[104:107]"
        A(f"    v_mfma_f32_16x16x32_bf16 v[104:107], v[{8+4*kk}:{11+4*kk}], v[{40+4*kk}:{43+4*kk}], {c}")
    A("    s_waitcnt vmcnt(0)")
    for kk in range(8):
        c = "0" if kk == 0 else "v[108:111]"
        A(f"    v_mfma_f32_16x16x32_bf16 v[108:111], v[{8+4*kk}:{11+4*kk}], v[{72+4*kk}:{75+4*kk}], {c}")
    A("    s_lshl_b32 s36, s30, 5")
    A(f"    s_add_u32 s36, s36, {WS_V}")
    A("    v_lshlrev_b32 v6, 3, v3")
    A("    v_cmp_eq_u32 vcc, 0, v2")
    A(f"    s_mov_b32 s38, {LOG2E}")
    A("    s_nop 7")
    for r in range(8):
        A(f"    v_mul_f32 v{104+r}, s38, v{104+r}")
    A("    v_cvt_pk_bf16_f32 v112, v104, v105")
    A("    v_cvt_pk_bf16_f32 v113, v106, v107")
    A("    v_cvt_pk_bf16_f32 v114, v108, v109")
    A("    v_cvt_pk_bf16_f32 v115, v110, v111")
    A("    s_and_saveexec_b64 s[40:41], vcc")
    A("    buffer_store_dwordx2 v[112:113], v6, s[24:27], s36 offen")
    A("    buffer_store_dwordx2 v[114:115], v6, s[24:27], s36 offen offset:2048")
    stamp(A, 4)
    if STAMPS:
        A("    s_waitcnt vmcnt(0)")
    stamp(A, 5)
    stamp_flush(A, 10, 0x40000, 0)
    A.label("PREP_END")
    A("    s_endpgm")


V_TID = 0; V_DMAC = 1; V_SADDR = 2; V_TE = 3; V_TO = 4; V_G16 = 5; V_H4 = 6; V_TGT = 7; V_T = 8
V_TGTA = 9; V_TA = 10; V_TMP = 11; V_PT = 12; V_ONES = 14; V_E = 16; V_D = 20; V_S = 28; V_DEN = 32
V_X = 36; V_C = 40; V_G = 41; V_L = 42; V_TMP2 = 43; V_TMP3 = 44; V_WOFF = 45
V_SCR = 64; V_V = 96; V_ACC = 128; V_W0 = 192
V_ACC2 = 40
S_X = 4; S_WS = 8; S_OUT = 12; S_SRC = 16; S_DST = 20
S_W = 24; S_TILE = 2; S_NA = 25; S_NB = 26; S_NU = 27; S_P = 28; S_PTR = 29; S_M0 = 30; S_DELTA = 31
S_MSK = 32
S_HI = 40
S_T0 = 41; S_T1 = 42; S_T2 = 43; S_ABASE = 44; S_REG = 45; S_P2 = 46; S_EX = 48
S_C02 = 50


def emit_dma_issue(A, interleave=None):
    for q in range(8):
        A(f"    v_and_or_b32 v{V_D+q}, v{V_D+q}, s{S_HI}, v{V_DMAC}")
        if q == 0:
            A(f"    s_mov_b32 m0, s{S_M0}")
        else:
            A(f"    s_add_u32 m0, s{S_M0}, {PAIR*q}")
        if interleave:
            interleave(q)
        else:
            A("    s_nop 0")
        A(f"    buffer_load_dwordx4 v{V_D+q}, s[{S_X}:{S_X+3}], 0 offen lds")


def emit_dma_entry_reads(A, addr_v):
    for i in range(4):
        A(f"    ds_read2_b32 v[{V_D+2*i}:{V_D+2*i+1}], v{addr_v} offset0:{4*i} offset1:{4*i+2}")


def emit_unit_front(A):
    A(f"    v_add_u32 v{V_TMP}, s{S_PTR}, v{V_G16}")
    A(f"    v_add_u32 v{V_TMP2}, s{S_P2}, v{V_H4}")
    A(f"    ds_read_b128 v[{V_E}:{V_E+3}], v{V_TMP}")
    emit_dma_entry_reads(A, V_TMP2)
    for kk in range(8):
        A(f"    ds_read_b128 v[{V_SCR+4*kk}:{V_SCR+4*kk+3}], v{V_SADDR} offset:{64*kk}")
    for kk in range(8):
        A(f"    s_waitcnt lgkmcnt({7+kk})")
        c = "0" if kk == 0 else f"v[{V_S}:{V_S+3}]"
        A(f"    v_mfma_f32_16x16x32_bf16 v[{V_S}:{V_S+3}], v[{V_SCR+4*kk}:{V_SCR+4*kk+3}], v[{V_V+4*kk}:{V_V+4*kk+3}], {c}")
        A(f"    ds_read_b64_tr_b16 v[{V_SCR+4*kk}:{V_SCR+4*kk+1}], v{V_TE} offset:{64*kk}")
        A(f"    ds_read_b64_tr_b16 v[{V_SCR+4*kk+2}:{V_SCR+4*kk+3}], v{V_TO} offset:{64*kk+32}")
    for r in range(4):
        A(f"    v_cmp_eq_u32_sdwa s[{S_MSK+2*r}:{S_MSK+2*r+1}], v{V_E+r}, v{V_TGT} src0_sel:BYTE_0 src1_sel:DWORD")
    A("    s_nop 3")
    for r in range(4):
        A(f"    v_add_f32 v{V_X+r}, v{V_S+r}, v{V_T}")
    for r in range(4):
        A(f"    v_mul_f32 v{V_E+r}, s{S_C02}, v{V_X+r}")
    for r in range(4):
        A(f"    v_max_f32 v{V_X+r}, v{V_X+r}, v{V_E+r}")
    for r in range(4):
        A(f"    v_exp_f32 v{V_X+r}, v{V_X+r}")
    for r in range(4):
        A(f"    v_cndmask_b32 v{V_X+r}, 0, v{V_X+r}, s[{S_MSK+2*r}:{S_MSK+2*r+1}]")
    A(f"    v_cvt_pk_bf16_f32 v{V_PT}, v{V_X}, v{V_X+1}")
    A(f"    v_cvt_pk_bf16_f32 v{V_PT+1}, v{V_X+2}, v{V_X+3}")
    A("    s_waitcnt lgkmcnt(0)")
    A("    s_nop 0")
    A(f"    v_mfma_f32_16x16x16_bf16 v[{V_DEN}:{V_DEN+3}], v[{V_ONES}:{V_ONES+1}], v[{V_PT}:{V_PT+1}], v[{V_DEN}:{V_DEN+3}]")


def agg_mfma(A, ft):
    A(f"    v_mfma_f32_16x16x16_bf16 v[{V_ACC+4*ft}:{V_ACC+4*ft+3}], v[{V_SCR+2*ft}:{V_SCR+2*ft+1}], v[{V_PT}:{V_PT+1}], v[{V_ACC+4*ft}:{V_ACC+4*ft+3}]")


def emit_finalize(A, stage, addr_e, addr_o, after_pair=None):
    A("    s_nop 7")
    A(f"    v_add_f32 v{V_TMP}, 0x3089705f, v{V_DEN}        ; + 1e-9")
    A(f"    v_rcp_f32 v{V_TMP}, v{V_TMP}")
    A("    s_nop 0")
    A(f"    v_mul_f32 v{V_TMP}, 0x3e800000, v{V_TMP}")
    for u in range(8):
        for half in range(2):
            ft = 2 * u + half
            a = V_ACC + 4 * ft
            for r in range(4):
                A(f"    v_mul_f32 v{a+r}, v{V_TMP}, v{a+r}")
            sq = stage + 4 * (u & 3)
            A(f"    v_cvt_pk_bf16_f32 v{sq+2*half}, v{a}, v{a+1}")
            A(f"    v_cvt_pk_bf16_f32 v{sq+2*half+1}, v{a+2}, v{a+3}")
        ad = addr_e if u % 2 == 0 else addr_o
        A(f"    ds_write_b128 v{ad}, v[{sq}:{sq+3}] offset:{64*u}")
        if after_pair:
            after_pair(u)


def w_load(A, ks, dst):
    A(f"    s_mov_b32 s{S_T0}, {WS_WF + ks*2048}")
    A(f"    buffer_load_dwordx4 v[{dst}:{dst+3}], v{V_WOFF}, s[{S_WS}:{S_WS+3}], s{S_T0} offen")
    A(f"    buffer_load_dwordx4 v[{dst+4}:{dst+7}], v{V_WOFF}, s[{S_WS}:{S_WS+3}], s{S_T0} offen offset:1024")


def gen_main(A, opt):
    K = "gather_scatter__graph_attention_gat__graph_kernel"
    VLDS = AGG1
    A(f".globl {K}\n.p2align 8\n.type {K},@function\n{K}:")
    A(f"    s_cmp_ge_u32 s2, {NT}")
    A("    s_cbranch_scc1 MAIN_END")
    stamp(A, 0)
    A("    s_load_dwordx2 s[52:53], s[0:1], 0       ; x")
    A("    s_load_dwordx2 s[60:61], s[0:1], 64      ; ws")
    A("    s_load_dwordx2 s[54:55], s[0:1], 48      ; out")
    A("    s_load_dwordx4 s[56:59], s[0:1], 8")
    A(f"    v_and_b32 v{V_L}, 63, v0")
    A(f"    v_lshrrev_b32 v{V_TMP}, 6, v0")
    A(f"    v_and_b32 v{V_C}, 15, v{V_L}")
    A(f"    v_readfirstlane_b32 s{S_W}, v{V_TMP}")
    A(f"    v_lshrrev_b32 v{V_G}, 4, v{V_L}")
    A(f"    v_lshlrev_b32 v20, 4, v0                 ; tid*16")
    A(f"    v_and_b32 v{V_TMP}, 31, v{V_L}")
    A(f"    v_lshlrev_b32 v{V_TMP}, 4, v{V_TMP}")
    A(f"    v_lshrrev_b32 v{V_TMP2}, 5, v{V_L}")
    A(f"    v_lshlrev_b32 v{V_H4}, 2, v{V_TMP2}")
    A(f"    v_lshlrev_b32 v21, 9, v{V_TMP2}          ; hi*512")
    A(f"    v_lshlrev_b32 v{V_TMP2}, 5, v{V_TMP2}")
    A(f"    v_xor_b32 v{V_DMAC}, v{V_TMP}, v{V_TMP2}")
    A(f"    v_add_u32 v21, v21, v{V_DMAC}")
    A(f"    v_lshlrev_b32 v{V_WOFF}, 4, v{V_L}       ; lane*16")
    A(f"    s_mul_i32 s{S_REG}, s{S_W}, {REGSZ}")
    A("    s_waitcnt lgkmcnt(0)")
    stamp(A, 1)
    if STAMPS:
        A(f"    s_mov_b32 s100, s{S_W}")
    srd(A, S_WS, 60, WS_BYTES)
    srd(A, S_X, 52, N * 512)
    A(f"    s_lshl_b32 s{S_T0}, s2, 13")
    A(f"    buffer_load_dwordx4 v[16:19], v20, s[{S_WS}:{S_WS+3}], s{S_T0} offen")
    A(f"    s_cmp_ge_u32 s{S_W}, 4")
    A("    s_cbranch_scc1 MAIN_NOV")
    A(f"    s_lshl_b32 s{S_T0}, s{S_W}, 10")
    A(f"    s_add_u32 s{S_T0}, s{S_T0}, {WS_V}")
    A(f"    buffer_load_dwordx4 v[24:27], v{V_WOFF}, s[{S_WS}:{S_WS+3}], s{S_T0} offen")
    A("    s_branch MAIN_NOT")
    A.label("MAIN_NOV")
    A(f"    s_cmp_lt_u32 s{S_W}, 5")
    A("    s_cbranch_scc1 MAIN_NOT")
    A(f"    s_mul_i32 s{S_T0}, s2, {TILE*512}")
    A(f"    s_sub_u32 s{S_T2}, s{S_W}, 5")
    A(f"    s_lshl_b32 s{S_T2}, s{S_T2}, 13           ; 16 rows * 512")
    A(f"    s_add_u32 s{S_T0}, s{S_T0}, s{S_T2}")
    for q in range(8):
        A(f"    s_add_u32 m0, s{S_REG}, {PAIR*q}")
        A(f"    s_add_u32 s{S_T1}, s{S_T0}, {1024*q}")
        A(f"    buffer_load_dwordx4 v21, s[{S_X}:{S_X+3}], s{S_T1} offen lds")
    A.label("MAIN_NOT")
    NTOUCH = 0
    if opt.touch:
        NTOUCH = 2
        A(f"    s_lshr_b32 s{S_T0}, s2, 3")
        A(f"    s_and_b32 s{S_T0}, s{S_T0}, 31")
        A(f"    s_lshl_b32 s{S_T0}, s{S_T0}, 14")
        A(f"    s_lshl_b32 s{S_T1}, s{S_W}, 11")
        A(f"    s_add_u32 s{S_T0}, s{S_T0}, s{S_T1}")
        A(f"    s_add_u32 s{S_T0}, s{S_T0}, {WS_WF}")
        A(f"    buffer_load_dwordx4 v[48:51], v{V_WOFF}, s[{S_WS}:{S_WS+3}], s{S_T0} offen")
        A(f"    buffer_load_dwordx4 v[52:55], v{V_WOFF}, s[{S_WS}:{S_WS+3}], s{S_T0} offen offset:1024")
    A(f"    s_lshl_b32 s{S_T0}, s{S_W}, 16")
    A(f"    v_add_u32 v{V_WOFF}, s{S_T0}, v{V_WOFF}")
    NW0 = 0
    if opt.wpos == "A":
        for ks in range(8):
            w_load(A, ks, V_W0 + 8 * ks)
        NW0 = 16
    srd(A, S_OUT, 54, N * 512)
    srd(A, S_SRC, 56, E * 4)
    srd(A, S_DST, 58, E * 4)
    A(f"    v_mov_b32 v28, {hex(SENT_LIST)}")
    A(f"    v_mov_b32 v29, v28\n    v_mov_b32 v30, v28\n    v_mov_b32 v31, v28")
    A(f"    v_add_u32 v22, {LISTS}, v20")
    A(f"    v_cmp_gt_u32 vcc, 352, v0")
    A(f"    v_mov_b32 v32, 0")
    A(f"    v_lshlrev_b32 v23, 2, v0")
    A(f"    v_add_u32 v23, {CNT}, v23")
    A(f"    s_and_saveexec_b64 s[{S_EX}:{S_EX+1}], vcc")
    A(f"    s_cbranch_execz MAIN_NOCNT")
    A(f"    ds_write_b128 v22, v[28:31]")
    A(f"    v_cmp_gt_u32 vcc, 32, v0")
    A(f"    s_and_b64 exec, exec, vcc")
    A(f"    s_cbranch_execz MAIN_NOCNT")
    A(f"    ds_write_b32 v23, v32")
    A.label("MAIN_NOCNT")
    A(f"    s_mov_b64 exec, s[{S_EX}:{S_EX+1}]")
    A(f"    v_lshlrev_b32 v{V_G16}, 4, v{V_G}")
    A(f"    v_lshrrev_b32 v{V_TMP}, 1, v{V_C}")
    A(f"    v_mul_u32_u24 v{V_SADDR}, {PAIR}, v{V_TMP}")
    A(f"    v_and_b32 v{V_TMP}, 1, v{V_C}")
    A(f"    v_lshl_add_u32 v{V_SADDR}, v{V_TMP}, 9, v{V_SADDR}")
    A(f"    v_lshrrev_b32 v{V_TMP2}, 1, v{V_G}")
    A(f"    v_xor_b32 v{V_TMP}, v{V_TMP}, v{V_TMP2}")
    A(f"    v_lshl_add_u32 v{V_SADDR}, v{V_TMP}, 5, v{V_SADDR}")
    A(f"    v_and_b32 v{V_TMP}, 1, v{V_G}")
    A(f"    v_lshl_add_u32 v{V_SADDR}, v{V_TMP}, 4, v{V_SADDR}")
    A(f"    v_add_u32 v{V_SADDR}, s{S_REG}, v{V_SADDR}")
    A(f"    v_lshrrev_b32 v{V_TMP}, 2, v{V_C}")
    A(f"    v_lshl_add_u32 v{V_TMP}, v{V_G}, 2, v{V_TMP}      ; row")
    A(f"    v_lshrrev_b32 v{V_TMP2}, 1, v{V_TMP}")
    A(f"    v_mul_u32_u24 v{V_TE}, {PAIR}, v{V_TMP2}")
    A(f"    v_and_b32 v{V_TMP}, 1, v{V_TMP}                  ; hi")
    A(f"    v_lshl_add_u32 v{V_TE}, v{V_TMP}, 9, v{V_TE}")
    A(f"    v_and_b32 v{V_TMP2}, 3, v{V_C}")
    A(f"    v_lshl_add_u32 v{V_TE}, v{V_TMP2}, 3, v{V_TE}")
    A(f"    v_add_u32 v{V_TE}, s{S_REG}, v{V_TE}")
    A(f"    v_lshlrev_b32 v{V_TMP}, 5, v{V_TMP}              ; 32*hi")
    A(f"    v_sub_u32 v{V_TO}, v{V_TE}, v{V_TMP}")
    A(f"    v_add_u32 v{V_TE}, v{V_TE}, v{V_TMP}")
    A(f"    v_mov_b32 v{V_ONES}, 0x3f803f80")
    A(f"    v_mov_b32 v{V_ONES+1}, 0x3f803f80")
    A(f"    s_mov_b32 s{S_HI}, 0xfffffe00")
    A(f"    s_mov_b32 s{S_C02}, 0x3e4ccccd")
    A(f"    s_mul_i32 s{S_ABASE}, s{S_W}, {LSZ}")
    A(f"    s_add_u32 s{S_ABASE}, s{S_ABASE}, {LISTS+192}")
    A(f"    v_and_b32 v{V_TMP}, 3, v{V_C}")
    A(f"    v_mul_u32_u24 v{V_TMP3}, 576, v{V_TMP}")
    A(f"    v_lshl_add_u32 v{V_TMP3}, v{V_G}, 4, v{V_TMP3}")
    A(f"    v_add_u32 v{V_TMP3}, {VLDS}, v{V_TMP3}")
    A(f"    v_lshrrev_b32 v{V_TMP}, 5, v{V_L}")
    A(f"    s_lshl_b32 s{S_T0}, s{S_W}, 1")
    A(f"    v_add_u32 v{V_TMP}, s{S_T0}, v{V_TMP}")
    A(f"    v_mul_u32_u24 v22, 576, v{V_TMP}")
    A(f"    v_and_b32 v{V_TMP}, 31, v{V_L}")
    A(f"    v_lshl_add_u32 v22, v{V_TMP}, 4, v22")
    A(f"    v_add_u32 v22, {VLDS}, v22")
    A(f"    s_waitcnt vmcnt({NTOUCH+NW0})")
    stamp(A, 2)
    A(f"    s_cmp_ge_u32 s{S_W}, 4")
    A("    s_cbranch_scc1 MAIN_NOV2")
    A(f"    ds_write_b128 v22, v[24:27]")
    A.label("MAIN_NOV2")
    A("    s_waitcnt lgkmcnt(0)")
    A("    s_barrier")
    for kk in range(8):
        A(f"    ds_read_b128 v[{V_V+4*kk}:{V_V+4*kk+3}], v{V_TMP3} offset:{64*kk}")
    A(f"    s_cmp_lt_u32 s{S_W}, 5")
    A("    s_cbranch_scc1 MAIN_NOT1")
    for kk in range(8):
        A(f"    ds_read_b128 v[{V_ACC+4*kk}:{V_ACC+4*kk+3}], v{V_TMP3} offset:{4*576+64*kk}")
    for kk in range(8):
        A(f"    ds_read_b128 v[{V_SCR+4*kk}:{V_SCR+4*kk+3}], v{V_SADDR} offset:{64*kk}")
    A.label("MAIN_NOT1")
    EN = 16
    NN = 20; WV = 24; RK = 28; BS = 32
    A(f"    v_mov_b32 v36, 1")
    A(f"    s_mov_b64 s[62:63], 0")
    for i in range(4):
        A(f"    v_and_b32 v{NN+i}, 63, v{EN+i}")
        A(f"    v_cmp_eq_u32 vcc, -2, v{EN+i}")
        A(f"    s_or_b64 s[62:63], s[62:63], vcc")
        A(f"    v_cmp_gt_u32 s[{64+2*i}:{65+2*i}], 40, v{NN+i}       ; valid")
        A(f"    v_cmp_le_u32 s[{72+2*i}:{73+2*i}], 32, v{NN+i}       ; group B")
        A(f"    v_lshrrev_b32 v37, 2, v{NN+i}")
        A(f"    v_subrev_u32 v38, 32, v{NN+i}")
        A(f"    v_subrev_u32 v39, 24, v{NN+i}")
        A(f"    v_cndmask_b32 v{WV+i}, v37, v38, s[{72+2*i}:{73+2*i}]")
        A(f"    v_cndmask_b32 v37, v37, v39, s[{72+2*i}:{73+2*i}]")
        A(f"    v_lshlrev_b32 v{BS+i}, 2, v37")
        A(f"    v_add_u32 v{BS+i}, {CNT}, v{BS+i}")
    for i in range(4):
        A(f"    s_mov_b64 exec, s[{64+2*i}:{65+2*i}]")
        A(f"    ds_add_rtn_u32 v{RK+i}, v{BS+i}, v36")
    A("    s_mov_b64 exec, -1")
    A(f"    s_mov_b32 s{S_T0}, {LSZ}")
    A(f"    v_mov_b32 v37, {LISTS+192}")
    for i in range(4):
        A(f"    v_mad_u32_u24 v{BS+i}, v{WV+i}, s{S_T0}, v37")
    A("    s_waitcnt lgkmcnt(0)")
    for i in range(4):
        A(f"    v_lshlrev_b32 v37, 2, v{RK+i}")
        A(f"    v_sub_u32 v38, -4, v37")
        A(f"    v_mov_b32 v39, {CAPA}")
        A(f"    v_cndmask_b32 v37, v37, v38, s[{72+2*i}:{73+2*i}]")
        A(f"    v_cndmask_b32 v39, v39, {CAPB}, s[{72+2*i}:{73+2*i}]")
        A(f"    v_add_u32 v{BS+i}, v{BS+i}, v37")
        A(f"    v_cmp_lt_u32 vcc, v{RK+i}, v39")
        A(f"    s_andn2_b64 s[80:81], s[{64+2*i}:{65+2*i}], vcc")
        A(f"    s_or_b64 s[62:63], s[62:63], s[80:81]")
        A(f"    s_and_b64 exec, s[{64+2*i}:{65+2*i}], vcc")
        A(f"    ds_write_b32 v{BS+i}, v{EN+i}")
        A(f"    s_mov_b64 exec, -1")
    A(f"    s_cmp_eq_u64 s[62:63], 0")
    A(f"    s_cbranch_scc1 MAIN_NOOVF")
    A(f"    v_mov_b32 v37, {OVF}")
    A(f"    ds_write_b32 v37, v36")
    A.label("MAIN_NOOVF")
    A(f"    s_cmp_lt_u32 s{S_W}, 5")
    A("    s_cbranch_scc1 MAIN_NOT2")
    for kk in range(8):
        c = "0" if kk == 0 else f"v[{V_S}:{V_S+3}]"
        A(f"    v_mfma_f32_16x16x32_bf16 v[{V_S}:{V_S+3}], v[{V_SCR+4*kk}:{V_SCR+4*kk+3}], v[{V_ACC+4*kk}:{V_ACC+4*kk+3}], {c}")
    A(f"    s_sub_u32 s{S_T0}, s{S_W}, 5")
    A(f"    s_lshl_b32 s{S_T0}, s{S_T0}, 8")
    A(f"    s_add_u32 s{S_T0}, s{S_T0}, {TBUF}")
    A(f"    v_lshlrev_b32 v37, 6, v{V_G}")
    A(f"    v_lshl_add_u32 v37, v{V_C}, 2, v37")
    A(f"    v_add_u32 v37, s{S_T0}, v37")
    A(f"    v_cmp_gt_u32 vcc, 4, v{V_C}")
    A(f"    s_nop 4")
    A(f"    s_and_saveexec_b64 s[{S_EX}:{S_EX+1}], vcc")
    for r in range(4):
        A(f"    ds_write_b32 v37, v{V_S+r} offset:{16*r}")
    A(f"    s_mov_b64 exec, s[{S_EX}:{S_EX+1}]")
    A.label("MAIN_NOT2")
    A("    s_waitcnt lgkmcnt(0)")
    A("    s_barrier")
    stamp(A, 3)
    A(f"    s_lshl_b32 s{S_T0}, s{S_W}, 2")
    A(f"    s_add_u32 s{S_T0}, s{S_T0}, {CNT}")
    A(f"    v_mov_b32 v16, s{S_T0}")
    A(f"    v_mov_b32 v17, {OVF}")
    A(f"    ds_read_b32 v18, v16                     ; cntA")
    A(f"    ds_read_b32 v19, v16 offset:32           ; cntB")
    A(f"    ds_read_b32 v20, v17")
    A(f"    s_lshl_b32 s{S_T0}, s{S_W}, 6")
    A(f"    s_add_u32 s{S_T0}, s{S_T0}, {TBUF}")
    A(f"    v_lshlrev_b32 v21, 2, v{V_C}")
    A(f"    v_add_u32 v21, s{S_T0}, v21")
    A(f"    ds_read_b32 v{V_TA}, v21")
    A(f"    s_lshl_b32 s{S_T0}, s{S_W}, 4")
    A(f"    s_add_u32 s{S_T0}, s{S_T0}, {TBUF+512}")
    A(f"    v_and_b32 v21, 3, v{V_C}")
    A(f"    v_lshlrev_b32 v21, 2, v21")
    A(f"    v_add_u32 v21, s{S_T0}, v21")
    A(f"    ds_read_b32 v{V_T}, v21")
    A(f"    v_lshrrev_b32 v21, 2, v{V_C}")
    A(f"    s_lshl_b32 s{S_T0}, s{S_W}, 2")
    A(f"    v_add_u32 v{V_TGTA}, s{S_T0}, v21")
    A(f"    s_add_u32 s{S_T0}, s{S_W}, 32")
    A(f"    v_mov_b32 v{V_TGT}, s{S_T0}")
    A("    s_waitcnt lgkmcnt(0)")
    A(f"    v_readfirstlane_b32 s{S_NA}, v18")
    A(f"    v_readfirstlane_b32 s{S_NB}, v19")
    A(f"    v_readfirstlane_b32 s{S_T0}, v20")
    for i in range(4):
        A(f"    v_mov_b32 v{V_DEN+i}, 0")
    A(f"    s_cmp_lg_u32 s{S_T0}, 0")
    A("    s_cbranch_scc1 MAIN_SLOW")
    A(f"    s_add_u32 s{S_NA}, s{S_NA}, 15")
    A(f"    s_lshr_b32 s{S_NA}, s{S_NA}, 4")
    A(f"    s_add_u32 s{S_NB}, s{S_NB}, 15")
    A(f"    s_lshr_b32 s{S_NB}, s{S_NB}, 4")
    A(f"    s_add_u32 s{S_NU}, s{S_NA}, s{S_NB}")
    A(f"    s_lshl_b32 s{S_T0}, s{S_NB}, 6")
    A(f"    s_sub_u32 s{S_PTR}, s{S_ABASE}, s{S_T0}")
    A(f"    s_mov_b32 s{S_P}, 0")
    A(f"    s_mov_b32 s{S_M0}, s{S_REG}")
    A(f"    s_mov_b32 s{S_DELTA}, {UNIT}")
    A(f"    s_cmp_eq_u32 s{S_NU}, 0")
    A("    s_cbranch_scc1 MAIN_PRO_DONE")
    A(f"    v_add_u32 v{V_TMP2}, s{S_PTR}, v{V_H4}")
    emit_dma_entry_reads(A, V_TMP2)
    A("    s_waitcnt lgkmcnt(0)")
    emit_dma_issue(A)
    A(f"    s_cmp_eq_u32 s{S_NU}, 1")
    A("    s_cbranch_scc1 MAIN_PRO_DONE")
    A(f"    v_add_u32 v{V_TMP2}, 64, v{V_TMP2}")
    emit_dma_entry_reads(A, V_TMP2)
    A(f"    s_add_u32 s{S_M0}, s{S_REG}, {UNIT}")
    A("    s_waitcnt lgkmcnt(0)")
    emit_dma_issue(A)
    A(f"    s_mov_b32 s{S_M0}, s{S_REG}")
    A.label("MAIN_PRO_DONE")
    for i in range(64):
        A(f"    v_mov_b32 v{V_ACC+i}, 0")
    if opt.wpos == "B":
        for ks in range(8):
            w_load(A, ks, V_W0 + 8 * ks)
    stamp(A, 4)
    ustamp0(A, 8)
    A.label("MAIN_LOOP")
    A(f"    s_cmp_eq_u32 s{S_P}, s{S_NB}")
    A("    s_cbranch_scc1 MAIN_FINB")
    A.label("MAIN_LOOP2")
    A(f"    s_cmp_ge_u32 s{S_P}, s{S_NU}")
    A("    s_cbranch_scc1 MAIN_DONE")
    ustamp(A, opt.up, 0)
    ustamp(A, opt.up+1, 4)
    A(f"    s_add_u32 s{S_T0}, s{S_P}, 1")
    A(f"    s_add_u32 s{S_P2}, s{S_PTR}, 128")
    A(f"    s_cmp_lt_u32 s{S_T0}, s{S_NU}")
    A("    s_cbranch_scc1 MAIN_W8")
    if opt.wpos == "B":
        A(f"    s_cmp_lt_u32 s{S_P}, 2")
        A("    s_cbranch_scc0 MAIN_W0")
        A("    s_waitcnt vmcnt(16)")
        A("    s_branch MAIN_GO")
        A.label("MAIN_W0")
    A("    s_waitcnt vmcnt(0)")
    A("    s_branch MAIN_GO")
    A.label("MAIN_W8")
    if opt.wpos == "B":
        A(f"    s_cmp_lt_u32 s{S_P}, 2")
        A("    s_cbranch_scc0 MAIN_W8B")
        A("    s_waitcnt vmcnt(24)")
        A("    s_branch MAIN_GO")
        A.label("MAIN_W8B")
    A("    s_waitcnt vmcnt(8)")
    A.label("MAIN_GO")
    ustamp(A, opt.up, 1)
    ustamp(A, opt.up+1, 5)
    emit_unit_front(A)
    ustamp(A, opt.up, 2)
    ustamp(A, opt.up+1, 6)
    A(f"    s_add_u32 s{S_T0}, s{S_P}, 2")
    A(f"    s_cmp_lt_u32 s{S_T0}, s{S_NU}")
    A("    s_cbranch_scc0 MAIN_NODMA")
    def il(q):
        agg_mfma(A, 2 * q)
        agg_mfma(A, 2 * q + 1)
    emit_dma_issue(A, interleave=il)
    A("    s_branch MAIN_NEXT")
    A.label("MAIN_NODMA")
    for ft in range(16):
        agg_mfma(A, ft)
    A.label("MAIN_NEXT")
    ustamp(A, opt.up, 3)
    ustamp(A, opt.up+1, 7)
    A(f"    v_add_u32 v{V_SADDR}, s{S_DELTA}, v{V_SADDR}")
    A(f"    v_add_u32 v{V_TE}, s{S_DELTA}, v{V_TE}")
    A(f"    v_add_u32 v{V_TO}, s{S_DELTA}, v{V_TO}")
    A(f"    s_add_u32 s{S_M0}, s{S_M0}, s{S_DELTA}")
    A(f"    s_sub_u32 s{S_DELTA}, 0, s{S_DELTA}")
    A(f"    s_add_u32 s{S_P}, s{S_P}, 1")
    A(f"    s_add_u32 s{S_PTR}, s{S_PTR}, 64")
    A("    s_branch MAIN_LOOP")

    def fin_addr(A, ve, vo, base_expr):
        A(f"    v_and_b32 v{V_TMP2}, 3, v{V_C}                ; h")
        A(f"    v_lshl_add_u32 v{ve}, v{V_TMP2}, 9, v{ve}")
        A(f"    v_and_b32 v{V_TMP3}, 1, v{V_TMP2}")
        A(f"    v_xor_b32 v{V_TMP3}, v{V_TMP3}, v{V_G}")
        A(f"    v_lshl_add_u32 v{ve}, v{V_TMP3}, 4, v{ve}")
        A(f"    v_lshrrev_b32 v{V_TMP2}, 1, v{V_TMP2}")
        A(f"    v_lshlrev_b32 v{V_TMP2}, 6, v{V_TMP2}          ; 64*h1")
        A(f"    v_sub_u32 v{vo}, v{ve}, v{V_TMP2}")
        A(f"    v_add_u32 v{ve}, v{ve}, v{V_TMP2}")

    def emit_finb(A):
        A(f"    s_mul_i32 s{S_T0}, s{S_W}, {RROW}")
        A(f"    s_add_u32 s{S_T0}, s{S_T0}, {AGG1}")
        A(f"    v_mov_b32 v46, s{S_T0}")
        fin_addr(A, 46, 47, None)
        A(f"    v_cmp_gt_u32 vcc, 4, v{V_C}")
        A(f"    s_and_saveexec_b64 s[{S_EX}:{S_EX+1}], vcc")
        emit_finalize(A, V_SCR, 46, 47)
        A(f"    s_mov_b64 exec, s[{S_EX}:{S_EX+1}]")
        for i in range(64):
            A(f"    v_mov_b32 v{V_ACC+i}, 0")
        for i in range(4):
            A(f"    v_mov_b32 v{V_DEN+i}, 0")
        A(f"    v_mov_b32 v{V_TGT}, v{V_TGTA}")
        A(f"    v_mov_b32 v{V_T}, v{V_TA}")

    A.label("MAIN_FINB")
    emit_finb(A)
    A("    s_branch MAIN_LOOP2")

    def emit_fina(A, with_w=True):
        A(f"    s_and_b32 s{S_T0}, s{S_W}, 1")
        A(f"    s_lshl_b32 s{S_T0}, s{S_T0}, 7")
        A(f"    s_add_u32 s{S_T0}, s{S_T0}, s{S_REG}")
        A(f"    v_lshrrev_b32 v46, 2, v{V_C}")
        A(f"    v_mul_u32_u24 v46, {RROW}, v46")
        A(f"    v_add_u32 v46, s{S_T0}, v46")
        fin_addr(A, 46, 47, None)

    A.label("MAIN_DONE")
    stamp(A, 5)
    emit_fina(A)
    emit_finalize(A, 12, 46, 47, after_pair=lambda u: w_load(A, 8 + u, V_SCR + 8 * u))
    A.label("MAIN_GEMM2")
    A(f"    v_lshrrev_b32 v{V_TMP}, 2, v{V_C}                 ; w'")
    A(f"    v_mul_u32_u24 v1, {REGSZ}, v{V_TMP}")
    A(f"    v_and_b32 v{V_TMP}, 1, v{V_TMP}")
    A(f"    v_lshl_add_u32 v1, v{V_TMP}, 7, v1")
    A(f"    v_and_b32 v{V_TMP}, 3, v{V_C}")
    A(f"    v_mul_u32_u24 v{V_TMP}, {RROW}, v{V_TMP}")
    A(f"    v_add_u32 v1, v1, v{V_TMP}")
    A(f"    v_and_b32 v{V_TMP}, 7, v{V_C}")
    A(f"    v_mul_u32_u24 v5, {RROW}, v{V_TMP}")
    A(f"    v_add_u32 v5, {AGG1}, v5")
    A(f"    v_lshlrev_b32 v{V_TMP}, 4, v{V_G}                 ; g*16")
    A(f"    v_xor_b32 v{V_TMP2}, 16, v{V_TMP}                 ; (g^1)*16")
    A(f"    v_add_u32 v2, v1, v{V_TMP2}")
    A(f"    v_add_u32 v1, v1, v{V_TMP}")
    A(f"    v_add_u32 v3, {4*REGSZ}, v1")
    A(f"    v_add_u32 v4, {4*REGSZ}, v2")
    A(f"    v_add_u32 v6, v5, v{V_TMP2}")
    A(f"    v_add_u32 v5, v5, v{V_TMP}")
    A(f"    s_mul_i32 s{S_T0}, s2, {TILE*512}")
    A(f"    s_lshl_b32 s{S_T1}, s{S_W}, 6")
    A(f"    s_add_u32 s{S_T0}, s{S_T0}, s{S_T1}")
    A(f"    v_lshlrev_b32 v8, 9, v{V_C}")
    A(f"    v_lshl_add_u32 v8, v{V_G}, 4, v8")
    A(f"    v_add_u32 v8, s{S_T0}, v8")
    A(f"    v_add_u32 v9, {16*512}, v8")
    A(f"    v_add_u32 v10, {32*512}, v8")
    A(f"    v_mov_b32 v{V_TMP}, 0x7ffffff0")
    A(f"    v_cmp_gt_u32 vcc, 8, v{V_C}")
    A(f"    v_mov_b32 v7, v{V_WOFF}")
    A(f"    s_nop 0")
    A(f"    v_cndmask_b32 v10, v{V_TMP}, v10, vcc")
    for i in range(24):
        A(f"    v_mov_b32 v{V_ACC2+i}, 0")
    A("    s_waitcnt lgkmcnt(0)")
    A("    s_barrier")
    stamp(A, 6)
    BR = 12
    def b_reads(ks):
        h = ks >> 3; u = ks & 7; h0 = h & 1; h1 = h >> 1
        imm = h * 512 + ((u ^ h1) * 64)
        st = BR + 12 * (ks & 1)
        for T in range(3):
            A(f"    ds_read_b128 v[{st+4*T}:{st+4*T+3}], v{1+2*T+h0} offset:{imm}")
    def w_load2(ks, dst):
        A(f"    s_mov_b32 s{S_T0}, {WS_WF + ks*2048}")
        A(f"    buffer_load_dwordx4 v[{dst}:{dst+3}], v7, s[{S_WS}:{S_WS+3}], s{S_T0} offen")
        A(f"    buffer_load_dwordx4 v[{dst+4}:{dst+7}], v7, s[{S_WS}:{S_WS+3}], s{S_T0} offen offset:1024")
    b_reads(0)
    q = [("s1", k) for k in range(8) for _ in range(2)]
    def wait_for(tag):
        idx = max(i for i, t in enumerate(q) if t == tag)
        return len(q) - 1 - idx
    issue_at = {}
    for k in range(8):
        issue_at.setdefault(k, []).append(("s2", k))
        issue_at.setdefault(8 + 2 * k, []).append(("s3", k))
    A("    s_waitcnt vmcnt(16)")
    for ks in range(32):
        if ks + 1 < 32:
            b_reads(ks + 1)
        s_ = ks >> 3; k = ks & 7
        wbase = [V_W0, V_SCR, V_ACC, V_W0][s_] + 8 * k
        lg = 3 if ks < 31 else 0
        if s_ == 0:
            A(f"    s_waitcnt lgkmcnt({lg})")
        else:
            n = wait_for((f"s{s_}", k))
            A(f"    s_waitcnt vmcnt({n}) lgkmcnt({lg})")
        st = BR + 12 * (ks & 1)
        for T in range(3):
            for t in range(2):
                a = V_ACC2 + 4 * (2 * T + t)
                A(f"    v_mfma_f32_16x16x32_bf16 v[{a}:{a+3}], v[{wbase+4*t}:{wbase+4*t+3}], v[{st+4*T}:{st+4*T+3}], v[{a}:{a+3}]")
        for (tag, kk) in issue_at.get(ks, []):
            if tag == "s2":
                w_load2(16 + kk, V_ACC + 8 * kk)
            else:
                w_load2(24 + kk, V_W0 + 8 * kk)
            q.append((tag, kk)); q.append((tag, kk))
    stamp(A, 7)
    A("    s_nop 7")
    for T in range(3):
        a0 = V_ACC2 + 4 * (2 * T); a1 = a0 + 4
        st = 12 + 4 * T
        A(f"    v_cvt_pk_bf16_f32 v{st}, v{a0}, v{a0+1}")
        A(f"    v_cvt_pk_bf16_f32 v{st+1}, v{a0+2}, v{a0+3}")
        A(f"    v_cvt_pk_bf16_f32 v{st+2}, v{a1}, v{a1+1}")
        A(f"    v_cvt_pk_bf16_f32 v{st+3}, v{a1+2}, v{a1+3}")
        A(f"    buffer_store_dwordx4 v[{st}:{st+3}], v{8+T}, s[{S_OUT}:{S_OUT+3}], 0 offen")
    if STAMPS:
        A("    s_waitcnt vmcnt(0)")
    stamp(A, 8)
    stamp_flush(A, 60, 0, 0)
    A("    s_endpgm")

    A.label("MAIN_SLOW")
    gen_slow(A, opt, emit_finb, emit_fina)
    A.label("MAIN_END")
    A("    s_endpgm")


def gen_slow(A, opt, emit_finb, emit_fina):
    S_GRP = 62; S_POS = 63; S_CNT = 64; S_LO = 65; S_HIB = 66; S_BASE = 67
    for i in range(64):
        A(f"    v_mov_b32 v{V_ACC+i}, 0")
    if opt.wpos == "B":
        for ks in range(8):
            w_load(A, ks, V_W0 + 8 * ks)
    A("    s_waitcnt vmcnt(0)")
    A(f"    s_mul_i32 s{S_BASE}, s2, {TILE}")
    A(f"    s_mov_b32 s{S_GRP}, 0")
    A(f"    s_mov_b32 s{S_M0}, s{S_REG}")
    A(f"    v_lshlrev_b32 v48, 2, v{V_L}              ; lane*4")
    A.label("SLOW_GROUP")
    A(f"    s_add_u32 s{S_LO}, s{S_W}, 32")
    A(f"    s_add_u32 s{S_HIB}, s{S_LO}, 1")
    A(f"    s_cmp_eq_u32 s{S_GRP}, 0")
    A("    s_cbranch_scc1 SLOW_RANGE")
    A(f"    s_lshl_b32 s{S_LO}, s{S_W}, 2")
    A(f"    s_add_u32 s{S_HIB}, s{S_LO}, 4")
    A.label("SLOW_RANGE")
    A(f"    s_mov_b32 s{S_POS}, 0")
    A.label("SLOW_REFILL")
    A(f"    v_mov_b32 v49, {hex(SENT_LIST)}")
    A(f"    v_add_u32 v50, s{S_ABASE}, v48")
    A(f"    ds_write_b32 v50, v49")
    A(f"    ds_write_b32 v50, v49 offset:256")
    A(f"    s_mov_b32 s{S_CNT}, 0")
    A.label("SLOW_SCAN")
    A(f"    s_cmp_ge_u32 s{S_POS}, {E*4}")
    A("    s_cbranch_scc1 SLOW_FLUSH")
    A(f"    s_cmp_gt_u32 s{S_CNT}, 64")
    A("    s_cbranch_scc1 SLOW_FLUSH")
    A(f"    buffer_load_dword v50, v48, s[{S_DST}:{S_DST+3}], s{S_POS} offen")
    A(f"    buffer_load_dword v51, v48, s[{S_SRC}:{S_SRC+3}], s{S_POS} offen")
    A(f"    s_add_u32 s{S_POS}, s{S_POS}, 256")
    A("    s_waitcnt vmcnt(0)")
    A(f"    v_subrev_u32 v50, s{S_BASE}, v50")
    A(f"    v_cmp_le_u32 s[68:69], s{S_LO}, v50")
    A(f"    v_cmp_gt_u32 vcc, s{S_HIB}, v50")
    A(f"    s_and_b64 vcc, vcc, s[68:69]")
    A(f"    v_lshl_or_b32 v51, v51, 9, v50")
    A(f"    s_nop 0")
    A(f"    v_mbcnt_lo_u32_b32 v52, vcc_lo, 0")
    A(f"    v_mbcnt_hi_u32_b32 v52, vcc_hi, v52")
    A(f"    v_add_u32 v52, s{S_CNT}, v52")
    A(f"    v_lshlrev_b32 v52, 2, v52")
    A(f"    v_add_u32 v52, s{S_ABASE}, v52")
    A(f"    s_bcnt1_i32_b64 s{S_T0}, vcc")
    A(f"    s_add_u32 s{S_CNT}, s{S_CNT}, s{S_T0}")
    A(f"    s_and_saveexec_b64 s[{S_EX}:{S_EX+1}], vcc")
    A(f"    ds_write_b32 v52, v51")
    A(f"    s_mov_b64 exec, s[{S_EX}:{S_EX+1}]")
    A("    s_branch SLOW_SCAN")
    A.label("SLOW_FLUSH")
    A(f"    s_add_u32 s{S_NU}, s{S_CNT}, 15")
    A(f"    s_lshr_b32 s{S_NU}, s{S_NU}, 4")
    A(f"    s_mov_b32 s{S_P}, 0")
    A(f"    s_mov_b32 s{S_PTR}, s{S_ABASE}")
    A("    s_waitcnt lgkmcnt(0)")
    A.label("SLOW_UNIT")
    A(f"    s_cmp_ge_u32 s{S_P}, s{S_NU}")
    A("    s_cbranch_scc1 SLOW_UNITS_DONE")
    A(f"    v_add_u32 v{V_TMP2}, s{S_PTR}, v{V_H4}")
    emit_dma_entry_reads(A, V_TMP2)
    A("    s_waitcnt lgkmcnt(0)")
    emit_dma_issue(A)
    A(f"    s_mov_b32 s{S_P2}, s{S_PTR}")
    A("    s_waitcnt vmcnt(0)")
    emit_unit_front(A)
    for ft in range(16):
        agg_mfma(A, ft)
    A(f"    s_add_u32 s{S_P}, s{S_P}, 1")
    A(f"    s_add_u32 s{S_PTR}, s{S_PTR}, 64")
    A("    s_branch SLOW_UNIT")
    A.label("SLOW_UNITS_DONE")
    A(f"    s_cmp_lt_u32 s{S_POS}, {E*4}")
    A("    s_cbranch_scc1 SLOW_REFILL")
    A(f"    s_cmp_eq_u32 s{S_GRP}, 1")
    A("    s_cbranch_scc1 MAIN_DONE")
    emit_finb(A)
    A(f"    s_mov_b32 s{S_GRP}, 1")
    A("    s_branch SLOW_GROUP")


def kd(name, vgpr, sgpr):
    return f""".amdhsa_kernel {name}
  .amdhsa_next_free_vgpr {vgpr}
  .amdhsa_next_free_sgpr {sgpr}
  .amdhsa_accum_offset {((vgpr+3)//4)*4}
  .amdhsa_group_segment_fixed_size 0
  .amdhsa_kernarg_size 72
  .amdhsa_user_sgpr_count 2
  .amdhsa_user_sgpr_kernarg_segment_ptr 1
  .amdhsa_system_sgpr_workgroup_id_x 1
  .amdhsa_float_denorm_mode_32 3
.end_amdhsa_kernel
"""


HEADER = """; Kernarg layout for this problem (72 bytes, ptrs only, base s[0:1]):
"""


def main():
    ap = argparse.ArgumentParser()
    ap.add_argument("-o", default="gather_scatter__graph_attention_gat__graph.s")
    ap.add_argument("--stamps", action="store_true")
    ap.add_argument("--ustamps", action="store_true")
    ap.add_argument("--dbgstamp", action="store_true")
    ap.add_argument("--up", type=int, default=1)
    ap.add_argument("--wpos", default="B")
    ap.add_argument("--touch", type=int, default=1)
    opt = ap.parse_args()
    global STAMPS, USTAMPS, DBGSTAMP
    DBGSTAMP = opt.dbgstamp
    STAMPS = opt.stamps
    USTAMPS = opt.ustamps
    A = Asm()
    A(HEADER.rstrip("\n"))
    A("; @launch kernel=gat_prep_kernel grid=(96,1,1) block=(640,1,1) lds=43520")
    A(f"; @launch kernel=gather_scatter__graph_attention_gat__graph_kernel grid=({NT},1,1) block=(512,1,1) lds={LDS_MAIN}")
    A('.amdgcn_target "amdgcn-amd-amdhsa--gfx950"')
    A(".text")
    gen_prep(A, opt)
    gen_main(A, opt)
    A('.section .rodata,"a"')
    A(".p2align 6")
    A(kd("gat_prep_kernel", 128, 102 if STAMPS else 48))
    A(".p2align 6")
    A(kd("gather_scatter__graph_attention_gat__graph_kernel", 256, 102 if STAMPS else 96))
    open(opt.o, "w").write(A.text())
    print("wrote", opt.o, len(A.lines), "lines")


if __name__ == "__main__":
    main()
```

```python
import sys, argparse

N = 10000; E = 160000; TILE = 40; NT = 250; G = 64; CH = 2500
WS_SLOTS = 0
WS_V = 0x1F8000
WS_WF = 0x200000
WS_STAMP = 0x700000
REGSZ = 17408; UNIT = 8704; PAIR = 1088; RROW = 2080
AGG1 = 8 * REGSZ
LISTS = AGG1 + 8 * RROW
LSZ = 704
TBUF = LISTS + 8 * LSZ
CNT = TBUF + 768
OVF = CNT + 64
LDS_MAIN = CNT + 128
VLDS = AGG1
CAPA = 128; CAPB = 48
SENT_LIST = 0x7FFFFE3F
LOG2E = 0x3FB8AA3B


class Asm:
    def __init__(self):
        self.lines = []
    def __call__(self, s=""):
        for l in s.split("\n"):
            self.lines.append(l)
    def label(self, n):
        self.lines.append(n + ":")
    def text(self):
        return "\n".join(self.lines) + "\n"


class Opt:
    pass
opt = Opt()
_ul = [0]
def uid(p):
    _ul[0] += 1
    return f"{p}_{_ul[0]}"


def stamp(A, i):
    if opt.stamps and not opt.ustamps and not opt.gstamps and not opt.pstamps and not opt.fstamps:
        A(f"    {'s_memtime' if opt.clk else 's_memrealtime'} s[{82+2*i}:{83+2*i}]")
def ustamp(A, p, i):
    if opt.stamps and opt.ustamps:
        l = uid("US")
        A(f"    s_cmp_eq_u32 s{S_P}, {p}")
        A(f"    s_cbranch_scc0 {l}")
        A(f"    s_memtime s[{82+2*i}:{83+2*i}]")
        A.label(l)
def pstamp(A):
    if opt.stamps and opt.pstamps:
        for p in range(8):
            l = uid("PS")
            A(f"    s_cmp_eq_u32 s{S_P}, {p}")
            A(f"    s_cbranch_scc0 {l}")
            A(f"    s_memtime s[{82+2*p}:{83+2*p}]")
            A.label(l)
def fstamp(A, i):
    if opt.stamps and opt.fstamps:
        A(f"    s_memtime s[{82+2*i}:{83+2*i}]")
def gstamp(A, i):
    if opt.stamps and opt.gstamps:
        A(f"    s_memtime s[{82+2*i}:{83+2*i}]")
def stamp_flush(A, wsbase, area):
    if not opt.stamps:
        return
    A("    s_waitcnt lgkmcnt(0)")
    A(f"    s_mov_b32 s76, s{wsbase}\n    s_mov_b32 s77, s{wsbase+1}\n    s_mov_b32 s78, 0x800000\n    s_mov_b32 s79, 0x00020000")
    A(f"    s_lshl_b32 s80, s2, 4")
    A(f"    s_add_u32 s80, s80, s100")
    A(f"    s_lshl_b32 s80, s80, 6")
    A(f"    s_add_u32 s80, s80, {WS_STAMP+area}")
    A("    s_mov_b64 exec, 1")
    A("    v_mov_b32 v1, 0")
    for i in range(9):
        A(f"    v_mov_b32 v2, s{82+2*i}")
        A(f"    buffer_store_dword v2, v1, s[76:79], s80 offen offset:{4*i}")
        A("    s_nop 1")


def srd(A, d, base, nbytes):
    A(f"    s_mov_b32 s{d}, s{base}")
    A(f"    s_mov_b32 s{d+1}, s{base+1}")
    A(f"    s_mov_b32 s{d+2}, {nbytes}")
    A(f"    s_mov_b32 s{d+3}, 0x00020000")


def x_touch(A, sbase, vaddr, vdst, ssrd, stmp):
    if not opt.xpre:
        return
    srd(A, ssrd, sbase, N * 512)
    A(f"    s_lshr_b32 s{stmp}, s2, 3")
    A(f"    s_mul_i32 s{stmp}, s{stmp}, 640")
    A(f"    v_add_u32 v{vaddr}, s{stmp}, v0")
    A(f"    v_lshlrev_b32 v{vaddr}, 7, v{vaddr}")
    for r in range(opt.xpre):
        A(f"    s_mov_b32 s{stmp}, {r*20480*128}")
        A(f"    buffer_load_dword v{vdst}, v{vaddr}, s[{ssrd}:{ssrd+3}], s{stmp} offen")


def ws_bytes():
    return WS_WF + opt.copies * 524288


def gen_prep(A):
    K = "gat_prep_kernel"
    NWG_W = 16 * opt.copies
    V0 = 64 + NWG_W
    X0 = V0 + 32
    NPREP = 256 if opt.xpre else X0
    opt.nprep = NPREP
    A(f".globl {K}\n.p2align 8\n.type {K},@function\n{K}:")
    A(f"    s_cmp_ge_u32 s2, {NPREP}")
    A("    s_cbranch_scc1 PREP_END")
    stamp(A, 0)
    if opt.stamps:
        A("    v_lshrrev_b32 v1, 6, v0\n    s_nop 1\n    v_readfirstlane_b32 s100, v1")
    A("    s_cmp_ge_u32 s2, 64")
    A("    s_cbranch_scc1 PREP_NB")
    A("    s_load_dwordx4 s[4:7], s[0:1], 8")
    A("    s_load_dwordx2 s[10:11], s[0:1], 64     ; ws")
    A("    s_load_dwordx2 s[12:13], s[0:1], 0      ; x")
    A("    v_lshlrev_b32 v1, 4, v0")
    for i in range(4):
        A(f"    v_mov_b32 v{4+i}, -1")
    A("    v_lshlrev_b32 v2, 2, v0")
    A("    v_mov_b32 v3, 0")
    A("    s_mul_i32 s28, s2, 10000")
    A("    v_add_u32 v30, s28, v1")
    A("    s_waitcnt lgkmcnt(0)")
    stamp(A, 1)
    srd(A, 20, 6, E * 4)
    A("    buffer_load_dwordx4 v[8:11], v30, s[20:23], 0 offen      ; dst")
    srd(A, 16, 4, E * 4)
    A("    buffer_load_dwordx4 v[12:15], v30, s[16:19], 0 offen     ; src")
    srd(A, 24, 10, ws_bytes())
    x_touch(A, 12, 31, 32, 36, 40)
    for r in range(4):
        A(f"    ds_write_b128 v1, v[4:7] offset:{10240*r}")
    A("    ds_write_b32 v2, v3 offset:40960")
    A("    v_cmp_gt_u32 vcc, 625, v0")
    A("    s_mov_b32 s29, 52429")
    A("    v_mov_b32 v3, 1")
    A("    v_mov_b32 v28, 32000")
    A("    s_waitcnt lgkmcnt(0)")
    A("    s_barrier")
    A("    s_and_saveexec_b64 s[30:31], vcc")
    A(f"    s_waitcnt vmcnt({1+opt.xpre})")
    stamp(A, 2)
    for i in range(4):
        A(f"    v_mul_u32_u24 v{16+i}, s29, v{8+i}")
        A(f"    v_lshrrev_b32 v{16+i}, 21, v{16+i}       ; tile")
        A(f"    v_lshlrev_b32 v{20+i}, 2, v{16+i}")
        A(f"    ds_add_rtn_u32 v{24+i}, v{20+i}, v3 offset:40960")
    A(f"    s_waitcnt vmcnt({opt.xpre})")
    for i in range(4):
        A(f"    v_mul_u32_u24 v4, 40, v{16+i}")
        A(f"    v_sub_u32 v4, v{8+i}, v4")
        A(f"    v_lshl_or_b32 v{12+i}, v{12+i}, 9, v4    ; entry")
        A(f"    v_lshlrev_b32 v{16+i}, 7, v{16+i}        ; tile*128")
    for i in range(4):
        A(f"    s_waitcnt lgkmcnt({3-i})")
        A(f"    v_cmp_gt_u32 vcc, 32, v{24+i}")
        A(f"    v_lshl_add_u32 v4, v{24+i}, 2, v{16+i}")
        A(f"    s_nop 0")
        A(f"    v_cndmask_b32 v{20+i}, v28, v4, vcc")
    for i in range(4):
        A(f"    ds_write_b32 v{20+i}, v{12+i}")
    A("    s_mov_b64 exec, s[30:31]")
    A("    s_lshl_b32 s28, s2, 7                    ; chunk*128")
    A("    v_and_b32 v2, 7, v0                      ; part (640 % 8 == 0)")
    A("    v_lshrrev_b32 v3, 3, v0")
    A("    v_lshlrev_b32 v29, 2, v3")
    A("    v_lshlrev_b32 v4, 4, v2")
    A("    v_lshl_add_u32 v4, v3, 13, v4")
    A("    v_add_u32 v4, s28, v4")
    A("    v_cmp_eq_u32 s[32:33], 7, v2")
    A("    v_cmp_gt_u32 vcc, 80, v0")
    A("    s_mov_b64 s[34:35], vcc")
    A("    v_mov_b32 v5, 0x7ffffff0")
    A("    v_mov_b32 v6, -2")
    A("    s_waitcnt lgkmcnt(0)")
    A("    s_barrier")
    stamp(A, 3)
    for r in range(4):
        A(f"    ds_read_b128 v[{8+4*r}:{11+4*r}], v1 offset:{10240*r}")
        A(f"    ds_read_b32 v{24+r}, v29 offset:{40960 + 320*r}")
    for r in range(4):
        A(f"    s_waitcnt lgkmcnt({6-2*r})")
        A(f"    v_cmp_lt_u32 vcc, 32, v{24+r}")
        A(f"    s_and_b64 vcc, vcc, s[32:33]")
        A(f"    v_add_u32 v7, {80*8192*r}, v4")
        if r == 3:
            A(f"    v_cndmask_b32 v7, v5, v7, s[34:35]")
        A(f"    s_nop 0")
        A(f"    v_cndmask_b32 v{11+4*r}, v{11+4*r}, v6, vcc")
        A(f"    buffer_store_dwordx4 v[{8+4*r}:{11+4*r}], v7, s[24:27], 0 offen")
    stamp(A, 4)
    if opt.stamps:
        A("    s_waitcnt vmcnt(0)")
    stamp(A, 5)
    stamp_flush(A, 10, 0x40000)
    A("    s_endpgm")
    A.label("PREP_NB")
    if opt.xpre:
        A(f"    s_cmp_ge_u32 s2, {X0}")
        A("    s_cbranch_scc1 PREP_X")
    A("    s_load_dwordx2 s[8:9], s[0:1], 24       ; w")
    A("    s_load_dwordx4 s[12:15], s[0:1], 32")
    A("    s_load_dwordx2 s[10:11], s[0:1], 64     ; ws")
    A("    s_load_dwordx2 s[42:43], s[0:1], 0      ; x")
    A("    s_sub_u32 s28, s2, 64                    ; idx")
    A("    v_lshrrev_b32 v1, 6, v0")
    A("    s_nop 0")
    cs = {1: 0, 2: 1, 4: 2, 8: 3}[opt.copies]
    A(f"    s_and_b32 s27, s28, {opt.copies-1}       ; copy")
    A(f"    s_lshr_b32 s28, s28, {cs}")
    A("    v_readfirstlane_b32 s29, v1              ; wave")
    A("    s_waitcnt lgkmcnt(0)")
    stamp(A, 1)
    srd(A, 16, 8, 524288)
    srd(A, 36, 10, ws_bytes())
    A(f"    s_cmp_ge_u32 s2, {V0}")
    A("    s_cbranch_scc1 PREP_V")
    A("    s_cmp_ge_u32 s29, 8")
    A("    s_cbranch_scc1 PREP_END")
    A("    s_lshl_b32 s30, s28, 15                  ; kp*2*16384")
    A("    s_add_u32 s33, s30, 16384")
    A("    v_lshrrev_b32 v1, 7, v0                  ; g")
    A("    v_and_b32 v2, 127, v0                    ; fp")
    A("    v_lshlrev_b32 v3, 11, v1")
    A("    v_lshl_add_u32 v3, v2, 2, v3             ; g*2048 + fp*4")
    A("    v_add_u32 v4, 8192, v3")
    for half, so in ((0, 30), (1, 33)):
        for j in range(4):
            A(f"    buffer_load_dword v{8+8*half+j}, v3, s[16:19], s{so} offen offset:{512*j}")
        for j in range(4):
            A(f"    buffer_load_dword v{12+8*half+j}, v4, s[16:19], s{so} offen offset:{512*j}")
    x_touch(A, 42, 41, 42, 44, 40)
    A("    v_lshrrev_b32 v5, 4, v2")
    A("    v_lshlrev_b32 v5, 16, v5")
    A("    v_bfe_u32 v6, v2, 1, 1")
    A("    v_lshl_add_u32 v5, v6, 10, v5")
    A("    v_lshl_add_u32 v5, v1, 8, v5             ; 16g*16")
    A("    v_bfe_u32 v6, v2, 2, 2")
    A("    v_lshl_add_u32 v5, v6, 6, v5             ; 4*gi*16")
    A("    v_and_b32 v6, 1, v2")
    A("    v_lshl_add_u32 v5, v6, 5, v5             ; 2*(fp&1)*16")
    A("    s_lshl_b32 s31, s28, 12                  ; kp*2*2048")
    A("    s_lshl_b32 s32, s27, 19                  ; copy*524288")
    A("    s_add_u32 s31, s31, s32")
    A(f"    s_add_u32 s31, s31, {WS_WF}")
    A("    s_mov_b32 s34, 0x05040100")
    A("    s_mov_b32 s35, 0x07060302")
    for half in range(2):
        A(f"    s_waitcnt vmcnt({(8 if half == 0 else 2) + opt.xpre})")
        if half == 0:
            stamp(A, 2)
        b = 8 + 8 * half; d = 24 + 8 * half
        for i in range(4):
            A(f"    v_perm_b32 v{d+i}, v{b+1+2*i}, v{b+2*i}, s34")
            A(f"    v_perm_b32 v{d+4+i}, v{b+1+2*i}, v{b+2*i}, s35")
        A(f"    buffer_store_dwordx4 v[{d}:{d+3}], v5, s[36:39], s31 offen offset:{2048*half}")
        A(f"    buffer_store_dwordx4 v[{d+4}:{d+7}], v5, s[36:39], s31 offen offset:{2048*half+16}")
    stamp(A, 4)
    if opt.stamps:
        A("    s_waitcnt vmcnt(0)")
    stamp(A, 5)
    stamp_flush(A, 10, 0x40000)
    A("    s_endpgm")
    A.label("PREP_V")
    A("    s_cmp_ge_u32 s29, 2")
    A("    s_cbranch_scc1 PREP_END")
    A(f"    s_sub_u32 s30, s2, {V0}")
    A("    s_lshl_b32 s30, s30, 1")
    A("    s_add_u32 s30, s30, s29")
    A("    s_lshr_b32 s31, s30, 4                   ; h")
    srd(A, 20, 12, 2048)
    srd(A, 24, 14, 2048)
    A("    v_and_b32 v1, 63, v0")
    A("    v_and_b32 v2, 15, v1                     ; i / c")
    A("    v_lshrrev_b32 v3, 4, v1                  ; g")
    A("    v_lshlrev_b32 v4, 9, v2")
    A("    v_lshl_add_u32 v4, v3, 4, v4             ; i*512 + g*16")
    A("    s_lshl_b32 s32, s30, 13")
    A("    v_lshlrev_b32 v5, 4, v3                  ; g*16")
    A("    s_lshl_b32 s33, s31, 9                   ; h*512")
    for kk in range(8):
        A(f"    buffer_load_dwordx4 v[{8+4*kk}:{11+4*kk}], v4, s[16:19], s32 offen offset:{64*kk}")
    A("    v_and_b32 v6, 1, v2")
    A("    v_cmp_eq_u32 vcc, 0, v6")
    A("    s_mov_b64 s[40:41], exec")
    A("    s_mov_b64 exec, vcc")
    for kk in range(8):
        A(f"    buffer_load_dwordx4 v[{40+4*kk}:{43+4*kk}], v5, s[20:23], s33 offen offset:{64*kk}")
    A("    s_andn2_b64 exec, s[40:41], vcc")
    for kk in range(8):
        A(f"    buffer_load_dwordx4 v[{40+4*kk}:{43+4*kk}], v5, s[24:27], s33 offen offset:{64*kk}")
    A("    s_mov_b64 exec, s[40:41]")
    A("    s_lshl_b32 s32, s30, 5")
    A(f"    s_add_u32 s32, s32, {WS_V}")
    A("    v_lshlrev_b32 v7, 3, v3")
    A("    v_lshl_add_u32 v7, v6, 11, v7")
    A("    v_cmp_gt_u32 vcc, 2, v2")
    A(f"    s_mov_b32 s33, {LOG2E}")
    A("    s_waitcnt vmcnt(0)")
    for kk in range(8):
        c = "0" if kk == 0 else "v[72:75]"
        A(f"    v_mfma_f32_16x16x32_bf16 v[72:75], v[{8+4*kk}:{11+4*kk}], v[{40+4*kk}:{43+4*kk}], {c}")
    A("    s_nop 7")
    for r in range(4):
        A(f"    v_mul_f32 v{72+r}, s33, v{72+r}")
    A("    v_cvt_pk_bf16_f32 v76, v72, v73")
    A("    v_cvt_pk_bf16_f32 v77, v74, v75")
    A("    s_and_saveexec_b64 s[40:41], vcc")
    A("    buffer_store_dwordx2 v[76:77], v7, s[36:39], s32 offen")
    stamp(A, 4)
    if opt.stamps:
        A("    s_waitcnt vmcnt(0)")
    stamp(A, 5)
    stamp_flush(A, 10, 0x40000)
    A("    s_endpgm")
    if opt.xpre:
        A.label("PREP_X")
        A("    s_load_dwordx2 s[8:9], s[0:1], 0         ; x")
        if opt.stamps:
            A("    s_load_dwordx2 s[10:11], s[0:1], 64     ; ws")
        A("    s_waitcnt lgkmcnt(0)")
        stamp(A, 1)
        x_touch(A, 8, 1, 2, 16, 28)
        if opt.stamps:
            A("    s_waitcnt vmcnt(0)")
        stamp(A, 4)
        stamp(A, 5)
        stamp_flush(A, 10, 0x40000)
    A.label("PREP_END")
    A("    s_endpgm")


V_TMP = 0; V_DMAC = 1; V_SADDR = 2; V_TE = 3; V_TO = 4; V_G16 = 5; V_H4 = 6; V_TGT = 7; V_TQ = 8
V_PT = 12; V_E = 16; V_D = 20; V_S = 28; V_DEN = 32; V_X = 36; V_ONES = 224
V_TGTA = 40; V_TA = 41; V_T1 = 42; V_T2 = 43; V_T3 = 44; V_WOFF = 45; V_FE = 46; V_FO = 47
V_R = 48; V_SCR = 64; V_V = 128; V_ACC = 160
V_ACC2 = 40
S_X = 4; S_WS = 8; S_OUT = 12; S_SRC = 16; S_DST = 20
S_W = 24; S_NA = 25; S_NB = 26; S_NU = 27; S_P = 28; S_PTR = 29; S_M0 = 30; S_DELTA = 31
S_MSK = 32
S_HI = 40; S_T0 = 41; S_T1 = 42; S_T2 = 43; S_ABASE = 44; S_REG = 45; S_P2 = 46; S_WF = 47; S_EX = 48
S_C02 = 50; S_FIRST = 52; S_K = 53; S_KA = 54; S_KB = 55
S_J1 = 70; S_J2 = 72; S_J3 = 74


def lane_cg(A, vl, vc, vg):
    A(f"    v_mbcnt_lo_u32_b32 v{vl}, -1, 0")
    A(f"    v_mbcnt_hi_u32_b32 v{vl}, -1, v{vl}")
    A(f"    v_and_b32 v{vc}, 15, v{vl}")
    A(f"    v_lshrrev_b32 v{vg}, 4, v{vl}")


def dma_one(A, q, between=None):
    A(f"    v_and_or_b32 v{V_D+q}, v{V_D+q}, s{S_HI}, v{V_DMAC}")
    if q == 0:
        A(f"    s_mov_b32 m0, s{S_M0}")
    else:
        A(f"    s_add_u32 m0, s{S_M0}, {PAIR*q}")
    if between:
        between()
    else:
        A("    s_nop 0")
    A(f"    buffer_load_dwordx4 v{V_D+q}, s[{S_X}:{S_X+3}], 0 offen lds")


def wait_vm_dyn(A, sreg, base, lo=0, hi=8):
    end = uid("WV")
    def rec(a, b):
        if a == b:
            A(f"    s_waitcnt vmcnt({base + a})")
            A(f"    s_branch {end}")
            return
        m = (a + b + 1) // 2
        l = uid("WV")
        A(f"    s_cmp_ge_u32 s{sreg}, {m}")
        A(f"    s_cbranch_scc1 {l}")
        rec(a, m - 1)
        A.label(l)
        rec(m, b)
    rec(lo, hi)
    A.label(end)


def dma_partial(A, sreg, zero_fill, rev=False):
    end = uid("DP")
    zl = [uid("DZ") for _ in range(8)]
    order = list(range(7, -1, -1)) if rev else list(range(8))
    for n, q in enumerate(order):
        if n > 0:
            A(f"    s_cmp_gt_u32 s{sreg}, {n}")
            A(f"    s_cbranch_scc0 {zl[n] if zero_fill else end}")
        dma_one(A, q)
    if zero_fill:
        A(f"    s_branch {end}")
        for n in range(1, 8):
            A.label(zl[n])
            A(f"    ds_write_b128 v{V_T2}, v[{V_S}:{V_S+3}] offset:{PAIR*order[n]}")
    A.label(end)


def unit_k(A, sq):
    A(f"    s_add_u32 s{S_T2}, s{sq}, 1")
    A(f"    s_cmp_eq_u32 s{S_T2}, s{S_NU}")
    A(f"    s_cselect_b32 s{S_K}, s{S_KA}, 8")


def dma_entry_reads(A, addr_v):
    for i in range(4):
        A(f"    ds_read2_b32 v[{V_D+2*i}:{V_D+2*i+1}], v{addr_v} offset0:{4*i} offset1:{4*i+2}")


def s_prefetch(A, between=None):
    A(f"    v_add_u32 v{V_TMP}, s{S_PTR}, v{V_G16}")
    if between: between(0)
    A(f"    ds_read_b128 v[{V_E}:{V_E+3}], v{V_TMP}")
    for kk in range(4):
        if between: between(1 + kk)
        A(f"    ds_read_b128 v[{V_R+4*kk}:{V_R+4*kk+3}], v{V_SADDR} offset:{64*kk}")


def unit_front(A, par=0):
    q = ["E", "S0", "S1", "S2", "S3"]
    def wait(tag):
        idx = q.index(tag)
        return len(q) - 1 - idx
    A(f"    v_add_u32 v{V_T1}, s{S_P2}, v{V_H4}")
    for kk in range(8):
        A(f"    s_waitcnt lgkmcnt({wait('S%d' % kk)})")
        c = f"v[{V_TQ}:{V_TQ+3}]" if kk == 0 else f"v[{V_S}:{V_S+3}]"
        r = V_R + 4 * (kk & 3)
        A(f"    v_mfma_f32_16x16x32_bf16 v[{V_S}:{V_S+3}], v[{r}:{r+3}], v[{V_V+4*kk}:{V_V+4*kk+3}], {c}")
        if kk < 4:
            A(f"    ds_read_b128 v[{r}:{r+3}], v{V_SADDR} offset:{64*(kk+4)}")
            q.append("S%d" % (kk + 4))
        a0 = V_SCR + 4 * (2 * kk) + 2 * par; a1 = V_SCR + 4 * (2 * kk + 1) + 2 * par
        A(f"    ds_read_b64_tr_b16 v[{a0}:{a0+1}], v{V_TE} offset:{64*kk}")
        A(f"    ds_read_b64_tr_b16 v[{a1}:{a1+1}], v{V_TO} offset:{64*kk+32}")
        q.append("T"); q.append("T")
    dma_entry_reads(A, V_T1)
    for r in range(4):
        A(f"    v_cmp_eq_u32_sdwa s[{S_MSK+2*r}:{S_MSK+2*r+1}], v{V_E+r}, v{V_TGT} src0_sel:BYTE_0 src1_sel:DWORD")
    A(f"    v_pk_mul_f32 v[{V_X}:{V_X+1}], v[{V_S}:{V_S+1}], s[{S_C02}:{S_C02+1}] op_sel_hi:[1,0]")
    A(f"    v_pk_mul_f32 v[{V_X+2}:{V_X+3}], v[{V_S+2}:{V_S+3}], s[{S_C02}:{S_C02+1}] op_sel_hi:[1,0]")
    for r in range(4):
        A(f"    v_max_f32 v{V_X+r}, v{V_X+r}, v{V_S+r}")
    for r in range(4):
        A(f"    v_exp_f32 v{V_X+r}, v{V_X+r}")
    for r in range(4):
        A(f"    v_cndmask_b32 v{V_X+r}, 0, v{V_X+r}, s[{S_MSK+2*r}:{S_MSK+2*r+1}]")
    A(f"    v_cvt_pk_bf16_f32 v{V_PT+2*par}, v{V_X}, v{V_X+1}")
    A(f"    v_cvt_pk_bf16_f32 v{V_PT+2*par+1}, v{V_X+2}, v{V_X+3}")


def agg_mfma(A, ft, first=False, k32=False):
    c = "0" if first else f"v[{V_ACC+4*ft}:{V_ACC+4*ft+3}]"
    a = V_SCR + 4 * ft
    if k32:
        A(f"    v_mfma_f32_16x16x32_bf16 v[{V_ACC+4*ft}:{V_ACC+4*ft+3}], v[{a}:{a+3}], v[{V_PT}:{V_PT+3}], {c}")
    else:
        A(f"    v_mfma_f32_16x16x16_bf16 v[{V_ACC+4*ft}:{V_ACC+4*ft+3}], v[{a}:{a+1}], v[{V_PT}:{V_PT+1}], {c}")


def den_mfma(A, first=False, k32=False):
    c = "0" if first else f"v[{V_DEN}:{V_DEN+3}]"
    if k32:
        A(f"    v_mfma_f32_16x16x32_bf16 v[{V_DEN}:{V_DEN+3}], v[{V_ONES}:{V_ONES+3}], v[{V_PT}:{V_PT+3}], {c}")
    else:
        A(f"    v_mfma_f32_16x16x16_bf16 v[{V_DEN}:{V_DEN+3}], v[{V_ONES}:{V_ONES+1}], v[{V_PT}:{V_PT+1}], {c}")


def unit_tail(A, dma, nxt, agg, first):
    k32 = agg == "k32"
    pend = list(range(16)) if agg else []
    def mf():
        if pend:
            agg_mfma(A, pend.pop(0), first, k32)
            return True
        return False
    if dma == "part":
        dma_partial(A, S_K, False)
    if agg:
        den_mfma(A, first, k32)
    for q in range(8):
        if dma == "full":
            dma_one(A, q, between=(lambda: (mf() or A("    s_nop 0"))))
        else:
            mf()
    A(f"    v_add_u32 v{V_SADDR}, s{S_DELTA}, v{V_SADDR}")
    A(f"    s_add_u32 s{S_PTR}, s{S_PTR}, 64")
    if nxt:
        if dma == "part":
            wait_vm_dyn(A, S_K, 0, 1, 7)
        else:
            A(f"    s_waitcnt vmcnt({8 if dma else 0})")
        s_prefetch(A, between=lambda i: mf())
    while mf():
        pass
    A(f"    v_add_u32 v{V_TE}, s{S_DELTA}, v{V_TE}")
    A(f"    v_add_u32 v{V_TO}, s{S_DELTA}, v{V_TO}")
    A(f"    s_add_u32 s{S_M0}, s{S_M0}, s{S_DELTA}")
    A(f"    s_sub_u32 s{S_DELTA}, 0, s{S_DELTA}")
    A(f"    s_add_u32 s{S_P}, s{S_P}, 1")
    if agg:
        A(f"    s_mov_b32 s{S_FIRST}, 0")


def finalize(A, stage, after_pair=None, fs=False):
    A(f"    v_add_f32 v{V_X}, 0x3089705f, v{V_DEN}        ; + 1e-9")
    A(f"    v_rcp_f32 v{V_X}, v{V_X}")
    A("    s_nop 0")
    A(f"    v_mul_f32 v{V_X}, 0x3e800000, v{V_X}")
    if fs: fstamp(A, 1)
    for u in range(8):
        if fs and u == 4: fstamp(A, 2)
        sq = stage + 4 * (u & 3)
        for half in range(2):
            a = V_ACC + 4 * (2 * u + half)
            if opt.nopk:
                for r in range(4):
                    A(f"    v_mul_f32 v{a+r}, v{V_X}, v{a+r}")
            else:
                A(f"    v_pk_mul_f32 v[{a}:{a+1}], v[{a}:{a+1}], v[{V_X}:{V_X+1}] op_sel_hi:[1,0]")
                A(f"    v_pk_mul_f32 v[{a+2}:{a+3}], v[{a+2}:{a+3}], v[{V_X}:{V_X+1}] op_sel_hi:[1,0]")
        for half in range(2):
            a = V_ACC + 4 * (2 * u + half)
            A(f"    v_cvt_pk_bf16_f32 v{sq+2*half}, v{a}, v{a+1}")
            A(f"    v_cvt_pk_bf16_f32 v{sq+2*half+1}, v{a+2}, v{a+3}")
        ad = V_FE if u % 2 == 0 else V_FO
        A(f"    ds_write_b128 v{ad}, v[{sq}:{sq+3}] offset:{64*u}")
        if after_pair:
            after_pair(u)


def fin_addr(A, vc, vg):
    A(f"    v_and_b32 v{V_T1}, 3, v{vc}                ; h")
    A(f"    v_lshl_add_u32 v{V_FE}, v{V_T1}, 9, v{V_FE}")
    A(f"    v_and_b32 v{V_T2}, 1, v{V_T1}")
    A(f"    v_xor_b32 v{V_T2}, v{V_T2}, v{vg}")
    A(f"    v_lshl_add_u32 v{V_FE}, v{V_T2}, 4, v{V_FE}")
    A(f"    v_lshrrev_b32 v{V_T1}, 1, v{V_T1}")
    A(f"    v_lshlrev_b32 v{V_T1}, 6, v{V_T1}          ; 64*h1")
    A(f"    v_sub_u32 v{V_FO}, v{V_FE}, v{V_T1}")
    A(f"    v_add_u32 v{V_FE}, v{V_FE}, v{V_T1}")


def zero_acc(A):
    for i in range(64):
        A(f"    v_mov_b32 v{V_ACC+i}, 0")
    for i in range(4):
        A(f"    v_mov_b32 v{V_DEN+i}, 0")


def wslot(ks):
    k = ks & 15
    if k < 3:
        return 232 + 8 * k
    if k < 15:
        return 64 + 8 * (k - 3)
    return 224


def w_load(A, ks, dst, voff=V_WOFF):
    A(f"    s_add_u32 s{S_T0}, s{S_WF}, {ks*2048}")
    A(f"    buffer_load_dwordx4 v[{dst}:{dst+3}], v{voff}, s[{S_WS}:{S_WS+3}], s{S_T0} offen")
    A(f"    buffer_load_dwordx4 v[{dst+4}:{dst+7}], v{voff}, s[{S_WS}:{S_WS+3}], s{S_T0} offen offset:1024")


def emit_finb(A, after_loop=True):
    l = uid("FB")
    A(f"    s_cmp_lg_u32 s{S_NB}, 0")
    A(f"    s_cbranch_scc1 {l}")
    zero_acc(A)
    A.label(l)
    A(f"    v_add_f32 v{V_X}, 0x3089705f, v{V_DEN}        ; + 1e-9")
    A(f"    v_rcp_f32 v{V_X}, v{V_X}")
    for j, m in ((1, S_J1), (2, S_J2), (3, S_J3)):
        for i in range(16):
            A(f"    v_cndmask_b32 v{V_ACC+i}, v{V_ACC+i}, v{V_ACC+16*j+i}, s[{m}:{m+1}]")
            if j == 1 and i == 0:
                A(f"    v_mul_f32 v{V_X}, 0x3e800000, v{V_X}")
    if after_loop: fstamp(A, 1)
    for i in range(8):
        a = V_ACC + 2 * i
        A(f"    v_pk_mul_f32 v[{a}:{a+1}], v[{a}:{a+1}], v[{V_X}:{V_X+1}] op_sel_hi:[1,0]")
    for i in range(8):
        a = V_ACC + 2 * i
        A(f"    v_cvt_pk_bf16_f32 v{V_SCR+i}, v{a}, v{a+1}")
    if after_loop: fstamp(A, 2)
    A(f"    ds_write_b128 v{V_FE}, v[{V_SCR}:{V_SCR+3}]")
    A(f"    ds_write_b128 v{V_FO}, v[{V_SCR+4}:{V_SCR+7}] offset:64")
    if after_loop: fstamp(A, 3)
    A(f"    v_mov_b32 v{V_TGT}, v{V_TGTA}")
    for i in range(4):
        A(f"    v_mov_b32 v{V_TQ+i}, v{V_TA}")
    lane_cg(A, V_T3, V_X + 2, V_X + 3)
    A(f"    s_and_b32 s{S_T0}, s{S_W}, 1")
    A(f"    s_lshl_b32 s{S_T0}, s{S_T0}, 7")
    A(f"    s_add_u32 s{S_T0}, s{S_T0}, s{S_REG}")
    A(f"    v_lshrrev_b32 v{V_FE}, 2, v{V_X+2}")
    A(f"    v_mul_u32_u24 v{V_FE}, {RROW}, v{V_FE}")
    A(f"    v_add_u32 v{V_FE}, s{S_T0}, v{V_FE}")
    fin_addr(A, V_X + 2, V_X + 3)
    A(f"    s_mov_b32 s{S_FIRST}, 1")
    if after_loop: fstamp(A, 4)
    A("    s_waitcnt lgkmcnt(0)")
    if after_loop: fstamp(A, 5)


def gen_main(A):
    K = "gather_scatter__graph_attention_gat__graph_kernel"
    VC = 36; VG = 37; VL = 38
    A(f".globl {K}\n.p2align 8\n.type {K},@function\n{K}:")
    A(f"    s_cmp_ge_u32 s2, {NT}")
    A("    s_cbranch_scc1 MAIN_END")
    stamp(A, 0)
    A("    s_load_dwordx2 s[60:61], s[0:1], 64      ; ws")
    A("    s_load_dwordx2 s[52:53], s[0:1], 0       ; x")
    A("    s_load_dwordx2 s[54:55], s[0:1], 48      ; out")
    A("    s_load_dwordx4 s[56:59], s[0:1], 8")
    A(f"    v_and_b32 v{VL}, 63, v0")
    A(f"    v_lshrrev_b32 v{V_T1}, 6, v0")
    A(f"    v_and_b32 v{VC}, 15, v{VL}")
    A(f"    v_readfirstlane_b32 s{S_W}, v{V_T1}")
    A(f"    v_lshrrev_b32 v{VG}, 4, v{VL}")
    A(f"    v_lshlrev_b32 v20, 4, v0                 ; tid*16")
    A(f"    v_lshlrev_b32 v{V_WOFF}, 4, v{VL}        ; lane*16")
    A(f"    v_lshlrev_b32 v21, 9, v{VC}")
    A(f"    v_lshl_add_u32 v21, v{VG}, 4, v21")
    A(f"    s_mul_i32 s{S_REG}, s{S_W}, {REGSZ}")
    A(f"    s_and_b32 s{S_WF}, s2, {opt.copies-1}")
    A(f"    s_lshl_b32 s{S_WF}, s{S_WF}, 19")
    A(f"    s_lshl_b32 s{S_T0}, s{S_W}, 16")
    A(f"    s_add_u32 s{S_WF}, s{S_WF}, s{S_T0}")
    A(f"    s_add_u32 s{S_WF}, s{S_WF}, {WS_WF}")
    A("    s_waitcnt lgkmcnt(0)")
    stamp(A, 1)
    if opt.stamps:
        A(f"    s_mov_b32 s100, s{S_W}")
    srd(A, S_WS, 60, ws_bytes())
    A(f"    s_lshl_b32 s{S_T0}, s2, 13")
    A(f"    buffer_load_dwordx4 v[16:19], v20, s[{S_WS}:{S_WS+3}], s{S_T0} offen")
    srd(A, S_X, 52, N * 512)
    A(f"    s_cmp_ge_u32 s{S_W}, 4")
    A("    s_cbranch_scc1 MAIN_NOV")
    A(f"    s_lshl_b32 s{S_T0}, s{S_W}, 10")
    A(f"    s_add_u32 s{S_T0}, s{S_T0}, {WS_V}")
    A(f"    buffer_load_dwordx4 v[24:27], v{V_WOFF}, s[{S_WS}:{S_WS+3}], s{S_T0} offen")
    A.label("MAIN_NOV")
    A(f"    v_and_b32 v{V_T1}, 31, v{VL}")
    A(f"    v_lshlrev_b32 v{V_T1}, 4, v{V_T1}")
    A(f"    v_lshrrev_b32 v{V_T2}, 5, v{VL}")
    A(f"    v_lshlrev_b32 v{V_H4}, 2, v{V_T2}")
    A(f"    v_lshlrev_b32 v21, 9, v{V_T2}            ; hi*512")
    A(f"    v_cmp_eq_u32 vcc, 0, v{V_T2}")
    A(f"    v_lshlrev_b32 v{V_T2}, 5, v{V_T2}")
    A(f"    v_xor_b32 v{V_DMAC}, v{V_T1}, v{V_T2}    ; DMAC = ((l&31)*16) ^ ((l>>5)*32)")
    A(f"    v_add_u32 v21, v21, v{V_DMAC}")
    A(f"    v_mov_b32 v22, 0x7ffffe00")
    A(f"    v_cndmask_b32 v22, v22, v{V_DMAC}, vcc")
    A(f"    s_mul_i32 s{S_T0}, s2, {TILE*512}")
    A(f"    s_lshl_b32 s{S_T1}, s{S_W}, 11            ; 4w rows")
    A(f"    s_add_u32 s{S_T1}, s{S_T1}, s{S_T0}")
    A(f"    s_add_u32 m0, s{S_REG}, {UNIT}")
    A(f"    s_add_u32 s{S_T2}, s{S_T1}, 1024")
    A(f"    buffer_load_dwordx4 v21, s[{S_X}:{S_X+3}], s{S_T1} offen lds")
    A(f"    s_add_u32 m0, s{S_REG}, {UNIT+PAIR}")
    A(f"    s_lshl_b32 s{S_T1}, s{S_W}, 9")
    A(f"    buffer_load_dwordx4 v21, s[{S_X}:{S_X+3}], s{S_T2} offen lds")
    A(f"    s_add_u32 m0, s{S_REG}, {UNIT+2*PAIR}")
    A(f"    s_add_u32 s{S_T1}, s{S_T1}, s{S_T0}")
    A(f"    s_add_u32 s{S_T1}, s{S_T1}, {32*512}")
    A(f"    buffer_load_dwordx4 v22, s[{S_X}:{S_X+3}], s{S_T1} offen lds")
    if opt.xt:
        A(f"    s_lshr_b32 s{S_T0}, s2, 3")
        A(f"    s_lshl_b32 s{S_T0}, s{S_T0}, 9")
        A(f"    v_add_u32 v23, s{S_T0}, v0")
        A(f"    v_lshlrev_b32 v23, 7, v23")
        for r in range(opt.xt):
            A(f"    s_mov_b32 s{S_T0}, {opt.xoff + r*16384*128}")
            A(f"    buffer_load_dword v255, v23, s[{S_X}:{S_X+3}], s{S_T0} offen")
    NW0 = 0
    srd(A, S_OUT, 54, N * 512)
    srd(A, S_SRC, 56, E * 4)
    srd(A, S_DST, 58, E * 4)
    A(f"    v_mov_b32 v28, {hex(SENT_LIST)}")
    A(f"    v_mov_b32 v29, v28\n    v_mov_b32 v30, v28\n    v_mov_b32 v31, v28")
    A(f"    v_add_u32 v22, {LISTS}, v20")
    A(f"    v_cmp_gt_u32 vcc, 352, v0")
    A(f"    v_mov_b32 v32, 0")
    A(f"    v_lshlrev_b32 v23, 2, v0")
    A(f"    v_add_u32 v23, {CNT}, v23")
    A(f"    s_and_saveexec_b64 s[{S_EX}:{S_EX+1}], vcc")
    A(f"    s_cbranch_execz MAIN_NOCNT")
    A(f"    ds_write_b128 v22, v[28:31]")
    A(f"    v_cmp_gt_u32 vcc, 32, v0")
    A(f"    s_and_b64 exec, exec, vcc")
    A(f"    s_cbranch_execz MAIN_NOCNT")
    A(f"    ds_write_b32 v23, v32")
    A.label("MAIN_NOCNT")
    A(f"    s_mov_b64 exec, s[{S_EX}:{S_EX+1}]")
    T1, T2, T3 = V_T1, V_T2, V_T3
    A(f"    v_lshlrev_b32 v{V_G16}, 4, v{VG}")
    A(f"    v_lshrrev_b32 v{T1}, 1, v{VC}")
    A(f"    v_mul_u32_u24 v{V_SADDR}, {PAIR}, v{T1}")
    A(f"    v_and_b32 v{T1}, 1, v{VC}")
    A(f"    v_lshl_add_u32 v{V_SADDR}, v{T1}, 9, v{V_SADDR}")
    A(f"    v_lshrrev_b32 v{T2}, 1, v{VG}")
    A(f"    v_xor_b32 v{T1}, v{T1}, v{T2}")
    A(f"    v_lshl_add_u32 v{V_SADDR}, v{T1}, 5, v{V_SADDR}")
    A(f"    v_and_b32 v{T1}, 1, v{VG}")
    A(f"    v_lshl_add_u32 v{V_SADDR}, v{T1}, 4, v{V_SADDR}")
    A(f"    v_add_u32 v{V_SADDR}, s{S_REG}, v{V_SADDR}")
    A(f"    v_lshrrev_b32 v{T1}, 2, v{VC}")
    A(f"    v_lshl_add_u32 v{T1}, v{VG}, 2, v{T1}      ; row")
    A(f"    v_lshrrev_b32 v{T2}, 1, v{T1}")
    A(f"    v_mul_u32_u24 v{V_TE}, {PAIR}, v{T2}")
    A(f"    v_and_b32 v{T1}, 1, v{T1}                  ; hi")
    A(f"    v_lshl_add_u32 v{V_TE}, v{T1}, 9, v{V_TE}")
    A(f"    v_and_b32 v{T2}, 3, v{VC}")
    A(f"    v_lshl_add_u32 v{V_TE}, v{T2}, 3, v{V_TE}")
    A(f"    v_add_u32 v{V_TE}, s{S_REG}, v{V_TE}")
    A(f"    v_lshlrev_b32 v{T1}, 5, v{T1}              ; 32*hi")
    A(f"    v_sub_u32 v{V_TO}, v{V_TE}, v{T1}")
    A(f"    v_add_u32 v{V_TE}, v{V_TE}, v{T1}")
    for i in range(4):
        A(f"    v_mov_b32 v{V_ONES+i}, 0x3f803f80")
    A(f"    s_mov_b32 s{S_HI}, 0xfffffe00")
    A(f"    s_mov_b32 s{S_C02}, 0x3e4ccccd")
    A(f"    s_mul_i32 s{S_ABASE}, s{S_W}, {LSZ}")
    A(f"    s_add_u32 s{S_ABASE}, s{S_ABASE}, {LISTS+192}")
    A(f"    s_mul_i32 s{S_T0}, s{S_W}, {RROW}")
    A(f"    s_add_u32 s{S_T0}, s{S_T0}, {AGG1}")
    A(f"    v_lshrrev_b32 v{V_FE}, 2, v{VC}")
    A(f"    v_lshlrev_b32 v{V_FE}, 7, v{V_FE}          ; 128*j")
    A(f"    v_add_u32 v{V_FE}, s{S_T0}, v{V_FE}")
    fin_addr(A, VC, VG)
    A(f"    v_and_b32 v{T1}, 3, v{VC}")
    A(f"    v_mul_u32_u24 v39, 576, v{T1}")
    A(f"    v_lshl_add_u32 v39, v{VG}, 4, v39")
    A(f"    v_add_u32 v39, {VLDS}, v39")
    A(f"    v_lshrrev_b32 v{T1}, 5, v{VL}")
    A(f"    s_lshl_b32 s{S_T0}, s{S_W}, 1")
    A(f"    v_add_u32 v{T1}, s{S_T0}, v{T1}")
    A(f"    v_mul_u32_u24 v22, 576, v{T1}")
    A(f"    v_and_b32 v{T1}, 31, v{VL}")
    A(f"    v_lshl_add_u32 v22, v{T1}, 4, v22")
    A(f"    v_add_u32 v22, {VLDS}, v22")
    A(f"    v_lshrrev_b32 v{T1}, 2, v{VC}")
    A(f"    s_lshl_b32 s{S_T0}, s{S_W}, 2")
    A(f"    v_add_u32 v{V_TGTA}, s{S_T0}, v{T1}")
    A(f"    s_add_u32 s{S_T0}, s{S_W}, 32")
    A(f"    v_mov_b32 v{V_TGT}, s{S_T0}")
    A(f"    s_waitcnt vmcnt({3+opt.xt})")
    A(f"    s_cmp_ge_u32 s{S_W}, 4")
    A("    s_cbranch_scc1 MAIN_WB")
    A(f"    ds_write_b128 v22, v[24:27]")
    A.label("MAIN_WB")
    stamp(A, 2)
    EN = 16
    NN = 20; WV = 24; RK = 28; BS = 32
    A(f"    s_mov_b64 s[62:63], 0")
    for i in range(4):
        A(f"    v_and_b32 v{NN+i}, 63, v{EN+i}")
        A(f"    v_cmp_eq_u32 vcc, -2, v{EN+i}")
        A(f"    s_or_b64 s[62:63], s[62:63], vcc")
        A(f"    v_cmp_gt_u32 s[{64+2*i}:{65+2*i}], 40, v{NN+i}       ; valid")
        A(f"    v_cmp_le_u32 s[{72+2*i}:{73+2*i}], 32, v{NN+i}       ; group B")
        A(f"    v_lshrrev_b32 v{T1}, 2, v{NN+i}")
        A(f"    v_subrev_u32 v{T2}, 32, v{NN+i}")
        A(f"    v_subrev_u32 v{T3}, 24, v{NN+i}")
        A(f"    v_cndmask_b32 v{WV+i}, v{T1}, v{T2}, s[{72+2*i}:{73+2*i}]")
        A(f"    v_cndmask_b32 v{T1}, v{T1}, v{T3}, s[{72+2*i}:{73+2*i}]")
        A(f"    v_lshlrev_b32 v{BS+i}, 2, v{T1}")
        A(f"    v_add_u32 v{BS+i}, {CNT}, v{BS+i}")
    A(f"    v_mov_b32 v{V_TMP}, 1")
    A("    s_waitcnt lgkmcnt(0)")
    A("    s_barrier")
    for i in range(4):
        A(f"    s_mov_b64 exec, s[{64+2*i}:{65+2*i}]")
        A(f"    ds_add_rtn_u32 v{RK+i}, v{BS+i}, v{V_TMP}")
    A("    s_mov_b64 exec, -1")
    for kk in range(8):
        A(f"    ds_read_b128 v[{V_V+4*kk}:{V_V+4*kk+3}], v39 offset:{64*kk}")
    for kk in range(8):
        A(f"    ds_read_b128 v[{V_ACC+4*kk}:{V_ACC+4*kk+3}], v39 offset:{4*576+64*kk}")
    A(f"    s_mov_b32 s{S_T0}, {LSZ}")
    A(f"    v_mov_b32 v{T1}, {LISTS+192}")
    for i in range(4):
        A(f"    v_mad_u32_u24 v{BS+i}, v{WV+i}, s{S_T0}, v{T1}")
    for i in range(4):
        A(f"    s_waitcnt lgkmcnt({min(15, 16+3-i)})")
        A(f"    v_lshlrev_b32 v{T1}, 2, v{RK+i}")
        A(f"    v_sub_u32 v{T2}, -4, v{T1}")
        A(f"    v_mov_b32 v{T3}, {CAPA}")
        A(f"    v_cndmask_b32 v{T1}, v{T1}, v{T2}, s[{72+2*i}:{73+2*i}]")
        A(f"    v_cndmask_b32 v{T3}, v{T3}, {CAPB}, s[{72+2*i}:{73+2*i}]")
        A(f"    v_add_u32 v{BS+i}, v{BS+i}, v{T1}")
        A(f"    v_cmp_lt_u32 vcc, v{RK+i}, v{T3}")
        A(f"    s_andn2_b64 s[80:81], s[{64+2*i}:{65+2*i}], vcc")
        A(f"    s_or_b64 s[62:63], s[62:63], s[80:81]")
        A(f"    s_and_b64 exec, s[{64+2*i}:{65+2*i}], vcc")
        A(f"    ds_write_b32 v{BS+i}, v{EN+i}")
        A(f"    s_mov_b64 exec, -1")
    A(f"    s_cmp_eq_u64 s[62:63], 0")
    A(f"    s_cbranch_scc1 MAIN_NOOVF")
    A(f"    v_mov_b32 v{T1}, {OVF}")
    A(f"    ds_write_b32 v{T1}, v{V_TMP}")
    A.label("MAIN_NOOVF")
    A("    s_waitcnt lgkmcnt(0)")
    A("    s_barrier")
    stamp(A, 3)
    A(f"    s_lshl_b32 s{S_T0}, s{S_W}, 2")
    A(f"    s_add_u32 s{S_T0}, s{S_T0}, {CNT}")
    A(f"    v_mov_b32 v16, s{S_T0}")
    A(f"    v_mov_b32 v17, {OVF}")
    A(f"    ds_read_b32 v18, v16                     ; cntA")
    A(f"    ds_read_b32 v19, v16 offset:32           ; cntB")
    A(f"    ds_read_b32 v20, v17")
    A(f"    v_lshrrev_b32 v{T1}, 2, v{VC}")
    A(f"    v_cmp_eq_u32 s[{S_J1}:{S_J1+1}], 1, v{T1}")
    A(f"    v_cmp_eq_u32 s[{S_J2}:{S_J2+1}], 2, v{T1}")
    A(f"    v_cmp_eq_u32 s[{S_J3}:{S_J3+1}], 3, v{T1}")
    A("    s_waitcnt lgkmcnt(0)")
    A(f"    v_readfirstlane_b32 s{S_NA}, v18")
    A(f"    v_readfirstlane_b32 s{S_NB}, v19")
    A(f"    v_readfirstlane_b32 s{S_T0}, v20")
    A(f"    s_mov_b32 s{S_M0}, s{S_REG}")
    A(f"    s_mov_b32 s{S_DELTA}, {UNIT}")
    A(f"    s_mov_b32 s{S_P}, 0")
    A(f"    s_mov_b32 s{S_FIRST}, 1")
    A(f"    s_cmp_lg_u32 s{S_T0}, 0")
    A("    s_cbranch_scc1 MAIN_SLOW")
    A(f"    s_sub_u32 s{S_KA}, s{S_NA}, 1")
    A(f"    s_and_b32 s{S_KA}, s{S_KA}, 15")
    A(f"    s_lshr_b32 s{S_KA}, s{S_KA}, 1")
    A(f"    s_add_u32 s{S_KA}, s{S_KA}, 1")
    A(f"    s_sub_u32 s{S_KB}, s{S_NB}, 1")
    A(f"    s_and_b32 s{S_KB}, s{S_KB}, 15")
    A(f"    s_lshr_b32 s{S_KB}, s{S_KB}, 1")
    A(f"    s_add_u32 s{S_KB}, s{S_KB}, 1")
    A(f"    s_cmp_eq_u32 s{S_NA}, 0")
    A(f"    s_cselect_b32 s{S_KA}, 8, s{S_KA}")
    A(f"    s_add_u32 s{S_NA}, s{S_NA}, 15")
    A(f"    s_lshr_b32 s{S_NA}, s{S_NA}, 4")
    A(f"    s_add_u32 s{S_NB}, s{S_NB}, 15")
    A(f"    s_lshr_b32 s{S_NB}, s{S_NB}, 4")
    A(f"    s_add_u32 s{S_NU}, s{S_NA}, s{S_NB}")
    A(f"    s_lshl_b32 s{S_T0}, s{S_NB}, 6")
    A(f"    s_sub_u32 s{S_PTR}, s{S_ABASE}, s{S_T0}")
    def emit_t(A):
        for kk in range(8):
            A(f"    ds_read_b128 v[{V_SCR+4*kk}:{V_SCR+4*kk+3}], v{V_SADDR} offset:{UNIT+64*kk}")
        A(f"    v_lshlrev_b32 v{T2}, 2, v{VC}")
        A(f"    v_and_b32 v{T3}, 3, v{VC}")
        A(f"    v_add_u32 v{T3}, 16, v{T3}")
        A(f"    v_lshlrev_b32 v{T3}, 2, v{T3}              ; lane 16 + h")
        for kk in range(8):
            A(f"    s_waitcnt lgkmcnt({7-kk})")
            c = "0" if kk == 0 else f"v[{V_S}:{V_S+3}]"
            A(f"    v_mfma_f32_16x16x32_bf16 v[{V_S}:{V_S+3}], v[{V_SCR+4*kk}:{V_SCR+4*kk+3}], v[{V_ACC+4*kk}:{V_ACC+4*kk+3}], {c}")
        A("    s_nop 7")
        A(f"    v_cndmask_b32 v{V_TA}, v{V_S}, v{V_S+1}, s[{S_J1}:{S_J1+1}]")
        A(f"    v_cndmask_b32 v{V_TA}, v{V_TA}, v{V_S+2}, s[{S_J2}:{S_J2+1}]")
        A(f"    v_cndmask_b32 v{V_TA}, v{V_TA}, v{V_S+3}, s[{S_J3}:{S_J3+1}]")
        A(f"    ds_bpermute_b32 v{V_TQ}, v{T3}, v{V_S}")
        A(f"    ds_bpermute_b32 v{V_TA}, v{T2}, v{V_TA}")
        A("    s_waitcnt lgkmcnt(0)")
        for i in range(1, 4):
            A(f"    v_mov_b32 v{V_TQ+i}, v{V_TQ}")

    def zero_prep(A, buf):
        if opt.skip:
            for i in range(4):
                A(f"    v_mov_b32 v{V_S+i}, 0")
            A(f"    v_mbcnt_lo_u32_b32 v{V_T2}, -1, 0")
            A(f"    v_mbcnt_hi_u32_b32 v{V_T2}, -1, v{V_T2}")
            A(f"    v_lshlrev_b32 v{V_T2}, 4, v{V_T2}")
            A(f"    s_add_u32 s{S_T1}, s{S_REG}, {UNIT*buf}")
            A(f"    v_add_u32 v{V_T2}, s{S_T1}, v{V_T2}")

    if opt.prio == 2:
        A("    s_setprio 3")
    A(f"    s_mov_b32 s{S_K}, 0")
    A(f"    s_cmp_eq_u32 s{S_NU}, 0")
    A("    s_cbranch_scc1 MAIN_PRO_T")
    A(f"    v_add_u32 v{T1}, s{S_PTR}, v{V_H4}")
    dma_entry_reads(A, T1)
    zero_prep(A, 0)
    A(f"    s_mov_b32 s{S_T1}, 0")
    if opt.skip:
        unit_k(A, S_T1)
    A("    s_waitcnt lgkmcnt(0)")
    if opt.skip:
        A(f"    s_cmp_eq_u32 s{S_NB}, 0")
        A("    s_cbranch_scc1 MAIN_U0A")
        A(f"    s_mov_b32 s{S_K}, s{S_KB}")
        dma_partial(A, S_K, True, rev=True)
        A("    s_branch MAIN_PRO_T")
        A.label("MAIN_U0A")
        dma_partial(A, S_K, True)
    else:
        A(f"    s_mov_b32 s{S_K}, 8")
        for q in range(8):
            dma_one(A, q)
    A.label("MAIN_PRO_T")
    if opt.bar0:
        A("    s_barrier")
    wait_vm_dyn(A, S_K, opt.xt, 0, 8)
    emit_t(A)
    A(f"    s_mov_b32 s{S_K}, 0")
    A(f"    s_cmp_le_u32 s{S_NU}, 1")
    A("    s_cbranch_scc1 MAIN_PRO_DONE")
    A(f"    v_add_u32 v{T1}, s{S_PTR}, v{V_H4}")
    A(f"    v_add_u32 v{T1}, 64, v{T1}")
    dma_entry_reads(A, T1)
    zero_prep(A, 1)
    A(f"    s_add_u32 s{S_M0}, s{S_REG}, {UNIT}")
    A(f"    s_mov_b32 s{S_T1}, 1")
    if opt.skip:
        unit_k(A, S_T1)
    else:
        A(f"    s_mov_b32 s{S_K}, 8")
    A("    s_waitcnt lgkmcnt(0)")
    if opt.skip:
        dma_partial(A, S_K, True)
    else:
        for q in range(8):
            dma_one(A, q)
    A(f"    s_mov_b32 s{S_M0}, s{S_REG}")
    A.label("MAIN_PRO_DONE")
    stamp(A, 4)
    if opt.prio == 1:
        A(f"    s_setprio 1")
    for ks in range(opt.w3):
        w_load(A, ks, wslot(ks))
    WX = 2 * opt.w3
    A(f"    s_cmp_eq_u32 s{S_NU}, 0")
    A("    s_cbranch_scc1 MAIN_LOOP")
    wait_vm_dyn(A, S_K, WX, 0, 8)
    A("    s_waitcnt lgkmcnt(0)")
    s_prefetch(A)
    if opt.stamps and opt.ustamps:
        A("    s_memtime s[98:99]")
    A.label("MAIN_LOOP")
    A(f"    s_cmp_eq_u32 s{S_P}, s{S_NB}")
    A("    s_cbranch_scc1 MAIN_FINB")
    A.label("MAIN_LOOP2")
    A(f"    s_cmp_ge_u32 s{S_P}, s{S_NU}")
    A("    s_cbranch_scc1 MAIN_DONE")

    def dispatch(tag, agg, firsts, minleft, dest):
        for first in firsts:
            if len(firsts) > 1:
                if first == firsts[0]:
                    A(f"    s_cmp_eq_u32 s{S_FIRST}, 0")
                    A(f"    s_cbranch_scc0 {tag}_F1")
                else:
                    A.label(f"{tag}_F1")
            A(f"    s_cmp_ge_u32 s{S_T0}, 3")
            A(f"    s_cbranch_scc0 {tag}_{first}_R2")
            if opt.skip:
                A(f"    s_cmp_eq_u32 s{S_K}, 8")
                A(f"    s_cbranch_scc0 {tag}_{first}_PART")
            unit_tail(A, "full", True, agg, first)
            A(f"    s_branch {dest}")
            if opt.skip:
                A.label(f"{tag}_{first}_PART")
                unit_tail(A, "part", True, agg, first)
                A(f"    s_branch {dest}")
            A.label(f"{tag}_{first}_R2")
            if minleft <= 1:
                A(f"    s_cmp_eq_u32 s{S_T0}, 2")
                A(f"    s_cbranch_scc0 {tag}_{first}_R1")
            unit_tail(A, None, True, agg, first)
            A(f"    s_branch {dest}")
            if minleft <= 1:
                A.label(f"{tag}_{first}_R1")
                unit_tail(A, None, False, agg, first)
                A(f"    s_branch {dest}")

    def set_prio():
        if opt.prio == 2:
            l1 = uid("PR"); l2 = uid("PR"); le = uid("PR")
            A(f"    s_cmp_ge_u32 s{S_P}, {opt.pa}")
            A(f"    s_cbranch_scc1 {l1}")
            A("    s_setprio 3")
            A(f"    s_branch {le}")
            A.label(l1)
            A(f"    s_cmp_ge_u32 s{S_P}, {opt.pb}")
            A(f"    s_cbranch_scc1 {l2}")
            A("    s_setprio 2")
            A(f"    s_branch {le}")
            A.label(l2)
            A("    s_setprio 1")
            A.label(le)

    def k_next():
        set_prio()
        if opt.skip:
            A(f"    s_add_u32 s{S_T1}, s{S_P}, 2")
            unit_k(A, S_T1)

    pstamp(A)
    ustamp(A, opt.up, 0); ustamp(A, opt.up + 1, 4)
    A(f"    s_add_u32 s{S_P2}, s{S_PTR}, 128")
    k_next()
    unit_front(A, 0)
    ustamp(A, opt.up, 1); ustamp(A, opt.up + 1, 5)
    A(f"    s_sub_u32 s{S_T0}, s{S_NU}, s{S_P}")
    A(f"    s_add_u32 s{S_T1}, s{S_P}, 1")
    A("    s_waitcnt lgkmcnt(0)")
    A(f"    s_cmp_eq_u32 s{S_T1}, s{S_NB}")
    A("    s_cbranch_scc1 TL_LAST")
    A(f"    s_cmp_eq_u32 s{S_T1}, s{S_NU}")
    A("    s_cbranch_scc1 TL_LAST")
    dispatch("TE", None, [0], 2, "MAIN_ODD")
    A.label("TL_LAST")
    dispatch("TL", "k16", [0, 1], 1, "MAIN_NEXT")
    A.label("MAIN_ODD")
    pstamp(A)
    ustamp(A, opt.up + 1, 2); ustamp(A, opt.up + 2, 6)
    ustamp(A, opt.up, 0); ustamp(A, opt.up + 1, 4)
    A(f"    s_add_u32 s{S_P2}, s{S_PTR}, 128")
    k_next()
    unit_front(A, 1)
    ustamp(A, opt.up, 1); ustamp(A, opt.up + 1, 5)
    A(f"    s_sub_u32 s{S_T0}, s{S_NU}, s{S_P}")
    A("    s_waitcnt lgkmcnt(0)")
    dispatch("TO", "k32", [0, 1], 1, "MAIN_NEXT")
    A.label("MAIN_NEXT")
    ustamp(A, opt.up + 1, 2); ustamp(A, opt.up + 2, 6)
    A("    s_branch MAIN_LOOP")

    A.label("MAIN_FINB")
    fstamp(A, 0)
    A("    s_nop 3")
    emit_finb(A)
    A("    s_branch MAIN_LOOP2")

    A.label("MAIN_DONE")
    if opt.prio:
        A("    s_setprio 0")
    stamp(A, 5)
    if opt.stamps and opt.pstamps:
        A("    s_memtime s[98:99]")
    A(f"    s_cmp_lg_u32 s{S_NA}, 0")
    A("    s_cbranch_scc1 MAIN_DONE2")
    zero_acc(A)
    A.label("MAIN_DONE2")
    VC2 = V_T2; VG2 = V_T3
    lane_cg(A, V_T1, VC2, VG2)
    A(f"    v_lshrrev_b32 v{V_TMP}, 2, v{VC2}                 ; w'")
    A(f"    v_mul_u32_u24 v1, {REGSZ}, v{V_TMP}")
    A(f"    v_and_b32 v{V_TMP}, 1, v{V_TMP}")
    A(f"    v_lshl_add_u32 v1, v{V_TMP}, 7, v1")
    A(f"    v_and_b32 v{V_TMP}, 3, v{VC2}")
    A(f"    v_mul_u32_u24 v{V_TMP}, {RROW}, v{V_TMP}")
    A(f"    v_add_u32 v1, v1, v{V_TMP}")
    A(f"    v_and_b32 v{V_TMP}, 7, v{VC2}")
    A(f"    v_mul_u32_u24 v5, {RROW}, v{V_TMP}")
    A(f"    v_add_u32 v5, {AGG1}, v5")
    A(f"    v_lshlrev_b32 v{V_TMP}, 4, v{VG2}                 ; g*16")
    A(f"    v_xor_b32 v{V_T1}, 16, v{V_TMP}                   ; (g^1)*16")
    A(f"    v_add_u32 v2, v1, v{V_T1}")
    A(f"    v_add_u32 v1, v1, v{V_TMP}")
    A(f"    v_add_u32 v3, {4*REGSZ}, v1")
    A(f"    v_add_u32 v4, {4*REGSZ}, v2")
    A(f"    v_add_u32 v6, v5, v{V_T1}")
    A(f"    v_add_u32 v5, v5, v{V_TMP}")
    A(f"    s_mul_i32 s{S_T0}, s2, {TILE*512}")
    A(f"    s_lshl_b32 s{S_T1}, s{S_W}, 6")
    A(f"    s_add_u32 s{S_T0}, s{S_T0}, s{S_T1}")
    A(f"    v_lshlrev_b32 v8, 9, v{VC2}")
    A(f"    v_lshl_add_u32 v8, v{VG2}, 4, v8")
    A(f"    v_add_u32 v8, s{S_T0}, v8")
    A(f"    v_add_u32 v9, {16*512}, v8")
    A(f"    v_add_u32 v10, {32*512}, v8")
    A(f"    v_mov_b32 v{V_TMP}, 0x7ffffff0")
    A(f"    v_cmp_gt_u32 vcc, 8, v{VC2}")
    A(f"    v_mov_b32 v7, v{V_WOFF}")
    A(f"    s_nop 0")
    A(f"    s_mov_b64 s[{S_EX}:{S_EX+1}], vcc")
    A(f"    v_cndmask_b32 v10, v{V_TMP}, v10, vcc")
    NPRE = opt.wpre
    W3 = opt.w3
    def pre(u):
        for k in range((NPRE * u) // 8, (NPRE * (u + 1)) // 8):
            w_load(A, W3 + k, wslot(W3 + k), 7)
    finalize(A, 12, after_pair=pre)
    A("    s_waitcnt lgkmcnt(0)")
    A("    s_barrier")
    stamp(A, 6)
    NB = opt.bring
    BR = V_ACC
    def b_reads(ks, zero2=False):
        h = ks >> 3; u = ks & 7; h0 = h & 1; h1 = h >> 1
        imm = h * 512 + ((u ^ h1) * 64)
        st = BR + 12 * (ks % NB)
        for T in range(3):
            if T == 2 and opt.zero2:
                A(f"    s_mov_b64 exec, s[{S_EX}:{S_EX+1}]")
            A(f"    ds_read_b128 v[{st+4*T}:{st+4*T+3}], v{1+2*T+h0} offset:{imm}")
            if T == 2 and opt.zero2:
                A(f"    s_mov_b64 exec, -1")
    if opt.zero2:
        for st_ in range(NB):
            for i in range(4):
                A(f"    v_mov_b32 v{BR+12*st_+8+i}, 0")
    for ks in range(NB - 1):
        b_reads(ks)
    q = [("w", k) for k in range(W3 + NPRE) for _ in range(2)]
    def wait_for(tag):
        idx = max(i for i, t in enumerate(q) if t == tag)
        return len(q) - 1 - idx
    nxt_w = W3 + NPRE
    nrem = 32 - nxt_w
    sched = {}
    for j in range(nrem):
        k2 = nxt_w + j
        st_ = max((j * opt.wlast) // max(nrem - 1, 1), k2 - 16)
        st_ = min(st_, k2 - opt.wmin)
        sched.setdefault(st_, []).append(k2)
    for ks in range(32):
        if ks % 4 == 0:
            gstamp(A, ks // 4)
        if ks + NB - 1 < 32:
            b_reads(ks + NB - 1, zero2=opt.zero2)
        lg = 3 * min(NB - 1, 31 - ks)
        A(f"    s_waitcnt vmcnt({min(wait_for(('w', ks)), 63)}) lgkmcnt({lg})")
        st = BR + 12 * (ks % NB)
        wb = wslot(ks)
        for T in range(3):
            for t in range(2):
                a = V_ACC2 + 4 * (2 * T + t)
                c = "0" if ks == 0 else f"v[{a}:{a+3}]"
                A(f"    v_mfma_f32_16x16x32_bf16 v[{a}:{a+3}], v[{wb+4*t}:{wb+4*t+3}], v[{st+4*T}:{st+4*T+3}], {c}")
        for k2 in sched.get(ks, []):
            assert k2 - 16 <= ks < k2
            assert k2 == nxt_w
            w_load(A, k2, wslot(k2), 7)
            q.append(("w", k2)); q.append(("w", k2))
            nxt_w += 1
    assert nxt_w == 32
    stamp(A, 7)
    gstamp(A, 8)
    A("    s_nop 7")
    for T in range(3):
        a0 = V_ACC2 + 4 * (2 * T); a1 = a0 + 4
        st = 12 + 4 * T
        A(f"    v_cvt_pk_bf16_f32 v{st}, v{a0}, v{a0+1}")
        A(f"    v_cvt_pk_bf16_f32 v{st+1}, v{a0+2}, v{a0+3}")
        A(f"    v_cvt_pk_bf16_f32 v{st+2}, v{a1}, v{a1+1}")
        A(f"    v_cvt_pk_bf16_f32 v{st+3}, v{a1+2}, v{a1+3}")
        A(f"    buffer_store_dwordx4 v[{st}:{st+3}], v{8+T}, s[{S_OUT}:{S_OUT+3}], 0 offen")
    if opt.stamps:
        A("    s_waitcnt vmcnt(0)")
    stamp(A, 8)
    stamp_flush(A, 60, 0)
    A("    s_endpgm")

    A.label("MAIN_SLOW")
    if opt.bar0:
        A("    s_barrier")
    A("    s_waitcnt vmcnt(0)")
    emit_t(A)
    for ks in range(opt.w3):
        w_load(A, ks, wslot(ks))
    gen_slow(A)
    A.label("MAIN_END")
    A("    s_endpgm")


def gen_slow(A):
    S_GRP = 62; S_POS = 63; S_CNT = 64; S_LO = 65; S_HIB = 66; S_BASE = 67
    A("    s_waitcnt vmcnt(0)")
    zero_acc(A)
    A(f"    s_mul_i32 s{S_BASE}, s2, {TILE}")
    A(f"    s_mov_b32 s{S_GRP}, 0")
    A(f"    s_mov_b32 s{S_NB}, 1")
    A(f"    s_mov_b32 s{S_NA}, 1")
    A.label("SLOW_GROUP")
    A(f"    s_add_u32 s{S_LO}, s{S_W}, 32")
    A(f"    s_add_u32 s{S_HIB}, s{S_LO}, 1")
    A(f"    s_cmp_eq_u32 s{S_GRP}, 0")
    A("    s_cbranch_scc1 SLOW_RANGE")
    A(f"    s_lshl_b32 s{S_LO}, s{S_W}, 2")
    A(f"    s_add_u32 s{S_HIB}, s{S_LO}, 4")
    A.label("SLOW_RANGE")
    A(f"    s_mov_b32 s{S_POS}, 0")
    A.label("SLOW_REFILL")
    L4 = V_T1; X1 = V_T2; X2 = V_T3; X3 = V_TMP
    A(f"    v_mbcnt_lo_u32_b32 v{L4}, -1, 0")
    A(f"    v_mbcnt_hi_u32_b32 v{L4}, -1, v{L4}")
    A(f"    v_lshlrev_b32 v{L4}, 2, v{L4}")
    A(f"    v_mov_b32 v{X1}, {hex(SENT_LIST)}")
    A(f"    v_add_u32 v{X2}, s{S_ABASE}, v{L4}")
    A(f"    ds_write_b32 v{X2}, v{X1}")
    A(f"    ds_write_b32 v{X2}, v{X1} offset:256")
    A(f"    s_mov_b32 s{S_CNT}, 0")
    A.label("SLOW_SCAN")
    A(f"    s_cmp_ge_u32 s{S_POS}, {E*4}")
    A("    s_cbranch_scc1 SLOW_FLUSH")
    A(f"    s_cmp_gt_u32 s{S_CNT}, 64")
    A("    s_cbranch_scc1 SLOW_FLUSH")
    A(f"    buffer_load_dword v{X1}, v{L4}, s[{S_DST}:{S_DST+3}], s{S_POS} offen")
    A(f"    buffer_load_dword v{X2}, v{L4}, s[{S_SRC}:{S_SRC+3}], s{S_POS} offen")
    A(f"    s_add_u32 s{S_POS}, s{S_POS}, 256")
    A("    s_waitcnt vmcnt(0)")
    A(f"    v_subrev_u32 v{X1}, s{S_BASE}, v{X1}")
    A(f"    v_cmp_le_u32 s[68:69], s{S_LO}, v{X1}")
    A(f"    v_cmp_gt_u32 vcc, s{S_HIB}, v{X1}")
    A(f"    s_and_b64 vcc, vcc, s[68:69]")
    A(f"    v_lshl_or_b32 v{X2}, v{X2}, 9, v{X1}")
    A(f"    s_nop 0")
    A(f"    v_mbcnt_lo_u32_b32 v{X3}, vcc_lo, 0")
    A(f"    v_mbcnt_hi_u32_b32 v{X3}, vcc_hi, v{X3}")
    A(f"    v_add_u32 v{X3}, s{S_CNT}, v{X3}")
    A(f"    v_lshlrev_b32 v{X3}, 2, v{X3}")
    A(f"    v_add_u32 v{X3}, s{S_ABASE}, v{X3}")
    A(f"    s_bcnt1_i32_b64 s{S_T0}, vcc")
    A(f"    s_add_u32 s{S_CNT}, s{S_CNT}, s{S_T0}")
    A(f"    s_and_saveexec_b64 s[{S_EX}:{S_EX+1}], vcc")
    A(f"    ds_write_b32 v{X3}, v{X2}")
    A(f"    s_mov_b64 exec, s[{S_EX}:{S_EX+1}]")
    A("    s_branch SLOW_SCAN")
    A.label("SLOW_FLUSH")
    A(f"    s_add_u32 s{S_NU}, s{S_CNT}, 15")
    A(f"    s_lshr_b32 s{S_NU}, s{S_NU}, 4")
    A(f"    s_mov_b32 s{S_P}, 0")
    A(f"    s_mov_b32 s{S_PTR}, s{S_ABASE}")
    A("    s_waitcnt lgkmcnt(0)")
    A.label("SLOW_UNIT")
    A(f"    s_cmp_ge_u32 s{S_P}, s{S_NU}")
    A("    s_cbranch_scc1 SLOW_UNITS_DONE")
    A(f"    v_add_u32 v{V_T1}, s{S_PTR}, v{V_H4}")
    dma_entry_reads(A, V_T1)
    A("    s_waitcnt lgkmcnt(0)")
    for q in range(8):
        dma_one(A, q)
    A(f"    s_mov_b32 s{S_P2}, s{S_PTR}")
    A("    s_waitcnt vmcnt(0)")
    s_prefetch(A)
    unit_front(A, 0)
    A("    s_waitcnt lgkmcnt(0)")
    A("    s_nop 0")
    den_mfma(A)
    for ft in range(16):
        agg_mfma(A, ft)
    A(f"    s_add_u32 s{S_P}, s{S_P}, 1")
    A(f"    s_add_u32 s{S_PTR}, s{S_PTR}, 64")
    A("    s_branch SLOW_UNIT")
    A.label("SLOW_UNITS_DONE")
    A(f"    s_cmp_lt_u32 s{S_POS}, {E*4}")
    A("    s_cbranch_scc1 SLOW_REFILL")
    A(f"    s_cmp_eq_u32 s{S_GRP}, 1")
    A("    s_cbranch_scc1 MAIN_DONE")
    A("    s_nop 7")
    emit_finb(A, after_loop=False)
    zero_acc(A)
    A(f"    s_mov_b32 s{S_GRP}, 1")
    A("    s_branch SLOW_GROUP")


def kd(name, vgpr, sgpr):
    return f""".amdhsa_kernel {name}
  .amdhsa_next_free_vgpr {vgpr}
  .amdhsa_next_free_sgpr {sgpr}
  .amdhsa_accum_offset {((vgpr+3)//4)*4}
  .amdhsa_group_segment_fixed_size 0
  .amdhsa_kernarg_size 72
  .amdhsa_user_sgpr_count 2
  .amdhsa_user_sgpr_kernarg_segment_ptr 1
  .amdhsa_system_sgpr_workgroup_id_x 1
  .amdhsa_float_denorm_mode_32 3
.end_amdhsa_kernel
"""


HEADER = """; Kernarg layout for this problem (72 bytes, ptrs only, base s[0:1]):
"""


def main():
    ap = argparse.ArgumentParser()
    ap.add_argument("-o", default="gather_scatter__graph_attention_gat__graph.s")
    ap.add_argument("--stamps", action="store_true")
    ap.add_argument("--ustamps", action="store_true")
    ap.add_argument("--gstamps", action="store_true")
    ap.add_argument("--fstamps", action="store_true")
    ap.add_argument("--nopk", type=int, default=0)
    ap.add_argument("--pstamps", action="store_true")
    ap.add_argument("--clk", action="store_true")
    ap.add_argument("--up", type=int, default=1)
    ap.add_argument("--wpos", default="A")
    ap.add_argument("--copies", type=int, default=1)
    ap.add_argument("--xpre", type=int, default=0)
    ap.add_argument("--wpre", type=int, default=9)
    ap.add_argument("--w3", type=int, default=3)
    ap.add_argument("--wlast", type=int, default=24)
    ap.add_argument("--wmin", type=int, default=6)
    ap.add_argument("--prio", type=int, default=2)
    ap.add_argument("--skip", type=int, default=1)
    ap.add_argument("--bar0", type=int, default=0)
    ap.add_argument("--xt", type=int, default=0)
    ap.add_argument("--xoff", type=int, default=0)
    ap.add_argument("--pa", type=int, default=2)
    ap.add_argument("--pb", type=int, default=4)
    ap.add_argument("--wlook", type=int, default=12)
    ap.add_argument("--wone", type=int, default=1)
    ap.add_argument("--zero2", type=int, default=1)
    ap.add_argument("--bring", type=int, default=4)
    ap.add_argument("--wspread", type=int, default=8)
    a = ap.parse_args()
    opt.__dict__.update(a.__dict__)
    A = Asm()
    B = Asm()
    gen_prep(B)
    gen_main(B)
    A(HEADER.rstrip("\n"))
    A(f"; @launch kernel=gat_prep_kernel grid=({opt.nprep},1,1) block=(640,1,1) lds=43520")
    A(f"; @launch kernel=gather_scatter__graph_attention_gat__graph_kernel grid=({NT},1,1) block=(512,1,1) lds={LDS_MAIN}")
    A('.amdgcn_target "amdgcn-amd-amdhsa--gfx950"')
    A(".text")
    A.lines += B.lines
    A('.section .rodata,"a"')
    A(".p2align 6")
    A(kd("gat_prep_kernel", 80, 102 if opt.stamps else 48))
    A(".p2align 6")
    A(kd("gather_scatter__graph_attention_gat__graph_kernel", 256, 102 if opt.stamps else 96))
    open(opt.o, "w").write(A.text())
    print("wrote", opt.o, len(A.lines), "lines")


if __name__ == "__main__":
    main()
```

```python
import sys, argparse

N = 10000; E = 160000; TILE = 40; NT = 250; G = 64; CH = 2500
WS_SLOTS = 0
WS_V = 0x1F8000
WS_WF = 0x200000
WS_STAMP = 0x700000
REGSZ = 17408; UNIT = 8704; PAIR = 1088; RROW = 2080
AGG1 = 8 * REGSZ
LISTS = AGG1 + 8 * RROW
LSZ = 704
TBUF = LISTS + 8 * LSZ
CNT = TBUF + 768
OVF = CNT + 64
LDS_MAIN = CNT + 128
VLDS = AGG1
CAPA = 128; CAPB = 48
SENT_LIST = 0x7FFFFE3F
LOG2E = 0x3FB8AA3B


class Asm:
    def __init__(self):
        self.lines = []
    def __call__(self, s=""):
        for l in s.split("\n"):
            self.lines.append(l)
    def label(self, n):
        self.lines.append(n + ":")
    def text(self):
        return "\n".join(self.lines) + "\n"


class Opt:
    pass
opt = Opt()
_ul = [0]
def uid(p):
    _ul[0] += 1
    return f"{p}_{_ul[0]}"


def stamp(A, i):
    if opt.stamps and not opt.ustamps and not opt.gstamps and not opt.pstamps and not opt.fstamps:
        A(f"    {'s_memtime' if opt.clk else 's_memrealtime'} s[{82+2*i}:{83+2*i}]")
def ustamp(A, p, i):
    if opt.stamps and opt.ustamps:
        l = uid("US")
        A(f"    s_cmp_eq_u32 s{S_P}, {p}")
        A(f"    s_cbranch_scc0 {l}")
        A(f"    s_memtime s[{82+2*i}:{83+2*i}]")
        A.label(l)
def pstamp(A):
    if opt.stamps and opt.pstamps:
        for p in range(8):
            l = uid("PS")
            A(f"    s_cmp_eq_u32 s{S_P}, {p}")
            A(f"    s_cbranch_scc0 {l}")
            A(f"    s_memtime s[{82+2*p}:{83+2*p}]")
            A.label(l)
def fstamp(A, i):
    if opt.stamps and opt.fstamps:
        A(f"    s_memtime s[{82+2*i}:{83+2*i}]")
def gstamp(A, i):
    if opt.stamps and opt.gstamps:
        A(f"    s_memtime s[{82+2*i}:{83+2*i}]")
def stamp_flush(A, wsbase, area):
    if not opt.stamps:
        return
    A("    s_waitcnt lgkmcnt(0)")
    A(f"    s_mov_b32 s76, s{wsbase}\n    s_mov_b32 s77, s{wsbase+1}\n    s_mov_b32 s78, 0x800000\n    s_mov_b32 s79, 0x00020000")
    A(f"    s_lshl_b32 s80, s2, 4")
    A(f"    s_add_u32 s80, s80, s100")
    A(f"    s_lshl_b32 s80, s80, 6")
    A(f"    s_add_u32 s80, s80, {WS_STAMP+area}")
    A("    s_mov_b64 exec, 1")
    A("    v_mov_b32 v1, 0")
    for i in range(9):
        A(f"    v_mov_b32 v2, s{82+2*i}")
        A(f"    buffer_store_dword v2, v1, s[76:79], s80 offen offset:{4*i}")
        A("    s_nop 1")


def srd(A, d, base, nbytes):
    A(f"    s_mov_b32 s{d}, s{base}")
    A(f"    s_mov_b32 s{d+1}, s{base+1}")
    A(f"    s_mov_b32 s{d+2}, {nbytes}")
    A(f"    s_mov_b32 s{d+3}, 0x00020000")


def x_touch(A, sbase, vaddr, vdst, ssrd, stmp):
    if not opt.xpre:
        return
    srd(A, ssrd, sbase, N * 512)
    A(f"    s_lshr_b32 s{stmp}, s2, 3")
    A(f"    s_mul_i32 s{stmp}, s{stmp}, 640")
    A(f"    v_add_u32 v{vaddr}, s{stmp}, v0")
    A(f"    v_lshlrev_b32 v{vaddr}, 7, v{vaddr}")
    for r in range(opt.xpre):
        A(f"    s_mov_b32 s{stmp}, {r*20480*128}")
        A(f"    buffer_load_dword v{vdst}, v{vaddr}, s[{ssrd}:{ssrd+3}], s{stmp} offen")


def ws_bytes():
    return WS_WF + opt.copies * 524288


def gen_prep(A):
    K = "gat_prep_kernel"
    NWG_W = 16 * opt.copies
    V0 = 64 + NWG_W
    X0 = V0 + 32
    NPREP = 256 if opt.xpre else X0
    opt.nprep = NPREP
    A(f".globl {K}\n.p2align 8\n.type {K},@function\n{K}:")
    A(f"    s_cmp_ge_u32 s2, {NPREP}")
    A("    s_cbranch_scc1 PREP_END")
    stamp(A, 0)
    if opt.stamps:
        A("    v_lshrrev_b32 v1, 6, v0\n    s_nop 1\n    v_readfirstlane_b32 s100, v1")
    A("    s_cmp_ge_u32 s2, 64")
    A("    s_cbranch_scc1 PREP_NB")
    A("    s_load_dwordx4 s[4:7], s[0:1], 8")
    A("    s_load_dwordx2 s[10:11], s[0:1], 64     ; ws")
    A("    s_load_dwordx2 s[12:13], s[0:1], 0      ; x")
    A("    v_lshlrev_b32 v1, 4, v0")
    for i in range(4):
        A(f"    v_mov_b32 v{4+i}, -1")
    A("    v_lshlrev_b32 v2, 2, v0")
    A("    v_mov_b32 v3, 0")
    A("    s_mul_i32 s28, s2, 10000")
    A("    v_add_u32 v30, s28, v1")
    A("    s_waitcnt lgkmcnt(0)")
    stamp(A, 1)
    srd(A, 20, 6, E * 4)
    A("    buffer_load_dwordx4 v[8:11], v30, s[20:23], 0 offen      ; dst")
    srd(A, 16, 4, E * 4)
    A("    buffer_load_dwordx4 v[12:15], v30, s[16:19], 0 offen     ; src")
    srd(A, 24, 10, ws_bytes())
    x_touch(A, 12, 31, 32, 36, 40)
    for r in range(4):
        A(f"    ds_write_b128 v1, v[4:7] offset:{10240*r}")
    A("    ds_write_b32 v2, v3 offset:40960")
    A("    v_cmp_gt_u32 vcc, 625, v0")
    A("    s_mov_b32 s29, 52429")
    A("    v_mov_b32 v3, 1")
    A("    v_mov_b32 v28, 32000")
    A("    s_waitcnt lgkmcnt(0)")
    A("    s_barrier")
    A("    s_and_saveexec_b64 s[30:31], vcc")
    A(f"    s_waitcnt vmcnt({1+opt.xpre})")
    stamp(A, 2)
    for i in range(4):
        A(f"    v_mul_u32_u24 v{16+i}, s29, v{8+i}")
        A(f"    v_lshrrev_b32 v{16+i}, 21, v{16+i}       ; tile")
        A(f"    v_lshlrev_b32 v{20+i}, 2, v{16+i}")
        A(f"    ds_add_rtn_u32 v{24+i}, v{20+i}, v3 offset:40960")
    A(f"    s_waitcnt vmcnt({opt.xpre})")
    for i in range(4):
        A(f"    v_mul_u32_u24 v4, 40, v{16+i}")
        A(f"    v_sub_u32 v4, v{8+i}, v4")
        A(f"    v_lshl_or_b32 v{12+i}, v{12+i}, 9, v4    ; entry")
        A(f"    v_lshlrev_b32 v{16+i}, 7, v{16+i}        ; tile*128")
    for i in range(4):
        A(f"    s_waitcnt lgkmcnt({3-i})")
        A(f"    v_cmp_gt_u32 vcc, 32, v{24+i}")
        A(f"    v_lshl_add_u32 v4, v{24+i}, 2, v{16+i}")
        A(f"    s_nop 0")
        A(f"    v_cndmask_b32 v{20+i}, v28, v4, vcc")
    for i in range(4):
        A(f"    ds_write_b32 v{20+i}, v{12+i}")
    A("    s_mov_b64 exec, s[30:31]")
    A("    s_lshl_b32 s28, s2, 7                    ; chunk*128")
    A("    v_and_b32 v2, 7, v0                      ; part (640 % 8 == 0)")
    A("    v_lshrrev_b32 v3, 3, v0")
    A("    v_lshlrev_b32 v29, 2, v3")
    A("    v_lshlrev_b32 v4, 4, v2")
    A("    v_lshl_add_u32 v4, v3, 13, v4")
    A("    v_add_u32 v4, s28, v4")
    A("    v_cmp_eq_u32 s[32:33], 7, v2")
    A("    v_cmp_gt_u32 vcc, 80, v0")
    A("    s_mov_b64 s[34:35], vcc")
    A("    v_mov_b32 v5, 0x7ffffff0")
    A("    v_mov_b32 v6, -2")
    A("    s_waitcnt lgkmcnt(0)")
    A("    s_barrier")
    stamp(A, 3)
    for r in range(4):
        A(f"    ds_read_b128 v[{8+4*r}:{11+4*r}], v1 offset:{10240*r}")
        A(f"    ds_read_b32 v{24+r}, v29 offset:{40960 + 320*r}")
    for r in range(4):
        A(f"    s_waitcnt lgkmcnt({6-2*r})")
        A(f"    v_cmp_lt_u32 vcc, 32, v{24+r}")
        A(f"    s_and_b64 vcc, vcc, s[32:33]")
        A(f"    v_add_u32 v7, {80*8192*r}, v4")
        if r == 3:
            A(f"    v_cndmask_b32 v7, v5, v7, s[34:35]")
        A(f"    s_nop 0")
        A(f"    v_cndmask_b32 v{11+4*r}, v{11+4*r}, v6, vcc")
        A(f"    buffer_store_dwordx4 v[{8+4*r}:{11+4*r}], v7, s[24:27], 0 offen")
    stamp(A, 4)
    if opt.stamps:
        A("    s_waitcnt vmcnt(0)")
    stamp(A, 5)
    stamp_flush(A, 10, 0x40000)
    A("    s_endpgm")
    A.label("PREP_NB")
    if opt.xpre:
        A(f"    s_cmp_ge_u32 s2, {X0}")
        A("    s_cbranch_scc1 PREP_X")
    A("    s_load_dwordx2 s[8:9], s[0:1], 24       ; w")
    A("    s_load_dwordx4 s[12:15], s[0:1], 32")
    A("    s_load_dwordx2 s[10:11], s[0:1], 64     ; ws")
    A("    s_load_dwordx2 s[42:43], s[0:1], 0      ; x")
    A("    s_sub_u32 s28, s2, 64                    ; idx")
    A("    v_lshrrev_b32 v1, 6, v0")
    A("    s_nop 0")
    cs = {1: 0, 2: 1, 4: 2, 8: 3}[opt.copies]
    A(f"    s_and_b32 s27, s28, {opt.copies-1}       ; copy")
    A(f"    s_lshr_b32 s28, s28, {cs}")
    A("    v_readfirstlane_b32 s29, v1              ; wave")
    A("    s_waitcnt lgkmcnt(0)")
    stamp(A, 1)
    srd(A, 16, 8, 524288)
    srd(A, 36, 10, ws_bytes())
    A(f"    s_cmp_ge_u32 s2, {V0}")
    A("    s_cbranch_scc1 PREP_V")
    A("    s_cmp_ge_u32 s29, 8")
    A("    s_cbranch_scc1 PREP_END")
    A("    s_lshl_b32 s30, s28, 15                  ; kp*2*16384")
    A("    s_add_u32 s33, s30, 16384")
    A("    v_lshrrev_b32 v1, 7, v0                  ; g")
    A("    v_and_b32 v2, 127, v0                    ; fp")
    A("    v_lshlrev_b32 v3, 11, v1")
    A("    v_lshl_add_u32 v3, v2, 2, v3             ; g*2048 + fp*4")
    A("    v_add_u32 v4, 8192, v3")
    for half, so in ((0, 30), (1, 33)):
        for j in range(4):
            A(f"    buffer_load_dword v{8+8*half+j}, v3, s[16:19], s{so} offen offset:{512*j}")
        for j in range(4):
            A(f"    buffer_load_dword v{12+8*half+j}, v4, s[16:19], s{so} offen offset:{512*j}")
    x_touch(A, 42, 41, 42, 44, 40)
    A("    v_lshrrev_b32 v5, 4, v2")
    A("    v_lshlrev_b32 v5, 16, v5")
    A("    v_bfe_u32 v6, v2, 1, 1")
    A("    v_lshl_add_u32 v5, v6, 10, v5")
    A("    v_lshl_add_u32 v5, v1, 8, v5             ; 16g*16")
    A("    v_bfe_u32 v6, v2, 2, 2")
    A("    v_lshl_add_u32 v5, v6, 6, v5             ; 4*gi*16")
    A("    v_and_b32 v6, 1, v2")
    A("    v_lshl_add_u32 v5, v6, 5, v5             ; 2*(fp&1)*16")
    A("    s_lshl_b32 s31, s28, 12                  ; kp*2*2048")
    A("    s_lshl_b32 s32, s27, 19                  ; copy*524288")
    A("    s_add_u32 s31, s31, s32")
    A(f"    s_add_u32 s31, s31, {WS_WF}")
    A("    s_mov_b32 s34, 0x05040100")
    A("    s_mov_b32 s35, 0x07060302")
    for half in range(2):
        A(f"    s_waitcnt vmcnt({(8 if half == 0 else 2) + opt.xpre})")
        if half == 0:
            stamp(A, 2)
        b = 8 + 8 * half; d = 24 + 8 * half
        for i in range(4):
            A(f"    v_perm_b32 v{d+i}, v{b+1+2*i}, v{b+2*i}, s34")
            A(f"    v_perm_b32 v{d+4+i}, v{b+1+2*i}, v{b+2*i}, s35")
        A(f"    buffer_store_dwordx4 v[{d}:{d+3}], v5, s[36:39], s31 offen offset:{2048*half}")
        A(f"    buffer_store_dwordx4 v[{d+4}:{d+7}], v5, s[36:39], s31 offen offset:{2048*half+16}")
    stamp(A, 4)
    if opt.stamps:
        A("    s_waitcnt vmcnt(0)")
    stamp(A, 5)
    stamp_flush(A, 10, 0x40000)
    A("    s_endpgm")
    A.label("PREP_V")
    if opt.tlb:
        A("    s_cmp_eq_u32 s29, 2")
        A("    s_cbranch_scc0 PREP_V2")
        srd(A, 44, 42, N * 512)
        A("    v_and_b32 v1, 63, v0")
        A(f"    s_mov_b32 s30, {opt.tlb}")
        A("    v_mul_lo_u32 v1, s30, v1")
        A(f"    s_sub_u32 s31, s2, {V0}")
        A("    s_lshr_b32 s31, s31, 3")
        A(f"    s_mul_i32 s31, s31, {opt.tlb // 4}")
        A("    buffer_load_dword v2, v1, s[44:47], s31 offen")
        A("    s_endpgm")
        A.label("PREP_V2")
    A("    s_cmp_ge_u32 s29, 2")
    A("    s_cbranch_scc1 PREP_END")
    A(f"    s_sub_u32 s30, s2, {V0}")
    A("    s_lshl_b32 s30, s30, 1")
    A("    s_add_u32 s30, s30, s29")
    A("    s_lshr_b32 s31, s30, 4                   ; h")
    srd(A, 20, 12, 2048)
    srd(A, 24, 14, 2048)
    A("    v_and_b32 v1, 63, v0")
    A("    v_and_b32 v2, 15, v1                     ; i / c")
    A("    v_lshrrev_b32 v3, 4, v1                  ; g")
    A("    v_lshlrev_b32 v4, 9, v2")
    A("    v_lshl_add_u32 v4, v3, 4, v4             ; i*512 + g*16")
    A("    s_lshl_b32 s32, s30, 13")
    A("    v_lshlrev_b32 v5, 4, v3                  ; g*16")
    A("    s_lshl_b32 s33, s31, 9                   ; h*512")
    for kk in range(8):
        A(f"    buffer_load_dwordx4 v[{8+4*kk}:{11+4*kk}], v4, s[16:19], s32 offen offset:{64*kk}")
    A("    v_and_b32 v6, 1, v2")
    A("    v_cmp_eq_u32 vcc, 0, v6")
    A("    s_mov_b64 s[40:41], exec")
    A("    s_mov_b64 exec, vcc")
    for kk in range(8):
        A(f"    buffer_load_dwordx4 v[{40+4*kk}:{43+4*kk}], v5, s[20:23], s33 offen offset:{64*kk}")
    A("    s_andn2_b64 exec, s[40:41], vcc")
    for kk in range(8):
        A(f"    buffer_load_dwordx4 v[{40+4*kk}:{43+4*kk}], v5, s[24:27], s33 offen offset:{64*kk}")
    A("    s_mov_b64 exec, s[40:41]")
    A("    s_lshl_b32 s32, s30, 5")
    A(f"    s_add_u32 s32, s32, {WS_V}")
    A("    v_lshlrev_b32 v7, 3, v3")
    A("    v_lshl_add_u32 v7, v6, 11, v7")
    A("    v_cmp_gt_u32 vcc, 2, v2")
    A(f"    s_mov_b32 s33, {LOG2E}")
    A("    s_waitcnt vmcnt(0)")
    for kk in range(8):
        c = "0" if kk == 0 else "v[72:75]"
        A(f"    v_mfma_f32_16x16x32_bf16 v[72:75], v[{8+4*kk}:{11+4*kk}], v[{40+4*kk}:{43+4*kk}], {c}")
    A("    s_nop 7")
    for r in range(4):
        A(f"    v_mul_f32 v{72+r}, s33, v{72+r}")
    A("    v_cvt_pk_bf16_f32 v76, v72, v73")
    A("    v_cvt_pk_bf16_f32 v77, v74, v75")
    A("    s_and_saveexec_b64 s[40:41], vcc")
    A("    buffer_store_dwordx2 v[76:77], v7, s[36:39], s32 offen")
    stamp(A, 4)
    if opt.stamps:
        A("    s_waitcnt vmcnt(0)")
    stamp(A, 5)
    stamp_flush(A, 10, 0x40000)
    A("    s_endpgm")
    if opt.xpre:
        A.label("PREP_X")
        A("    s_load_dwordx2 s[8:9], s[0:1], 0         ; x")
        if opt.stamps:
            A("    s_load_dwordx2 s[10:11], s[0:1], 64     ; ws")
        A("    s_waitcnt lgkmcnt(0)")
        stamp(A, 1)
        x_touch(A, 8, 1, 2, 16, 28)
        if opt.stamps:
            A("    s_waitcnt vmcnt(0)")
        stamp(A, 4)
        stamp(A, 5)
        stamp_flush(A, 10, 0x40000)
    A.label("PREP_END")
    A("    s_endpgm")


V_TMP = 0; V_DMAC = 1; V_SADDR = 2; V_TE = 3; V_TO = 4; V_G16 = 5; V_H4 = 6; V_TGT = 7; V_TQ = 8
V_PT = 12; V_E = 16; V_D = 20; V_S = 28; V_DEN = 32; V_X = 36; V_ONES = 224
V_TGTA = 40; V_TA = 41; V_T1 = 42; V_T2 = 43; V_T3 = 44; V_WOFF = 45; V_FE = 46; V_FO = 47
V_R = 48; V_SCR = 64; V_V = 128; V_ACC = 160
V_ACC2 = 40
S_X = 4; S_WS = 8; S_OUT = 12; S_SRC = 16; S_DST = 20
S_W = 24; S_NA = 25; S_NB = 26; S_NU = 27; S_P = 28; S_PTR = 29; S_M0 = 30; S_DELTA = 31
S_MSK = 32
S_HI = 40; S_T0 = 41; S_T1 = 42; S_T2 = 43; S_ABASE = 44; S_REG = 45; S_P2 = 46; S_WF = 47; S_EX = 48
S_C02 = 50; S_FIRST = 52; S_K = 53; S_KA = 54; S_KB = 55
S_J1 = 70; S_J2 = 72; S_J3 = 74


def lane_cg(A, vl, vc, vg):
    A(f"    v_mbcnt_lo_u32_b32 v{vl}, -1, 0")
    A(f"    v_mbcnt_hi_u32_b32 v{vl}, -1, v{vl}")
    A(f"    v_and_b32 v{vc}, 15, v{vl}")
    A(f"    v_lshrrev_b32 v{vg}, 4, v{vl}")


def dma_one(A, q, between=None):
    if q == 0:
        A(f"    s_mov_b32 m0, s{S_M0}")
    else:
        A(f"    s_add_u32 m0, s{S_M0}, {PAIR*q}")
    A(f"    v_and_or_b32 v{V_D+q}, v{V_D+q}, s{S_HI}, v{V_DMAC}")
    if between:
        between()
    A(f"    buffer_load_dwordx4 v{V_D+q}, s[{S_X}:{S_X+3}], 0 offen lds")


def wait_vm_dyn(A, sreg, base, lo=0, hi=8):
    end = uid("WV")
    def rec(a, b):
        if a == b:
            A(f"    s_waitcnt vmcnt({base + a})")
            A(f"    s_branch {end}")
            return
        m = (a + b + 1) // 2
        l = uid("WV")
        A(f"    s_cmp_ge_u32 s{sreg}, {m}")
        A(f"    s_cbranch_scc1 {l}")
        rec(a, m - 1)
        A.label(l)
        rec(m, b)
    rec(lo, hi)
    A.label(end)


def dma_partial(A, sreg, zero_fill, rev=False):
    end = uid("DP")
    zl = [uid("DZ") for _ in range(8)]
    order = list(range(7, -1, -1)) if rev else list(range(8))
    for n, q in enumerate(order):
        if n > 0:
            A(f"    s_cmp_gt_u32 s{sreg}, {n}")
            A(f"    s_cbranch_scc0 {zl[n] if zero_fill else end}")
        dma_one(A, q)
    if zero_fill:
        A(f"    s_branch {end}")
        for n in range(1, 8):
            A.label(zl[n])
            A(f"    ds_write_b128 v{V_T2}, v[{V_S}:{V_S+3}] offset:{PAIR*order[n]}")
    A.label(end)


def unit_k(A, sq):
    A(f"    s_add_u32 s{S_T2}, s{sq}, 1")
    A(f"    s_cmp_eq_u32 s{S_T2}, s{S_NU}")
    A(f"    s_cselect_b32 s{S_K}, s{S_KA}, 8")


def dma_entry_reads(A, addr_v):
    for i in range(4):
        A(f"    ds_read2_b32 v[{V_D+2*i}:{V_D+2*i+1}], v{addr_v} offset0:{4*i} offset1:{4*i+2}")


def s_prefetch(A, between=None):
    A(f"    v_add_u32 v{V_TMP}, s{S_PTR}, v{V_G16}")
    if between: between(0)
    A(f"    ds_read_b128 v[{V_E}:{V_E+3}], v{V_TMP}")
    for kk in range(4):
        if between: between(1 + kk)
        A(f"    ds_read_b128 v[{V_R+4*kk}:{V_R+4*kk+3}], v{V_SADDR} offset:{64*kk}")


def s_mfma(A, kk):
    c = f"v[{V_TQ}:{V_TQ+3}]" if kk == 0 else f"v[{V_S}:{V_S+3}]"
    r = V_R + 4 * (kk & 3)
    A(f"    v_mfma_f32_16x16x32_bf16 v[{V_S}:{V_S+3}], v[{r}:{r+3}], v[{V_V+4*kk}:{V_V+4*kk+3}], {c}")


def unit_front(A, par=0):
    q = ["E", "S0", "S1", "S2", "S3"]
    def wait(tag):
        idx = q.index(tag)
        return min(15, len(q) - 1 - idx)
    A(f"    v_add_u32 v{V_T1}, s{S_P2}, v{V_H4}")
    for kk in range(7):
        A(f"    s_waitcnt lgkmcnt({wait('S%d' % kk)})")
        s_mfma(A, kk)
        if kk < 4:
            r = V_R + 4 * kk
            A(f"    ds_read_b128 v[{r}:{r+3}], v{V_SADDR} offset:{64*(kk+4)}")
            q.append("S%d" % (kk + 4))
            for ft in range(4 * kk, 4 * kk + 4):
                a0 = V_SCR + 4 * ft + 2 * par
                A(f"    ds_read_b64_tr_b16 v[{a0}:{a0+1}], v{V_TE if ft % 2 == 0 else V_TO} offset:{32*ft}")
                q.append("T")
            if kk == 3:
                dma_entry_reads(A, V_T1)
                q += ["D"] * 4


def p_ops(par):
    ops = []
    for r in range(4):
        ops.append(f"    v_cmp_eq_u32_sdwa s[{S_MSK+2*r}:{S_MSK+2*r+1}], v{V_E+r}, v{V_TGT} src0_sel:BYTE_0 src1_sel:DWORD")
    grp = [ops]
    grp.append([f"    v_pk_mul_f32 v[{V_X}:{V_X+1}], v[{V_S}:{V_S+1}], s[{S_C02}:{S_C02+1}] op_sel_hi:[1,0]",
                f"    v_pk_mul_f32 v[{V_X+2}:{V_X+3}], v[{V_S+2}:{V_S+3}], s[{S_C02}:{S_C02+1}] op_sel_hi:[1,0]"])
    grp.append([f"    v_max_f32 v{V_X+r}, v{V_X+r}, v{V_S+r}" for r in range(4)])
    grp.append([f"    v_exp_f32 v{V_X+r}, v{V_X+r}" for r in range(4)])
    grp.append([f"    v_cndmask_b32 v{V_X+r}, 0, v{V_X+r}, s[{S_MSK+2*r}:{S_MSK+2*r+1}]" for r in range(4)])
    grp.append([f"    v_cvt_pk_bf16_f32 v{V_PT+2*par}, v{V_X}, v{V_X+1}",
                f"    v_cvt_pk_bf16_f32 v{V_PT+2*par+1}, v{V_X+2}, v{V_X+3}"])
    return grp


def unit_finish_plain(A, par=0):
    A("    s_waitcnt lgkmcnt(0)")
    s_mfma(A, 7)
    g = p_ops(par)
    for l in g[0]: A(l)
    A("    s_nop 3")
    for grp in g[1:]:
        for l in grp: A(l)
    A("    s_nop 1")


def agg_mfma(A, ft, first=False, k32=False):
    c = "0" if first else f"v[{V_ACC+4*ft}:{V_ACC+4*ft+3}]"
    a = V_SCR + 4 * ft
    if k32:
        A(f"    v_mfma_f32_16x16x32_bf16 v[{V_ACC+4*ft}:{V_ACC+4*ft+3}], v[{a}:{a+3}], v[{V_PT}:{V_PT+3}], {c}")
    else:
        A(f"    v_mfma_f32_16x16x16_bf16 v[{V_ACC+4*ft}:{V_ACC+4*ft+3}], v[{a}:{a+1}], v[{V_PT}:{V_PT+1}], {c}")


def den_mfma(A, first=False, k32=False):
    c = "0" if first else f"v[{V_DEN}:{V_DEN+3}]"
    if k32:
        A(f"    v_mfma_f32_16x16x32_bf16 v[{V_DEN}:{V_DEN+3}], v[{V_ONES}:{V_ONES+3}], v[{V_PT}:{V_PT+3}], {c}")
    else:
        A(f"    v_mfma_f32_16x16x16_bf16 v[{V_DEN}:{V_DEN+3}], v[{V_ONES}:{V_ONES+1}], v[{V_PT}:{V_PT+1}], {c}")


def unit_tail(A, dma, nxt, agg, first, par):
    k32 = agg == "k32"
    pend = list(range(16)) if agg else []
    def mf():
        if pend:
            agg_mfma(A, pend.pop(0), first, k32)
            return True
        return False
    g = p_ops(par)
    A("    s_waitcnt lgkmcnt(0)")
    s_mfma(A, 7)
    if dma == "full":
        for q in range(2):
            dma_one(A, q)
        for l in g[0]: A(l)
        for i, grp in enumerate(g[1:]):
            for l in grp: A(l)
            dma_one(A, 2 + i) if i < 5 else None
        dma_one(A, 7)
    elif dma == "part":
        for l in g[0]: A(l)
        dma_partial(A, S_K, False)
        A("    s_nop 1")
        for grp in g[1:]:
            for l in grp: A(l)
        A("    s_nop 1")
    else:
        for l in g[0]: A(l)
        A("    s_nop 3")
        for grp in g[1:]:
            for l in grp: A(l)
        A("    s_nop 1")
    if agg:
        den_mfma(A, first, k32)
    for q in range(8):
        mf()
    A(f"    v_add_u32 v{V_SADDR}, s{S_DELTA}, v{V_SADDR}")
    A(f"    s_add_u32 s{S_PTR}, s{S_PTR}, 64")
    if nxt:
        if dma == "part":
            wait_vm_dyn(A, S_K, 0, 1, 7)
        else:
            A(f"    s_waitcnt vmcnt({8 if dma else 0})")
        s_prefetch(A, between=lambda i: mf())
    while mf():
        pass
    A(f"    v_add_u32 v{V_TE}, s{S_DELTA}, v{V_TE}")
    A(f"    v_add_u32 v{V_TO}, s{S_DELTA}, v{V_TO}")
    A(f"    s_add_u32 s{S_M0}, s{S_M0}, s{S_DELTA}")
    A(f"    s_sub_u32 s{S_DELTA}, 0, s{S_DELTA}")
    A(f"    s_add_u32 s{S_P}, s{S_P}, 1")
    if agg:
        A(f"    s_mov_b32 s{S_FIRST}, 0")


def finalize(A, stage, after_pair=None, fs=False):
    A(f"    v_add_f32 v{V_X}, 0x3089705f, v{V_DEN}        ; + 1e-9")
    A(f"    v_rcp_f32 v{V_X}, v{V_X}")
    A("    s_nop 0")
    A(f"    v_mul_f32 v{V_X}, 0x3e800000, v{V_X}")
    if fs: fstamp(A, 1)
    for u in range(8):
        if fs and u == 4: fstamp(A, 2)
        sq = stage + 4 * (u & 3)
        for half in range(2):
            a = V_ACC + 4 * (2 * u + half)
            if opt.nopk:
                for r in range(4):
                    A(f"    v_mul_f32 v{a+r}, v{V_X}, v{a+r}")
            else:
                A(f"    v_pk_mul_f32 v[{a}:{a+1}], v[{a}:{a+1}], v[{V_X}:{V_X+1}] op_sel_hi:[1,0]")
                A(f"    v_pk_mul_f32 v[{a+2}:{a+3}], v[{a+2}:{a+3}], v[{V_X}:{V_X+1}] op_sel_hi:[1,0]")
        for half in range(2):
            a = V_ACC + 4 * (2 * u + half)
            A(f"    v_cvt_pk_bf16_f32 v{sq+2*half}, v{a}, v{a+1}")
            A(f"    v_cvt_pk_bf16_f32 v{sq+2*half+1}, v{a+2}, v{a+3}")
        ad = V_FE if u % 2 == 0 else V_FO
        A(f"    ds_write_b128 v{ad}, v[{sq}:{sq+3}] offset:{64*u}")
        if after_pair:
            after_pair(u)


def fin_addr(A, vc, vg):
    A(f"    v_and_b32 v{V_T1}, 3, v{vc}                ; h")
    A(f"    v_lshl_add_u32 v{V_FE}, v{V_T1}, 9, v{V_FE}")
    A(f"    v_and_b32 v{V_T2}, 1, v{V_T1}")
    A(f"    v_xor_b32 v{V_T2}, v{V_T2}, v{vg}")
    A(f"    v_lshl_add_u32 v{V_FE}, v{V_T2}, 4, v{V_FE}")
    A(f"    v_lshrrev_b32 v{V_T1}, 1, v{V_T1}")
    A(f"    v_lshlrev_b32 v{V_T1}, 6, v{V_T1}          ; 64*h1")
    A(f"    v_sub_u32 v{V_FO}, v{V_FE}, v{V_T1}")
    A(f"    v_add_u32 v{V_FE}, v{V_FE}, v{V_T1}")


def zero_acc(A):
    for i in range(64):
        A(f"    v_mov_b32 v{V_ACC+i}, 0")
    for i in range(4):
        A(f"    v_mov_b32 v{V_DEN+i}, 0")


def wslot(ks):
    k = ks & 15
    if k < 3:
        return 232 + 8 * k
    if k < 15:
        return 64 + 8 * (k - 3)
    return 224


def w_load(A, ks, dst, voff=V_WOFF):
    A(f"    s_add_u32 s{S_T0}, s{S_WF}, {ks*2048}")
    A(f"    buffer_load_dwordx4 v[{dst}:{dst+3}], v{voff}, s[{S_WS}:{S_WS+3}], s{S_T0} offen")
    A(f"    buffer_load_dwordx4 v[{dst+4}:{dst+7}], v{voff}, s[{S_WS}:{S_WS+3}], s{S_T0} offen offset:1024")


def emit_finb(A, after_loop=True):
    l = uid("FB")
    A(f"    s_cmp_lg_u32 s{S_NB}, 0")
    A(f"    s_cbranch_scc1 {l}")
    zero_acc(A)
    A.label(l)
    A(f"    v_add_f32 v{V_X}, 0x3089705f, v{V_DEN}        ; + 1e-9")
    A(f"    v_rcp_f32 v{V_X}, v{V_X}")
    for j, m in ((1, S_J1), (2, S_J2), (3, S_J3)):
        for i in range(16):
            A(f"    v_cndmask_b32 v{V_ACC+i}, v{V_ACC+i}, v{V_ACC+16*j+i}, s[{m}:{m+1}]")
            if j == 1 and i == 0:
                A(f"    v_mul_f32 v{V_X}, 0x3e800000, v{V_X}")
    if after_loop: fstamp(A, 1)
    for i in range(8):
        a = V_ACC + 2 * i
        A(f"    v_pk_mul_f32 v[{a}:{a+1}], v[{a}:{a+1}], v[{V_X}:{V_X+1}] op_sel_hi:[1,0]")
    for i in range(8):
        a = V_ACC + 2 * i
        A(f"    v_cvt_pk_bf16_f32 v{V_SCR+i}, v{a}, v{a+1}")
    if after_loop: fstamp(A, 2)
    A(f"    ds_write_b128 v{V_FE}, v[{V_SCR}:{V_SCR+3}]")
    A(f"    ds_write_b128 v{V_FO}, v[{V_SCR+4}:{V_SCR+7}] offset:64")
    if after_loop: fstamp(A, 3)
    A(f"    v_mov_b32 v{V_TGT}, v{V_TGTA}")
    for i in range(4):
        A(f"    v_mov_b32 v{V_TQ+i}, v{V_TA}")
    lane_cg(A, V_T3, V_X + 2, V_X + 3)
    A(f"    s_and_b32 s{S_T0}, s{S_W}, 1")
    A(f"    s_lshl_b32 s{S_T0}, s{S_T0}, 7")
    A(f"    s_add_u32 s{S_T0}, s{S_T0}, s{S_REG}")
    A(f"    v_lshrrev_b32 v{V_FE}, 2, v{V_X+2}")
    A(f"    v_mul_u32_u24 v{V_FE}, {RROW}, v{V_FE}")
    A(f"    v_add_u32 v{V_FE}, s{S_T0}, v{V_FE}")
    fin_addr(A, V_X + 2, V_X + 3)
    A(f"    s_mov_b32 s{S_FIRST}, 1")
    if after_loop: fstamp(A, 4)
    A("    s_waitcnt lgkmcnt(0)")
    if after_loop: fstamp(A, 5)


def gen_main(A):
    K = "gather_scatter__graph_attention_gat__graph_kernel"
    VC = 36; VG = 37; VL = 38
    A(f".globl {K}\n.p2align 8\n.type {K},@function\n{K}:")
    A(f"    s_cmp_ge_u32 s2, {NT}")
    A("    s_cbranch_scc1 MAIN_END")
    stamp(A, 0)
    A("    s_load_dwordx2 s[60:61], s[0:1], 64      ; ws")
    A("    s_load_dwordx2 s[52:53], s[0:1], 0       ; x")
    A("    s_load_dwordx2 s[54:55], s[0:1], 48      ; out")
    A("    s_load_dwordx4 s[56:59], s[0:1], 8")
    A(f"    v_and_b32 v{VL}, 63, v0")
    A(f"    v_lshrrev_b32 v{V_T1}, 6, v0")
    A(f"    v_and_b32 v{VC}, 15, v{VL}")
    A(f"    v_readfirstlane_b32 s{S_W}, v{V_T1}")
    A(f"    v_lshrrev_b32 v{VG}, 4, v{VL}")
    A(f"    v_lshlrev_b32 v20, 4, v0                 ; tid*16")
    A(f"    v_lshlrev_b32 v{V_WOFF}, 4, v{VL}        ; lane*16")
    A(f"    v_lshlrev_b32 v21, 9, v{VC}")
    A(f"    v_lshl_add_u32 v21, v{VG}, 4, v21")
    A(f"    s_mul_i32 s{S_REG}, s{S_W}, {REGSZ}")
    A(f"    s_and_b32 s{S_WF}, s2, {opt.copies-1}")
    A(f"    s_lshl_b32 s{S_WF}, s{S_WF}, 19")
    A(f"    s_lshl_b32 s{S_T0}, s{S_W}, 16")
    A(f"    s_add_u32 s{S_WF}, s{S_WF}, s{S_T0}")
    A(f"    s_add_u32 s{S_WF}, s{S_WF}, {WS_WF}")
    A("    s_waitcnt lgkmcnt(0)")
    stamp(A, 1)
    if opt.stamps:
        A(f"    s_mov_b32 s100, s{S_W}")
    srd(A, S_WS, 60, ws_bytes())
    A(f"    s_lshl_b32 s{S_T0}, s2, 13")
    A(f"    buffer_load_dwordx4 v[16:19], v20, s[{S_WS}:{S_WS+3}], s{S_T0} offen")
    srd(A, S_X, 52, N * 512)
    A(f"    s_cmp_ge_u32 s{S_W}, 4")
    A("    s_cbranch_scc1 MAIN_NOV")
    A(f"    s_lshl_b32 s{S_T0}, s{S_W}, 10")
    A(f"    s_add_u32 s{S_T0}, s{S_T0}, {WS_V}")
    A(f"    buffer_load_dwordx4 v[24:27], v{V_WOFF}, s[{S_WS}:{S_WS+3}], s{S_T0} offen")
    A.label("MAIN_NOV")
    A(f"    v_and_b32 v{V_T1}, 31, v{VL}")
    A(f"    v_lshlrev_b32 v{V_T1}, 4, v{V_T1}")
    A(f"    v_lshrrev_b32 v{V_T2}, 5, v{VL}")
    A(f"    v_lshlrev_b32 v{V_H4}, 2, v{V_T2}")
    A(f"    v_lshlrev_b32 v21, 9, v{V_T2}            ; hi*512")
    A(f"    v_cmp_eq_u32 vcc, 0, v{V_T2}")
    A(f"    v_lshlrev_b32 v{V_T2}, 5, v{V_T2}")
    A(f"    v_xor_b32 v{V_DMAC}, v{V_T1}, v{V_T2}    ; DMAC = ((l&31)*16) ^ ((l>>5)*32)")
    A(f"    v_add_u32 v21, v21, v{V_DMAC}")
    A(f"    v_mov_b32 v22, 0x7ffffe00")
    A(f"    v_cndmask_b32 v22, v22, v{V_DMAC}, vcc")
    A(f"    s_mul_i32 s{S_T0}, s2, {TILE*512}")
    A(f"    s_lshl_b32 s{S_T1}, s{S_W}, 11            ; 4w rows")
    A(f"    s_add_u32 s{S_T1}, s{S_T1}, s{S_T0}")
    A(f"    s_add_u32 m0, s{S_REG}, {UNIT}")
    A(f"    s_add_u32 s{S_T2}, s{S_T1}, 1024")
    A(f"    buffer_load_dwordx4 v21, s[{S_X}:{S_X+3}], s{S_T1} offen lds")
    A(f"    s_add_u32 m0, s{S_REG}, {UNIT+PAIR}")
    A(f"    s_lshl_b32 s{S_T1}, s{S_W}, 9")
    A(f"    buffer_load_dwordx4 v21, s[{S_X}:{S_X+3}], s{S_T2} offen lds")
    A(f"    s_add_u32 m0, s{S_REG}, {UNIT+2*PAIR}")
    A(f"    s_add_u32 s{S_T1}, s{S_T1}, s{S_T0}")
    A(f"    s_add_u32 s{S_T1}, s{S_T1}, {32*512}")
    A(f"    buffer_load_dwordx4 v22, s[{S_X}:{S_X+3}], s{S_T1} offen lds")
    if opt.xt:
        A(f"    s_lshr_b32 s{S_T0}, s2, 3")
        A(f"    s_lshl_b32 s{S_T0}, s{S_T0}, 9")
        A(f"    v_add_u32 v23, s{S_T0}, v0")
        A(f"    v_lshlrev_b32 v23, 7, v23")
        for r in range(opt.xt):
            A(f"    s_mov_b32 s{S_T0}, {opt.xoff + r*16384*128}")
            A(f"    buffer_load_dword v255, v23, s[{S_X}:{S_X+3}], s{S_T0} offen")
    NW0 = 0
    srd(A, S_OUT, 54, N * 512)
    srd(A, S_SRC, 56, E * 4)
    srd(A, S_DST, 58, E * 4)
    A(f"    v_mov_b32 v28, {hex(SENT_LIST)}")
    A(f"    v_mov_b32 v29, v28\n    v_mov_b32 v30, v28\n    v_mov_b32 v31, v28")
    A(f"    v_add_u32 v22, {LISTS}, v20")
    A(f"    v_cmp_gt_u32 vcc, 352, v0")
    A(f"    v_mov_b32 v32, 0")
    A(f"    v_lshlrev_b32 v23, 2, v0")
    A(f"    v_add_u32 v23, {CNT}, v23")
    A(f"    s_and_saveexec_b64 s[{S_EX}:{S_EX+1}], vcc")
    A(f"    s_cbranch_execz MAIN_NOCNT")
    A(f"    ds_write_b128 v22, v[28:31]")
    A(f"    v_cmp_gt_u32 vcc, 32, v0")
    A(f"    s_and_b64 exec, exec, vcc")
    A(f"    s_cbranch_execz MAIN_NOCNT")
    A(f"    ds_write_b32 v23, v32")
    A.label("MAIN_NOCNT")
    A(f"    s_mov_b64 exec, s[{S_EX}:{S_EX+1}]")
    T1, T2, T3 = V_T1, V_T2, V_T3
    A(f"    v_lshlrev_b32 v{V_G16}, 4, v{VG}")
    A(f"    v_lshrrev_b32 v{T1}, 1, v{VC}")
    A(f"    v_mul_u32_u24 v{V_SADDR}, {PAIR}, v{T1}")
    A(f"    v_and_b32 v{T1}, 1, v{VC}")
    A(f"    v_lshl_add_u32 v{V_SADDR}, v{T1}, 9, v{V_SADDR}")
    A(f"    v_lshrrev_b32 v{T2}, 1, v{VG}")
    A(f"    v_xor_b32 v{T1}, v{T1}, v{T2}")
    A(f"    v_lshl_add_u32 v{V_SADDR}, v{T1}, 5, v{V_SADDR}")
    A(f"    v_and_b32 v{T1}, 1, v{VG}")
    A(f"    v_lshl_add_u32 v{V_SADDR}, v{T1}, 4, v{V_SADDR}")
    A(f"    v_add_u32 v{V_SADDR}, s{S_REG}, v{V_SADDR}")
    A(f"    v_lshrrev_b32 v{T1}, 2, v{VC}")
    A(f"    v_lshl_add_u32 v{T1}, v{VG}, 2, v{T1}      ; row")
    A(f"    v_lshrrev_b32 v{T2}, 1, v{T1}")
    A(f"    v_mul_u32_u24 v{V_TE}, {PAIR}, v{T2}")
    A(f"    v_and_b32 v{T1}, 1, v{T1}                  ; hi")
    A(f"    v_lshl_add_u32 v{V_TE}, v{T1}, 9, v{V_TE}")
    A(f"    v_and_b32 v{T2}, 3, v{VC}")
    A(f"    v_lshl_add_u32 v{V_TE}, v{T2}, 3, v{V_TE}")
    A(f"    v_add_u32 v{V_TE}, s{S_REG}, v{V_TE}")
    A(f"    v_lshlrev_b32 v{T1}, 5, v{T1}              ; 32*hi")
    A(f"    v_sub_u32 v{V_TO}, v{V_TE}, v{T1}")
    A(f"    v_add_u32 v{V_TE}, v{V_TE}, v{T1}")
    for i in range(4):
        A(f"    v_mov_b32 v{V_ONES+i}, 0x3f803f80")
    A(f"    s_mov_b32 s{S_HI}, 0xfffffe00")
    A(f"    s_mov_b32 s{S_C02}, 0x3e4ccccd")
    A(f"    s_mul_i32 s{S_ABASE}, s{S_W}, {LSZ}")
    A(f"    s_add_u32 s{S_ABASE}, s{S_ABASE}, {LISTS+192}")
    A(f"    s_mul_i32 s{S_T0}, s{S_W}, {RROW}")
    A(f"    s_add_u32 s{S_T0}, s{S_T0}, {AGG1}")
    A(f"    v_lshrrev_b32 v{V_FE}, 2, v{VC}")
    A(f"    v_lshlrev_b32 v{V_FE}, 7, v{V_FE}          ; 128*j")
    A(f"    v_add_u32 v{V_FE}, s{S_T0}, v{V_FE}")
    fin_addr(A, VC, VG)
    A(f"    v_and_b32 v{T1}, 3, v{VC}")
    A(f"    v_mul_u32_u24 v39, 576, v{T1}")
    A(f"    v_lshl_add_u32 v39, v{VG}, 4, v39")
    A(f"    v_add_u32 v39, {VLDS}, v39")
    A(f"    v_lshrrev_b32 v{T1}, 5, v{VL}")
    A(f"    s_lshl_b32 s{S_T0}, s{S_W}, 1")
    A(f"    v_add_u32 v{T1}, s{S_T0}, v{T1}")
    A(f"    v_mul_u32_u24 v22, 576, v{T1}")
    A(f"    v_and_b32 v{T1}, 31, v{VL}")
    A(f"    v_lshl_add_u32 v22, v{T1}, 4, v22")
    A(f"    v_add_u32 v22, {VLDS}, v22")
    A(f"    v_lshrrev_b32 v{T1}, 2, v{VC}")
    A(f"    s_lshl_b32 s{S_T0}, s{S_W}, 2")
    A(f"    v_add_u32 v{V_TGTA}, s{S_T0}, v{T1}")
    A(f"    s_add_u32 s{S_T0}, s{S_W}, 32")
    A(f"    v_mov_b32 v{V_TGT}, s{S_T0}")
    A(f"    s_waitcnt vmcnt({3+opt.xt})")
    A(f"    s_cmp_ge_u32 s{S_W}, 4")
    A("    s_cbranch_scc1 MAIN_WB")
    A(f"    ds_write_b128 v22, v[24:27]")
    A.label("MAIN_WB")
    stamp(A, 2)
    EN = 16
    NN = 20; WV = 24; RK = 28; BS = 32
    A(f"    s_mov_b64 s[62:63], 0")
    for i in range(4):
        A(f"    v_and_b32 v{NN+i}, 63, v{EN+i}")
        A(f"    v_cmp_eq_u32 vcc, -2, v{EN+i}")
        A(f"    s_or_b64 s[62:63], s[62:63], vcc")
        A(f"    v_cmp_gt_u32 s[{64+2*i}:{65+2*i}], 40, v{NN+i}       ; valid")
        A(f"    v_cmp_le_u32 s[{72+2*i}:{73+2*i}], 32, v{NN+i}       ; group B")
        A(f"    v_lshrrev_b32 v{T1}, 2, v{NN+i}")
        A(f"    v_subrev_u32 v{T2}, 32, v{NN+i}")
        A(f"    v_subrev_u32 v{T3}, 24, v{NN+i}")
        A(f"    v_cndmask_b32 v{WV+i}, v{T1}, v{T2}, s[{72+2*i}:{73+2*i}]")
        A(f"    v_cndmask_b32 v{T1}, v{T1}, v{T3}, s[{72+2*i}:{73+2*i}]")
        A(f"    v_lshlrev_b32 v{BS+i}, 2, v{T1}")
        A(f"    v_add_u32 v{BS+i}, {CNT}, v{BS+i}")
    A(f"    v_mov_b32 v{V_TMP}, 1")
    A("    s_waitcnt lgkmcnt(0)")
    A("    s_barrier")
    for i in range(4):
        A(f"    s_mov_b64 exec, s[{64+2*i}:{65+2*i}]")
        A(f"    ds_add_rtn_u32 v{RK+i}, v{BS+i}, v{V_TMP}")
    A("    s_mov_b64 exec, -1")
    def v_reads():
        for kk in range(8):
            A(f"    ds_read_b128 v[{V_ACC+4*kk}:{V_ACC+4*kk+3}], v39 offset:{4*576+64*kk}")
        for kk in range(8):
            A(f"    ds_read_b128 v[{V_V+4*kk}:{V_V+4*kk+3}], v39 offset:{64*kk}")
    if not opt.vlate:
        v_reads()
    A(f"    s_mov_b32 s{S_T0}, {LSZ}")
    A(f"    v_mov_b32 v{T1}, {LISTS+192}")
    for i in range(4):
        A(f"    v_mad_u32_u24 v{BS+i}, v{WV+i}, s{S_T0}, v{T1}")
    for i in range(4):
        A(f"    s_waitcnt lgkmcnt({(3-i) if opt.vlate else min(15, 16+3-i)})")
        A(f"    v_lshlrev_b32 v{T1}, 2, v{RK+i}")
        A(f"    v_sub_u32 v{T2}, -4, v{T1}")
        A(f"    v_mov_b32 v{T3}, {CAPA}")
        A(f"    v_cndmask_b32 v{T1}, v{T1}, v{T2}, s[{72+2*i}:{73+2*i}]")
        A(f"    v_cndmask_b32 v{T3}, v{T3}, {CAPB}, s[{72+2*i}:{73+2*i}]")
        A(f"    v_add_u32 v{BS+i}, v{BS+i}, v{T1}")
        A(f"    v_cmp_lt_u32 vcc, v{RK+i}, v{T3}")
        A(f"    s_andn2_b64 s[80:81], s[{64+2*i}:{65+2*i}], vcc")
        A(f"    s_or_b64 s[62:63], s[62:63], s[80:81]")
        A(f"    s_and_b64 exec, s[{64+2*i}:{65+2*i}], vcc")
        A(f"    ds_write_b32 v{BS+i}, v{EN+i}")
        A(f"    s_mov_b64 exec, -1")
    A(f"    s_cmp_eq_u64 s[62:63], 0")
    A(f"    s_cbranch_scc1 MAIN_NOOVF")
    A(f"    v_mov_b32 v{T1}, {OVF}")
    A(f"    ds_write_b32 v{T1}, v{V_TMP}")
    A.label("MAIN_NOOVF")
    A("    s_waitcnt lgkmcnt(0)")
    A("    s_barrier")
    stamp(A, 3)
    A(f"    s_lshl_b32 s{S_T0}, s{S_W}, 2")
    A(f"    s_add_u32 s{S_T0}, s{S_T0}, {CNT}")
    A(f"    v_mov_b32 v16, s{S_T0}")
    A(f"    v_mov_b32 v17, {OVF}")
    A(f"    ds_read_b32 v18, v16                     ; cntA")
    A(f"    ds_read_b32 v19, v16 offset:32           ; cntB")
    A(f"    ds_read_b32 v20, v17")
    A(f"    v_lshrrev_b32 v{T1}, 2, v{VC}")
    A(f"    v_cmp_eq_u32 s[{S_J1}:{S_J1+1}], 1, v{T1}")
    A(f"    v_cmp_eq_u32 s[{S_J2}:{S_J2+1}], 2, v{T1}")
    A(f"    v_cmp_eq_u32 s[{S_J3}:{S_J3+1}], 3, v{T1}")
    A("    s_waitcnt lgkmcnt(0)")
    A(f"    v_readfirstlane_b32 s{S_NA}, v18")
    A(f"    v_readfirstlane_b32 s{S_NB}, v19")
    A(f"    v_readfirstlane_b32 s{S_T0}, v20")
    A(f"    s_mov_b32 s{S_M0}, s{S_REG}")
    A(f"    s_mov_b32 s{S_DELTA}, {UNIT}")
    A(f"    s_mov_b32 s{S_P}, 0")
    A(f"    s_mov_b32 s{S_FIRST}, 1")
    A(f"    s_cmp_lg_u32 s{S_T0}, 0")
    A("    s_cbranch_scc1 MAIN_SLOW")
    A(f"    s_sub_u32 s{S_KA}, s{S_NA}, 1")
    A(f"    s_and_b32 s{S_KA}, s{S_KA}, 15")
    A(f"    s_lshr_b32 s{S_KA}, s{S_KA}, 1")
    A(f"    s_add_u32 s{S_KA}, s{S_KA}, 1")
    A(f"    s_sub_u32 s{S_KB}, s{S_NB}, 1")
    A(f"    s_and_b32 s{S_KB}, s{S_KB}, 15")
    A(f"    s_lshr_b32 s{S_KB}, s{S_KB}, 1")
    A(f"    s_add_u32 s{S_KB}, s{S_KB}, 1")
    A(f"    s_cmp_eq_u32 s{S_NA}, 0")
    A(f"    s_cselect_b32 s{S_KA}, 8, s{S_KA}")
    A(f"    s_add_u32 s{S_NA}, s{S_NA}, 15")
    A(f"    s_lshr_b32 s{S_NA}, s{S_NA}, 4")
    A(f"    s_add_u32 s{S_NB}, s{S_NB}, 15")
    A(f"    s_lshr_b32 s{S_NB}, s{S_NB}, 4")
    A(f"    s_add_u32 s{S_NU}, s{S_NA}, s{S_NB}")
    A(f"    s_lshl_b32 s{S_T0}, s{S_NB}, 6")
    A(f"    s_sub_u32 s{S_PTR}, s{S_ABASE}, s{S_T0}")
    def emit_t(A):
        for kk in range(8):
            A(f"    ds_read_b128 v[{V_SCR+4*kk}:{V_SCR+4*kk+3}], v{V_SADDR} offset:{UNIT+64*kk}")
        A(f"    v_lshlrev_b32 v{T2}, 2, v{VC}")
        A(f"    v_and_b32 v{T3}, 3, v{VC}")
        A(f"    v_add_u32 v{T3}, 16, v{T3}")
        A(f"    v_lshlrev_b32 v{T3}, 2, v{T3}              ; lane 16 + h")
        for kk in range(8):
            A(f"    s_waitcnt lgkmcnt({7-kk})")
            c = "0" if kk == 0 else f"v[{V_S}:{V_S+3}]"
            A(f"    v_mfma_f32_16x16x32_bf16 v[{V_S}:{V_S+3}], v[{V_SCR+4*kk}:{V_SCR+4*kk+3}], v[{V_ACC+4*kk}:{V_ACC+4*kk+3}], {c}")
        A("    s_nop 7")
        A(f"    v_cndmask_b32 v{V_TA}, v{V_S}, v{V_S+1}, s[{S_J1}:{S_J1+1}]")
        A(f"    v_cndmask_b32 v{V_TA}, v{V_TA}, v{V_S+2}, s[{S_J2}:{S_J2+1}]")
        A(f"    v_cndmask_b32 v{V_TA}, v{V_TA}, v{V_S+3}, s[{S_J3}:{S_J3+1}]")
        A(f"    ds_bpermute_b32 v{V_TQ}, v{T3}, v{V_S}")
        A(f"    ds_bpermute_b32 v{V_TA}, v{T2}, v{V_TA}")
        A("    s_waitcnt lgkmcnt(0)")
        for i in range(1, 4):
            A(f"    v_mov_b32 v{V_TQ+i}, v{V_TQ}")

    def zero_prep(A, buf):
        if opt.skip:
            for i in range(4):
                A(f"    v_mov_b32 v{V_S+i}, 0")
            A(f"    v_mbcnt_lo_u32_b32 v{V_T2}, -1, 0")
            A(f"    v_mbcnt_hi_u32_b32 v{V_T2}, -1, v{V_T2}")
            A(f"    v_lshlrev_b32 v{V_T2}, 4, v{V_T2}")
            A(f"    s_add_u32 s{S_T1}, s{S_REG}, {UNIT*buf}")
            A(f"    v_add_u32 v{V_T2}, s{S_T1}, v{V_T2}")

    if opt.prio == 2:
        A("    s_setprio 3")
    A(f"    s_mov_b32 s{S_K}, 0")
    A(f"    s_cmp_eq_u32 s{S_NU}, 0")
    A("    s_cbranch_scc1 MAIN_PRO_T")
    A(f"    v_add_u32 v{T1}, s{S_PTR}, v{V_H4}")
    dma_entry_reads(A, T1)
    zero_prep(A, 0)
    A(f"    s_mov_b32 s{S_T1}, 0")
    if opt.skip:
        unit_k(A, S_T1)
    A("    s_waitcnt lgkmcnt(0)")
    if opt.skip:
        A(f"    s_cmp_eq_u32 s{S_NB}, 0")
        A("    s_cbranch_scc1 MAIN_U0A")
        A(f"    s_mov_b32 s{S_K}, s{S_KB}")
        dma_partial(A, S_K, True, rev=True)
        A("    s_branch MAIN_PRO_T")
        A.label("MAIN_U0A")
        dma_partial(A, S_K, True)
    else:
        A(f"    s_mov_b32 s{S_K}, 8")
        for q in range(8):
            dma_one(A, q)
    A.label("MAIN_PRO_T")
    if opt.vlate:
        v_reads()
        A("    s_waitcnt lgkmcnt(0)")
    if opt.bar0 or opt.vlate:
        A("    s_barrier")
    wait_vm_dyn(A, S_K, opt.xt, 0, 8)
    emit_t(A)
    A(f"    s_mov_b32 s{S_K}, 0")
    A(f"    s_cmp_le_u32 s{S_NU}, 1")
    A("    s_cbranch_scc1 MAIN_PRO_DONE")
    A(f"    v_add_u32 v{T1}, s{S_PTR}, v{V_H4}")
    A(f"    v_add_u32 v{T1}, 64, v{T1}")
    dma_entry_reads(A, T1)
    zero_prep(A, 1)
    A(f"    s_add_u32 s{S_M0}, s{S_REG}, {UNIT}")
    A(f"    s_mov_b32 s{S_T1}, 1")
    if opt.skip:
        unit_k(A, S_T1)
    else:
        A(f"    s_mov_b32 s{S_K}, 8")
    A("    s_waitcnt lgkmcnt(0)")
    if opt.skip:
        dma_partial(A, S_K, True)
    else:
        for q in range(8):
            dma_one(A, q)
    A(f"    s_mov_b32 s{S_M0}, s{S_REG}")
    A.label("MAIN_PRO_DONE")
    stamp(A, 4)
    if opt.prio == 1:
        A(f"    s_setprio 1")
    for ks in range(opt.w3):
        w_load(A, ks, wslot(ks))
    WX = 2 * opt.w3
    A(f"    s_cmp_eq_u32 s{S_NU}, 0")
    A("    s_cbranch_scc1 MAIN_LOOP")
    wait_vm_dyn(A, S_K, WX, 0, 8)
    A("    s_waitcnt lgkmcnt(0)")
    s_prefetch(A)
    if opt.stamps and opt.ustamps:
        A("    s_memtime s[98:99]")
    A.label("MAIN_LOOP")
    A(f"    s_cmp_eq_u32 s{S_P}, s{S_NB}")
    A("    s_cbranch_scc1 MAIN_FINB")
    A.label("MAIN_LOOP2")
    A(f"    s_cmp_ge_u32 s{S_P}, s{S_NU}")
    A("    s_cbranch_scc1 MAIN_DONE")

    def dispatch(tag, agg, firsts, minleft, dest, par):
        for first in firsts:
            if len(firsts) > 1:
                if first == firsts[0]:
                    A(f"    s_cmp_eq_u32 s{S_FIRST}, 0")
                    A(f"    s_cbranch_scc0 {tag}_F1")
                else:
                    A.label(f"{tag}_F1")
            A(f"    s_cmp_ge_u32 s{S_T0}, 3")
            A(f"    s_cbranch_scc0 {tag}_{first}_R2")
            if opt.skip:
                A(f"    s_cmp_eq_u32 s{S_K}, 8")
                A(f"    s_cbranch_scc0 {tag}_{first}_PART")
            unit_tail(A, "full", True, agg, first, par)
            A(f"    s_branch {dest}")
            if opt.skip:
                A.label(f"{tag}_{first}_PART")
                unit_tail(A, "part", True, agg, first, par)
                A(f"    s_branch {dest}")
            A.label(f"{tag}_{first}_R2")
            if minleft <= 1:
                A(f"    s_cmp_eq_u32 s{S_T0}, 2")
                A(f"    s_cbranch_scc0 {tag}_{first}_R1")
            unit_tail(A, None, True, agg, first, par)
            A(f"    s_branch {dest}")
            if minleft <= 1:
                A.label(f"{tag}_{first}_R1")
                unit_tail(A, None, False, agg, first, par)
                A(f"    s_branch {dest}")

    def set_prio():
        if opt.prio == 2:
            l1 = uid("PR"); l2 = uid("PR"); le = uid("PR")
            A(f"    s_cmp_ge_u32 s{S_P}, {opt.pa}")
            A(f"    s_cbranch_scc1 {l1}")
            A("    s_setprio 3")
            A(f"    s_branch {le}")
            A.label(l1)
            A(f"    s_cmp_ge_u32 s{S_P}, {opt.pb}")
            A(f"    s_cbranch_scc1 {l2}")
            A("    s_setprio 2")
            A(f"    s_branch {le}")
            A.label(l2)
            A("    s_setprio 1")
            A.label(le)

    def k_next():
        set_prio()
        if opt.skip:
            A(f"    s_add_u32 s{S_T1}, s{S_P}, 2")
            unit_k(A, S_T1)

    pstamp(A)
    ustamp(A, opt.up, 0); ustamp(A, opt.up + 1, 4)
    A(f"    s_add_u32 s{S_P2}, s{S_PTR}, 128")
    k_next()
    unit_front(A, 0)
    ustamp(A, opt.up, 1); ustamp(A, opt.up + 1, 5)
    A(f"    s_sub_u32 s{S_T0}, s{S_NU}, s{S_P}")
    A(f"    s_add_u32 s{S_T1}, s{S_P}, 1")
    A(f"    s_cmp_eq_u32 s{S_T1}, s{S_NB}")
    A("    s_cbranch_scc1 TL_LAST")
    A(f"    s_cmp_eq_u32 s{S_T1}, s{S_NU}")
    A("    s_cbranch_scc1 TL_LAST")
    dispatch("TE", None, [0], 2, "MAIN_ODD", 0)
    A.label("TL_LAST")
    dispatch("TL", "k16", [0, 1], 1, "MAIN_NEXT", 0)
    A.label("MAIN_ODD")
    pstamp(A)
    ustamp(A, opt.up + 1, 2); ustamp(A, opt.up + 2, 6)
    ustamp(A, opt.up, 0); ustamp(A, opt.up + 1, 4)
    A(f"    s_add_u32 s{S_P2}, s{S_PTR}, 128")
    k_next()
    unit_front(A, 1)
    ustamp(A, opt.up, 1); ustamp(A, opt.up + 1, 5)
    A(f"    s_sub_u32 s{S_T0}, s{S_NU}, s{S_P}")
    dispatch("TO", "k32", [0, 1], 1, "MAIN_NEXT", 1)
    A.label("MAIN_NEXT")
    ustamp(A, opt.up + 1, 2); ustamp(A, opt.up + 2, 6)
    A("    s_branch MAIN_LOOP")

    A.label("MAIN_FINB")
    fstamp(A, 0)
    A("    s_nop 3")
    emit_finb(A)
    A("    s_branch MAIN_LOOP2")

    A.label("MAIN_DONE")
    if opt.prio:
        A("    s_setprio 0")
    stamp(A, 5)
    if opt.stamps and opt.pstamps:
        A("    s_memtime s[98:99]")
    A(f"    s_cmp_lg_u32 s{S_NA}, 0")
    A("    s_cbranch_scc1 MAIN_DONE2")
    zero_acc(A)
    A.label("MAIN_DONE2")
    VC2 = V_T2; VG2 = V_T3
    lane_cg(A, V_T1, VC2, VG2)
    A(f"    v_lshrrev_b32 v{V_TMP}, 2, v{VC2}                 ; w'")
    A(f"    v_mul_u32_u24 v1, {REGSZ}, v{V_TMP}")
    A(f"    v_and_b32 v{V_TMP}, 1, v{V_TMP}")
    A(f"    v_lshl_add_u32 v1, v{V_TMP}, 7, v1")
    A(f"    v_and_b32 v{V_TMP}, 3, v{VC2}")
    A(f"    v_mul_u32_u24 v{V_TMP}, {RROW}, v{V_TMP}")
    A(f"    v_add_u32 v1, v1, v{V_TMP}")
    A(f"    v_and_b32 v{V_TMP}, 7, v{VC2}")
    A(f"    v_mul_u32_u24 v5, {RROW}, v{V_TMP}")
    A(f"    v_add_u32 v5, {AGG1}, v5")
    A(f"    v_lshlrev_b32 v{V_TMP}, 4, v{VG2}                 ; g*16")
    A(f"    v_xor_b32 v{V_T1}, 16, v{V_TMP}                   ; (g^1)*16")
    A(f"    v_add_u32 v2, v1, v{V_T1}")
    A(f"    v_add_u32 v1, v1, v{V_TMP}")
    A(f"    v_add_u32 v3, {4*REGSZ}, v1")
    A(f"    v_add_u32 v4, {4*REGSZ}, v2")
    A(f"    v_add_u32 v6, v5, v{V_T1}")
    A(f"    v_add_u32 v5, v5, v{V_TMP}")
    A(f"    s_mul_i32 s{S_T0}, s2, {TILE*512}")
    A(f"    s_lshl_b32 s{S_T1}, s{S_W}, 6")
    A(f"    s_add_u32 s{S_T0}, s{S_T0}, s{S_T1}")
    A(f"    v_lshlrev_b32 v8, 9, v{VC2}")
    A(f"    v_lshl_add_u32 v8, v{VG2}, 4, v8")
    A(f"    v_add_u32 v8, s{S_T0}, v8")
    A(f"    v_add_u32 v9, {16*512}, v8")
    A(f"    v_add_u32 v10, {32*512}, v8")
    A(f"    v_mov_b32 v{V_TMP}, 0x7ffffff0")
    A(f"    v_cmp_gt_u32 vcc, 8, v{VC2}")
    A(f"    v_mov_b32 v7, v{V_WOFF}")
    A(f"    s_nop 0")
    A(f"    s_mov_b64 s[{S_EX}:{S_EX+1}], vcc")
    A(f"    v_cndmask_b32 v10, v{V_TMP}, v10, vcc")
    NPRE = opt.wpre
    W3 = opt.w3
    def pre(u):
        for k in range((NPRE * u) // 8, (NPRE * (u + 1)) // 8):
            w_load(A, W3 + k, wslot(W3 + k), 7)
    finalize(A, 12, after_pair=pre)
    A("    s_waitcnt lgkmcnt(0)")
    A("    s_barrier")
    stamp(A, 6)
    NB = opt.bring
    BR = V_ACC
    def b_reads(ks, zero2=False):
        h = ks >> 3; u = ks & 7; h0 = h & 1; h1 = h >> 1
        imm = h * 512 + ((u ^ h1) * 64)
        st = BR + 12 * (ks % NB)
        for T in range(3):
            if T == 2 and opt.zero2:
                A(f"    s_mov_b64 exec, s[{S_EX}:{S_EX+1}]")
            A(f"    ds_read_b128 v[{st+4*T}:{st+4*T+3}], v{1+2*T+h0} offset:{imm}")
            if T == 2 and opt.zero2:
                A(f"    s_mov_b64 exec, -1")
    if opt.zero2:
        for st_ in range(NB):
            for i in range(4):
                A(f"    v_mov_b32 v{BR+12*st_+8+i}, 0")
    for ks in range(NB - 1):
        b_reads(ks)
    q = [("w", k) for k in range(W3 + NPRE) for _ in range(2)]
    def wait_for(tag):
        idx = max(i for i, t in enumerate(q) if t == tag)
        return len(q) - 1 - idx
    nxt_w = W3 + NPRE
    nrem = 32 - nxt_w
    sched = {}
    for j in range(nrem):
        k2 = nxt_w + j
        st_ = max((j * opt.wlast) // max(nrem - 1, 1), k2 - 16)
        st_ = min(st_, k2 - opt.wmin)
        sched.setdefault(st_, []).append(k2)
    if opt.gprio:
        l = uid("GP")
        A(f"    s_cmp_lt_u32 s{S_W}, 4")
        A(f"    s_cbranch_scc1 {l}")
        A("    s_setprio 1")
        A.label(l)
    for ks in range(32):
        if opt.gprio and ks == opt.gpa:
            l = uid("GP")
            A(f"    s_cmp_lt_u32 s{S_W}, 4")
            A(f"    s_cbranch_scc0 {l}")
            A("    s_setprio 1")
            A.label(l)
        if opt.gprio and ks == opt.gpb:
            l = uid("GP")
            A(f"    s_cmp_lt_u32 s{S_W}, 4")
            A(f"    s_cbranch_scc1 {l}")
            A("    s_setprio 0")
            A.label(l)
        if ks % 4 == 0:
            gstamp(A, ks // 4)
        if ks + NB - 1 < 32:
            b_reads(ks + NB - 1, zero2=opt.zero2)
        lg = 3 * min(NB - 1, 31 - ks)
        A(f"    s_waitcnt vmcnt({min(wait_for(('w', ks)), 63)}) lgkmcnt({lg})")
        st = BR + 12 * (ks % NB)
        wb = wslot(ks)
        for T in range(3):
            for t in range(2):
                a = V_ACC2 + 4 * (2 * T + t)
                c = "0" if ks == 0 else f"v[{a}:{a+3}]"
                A(f"    v_mfma_f32_16x16x32_bf16 v[{a}:{a+3}], v[{wb+4*t}:{wb+4*t+3}], v[{st+4*T}:{st+4*T+3}], {c}")
        for k2 in sched.get(ks, []):
            assert k2 - 16 <= ks < k2
            assert k2 == nxt_w
            w_load(A, k2, wslot(k2), 7)
            q.append(("w", k2)); q.append(("w", k2))
            nxt_w += 1
    assert nxt_w == 32
    stamp(A, 7)
    gstamp(A, 8)
    A("    s_nop 7")
    for T in range(3):
        a0 = V_ACC2 + 4 * (2 * T); a1 = a0 + 4
        st = 12 + 4 * T
        A(f"    v_cvt_pk_bf16_f32 v{st}, v{a0}, v{a0+1}")
        A(f"    v_cvt_pk_bf16_f32 v{st+1}, v{a0+2}, v{a0+3}")
        A(f"    v_cvt_pk_bf16_f32 v{st+2}, v{a1}, v{a1+1}")
        A(f"    v_cvt_pk_bf16_f32 v{st+3}, v{a1+2}, v{a1+3}")
        A(f"    buffer_store_dwordx4 v[{st}:{st+3}], v{8+T}, s[{S_OUT}:{S_OUT+3}], 0 offen")
    if opt.stamps:
        A("    s_waitcnt vmcnt(0)")
    stamp(A, 8)
    stamp_flush(A, 60, 0)
    A("    s_endpgm")

    A.label("MAIN_SLOW")
    if opt.vlate:
        v_reads()
        A("    s_waitcnt lgkmcnt(0)")
    if opt.bar0 or opt.vlate:
        A("    s_barrier")
    A("    s_waitcnt vmcnt(0)")
    emit_t(A)
    for ks in range(opt.w3):
        w_load(A, ks, wslot(ks))
    gen_slow(A)
    A.label("MAIN_END")
    A("    s_endpgm")


def gen_slow(A):
    S_GRP = 62; S_POS = 63; S_CNT = 64; S_LO = 65; S_HIB = 66; S_BASE = 67
    A("    s_waitcnt vmcnt(0)")
    zero_acc(A)
    A(f"    s_mul_i32 s{S_BASE}, s2, {TILE}")
    A(f"    s_mov_b32 s{S_GRP}, 0")
    A(f"    s_mov_b32 s{S_NB}, 1")
    A(f"    s_mov_b32 s{S_NA}, 1")
    A.label("SLOW_GROUP")
    A(f"    s_add_u32 s{S_LO}, s{S_W}, 32")
    A(f"    s_add_u32 s{S_HIB}, s{S_LO}, 1")
    A(f"    s_cmp_eq_u32 s{S_GRP}, 0")
    A("    s_cbranch_scc1 SLOW_RANGE")
    A(f"    s_lshl_b32 s{S_LO}, s{S_W}, 2")
    A(f"    s_add_u32 s{S_HIB}, s{S_LO}, 4")
    A.label("SLOW_RANGE")
    A(f"    s_mov_b32 s{S_POS}, 0")
    A.label("SLOW_REFILL")
    L4 = V_T1; X1 = V_T2; X2 = V_T3; X3 = V_TMP
    A(f"    v_mbcnt_lo_u32_b32 v{L4}, -1, 0")
    A(f"    v_mbcnt_hi_u32_b32 v{L4}, -1, v{L4}")
    A(f"    v_lshlrev_b32 v{L4}, 2, v{L4}")
    A(f"    v_mov_b32 v{X1}, {hex(SENT_LIST)}")
    A(f"    v_add_u32 v{X2}, s{S_ABASE}, v{L4}")
    A(f"    ds_write_b32 v{X2}, v{X1}")
    A(f"    ds_write_b32 v{X2}, v{X1} offset:256")
    A(f"    s_mov_b32 s{S_CNT}, 0")
    A.label("SLOW_SCAN")
    A(f"    s_cmp_ge_u32 s{S_POS}, {E*4}")
    A("    s_cbranch_scc1 SLOW_FLUSH")
    A(f"    s_cmp_gt_u32 s{S_CNT}, 64")
    A("    s_cbranch_scc1 SLOW_FLUSH")
    A(f"    buffer_load_dword v{X1}, v{L4}, s[{S_DST}:{S_DST+3}], s{S_POS} offen")
    A(f"    buffer_load_dword v{X2}, v{L4}, s[{S_SRC}:{S_SRC+3}], s{S_POS} offen")
    A(f"    s_add_u32 s{S_POS}, s{S_POS}, 256")
    A("    s_waitcnt vmcnt(0)")
    A(f"    v_subrev_u32 v{X1}, s{S_BASE}, v{X1}")
    A(f"    v_cmp_le_u32 s[68:69], s{S_LO}, v{X1}")
    A(f"    v_cmp_gt_u32 vcc, s{S_HIB}, v{X1}")
    A(f"    s_and_b64 vcc, vcc, s[68:69]")
    A(f"    v_lshl_or_b32 v{X2}, v{X2}, 9, v{X1}")
    A(f"    s_nop 0")
    A(f"    v_mbcnt_lo_u32_b32 v{X3}, vcc_lo, 0")
    A(f"    v_mbcnt_hi_u32_b32 v{X3}, vcc_hi, v{X3}")
    A(f"    v_add_u32 v{X3}, s{S_CNT}, v{X3}")
    A(f"    v_lshlrev_b32 v{X3}, 2, v{X3}")
    A(f"    v_add_u32 v{X3}, s{S_ABASE}, v{X3}")
    A(f"    s_bcnt1_i32_b64 s{S_T0}, vcc")
    A(f"    s_add_u32 s{S_CNT}, s{S_CNT}, s{S_T0}")
    A(f"    s_and_saveexec_b64 s[{S_EX}:{S_EX+1}], vcc")
    A(f"    ds_write_b32 v{X3}, v{X2}")
    A(f"    s_mov_b64 exec, s[{S_EX}:{S_EX+1}]")
    A("    s_branch SLOW_SCAN")
    A.label("SLOW_FLUSH")
    A(f"    s_add_u32 s{S_NU}, s{S_CNT}, 15")
    A(f"    s_lshr_b32 s{S_NU}, s{S_NU}, 4")
    A(f"    s_mov_b32 s{S_P}, 0")
    A(f"    s_mov_b32 s{S_PTR}, s{S_ABASE}")
    A("    s_waitcnt lgkmcnt(0)")
    A.label("SLOW_UNIT")
    A(f"    s_cmp_ge_u32 s{S_P}, s{S_NU}")
    A("    s_cbranch_scc1 SLOW_UNITS_DONE")
    A(f"    v_add_u32 v{V_T1}, s{S_PTR}, v{V_H4}")
    dma_entry_reads(A, V_T1)
    A("    s_waitcnt lgkmcnt(0)")
    for q in range(8):
        dma_one(A, q)
    A(f"    s_mov_b32 s{S_P2}, s{S_PTR}")
    A("    s_waitcnt vmcnt(0)")
    s_prefetch(A)
    unit_front(A, 0)
    unit_finish_plain(A, 0)
    den_mfma(A)
    for ft in range(16):
        agg_mfma(A, ft)
    A(f"    s_add_u32 s{S_P}, s{S_P}, 1")
    A(f"    s_add_u32 s{S_PTR}, s{S_PTR}, 64")
    A("    s_branch SLOW_UNIT")
    A.label("SLOW_UNITS_DONE")
    A(f"    s_cmp_lt_u32 s{S_POS}, {E*4}")
    A("    s_cbranch_scc1 SLOW_REFILL")
    A(f"    s_cmp_eq_u32 s{S_GRP}, 1")
    A("    s_cbranch_scc1 MAIN_DONE")
    A("    s_nop 7")
    emit_finb(A, after_loop=False)
    zero_acc(A)
    A(f"    s_mov_b32 s{S_GRP}, 1")
    A("    s_branch SLOW_GROUP")


def kd(name, vgpr, sgpr):
    return f""".amdhsa_kernel {name}
  .amdhsa_next_free_vgpr {vgpr}
  .amdhsa_next_free_sgpr {sgpr}
  .amdhsa_accum_offset {((vgpr+3)//4)*4}
  .amdhsa_group_segment_fixed_size 0
  .amdhsa_kernarg_size 72
  .amdhsa_user_sgpr_count 2
  .amdhsa_user_sgpr_kernarg_segment_ptr 1
  .amdhsa_system_sgpr_workgroup_id_x 1
  .amdhsa_float_denorm_mode_32 3
.end_amdhsa_kernel
"""


HEADER = """; Kernarg layout for this problem (72 bytes, ptrs only, base s[0:1]):
"""


def main():
    ap = argparse.ArgumentParser()
    ap.add_argument("-o", default="gather_scatter__graph_attention_gat__graph.s")
    ap.add_argument("--stamps", action="store_true")
    ap.add_argument("--ustamps", action="store_true")
    ap.add_argument("--gstamps", action="store_true")
    ap.add_argument("--fstamps", action="store_true")
    ap.add_argument("--nopk", type=int, default=0)
    ap.add_argument("--pstamps", action="store_true")
    ap.add_argument("--clk", action="store_true")
    ap.add_argument("--up", type=int, default=1)
    ap.add_argument("--wpos", default="A")
    ap.add_argument("--copies", type=int, default=1)
    ap.add_argument("--xpre", type=int, default=0)
    ap.add_argument("--wpre", type=int, default=9)
    ap.add_argument("--w3", type=int, default=3)
    ap.add_argument("--wlast", type=int, default=24)
    ap.add_argument("--wmin", type=int, default=6)
    ap.add_argument("--prio", type=int, default=2)
    ap.add_argument("--skip", type=int, default=0)
    ap.add_argument("--bar0", type=int, default=0)
    ap.add_argument("--xt", type=int, default=0)
    ap.add_argument("--vlate", type=int, default=1)
    ap.add_argument("--gprio", type=int, default=1)
    ap.add_argument("--gpa", type=int, default=13)
    ap.add_argument("--gpb", type=int, default=19)
    ap.add_argument("--tlb", type=int, default=0)
    ap.add_argument("--xoff", type=int, default=0)
    ap.add_argument("--pa", type=int, default=2)
    ap.add_argument("--pb", type=int, default=4)
    ap.add_argument("--wlook", type=int, default=12)
    ap.add_argument("--wone", type=int, default=1)
    ap.add_argument("--zero2", type=int, default=1)
    ap.add_argument("--bring", type=int, default=4)
    ap.add_argument("--wspread", type=int, default=8)
    a = ap.parse_args()
    opt.__dict__.update(a.__dict__)
    A = Asm()
    B = Asm()
    gen_prep(B)
    gen_main(B)
    A(HEADER.rstrip("\n"))
    A(f"; @launch kernel=gat_prep_kernel grid=({opt.nprep},1,1) block=(640,1,1) lds=43520")
    A(f"; @launch kernel=gather_scatter__graph_attention_gat__graph_kernel grid=({NT},1,1) block=(512,1,1) lds={LDS_MAIN}")
    A('.amdgcn_target "amdgcn-amd-amdhsa--gfx950"')
    A(".text")
    A.lines += B.lines
    A('.section .rodata,"a"')
    A(".p2align 6")
    A(kd("gat_prep_kernel", 80, 102 if opt.stamps else 48))
    A(".p2align 6")
    A(kd("gather_scatter__graph_attention_gat__graph_kernel", 256, 102 if opt.stamps else 96))
    open(opt.o, "w").write(A.text())
    print("wrote", opt.o, len(A.lines), "lines")


if __name__ == "__main__":
    main()
```

```python
import sys, argparse

N = 10000; E = 160000; TILE = 40; NT = 250; G = 64; CH = 2500
WS_SLOTS = 0
WS_V = 0x1F8000
WS_WF = 0x200000
WS_STAMP = 0x700000
REGSZ = 17408; UNIT = 8704; PAIR = 1088; RROW = 2080
AGG1 = 8 * REGSZ
LISTS = AGG1 + 8 * RROW
LSZ = 704
TBUF = LISTS + 8 * LSZ
CNT = TBUF + 768
OVF = CNT + 64
LDS_MAIN = CNT + 128
VLDS = AGG1
CAPA = 128; CAPB = 48
SENT_LIST = 0x7FFFFE3F
LOG2E = 0x3FB8AA3B


class Asm:
    def __init__(self):
        self.lines = []
    def __call__(self, s=""):
        for l in s.split("\n"):
            self.lines.append(l)
    def label(self, n):
        self.lines.append(n + ":")
    def text(self):
        return "\n".join(self.lines) + "\n"


class Opt:
    pass
opt = Opt()
_ul = [0]
def uid(p):
    _ul[0] += 1
    return f"{p}_{_ul[0]}"


def stamp(A, i):
    if opt.stamps and not opt.ustamps and not opt.gstamps and not opt.pstamps and not opt.fstamps and not opt.tstamps:
        A(f"    {'s_memtime' if opt.clk else 's_memrealtime'} s[{82+2*i}:{83+2*i}]")
def ustamp(A, p, i):
    if opt.stamps and opt.ustamps:
        l = uid("US")
        A(f"    s_cmp_eq_u32 s{S_P}, {p}")
        A(f"    s_cbranch_scc0 {l}")
        A(f"    s_memtime s[{82+2*i}:{83+2*i}]")
        A.label(l)
def pstamp(A):
    if opt.stamps and opt.pstamps:
        for p in range(8):
            l = uid("PS")
            A(f"    s_cmp_eq_u32 s{S_P}, {p}")
            A(f"    s_cbranch_scc0 {l}")
            A(f"    s_memtime s[{82+2*p}:{83+2*p}]")
            A.label(l)
def fstamp(A, i):
    if opt.stamps and opt.fstamps:
        A(f"    s_memtime s[{82+2*i}:{83+2*i}]")
def tstamp(A, i):
    if opt.stamps and opt.tstamps:
        A(f"    s_memtime s[{82+2*i}:{83+2*i}]")
def gstamp(A, i):
    if opt.stamps and opt.gstamps:
        A(f"    s_memtime s[{82+2*i}:{83+2*i}]")
def stamp_flush(A, wsbase, area):
    if not opt.stamps:
        return
    A("    s_waitcnt lgkmcnt(0)")
    A(f"    s_mov_b32 s76, s{wsbase}\n    s_mov_b32 s77, s{wsbase+1}\n    s_mov_b32 s78, 0x800000\n    s_mov_b32 s79, 0x00020000")
    A(f"    s_lshl_b32 s80, s2, 4")
    A(f"    s_add_u32 s80, s80, s100")
    A(f"    s_lshl_b32 s80, s80, 6")
    A(f"    s_add_u32 s80, s80, {WS_STAMP+area}")
    A("    s_mov_b64 exec, 1")
    A("    v_mov_b32 v1, 0")
    for i in range(9):
        A(f"    v_mov_b32 v2, s{82+2*i}")
        A(f"    buffer_store_dword v2, v1, s[76:79], s80 offen offset:{4*i}")
        A("    s_nop 1")


def srd(A, d, base, nbytes):
    A(f"    s_mov_b32 s{d}, s{base}")
    A(f"    s_mov_b32 s{d+1}, s{base+1}")
    A(f"    s_mov_b32 s{d+2}, {nbytes}")
    A(f"    s_mov_b32 s{d+3}, 0x00020000")


def x_touch(A, sbase, vaddr, vdst, ssrd, stmp):
    if not opt.xpre:
        return
    srd(A, ssrd, sbase, N * 512)
    A(f"    s_lshr_b32 s{stmp}, s2, 3")
    A(f"    s_mul_i32 s{stmp}, s{stmp}, 640")
    A(f"    v_add_u32 v{vaddr}, s{stmp}, v0")
    A(f"    v_lshlrev_b32 v{vaddr}, 7, v{vaddr}")
    for r in range(opt.xpre):
        A(f"    s_mov_b32 s{stmp}, {r*20480*128}")
        A(f"    buffer_load_dword v{vdst}, v{vaddr}, s[{ssrd}:{ssrd+3}], s{stmp} offen")


def ws_bytes():
    return WS_WF + opt.copies * 524288


def gen_prep(A):
    K = "gat_prep_kernel"
    NWG_W = 16 * opt.copies
    V0 = 64 + NWG_W
    X0 = V0 + 32
    NPREP = 256 if opt.xpre else X0
    opt.nprep = NPREP
    A(f".globl {K}\n.p2align 8\n.type {K},@function\n{K}:")
    A(f"    s_cmp_ge_u32 s2, {NPREP}")
    A("    s_cbranch_scc1 PREP_END")
    stamp(A, 0)
    if opt.stamps:
        A("    v_lshrrev_b32 v1, 6, v0\n    s_nop 1\n    v_readfirstlane_b32 s100, v1")
    A("    s_cmp_ge_u32 s2, 64")
    A("    s_cbranch_scc1 PREP_NB")
    A("    s_load_dwordx4 s[4:7], s[0:1], 8")
    A("    s_load_dwordx2 s[10:11], s[0:1], 64     ; ws")
    A("    s_load_dwordx2 s[12:13], s[0:1], 0      ; x")
    A("    v_lshlrev_b32 v1, 4, v0")
    for i in range(4):
        A(f"    v_mov_b32 v{4+i}, -1")
    A("    v_lshlrev_b32 v2, 2, v0")
    A("    v_mov_b32 v3, 0")
    A("    s_mul_i32 s28, s2, 10000")
    A("    v_add_u32 v30, s28, v1")
    A("    s_waitcnt lgkmcnt(0)")
    stamp(A, 1)
    srd(A, 20, 6, E * 4)
    A("    buffer_load_dwordx4 v[8:11], v30, s[20:23], 0 offen      ; dst")
    srd(A, 16, 4, E * 4)
    A("    buffer_load_dwordx4 v[12:15], v30, s[16:19], 0 offen     ; src")
    srd(A, 24, 10, ws_bytes())
    x_touch(A, 12, 31, 32, 36, 40)
    for r in range(4):
        A(f"    ds_write_b128 v1, v[4:7] offset:{10240*r}")
    A("    ds_write_b32 v2, v3 offset:40960")
    A("    v_cmp_gt_u32 vcc, 625, v0")
    A("    s_mov_b32 s29, 52429")
    A("    v_mov_b32 v3, 1")
    A("    v_mov_b32 v28, 32000")
    A("    s_waitcnt lgkmcnt(0)")
    A("    s_barrier")
    A("    s_and_saveexec_b64 s[30:31], vcc")
    A(f"    s_waitcnt vmcnt({1+opt.xpre})")
    stamp(A, 2)
    for i in range(4):
        A(f"    v_mul_u32_u24 v{16+i}, s29, v{8+i}")
        A(f"    v_lshrrev_b32 v{16+i}, 21, v{16+i}       ; tile")
        A(f"    v_lshlrev_b32 v{20+i}, 2, v{16+i}")
        A(f"    ds_add_rtn_u32 v{24+i}, v{20+i}, v3 offset:40960")
    A(f"    s_waitcnt vmcnt({opt.xpre})")
    for i in range(4):
        A(f"    v_mul_u32_u24 v4, 40, v{16+i}")
        A(f"    v_sub_u32 v4, v{8+i}, v4")
        A(f"    v_lshl_or_b32 v{12+i}, v{12+i}, 9, v4    ; entry")
        A(f"    v_lshlrev_b32 v{16+i}, 7, v{16+i}        ; tile*128")
    for i in range(4):
        A(f"    s_waitcnt lgkmcnt({3-i})")
        A(f"    v_cmp_gt_u32 vcc, 32, v{24+i}")
        A(f"    v_lshl_add_u32 v4, v{24+i}, 2, v{16+i}")
        A(f"    s_nop 0")
        A(f"    v_cndmask_b32 v{20+i}, v28, v4, vcc")
    for i in range(4):
        A(f"    ds_write_b32 v{20+i}, v{12+i}")
    A("    s_mov_b64 exec, s[30:31]")
    A("    s_lshl_b32 s28, s2, 7                    ; chunk*128")
    A("    v_and_b32 v2, 7, v0                      ; part (640 % 8 == 0)")
    A("    v_lshrrev_b32 v3, 3, v0")
    A("    v_lshlrev_b32 v29, 2, v3")
    A("    v_lshlrev_b32 v4, 4, v2")
    A("    v_lshl_add_u32 v4, v3, 13, v4")
    A("    v_add_u32 v4, s28, v4")
    A("    v_cmp_eq_u32 s[32:33], 7, v2")
    A("    v_cmp_gt_u32 vcc, 80, v0")
    A("    s_mov_b64 s[34:35], vcc")
    A("    v_mov_b32 v5, 0x7ffffff0")
    A("    v_mov_b32 v6, -2")
    A("    s_waitcnt lgkmcnt(0)")
    A("    s_barrier")
    stamp(A, 3)
    for r in range(4):
        A(f"    ds_read_b128 v[{8+4*r}:{11+4*r}], v1 offset:{10240*r}")
        A(f"    ds_read_b32 v{24+r}, v29 offset:{40960 + 320*r}")
    for r in range(4):
        A(f"    s_waitcnt lgkmcnt({6-2*r})")
        A(f"    v_cmp_lt_u32 vcc, 32, v{24+r}")
        A(f"    s_and_b64 vcc, vcc, s[32:33]")
        A(f"    v_add_u32 v7, {80*8192*r}, v4")
        if r == 3:
            A(f"    v_cndmask_b32 v7, v5, v7, s[34:35]")
        A(f"    s_nop 0")
        A(f"    v_cndmask_b32 v{11+4*r}, v{11+4*r}, v6, vcc")
        A(f"    buffer_store_dwordx4 v[{8+4*r}:{11+4*r}], v7, s[24:27], 0 offen")
    stamp(A, 4)
    if opt.stamps:
        A("    s_waitcnt vmcnt(0)")
    stamp(A, 5)
    stamp_flush(A, 10, 0x40000)
    A("    s_endpgm")
    A.label("PREP_NB")
    if opt.xpre:
        A(f"    s_cmp_ge_u32 s2, {X0}")
        A("    s_cbranch_scc1 PREP_X")
    A("    s_load_dwordx2 s[8:9], s[0:1], 24       ; w")
    A("    s_load_dwordx4 s[12:15], s[0:1], 32")
    A("    s_load_dwordx2 s[10:11], s[0:1], 64     ; ws")
    A("    s_load_dwordx2 s[42:43], s[0:1], 0      ; x")
    A("    s_sub_u32 s28, s2, 64                    ; idx")
    A("    v_lshrrev_b32 v1, 6, v0")
    A("    s_nop 0")
    cs = {1: 0, 2: 1, 4: 2, 8: 3}[opt.copies]
    A(f"    s_and_b32 s27, s28, {opt.copies-1}       ; copy")
    A(f"    s_lshr_b32 s28, s28, {cs}")
    A("    v_readfirstlane_b32 s29, v1              ; wave")
    A("    s_waitcnt lgkmcnt(0)")
    stamp(A, 1)
    srd(A, 16, 8, 524288)
    srd(A, 36, 10, ws_bytes())
    A(f"    s_cmp_ge_u32 s2, {V0}")
    A("    s_cbranch_scc1 PREP_V")
    A("    s_cmp_ge_u32 s29, 8")
    A("    s_cbranch_scc1 PREP_END")
    A("    s_lshl_b32 s30, s28, 15                  ; kp*2*16384")
    A("    s_add_u32 s33, s30, 16384")
    A("    v_lshrrev_b32 v1, 7, v0                  ; g")
    A("    v_and_b32 v2, 127, v0                    ; fp")
    A("    v_lshlrev_b32 v3, 11, v1")
    A("    v_lshl_add_u32 v3, v2, 2, v3             ; g*2048 + fp*4")
    A("    v_add_u32 v4, 8192, v3")
    for half, so in ((0, 30), (1, 33)):
        for j in range(4):
            A(f"    buffer_load_dword v{8+8*half+j}, v3, s[16:19], s{so} offen offset:{512*j}")
        for j in range(4):
            A(f"    buffer_load_dword v{12+8*half+j}, v4, s[16:19], s{so} offen offset:{512*j}")
    x_touch(A, 42, 41, 42, 44, 40)
    A("    v_lshrrev_b32 v5, 4, v2")
    A("    v_lshlrev_b32 v5, 16, v5")
    A("    v_bfe_u32 v6, v2, 1, 1")
    A("    v_lshl_add_u32 v5, v6, 10, v5")
    A("    v_lshl_add_u32 v5, v1, 8, v5             ; 16g*16")
    A("    v_bfe_u32 v6, v2, 2, 2")
    A("    v_lshl_add_u32 v5, v6, 6, v5             ; 4*gi*16")
    A("    v_and_b32 v6, 1, v2")
    A("    v_lshl_add_u32 v5, v6, 5, v5             ; 2*(fp&1)*16")
    A("    s_lshl_b32 s31, s28, 12                  ; kp*2*2048")
    A("    s_lshl_b32 s32, s27, 19                  ; copy*524288")
    A("    s_add_u32 s31, s31, s32")
    A(f"    s_add_u32 s31, s31, {WS_WF}")
    A("    s_mov_b32 s34, 0x05040100")
    A("    s_mov_b32 s35, 0x07060302")
    for half in range(2):
        A(f"    s_waitcnt vmcnt({(8 if half == 0 else 2) + opt.xpre})")
        if half == 0:
            stamp(A, 2)
        b = 8 + 8 * half; d = 24 + 8 * half
        for i in range(4):
            A(f"    v_perm_b32 v{d+i}, v{b+1+2*i}, v{b+2*i}, s34")
            A(f"    v_perm_b32 v{d+4+i}, v{b+1+2*i}, v{b+2*i}, s35")
        A(f"    buffer_store_dwordx4 v[{d}:{d+3}], v5, s[36:39], s31 offen offset:{2048*half}")
        A(f"    buffer_store_dwordx4 v[{d+4}:{d+7}], v5, s[36:39], s31 offen offset:{2048*half+16}")
    stamp(A, 4)
    if opt.stamps:
        A("    s_waitcnt vmcnt(0)")
    stamp(A, 5)
    stamp_flush(A, 10, 0x40000)
    A("    s_endpgm")
    A.label("PREP_V")
    if opt.mall:
        A("    s_cmp_lt_u32 s29, 2")
        A("    s_cbranch_scc1 PREP_V2")
        srd(A, 44, 42, N * 512)
        A(f"    s_sub_u32 s31, s2, {V0}")
        A("    s_lshl_b32 s31, s31, 9")
        A("    v_subrev_u32 v1, 128, v0")
        A("    v_add_u32 v1, s31, v1")
        A("    v_lshlrev_b32 v1, 7, v1")
        for r in range(opt.mall):
            A(f"    s_mov_b32 s30, {r*16384*128}")
            A(f"    buffer_load_dword v{2+r}, v1, s[44:47], s30 offen")
        A("    s_endpgm")
        A.label("PREP_V2")
    A("    s_cmp_ge_u32 s29, 2")
    A("    s_cbranch_scc1 PREP_END")
    A(f"    s_sub_u32 s30, s2, {V0}")
    A("    s_lshl_b32 s30, s30, 1")
    A("    s_add_u32 s30, s30, s29")
    A("    s_lshr_b32 s31, s30, 4                   ; h")
    srd(A, 20, 12, 2048)
    srd(A, 24, 14, 2048)
    A("    v_and_b32 v1, 63, v0")
    A("    v_and_b32 v2, 15, v1                     ; i / c")
    A("    v_lshrrev_b32 v3, 4, v1                  ; g")
    A("    v_lshlrev_b32 v4, 9, v2")
    A("    v_lshl_add_u32 v4, v3, 4, v4             ; i*512 + g*16")
    A("    s_lshl_b32 s32, s30, 13")
    A("    v_lshlrev_b32 v5, 4, v3                  ; g*16")
    A("    s_lshl_b32 s33, s31, 9                   ; h*512")
    for kk in range(8):
        A(f"    buffer_load_dwordx4 v[{8+4*kk}:{11+4*kk}], v4, s[16:19], s32 offen offset:{64*kk}")
    A("    v_and_b32 v6, 1, v2")
    A("    v_cmp_eq_u32 vcc, 0, v6")
    A("    s_mov_b64 s[40:41], exec")
    A("    s_mov_b64 exec, vcc")
    for kk in range(8):
        A(f"    buffer_load_dwordx4 v[{40+4*kk}:{43+4*kk}], v5, s[20:23], s33 offen offset:{64*kk}")
    A("    s_andn2_b64 exec, s[40:41], vcc")
    for kk in range(8):
        A(f"    buffer_load_dwordx4 v[{40+4*kk}:{43+4*kk}], v5, s[24:27], s33 offen offset:{64*kk}")
    A("    s_mov_b64 exec, s[40:41]")
    A("    s_lshl_b32 s32, s30, 5")
    A(f"    s_add_u32 s32, s32, {WS_V}")
    A("    v_lshlrev_b32 v7, 3, v3")
    A("    v_lshl_add_u32 v7, v6, 11, v7")
    A("    v_cmp_gt_u32 vcc, 2, v2")
    A(f"    s_mov_b32 s33, {LOG2E}")
    A("    s_waitcnt vmcnt(0)")
    for kk in range(8):
        c = "0" if kk == 0 else "v[72:75]"
        A(f"    v_mfma_f32_16x16x32_bf16 v[72:75], v[{8+4*kk}:{11+4*kk}], v[{40+4*kk}:{43+4*kk}], {c}")
    A("    s_nop 7")
    for r in range(4):
        A(f"    v_mul_f32 v{72+r}, s33, v{72+r}")
    A("    v_cvt_pk_bf16_f32 v76, v72, v73")
    A("    v_cvt_pk_bf16_f32 v77, v74, v75")
    A("    s_and_saveexec_b64 s[40:41], vcc")
    A("    buffer_store_dwordx2 v[76:77], v7, s[36:39], s32 offen")
    stamp(A, 4)
    if opt.stamps:
        A("    s_waitcnt vmcnt(0)")
    stamp(A, 5)
    stamp_flush(A, 10, 0x40000)
    A("    s_endpgm")
    if opt.xpre:
        A.label("PREP_X")
        A("    s_load_dwordx2 s[8:9], s[0:1], 0         ; x")
        if opt.stamps:
            A("    s_load_dwordx2 s[10:11], s[0:1], 64     ; ws")
        A("    s_waitcnt lgkmcnt(0)")
        stamp(A, 1)
        x_touch(A, 8, 1, 2, 16, 28)
        if opt.stamps:
            A("    s_waitcnt vmcnt(0)")
        stamp(A, 4)
        stamp(A, 5)
        stamp_flush(A, 10, 0x40000)
    A.label("PREP_END")
    A("    s_endpgm")


V_TMP = 0; V_DMAC = 1; V_SADDR = 2; V_TE = 3; V_TO = 4; V_G16 = 5; V_H4 = 6; V_TGT = 7; V_TQ = 8
V_PT = 12; V_E = 16; V_D = 20; V_S = 28; V_DEN = 32; V_X = 36; V_ONES = 224
V_TGTA = 40; V_TA = 41; V_T1 = 42; V_T2 = 43; V_T3 = 44; V_WOFF = 45; V_FE = 46; V_FO = 47
V_R = 48; V_SCR = 64; V_V = 128; V_ACC = 160
V_ACC2 = 40
S_X = 4; S_WS = 8; S_OUT = 12; S_SRC = 16; S_DST = 20
S_W = 24; S_NA = 25; S_NB = 26; S_NU = 27; S_P = 28; S_PTR = 29; S_M0 = 30; S_DELTA = 31
S_MSK = 32
S_HI = 40; S_T0 = 41; S_T1 = 42; S_T2 = 43; S_ABASE = 44; S_REG = 45; S_P2 = 46; S_WF = 47; S_EX = 48
S_C02 = 50; S_FIRST = 52; S_K = 53; S_KA = 54; S_KB = 55
S_J1 = 70; S_J2 = 72; S_J3 = 74


def lane_cg(A, vl, vc, vg):
    A(f"    v_mbcnt_lo_u32_b32 v{vl}, -1, 0")
    A(f"    v_mbcnt_hi_u32_b32 v{vl}, -1, v{vl}")
    A(f"    v_and_b32 v{vc}, 15, v{vl}")
    A(f"    v_lshrrev_b32 v{vg}, 4, v{vl}")


def dma_one(A, q, between=None):
    if q == 0:
        A(f"    s_mov_b32 m0, s{S_M0}")
    else:
        A(f"    s_add_u32 m0, s{S_M0}, {PAIR*q}")
    A(f"    v_and_or_b32 v{V_D+q}, v{V_D+q}, s{S_HI}, v{V_DMAC}")
    if between:
        between()
    A(f"    buffer_load_dwordx4 v{V_D+q}, s[{S_X}:{S_X+3}], 0 offen lds")


def wait_vm_dyn(A, sreg, base, lo=0, hi=8):
    end = uid("WV")
    def rec(a, b):
        if a == b:
            A(f"    s_waitcnt vmcnt({base + a})")
            A(f"    s_branch {end}")
            return
        m = (a + b + 1) // 2
        l = uid("WV")
        A(f"    s_cmp_ge_u32 s{sreg}, {m}")
        A(f"    s_cbranch_scc1 {l}")
        rec(a, m - 1)
        A.label(l)
        rec(m, b)
    rec(lo, hi)
    A.label(end)


def dma_partial(A, sreg, zero_fill, rev=False):
    end = uid("DP")
    zl = [uid("DZ") for _ in range(8)]
    order = list(range(7, -1, -1)) if rev else list(range(8))
    for n, q in enumerate(order):
        if n > 0:
            A(f"    s_cmp_gt_u32 s{sreg}, {n}")
            A(f"    s_cbranch_scc0 {zl[n] if zero_fill else end}")
        dma_one(A, q)
    if zero_fill:
        A(f"    s_branch {end}")
        for n in range(1, 8):
            A.label(zl[n])
            A(f"    ds_write_b128 v{V_T2}, v[{V_S}:{V_S+3}] offset:{PAIR*order[n]}")
    A.label(end)


def unit_k(A, sq):
    A(f"    s_add_u32 s{S_T2}, s{sq}, 1")
    A(f"    s_cmp_eq_u32 s{S_T2}, s{S_NU}")
    A(f"    s_cselect_b32 s{S_K}, s{S_KA}, 8")


def dma_entry_reads(A, addr_v):
    for i in range(4):
        A(f"    ds_read2_b32 v[{V_D+2*i}:{V_D+2*i+1}], v{addr_v} offset0:{4*i} offset1:{4*i+2}")


def s_prefetch(A, between=None):
    A(f"    v_add_u32 v{V_TMP}, s{S_PTR}, v{V_G16}")
    if between: between(0)
    A(f"    ds_read_b128 v[{V_E}:{V_E+3}], v{V_TMP}")
    for kk in range(4):
        if between: between(1 + kk)
        A(f"    ds_read_b128 v[{V_R+4*kk}:{V_R+4*kk+3}], v{V_SADDR} offset:{64*kk}")


def s_mfma(A, kk):
    c = f"v[{V_TQ}:{V_TQ+3}]" if kk == 0 else f"v[{V_S}:{V_S+3}]"
    r = V_R + 4 * (kk & 3)
    A(f"    v_mfma_f32_16x16x32_bf16 v[{V_S}:{V_S+3}], v[{r}:{r+3}], v[{V_V+4*kk}:{V_V+4*kk+3}], {c}")


def unit_front(A, par=0):
    q = ["E", "S0", "S1", "S2", "S3"]
    def wait(tag):
        idx = q.index(tag)
        return min(15, len(q) - 1 - idx)
    A(f"    v_add_u32 v{V_T1}, s{S_P2}, v{V_H4}")
    for kk in range(7):
        A(f"    s_waitcnt lgkmcnt({wait('S%d' % kk)})")
        s_mfma(A, kk)
        if kk < 4:
            r = V_R + 4 * kk
            A(f"    ds_read_b128 v[{r}:{r+3}], v{V_SADDR} offset:{64*(kk+4)}")
            q.append("S%d" % (kk + 4))
            for ft in range(4 * kk, 4 * kk + 4):
                a0 = V_SCR + 4 * ft + 2 * par
                A(f"    ds_read_b64_tr_b16 v[{a0}:{a0+1}], v{V_TE if ft % 2 == 0 else V_TO} offset:{32*ft}")
                q.append("T")
            if kk == 3:
                dma_entry_reads(A, V_T1)
                q += ["D"] * 4


def p_ops(par):
    ops = []
    for r in range(4):
        ops.append(f"    v_cmp_eq_u32_sdwa s[{S_MSK+2*r}:{S_MSK+2*r+1}], v{V_E+r}, v{V_TGT} src0_sel:BYTE_0 src1_sel:DWORD")
    grp = [ops]
    grp.append([f"    v_pk_mul_f32 v[{V_X}:{V_X+1}], v[{V_S}:{V_S+1}], s[{S_C02}:{S_C02+1}] op_sel_hi:[1,0]",
                f"    v_pk_mul_f32 v[{V_X+2}:{V_X+3}], v[{V_S+2}:{V_S+3}], s[{S_C02}:{S_C02+1}] op_sel_hi:[1,0]"])
    grp.append([f"    v_max_f32 v{V_X+r}, v{V_X+r}, v{V_S+r}" for r in range(4)])
    grp.append([f"    v_exp_f32 v{V_X+r}, v{V_X+r}" for r in range(4)])
    grp.append([f"    v_cndmask_b32 v{V_X+r}, 0, v{V_X+r}, s[{S_MSK+2*r}:{S_MSK+2*r+1}]" for r in range(4)])
    grp.append([f"    v_cvt_pk_bf16_f32 v{V_PT+2*par}, v{V_X}, v{V_X+1}",
                f"    v_cvt_pk_bf16_f32 v{V_PT+2*par+1}, v{V_X+2}, v{V_X+3}"])
    return grp


def unit_finish_plain(A, par=0):
    A("    s_waitcnt lgkmcnt(0)")
    s_mfma(A, 7)
    g = p_ops(par)
    for l in g[0]: A(l)
    A("    s_nop 3")
    for grp in g[1:]:
        for l in grp: A(l)
    A("    s_nop 1")


def agg_mfma(A, ft, first=False, k32=False):
    c = "0" if first else f"v[{V_ACC+4*ft}:{V_ACC+4*ft+3}]"
    a = V_SCR + 4 * ft
    if k32:
        A(f"    v_mfma_f32_16x16x32_bf16 v[{V_ACC+4*ft}:{V_ACC+4*ft+3}], v[{a}:{a+3}], v[{V_PT}:{V_PT+3}], {c}")
    else:
        A(f"    v_mfma_f32_16x16x16_bf16 v[{V_ACC+4*ft}:{V_ACC+4*ft+3}], v[{a}:{a+1}], v[{V_PT}:{V_PT+1}], {c}")


def den_mfma(A, first=False, k32=False):
    c = "0" if first else f"v[{V_DEN}:{V_DEN+3}]"
    if k32:
        A(f"    v_mfma_f32_16x16x32_bf16 v[{V_DEN}:{V_DEN+3}], v[{V_ONES}:{V_ONES+3}], v[{V_PT}:{V_PT+3}], {c}")
    else:
        A(f"    v_mfma_f32_16x16x16_bf16 v[{V_DEN}:{V_DEN+3}], v[{V_ONES}:{V_ONES+1}], v[{V_PT}:{V_PT+1}], {c}")


def unit_tail(A, dma, nxt, agg, first, par):
    k32 = agg == "k32"
    pend = list(range(16)) if agg else []
    def mf():
        if pend:
            agg_mfma(A, pend.pop(0), first, k32)
            return True
        return False
    g = p_ops(par)
    A("    s_waitcnt lgkmcnt(0)")
    s_mfma(A, 7)
    if dma == "full":
        for q in range(2):
            dma_one(A, q)
        for l in g[0]: A(l)
        for i, grp in enumerate(g[1:]):
            for l in grp: A(l)
            dma_one(A, 2 + i) if i < 5 else None
        dma_one(A, 7)
    elif dma == "part":
        for l in g[0]: A(l)
        dma_partial(A, S_K, False)
        A("    s_nop 1")
        for grp in g[1:]:
            for l in grp: A(l)
        A("    s_nop 1")
    else:
        for l in g[0]: A(l)
        A("    s_nop 3")
        for grp in g[1:]:
            for l in grp: A(l)
        A("    s_nop 1")
    if agg:
        den_mfma(A, first, k32)
    for q in range(8):
        mf()
    A(f"    v_add_u32 v{V_SADDR}, s{S_DELTA}, v{V_SADDR}")
    A(f"    s_add_u32 s{S_PTR}, s{S_PTR}, 64")
    if nxt:
        if dma == "part":
            wait_vm_dyn(A, S_K, 0, 1, 7)
        else:
            A(f"    s_waitcnt vmcnt({8 if dma else 0})")
        s_prefetch(A, between=lambda i: mf())
    while mf():
        pass
    A(f"    v_add_u32 v{V_TE}, s{S_DELTA}, v{V_TE}")
    A(f"    v_add_u32 v{V_TO}, s{S_DELTA}, v{V_TO}")
    A(f"    s_add_u32 s{S_M0}, s{S_M0}, s{S_DELTA}")
    A(f"    s_sub_u32 s{S_DELTA}, 0, s{S_DELTA}")
    A(f"    s_add_u32 s{S_P}, s{S_P}, 1")
    if agg:
        A(f"    s_mov_b32 s{S_FIRST}, 0")


def finalize(A, stage, after_pair=None, fs=False):
    A(f"    v_add_f32 v{V_X}, 0x3089705f, v{V_DEN}        ; + 1e-9")
    A(f"    v_rcp_f32 v{V_X}, v{V_X}")
    A("    s_nop 0")
    A(f"    v_mul_f32 v{V_X}, 0x3e800000, v{V_X}")
    if fs: fstamp(A, 1)
    for u in range(8):
        if fs and u == 4: fstamp(A, 2)
        sq = stage + 4 * (u & 3)
        for half in range(2):
            a = V_ACC + 4 * (2 * u + half)
            if opt.nopk:
                for r in range(4):
                    A(f"    v_mul_f32 v{a+r}, v{V_X}, v{a+r}")
            else:
                A(f"    v_pk_mul_f32 v[{a}:{a+1}], v[{a}:{a+1}], v[{V_X}:{V_X+1}] op_sel_hi:[1,0]")
                A(f"    v_pk_mul_f32 v[{a+2}:{a+3}], v[{a+2}:{a+3}], v[{V_X}:{V_X+1}] op_sel_hi:[1,0]")
        for half in range(2):
            a = V_ACC + 4 * (2 * u + half)
            A(f"    v_cvt_pk_bf16_f32 v{sq+2*half}, v{a}, v{a+1}")
            A(f"    v_cvt_pk_bf16_f32 v{sq+2*half+1}, v{a+2}, v{a+3}")
        ad = V_FE if u % 2 == 0 else V_FO
        A(f"    ds_write_b128 v{ad}, v[{sq}:{sq+3}] offset:{64*u}")
        if after_pair:
            after_pair(u)


def fin_addr(A, vc, vg):
    A(f"    v_and_b32 v{V_T1}, 3, v{vc}                ; h")
    A(f"    v_lshl_add_u32 v{V_FE}, v{V_T1}, 9, v{V_FE}")
    A(f"    v_and_b32 v{V_T2}, 1, v{V_T1}")
    A(f"    v_xor_b32 v{V_T2}, v{V_T2}, v{vg}")
    A(f"    v_lshl_add_u32 v{V_FE}, v{V_T2}, 4, v{V_FE}")
    A(f"    v_lshrrev_b32 v{V_T1}, 1, v{V_T1}")
    A(f"    v_lshlrev_b32 v{V_T1}, 6, v{V_T1}          ; 64*h1")
    A(f"    v_sub_u32 v{V_FO}, v{V_FE}, v{V_T1}")
    A(f"    v_add_u32 v{V_FE}, v{V_FE}, v{V_T1}")


def zero_acc(A):
    for i in range(64):
        A(f"    v_mov_b32 v{V_ACC+i}, 0")
    for i in range(4):
        A(f"    v_mov_b32 v{V_DEN+i}, 0")


def wslot(ks):
    k = ks & 15
    if k < 3:
        return 232 + 8 * k
    if k < 15:
        return 64 + 8 * (k - 3)
    return 224


def w_load(A, ks, dst, voff=V_WOFF):
    A(f"    s_add_u32 s{S_T0}, s{S_WF}, {ks*2048}")
    A(f"    buffer_load_dwordx4 v[{dst}:{dst+3}], v{voff}, s[{S_WS}:{S_WS+3}], s{S_T0} offen")
    A(f"    buffer_load_dwordx4 v[{dst+4}:{dst+7}], v{voff}, s[{S_WS}:{S_WS+3}], s{S_T0} offen offset:1024")


def emit_finb(A, after_loop=True):
    l = uid("FB")
    A(f"    s_cmp_lg_u32 s{S_NB}, 0")
    A(f"    s_cbranch_scc1 {l}")
    zero_acc(A)
    A.label(l)
    A(f"    v_add_f32 v{V_X}, 0x3089705f, v{V_DEN}        ; + 1e-9")
    A(f"    v_rcp_f32 v{V_X}, v{V_X}")
    for j, m in ((1, S_J1), (2, S_J2), (3, S_J3)):
        for i in range(16):
            A(f"    v_cndmask_b32 v{V_ACC+i}, v{V_ACC+i}, v{V_ACC+16*j+i}, s[{m}:{m+1}]")
            if j == 1 and i == 0:
                A(f"    v_mul_f32 v{V_X}, 0x3e800000, v{V_X}")
    if after_loop: fstamp(A, 1)
    for i in range(8):
        a = V_ACC + 2 * i
        A(f"    v_pk_mul_f32 v[{a}:{a+1}], v[{a}:{a+1}], v[{V_X}:{V_X+1}] op_sel_hi:[1,0]")
    for i in range(8):
        a = V_ACC + 2 * i
        A(f"    v_cvt_pk_bf16_f32 v{V_SCR+i}, v{a}, v{a+1}")
    if after_loop: fstamp(A, 2)
    A(f"    ds_write_b128 v{V_FE}, v[{V_SCR}:{V_SCR+3}]")
    A(f"    ds_write_b128 v{V_FO}, v[{V_SCR+4}:{V_SCR+7}] offset:64")
    if after_loop: fstamp(A, 3)
    A(f"    v_mov_b32 v{V_TGT}, v{V_TGTA}")
    for i in range(4):
        A(f"    v_mov_b32 v{V_TQ+i}, v{V_TA}")
    lane_cg(A, V_T3, V_X + 2, V_X + 3)
    A(f"    s_and_b32 s{S_T0}, s{S_W}, 1")
    A(f"    s_lshl_b32 s{S_T0}, s{S_T0}, 7")
    A(f"    s_add_u32 s{S_T0}, s{S_T0}, s{S_REG}")
    A(f"    v_lshrrev_b32 v{V_FE}, 2, v{V_X+2}")
    A(f"    v_mul_u32_u24 v{V_FE}, {RROW}, v{V_FE}")
    A(f"    v_add_u32 v{V_FE}, s{S_T0}, v{V_FE}")
    fin_addr(A, V_X + 2, V_X + 3)
    A(f"    s_mov_b32 s{S_FIRST}, 1")
    if after_loop: fstamp(A, 4)
    A("    s_waitcnt lgkmcnt(0)")
    if after_loop: fstamp(A, 5)


def gen_main(A):
    K = "gather_scatter__graph_attention_gat__graph_kernel"
    VC = 36; VG = 37; VL = 38
    A(f".globl {K}\n.p2align 8\n.type {K},@function\n{K}:")
    A(f"    s_cmp_ge_u32 s2, {NT}")
    A("    s_cbranch_scc1 MAIN_END")
    stamp(A, 0)
    A("    s_load_dwordx2 s[60:61], s[0:1], 64      ; ws")
    A("    s_load_dwordx2 s[52:53], s[0:1], 0       ; x")
    A("    s_load_dwordx2 s[54:55], s[0:1], 48      ; out")
    A("    s_load_dwordx4 s[56:59], s[0:1], 8")
    A(f"    v_and_b32 v{VL}, 63, v0")
    A(f"    v_lshrrev_b32 v{V_T1}, 6, v0")
    A(f"    v_and_b32 v{VC}, 15, v{VL}")
    A(f"    v_readfirstlane_b32 s{S_W}, v{V_T1}")
    A(f"    v_lshrrev_b32 v{VG}, 4, v{VL}")
    A(f"    v_lshlrev_b32 v20, 4, v0                 ; tid*16")
    A(f"    v_lshlrev_b32 v{V_WOFF}, 4, v{VL}        ; lane*16")
    A(f"    v_lshlrev_b32 v21, 9, v{VC}")
    A(f"    v_lshl_add_u32 v21, v{VG}, 4, v21")
    A(f"    s_mul_i32 s{S_REG}, s{S_W}, {REGSZ}")
    A(f"    s_and_b32 s{S_WF}, s2, {opt.copies-1}")
    A(f"    s_lshl_b32 s{S_WF}, s{S_WF}, 19")
    A(f"    s_lshl_b32 s{S_T0}, s{S_W}, 16")
    A(f"    s_add_u32 s{S_WF}, s{S_WF}, s{S_T0}")
    A(f"    s_add_u32 s{S_WF}, s{S_WF}, {WS_WF}")
    A("    s_waitcnt lgkmcnt(0)")
    stamp(A, 1)
    if opt.stamps:
        A(f"    s_mov_b32 s100, s{S_W}")
    srd(A, S_WS, 60, ws_bytes())
    A(f"    s_lshl_b32 s{S_T0}, s2, 13")
    A(f"    buffer_load_dwordx4 v[16:19], v20, s[{S_WS}:{S_WS+3}], s{S_T0} offen")
    srd(A, S_X, 52, N * 512)
    A(f"    v_and_b32 v{V_T1}, 31, v{VL}")
    A(f"    v_lshlrev_b32 v{V_T1}, 4, v{V_T1}")
    A(f"    v_lshrrev_b32 v{V_T2}, 5, v{VL}")
    A(f"    v_lshlrev_b32 v{V_H4}, 2, v{V_T2}")
    A(f"    v_lshlrev_b32 v21, 9, v{V_T2}            ; hi*512")
    A(f"    v_cmp_eq_u32 vcc, 0, v{V_T2}")
    A(f"    v_lshlrev_b32 v{V_T2}, 5, v{V_T2}")
    A(f"    v_xor_b32 v{V_DMAC}, v{V_T1}, v{V_T2}    ; DMAC = ((l&31)*16) ^ ((l>>5)*32)")
    A(f"    v_add_u32 v21, v21, v{V_DMAC}")
    A(f"    v_mov_b32 v22, 0x7ffffe00")
    A(f"    v_cndmask_b32 v22, v22, v{V_DMAC}, vcc")
    A(f"    s_mul_i32 s{S_T0}, s2, {TILE*512}")
    A(f"    s_lshl_b32 s{S_T1}, s{S_W}, 11            ; 4w rows")
    A(f"    s_add_u32 s{S_T1}, s{S_T1}, s{S_T0}")
    A(f"    s_add_u32 m0, s{S_REG}, {UNIT}")
    A(f"    s_add_u32 s{S_T2}, s{S_T1}, 1024")
    A(f"    buffer_load_dwordx4 v21, s[{S_X}:{S_X+3}], s{S_T1} offen lds")
    A(f"    s_add_u32 m0, s{S_REG}, {UNIT+PAIR}")
    A(f"    s_lshl_b32 s{S_T1}, s{S_W}, 9")
    A(f"    buffer_load_dwordx4 v21, s[{S_X}:{S_X+3}], s{S_T2} offen lds")
    A(f"    s_add_u32 m0, s{S_REG}, {UNIT+2*PAIR}")
    A(f"    s_add_u32 s{S_T1}, s{S_T1}, s{S_T0}")
    A(f"    s_add_u32 s{S_T1}, s{S_T1}, {32*512}")
    A(f"    buffer_load_dwordx4 v22, s[{S_X}:{S_X+3}], s{S_T1} offen lds")
    for i in range(4):
        A(f"    s_add_u32 m0, s{S_REG}, {UNIT+(3+i)*PAIR}")
        A(f"    s_mov_b32 s{S_T0}, {WS_V + 1024*i}")
        A(f"    buffer_load_dwordx4 v{V_WOFF}, s[{S_WS}:{S_WS+3}], s{S_T0} offen lds")
    NW0 = 0
    srd(A, S_OUT, 54, N * 512)
    srd(A, S_SRC, 56, E * 4)
    srd(A, S_DST, 58, E * 4)
    A(f"    v_mov_b32 v28, {hex(SENT_LIST)}")
    A(f"    v_mov_b32 v29, v28\n    v_mov_b32 v30, v28\n    v_mov_b32 v31, v28")
    A(f"    v_add_u32 v22, {LISTS}, v20")
    A(f"    v_cmp_gt_u32 vcc, 352, v0")
    A(f"    v_mov_b32 v32, 0")
    A(f"    v_lshlrev_b32 v23, 2, v0")
    A(f"    v_add_u32 v23, {CNT}, v23")
    A(f"    s_and_saveexec_b64 s[{S_EX}:{S_EX+1}], vcc")
    A(f"    s_cbranch_execz MAIN_NOCNT")
    A(f"    ds_write_b128 v22, v[28:31]")
    A(f"    v_cmp_gt_u32 vcc, 32, v0")
    A(f"    s_and_b64 exec, exec, vcc")
    A(f"    s_cbranch_execz MAIN_NOCNT")
    A(f"    ds_write_b32 v23, v32")
    A.label("MAIN_NOCNT")
    A(f"    s_mov_b64 exec, s[{S_EX}:{S_EX+1}]")
    T1, T2, T3 = V_T1, V_T2, V_T3
    A(f"    v_lshlrev_b32 v{V_G16}, 4, v{VG}")
    A(f"    v_lshrrev_b32 v{T1}, 1, v{VC}")
    A(f"    v_mul_u32_u24 v{V_SADDR}, {PAIR}, v{T1}")
    A(f"    v_and_b32 v{T1}, 1, v{VC}")
    A(f"    v_lshl_add_u32 v{V_SADDR}, v{T1}, 9, v{V_SADDR}")
    A(f"    v_lshrrev_b32 v{T2}, 1, v{VG}")
    A(f"    v_xor_b32 v{T1}, v{T1}, v{T2}")
    A(f"    v_lshl_add_u32 v{V_SADDR}, v{T1}, 5, v{V_SADDR}")
    A(f"    v_and_b32 v{T1}, 1, v{VG}")
    A(f"    v_lshl_add_u32 v{V_SADDR}, v{T1}, 4, v{V_SADDR}")
    A(f"    v_add_u32 v{V_SADDR}, s{S_REG}, v{V_SADDR}")
    A(f"    v_lshrrev_b32 v{T1}, 2, v{VC}")
    A(f"    v_lshl_add_u32 v{T1}, v{VG}, 2, v{T1}      ; row")
    A(f"    v_lshrrev_b32 v{T2}, 1, v{T1}")
    A(f"    v_mul_u32_u24 v{V_TE}, {PAIR}, v{T2}")
    A(f"    v_and_b32 v{T1}, 1, v{T1}                  ; hi")
    A(f"    v_lshl_add_u32 v{V_TE}, v{T1}, 9, v{V_TE}")
    A(f"    v_and_b32 v{T2}, 3, v{VC}")
    A(f"    v_lshl_add_u32 v{V_TE}, v{T2}, 3, v{V_TE}")
    A(f"    v_add_u32 v{V_TE}, s{S_REG}, v{V_TE}")
    A(f"    v_lshlrev_b32 v{T1}, 5, v{T1}              ; 32*hi")
    A(f"    v_sub_u32 v{V_TO}, v{V_TE}, v{T1}")
    A(f"    v_add_u32 v{V_TE}, v{V_TE}, v{T1}")
    for i in range(4):
        A(f"    v_mov_b32 v{V_ONES+i}, 0x3f803f80")
    A(f"    s_mov_b32 s{S_HI}, 0xfffffe00")
    A(f"    s_mov_b32 s{S_C02}, 0x3e4ccccd")
    A(f"    s_mul_i32 s{S_ABASE}, s{S_W}, {LSZ}")
    A(f"    s_add_u32 s{S_ABASE}, s{S_ABASE}, {LISTS+192}")
    A(f"    s_mul_i32 s{S_T0}, s{S_W}, {RROW}")
    A(f"    s_add_u32 s{S_T0}, s{S_T0}, {AGG1}")
    A(f"    v_lshrrev_b32 v{V_FE}, 2, v{VC}")
    A(f"    v_lshlrev_b32 v{V_FE}, 7, v{V_FE}          ; 128*j")
    A(f"    v_add_u32 v{V_FE}, s{S_T0}, v{V_FE}")
    fin_addr(A, VC, VG)
    A(f"    v_bfe_u32 v{T1}, v{VC}, 1, 1")
    A(f"    v_mul_u32_u24 v39, {PAIR}, v{T1}")
    A(f"    v_and_b32 v{T1}, 1, v{VC}")
    A(f"    v_lshl_add_u32 v39, v{T1}, 9, v39")
    A(f"    v_lshl_add_u32 v39, v{VG}, 4, v39")
    A(f"    s_add_u32 s{S_T0}, s{S_REG}, {UNIT+3*PAIR}")
    A(f"    v_add_u32 v39, s{S_T0}, v39")
    A(f"    v_lshrrev_b32 v{T1}, 2, v{VC}")
    A(f"    s_lshl_b32 s{S_T0}, s{S_W}, 2")
    A(f"    v_add_u32 v{V_TGTA}, s{S_T0}, v{T1}")
    A(f"    s_add_u32 s{S_T0}, s{S_W}, 32")
    A(f"    v_mov_b32 v{V_TGT}, s{S_T0}")
    A("    s_waitcnt lgkmcnt(0)")
    A("    s_barrier")
    if opt.xt:
        A(f"    s_lshr_b32 s{S_T0}, s2, 3")
        A(f"    s_lshl_b32 s{S_T0}, s{S_T0}, 9")
        A(f"    v_add_u32 v23, s{S_T0}, v0")
        A(f"    v_lshlrev_b32 v23, 7, v23")
        if opt.xhalf:
            A(f"    s_cmp_ge_u32 s{S_W}, 4")
            A(f"    s_cbranch_scc0 MAIN_XT")
            A(f"    v_mov_b32 v23, 0x7ffffe00")
            A.label("MAIN_XT")
        for r in range(opt.xt):
            A(f"    s_mov_b32 s{S_T0}, {opt.xoff + r*16384*128}")
            A(f"    buffer_load_dword v255, v23, s[{S_X}:{S_X+3}], s{S_T0} offen")
    A(f"    s_waitcnt vmcnt({7+opt.xt})")
    stamp(A, 2)
    EN = 16
    NN = 20; WV = 24; RK = 28; BS = 32
    A(f"    s_mov_b64 s[62:63], 0")
    for i in range(4):
        A(f"    v_and_b32 v{NN+i}, 63, v{EN+i}")
        A(f"    v_cmp_eq_u32 vcc, -2, v{EN+i}")
        A(f"    s_or_b64 s[62:63], s[62:63], vcc")
        A(f"    v_cmp_gt_u32 s[{64+2*i}:{65+2*i}], 40, v{NN+i}       ; valid")
        A(f"    v_cmp_le_u32 s[{72+2*i}:{73+2*i}], 32, v{NN+i}       ; group B")
        A(f"    v_lshrrev_b32 v{T1}, 2, v{NN+i}")
        A(f"    v_subrev_u32 v{T2}, 32, v{NN+i}")
        A(f"    v_subrev_u32 v{T3}, 24, v{NN+i}")
        A(f"    v_cndmask_b32 v{WV+i}, v{T1}, v{T2}, s[{72+2*i}:{73+2*i}]")
        A(f"    v_cndmask_b32 v{T1}, v{T1}, v{T3}, s[{72+2*i}:{73+2*i}]")
        A(f"    v_lshlrev_b32 v{BS+i}, 2, v{T1}")
        A(f"    v_add_u32 v{BS+i}, {CNT}, v{BS+i}")
    A(f"    v_mov_b32 v{V_TMP}, 1")
    for i in range(4):
        A(f"    s_mov_b64 exec, s[{64+2*i}:{65+2*i}]")
        A(f"    ds_add_rtn_u32 v{RK+i}, v{BS+i}, v{V_TMP}")
    A("    s_mov_b64 exec, -1")
    def v_reads():
        for kk in range(8):
            A(f"    ds_read_b128 v[{V_ACC+4*kk}:{V_ACC+4*kk+3}], v39 offset:{2*PAIR+64*kk}")
        for kk in range(8):
            A(f"    ds_read_b128 v[{V_V+4*kk}:{V_V+4*kk+3}], v39 offset:{64*kk}")
    A(f"    s_mov_b32 s{S_T0}, {LSZ}")
    A(f"    v_mov_b32 v{T1}, {LISTS+192}")
    for i in range(4):
        A(f"    v_mad_u32_u24 v{BS+i}, v{WV+i}, s{S_T0}, v{T1}")
    for i in range(4):
        A(f"    s_waitcnt lgkmcnt({3-i})")
        A(f"    v_lshlrev_b32 v{T1}, 2, v{RK+i}")
        A(f"    v_sub_u32 v{T2}, -4, v{T1}")
        A(f"    v_mov_b32 v{T3}, {CAPA}")
        A(f"    v_cndmask_b32 v{T1}, v{T1}, v{T2}, s[{72+2*i}:{73+2*i}]")
        A(f"    v_cndmask_b32 v{T3}, v{T3}, {CAPB}, s[{72+2*i}:{73+2*i}]")
        A(f"    v_add_u32 v{BS+i}, v{BS+i}, v{T1}")
        A(f"    v_cmp_lt_u32 vcc, v{RK+i}, v{T3}")
        A(f"    s_andn2_b64 s[80:81], s[{64+2*i}:{65+2*i}], vcc")
        A(f"    s_or_b64 s[62:63], s[62:63], s[80:81]")
        A(f"    s_and_b64 exec, s[{64+2*i}:{65+2*i}], vcc")
        A(f"    ds_write_b32 v{BS+i}, v{EN+i}")
        A(f"    s_mov_b64 exec, -1")
    A(f"    s_cmp_eq_u64 s[62:63], 0")
    A(f"    s_cbranch_scc1 MAIN_NOOVF")
    A(f"    v_mov_b32 v{T1}, {OVF}")
    A(f"    ds_write_b32 v{T1}, v{V_TMP}")
    A.label("MAIN_NOOVF")
    A("    s_waitcnt lgkmcnt(0)")
    A("    s_barrier")
    stamp(A, 3)
    tstamp(A, 0)
    A(f"    s_lshl_b32 s{S_T0}, s{S_W}, 2")
    A(f"    s_add_u32 s{S_T0}, s{S_T0}, {CNT}")
    A(f"    v_mov_b32 v16, s{S_T0}")
    A(f"    v_mov_b32 v17, {OVF}")
    A(f"    ds_read_b32 v18, v16                     ; cntA")
    A(f"    ds_read_b32 v19, v16 offset:32           ; cntB")
    A(f"    ds_read_b32 v20, v17")
    A(f"    v_lshrrev_b32 v{T1}, 2, v{VC}")
    A(f"    v_cmp_eq_u32 s[{S_J1}:{S_J1+1}], 1, v{T1}")
    A(f"    v_cmp_eq_u32 s[{S_J2}:{S_J2+1}], 2, v{T1}")
    A(f"    v_cmp_eq_u32 s[{S_J3}:{S_J3+1}], 3, v{T1}")
    A("    s_waitcnt lgkmcnt(0)")
    A(f"    v_readfirstlane_b32 s{S_NA}, v18")
    A(f"    v_readfirstlane_b32 s{S_NB}, v19")
    A(f"    v_readfirstlane_b32 s{S_T0}, v20")
    A(f"    s_mov_b32 s{S_M0}, s{S_REG}")
    A(f"    s_mov_b32 s{S_DELTA}, {UNIT}")
    A(f"    s_mov_b32 s{S_P}, 0")
    A(f"    s_mov_b32 s{S_FIRST}, 1")
    A(f"    s_cmp_lg_u32 s{S_T0}, 0")
    A("    s_cbranch_scc1 MAIN_SLOW")
    A(f"    s_sub_u32 s{S_KA}, s{S_NA}, 1")
    A(f"    s_and_b32 s{S_KA}, s{S_KA}, 15")
    A(f"    s_lshr_b32 s{S_KA}, s{S_KA}, 1")
    A(f"    s_add_u32 s{S_KA}, s{S_KA}, 1")
    A(f"    s_sub_u32 s{S_KB}, s{S_NB}, 1")
    A(f"    s_and_b32 s{S_KB}, s{S_KB}, 15")
    A(f"    s_lshr_b32 s{S_KB}, s{S_KB}, 1")
    A(f"    s_add_u32 s{S_KB}, s{S_KB}, 1")
    A(f"    s_cmp_eq_u32 s{S_NA}, 0")
    A(f"    s_cselect_b32 s{S_KA}, 8, s{S_KA}")
    A(f"    s_add_u32 s{S_NA}, s{S_NA}, 15")
    A(f"    s_lshr_b32 s{S_NA}, s{S_NA}, 4")
    A(f"    s_add_u32 s{S_NB}, s{S_NB}, 15")
    A(f"    s_lshr_b32 s{S_NB}, s{S_NB}, 4")
    A(f"    s_add_u32 s{S_NU}, s{S_NA}, s{S_NB}")
    A(f"    s_lshl_b32 s{S_T0}, s{S_NB}, 6")
    A(f"    s_sub_u32 s{S_PTR}, s{S_ABASE}, s{S_T0}")
    def emit_t(A):
        for kk in range(8):
            A(f"    ds_read_b128 v[{V_SCR+4*kk}:{V_SCR+4*kk+3}], v{V_SADDR} offset:{UNIT+64*kk}")
        A(f"    v_lshlrev_b32 v{T2}, 2, v{VC}")
        A(f"    v_and_b32 v{T3}, 3, v{VC}")
        A(f"    v_add_u32 v{T3}, 16, v{T3}")
        A(f"    v_lshlrev_b32 v{T3}, 2, v{T3}              ; lane 16 + h")
        for kk in range(8):
            A(f"    s_waitcnt lgkmcnt({7-kk})")
            c = "0" if kk == 0 else f"v[{V_S}:{V_S+3}]"
            A(f"    v_mfma_f32_16x16x32_bf16 v[{V_S}:{V_S+3}], v[{V_SCR+4*kk}:{V_SCR+4*kk+3}], v[{V_ACC+4*kk}:{V_ACC+4*kk+3}], {c}")
        A("    s_nop 7")
        A(f"    v_cndmask_b32 v{V_TA}, v{V_S}, v{V_S+1}, s[{S_J1}:{S_J1+1}]")
        A(f"    v_cndmask_b32 v{V_TA}, v{V_TA}, v{V_S+2}, s[{S_J2}:{S_J2+1}]")
        A(f"    v_cndmask_b32 v{V_TA}, v{V_TA}, v{V_S+3}, s[{S_J3}:{S_J3+1}]")
        A(f"    ds_bpermute_b32 v{V_TQ}, v{T3}, v{V_S}")
        A(f"    ds_bpermute_b32 v{V_TA}, v{T2}, v{V_TA}")
        A("    s_waitcnt lgkmcnt(0)")
        for i in range(1, 4):
            A(f"    v_mov_b32 v{V_TQ+i}, v{V_TQ}")

    def zero_prep(A, buf):
        if opt.skip:
            for i in range(4):
                A(f"    v_mov_b32 v{V_S+i}, 0")
            A(f"    v_mbcnt_lo_u32_b32 v{V_T2}, -1, 0")
            A(f"    v_mbcnt_hi_u32_b32 v{V_T2}, -1, v{V_T2}")
            A(f"    v_lshlrev_b32 v{V_T2}, 4, v{V_T2}")
            A(f"    s_add_u32 s{S_T1}, s{S_REG}, {UNIT*buf}")
            A(f"    v_add_u32 v{V_T2}, s{S_T1}, v{V_T2}")

    tstamp(A, 1)
    if opt.prio == 2:
        A("    s_setprio 3")
    A(f"    s_mov_b32 s{S_K}, 0")
    A(f"    s_cmp_eq_u32 s{S_NU}, 0")
    A("    s_cbranch_scc1 MAIN_PRO_T")
    A(f"    v_add_u32 v{T1}, s{S_PTR}, v{V_H4}")
    dma_entry_reads(A, T1)
    zero_prep(A, 0)
    A(f"    s_mov_b32 s{S_T1}, 0")
    if opt.skip:
        unit_k(A, S_T1)
    A("    s_waitcnt lgkmcnt(0)")
    if opt.skip:
        A(f"    s_cmp_eq_u32 s{S_NB}, 0")
        A("    s_cbranch_scc1 MAIN_U0A")
        A(f"    s_mov_b32 s{S_K}, s{S_KB}")
        dma_partial(A, S_K, True, rev=True)
        A("    s_branch MAIN_PRO_T")
        A.label("MAIN_U0A")
        dma_partial(A, S_K, True)
    else:
        A(f"    s_mov_b32 s{S_K}, 8")
        for q in range(8):
            dma_one(A, q)
    A.label("MAIN_PRO_T")
    tstamp(A, 2)
    wait_vm_dyn(A, S_K, opt.xt, 0, 8)
    tstamp(A, 3)
    v_reads()
    emit_t(A)
    tstamp(A, 4)
    A(f"    s_mov_b32 s{S_K}, 0")
    A(f"    s_cmp_le_u32 s{S_NU}, 1")
    A("    s_cbranch_scc1 MAIN_PRO_DONE")
    A(f"    v_add_u32 v{T1}, s{S_PTR}, v{V_H4}")
    A(f"    v_add_u32 v{T1}, 64, v{T1}")
    dma_entry_reads(A, T1)
    zero_prep(A, 1)
    A(f"    s_add_u32 s{S_M0}, s{S_REG}, {UNIT}")
    A(f"    s_mov_b32 s{S_T1}, 1")
    if opt.skip:
        unit_k(A, S_T1)
    else:
        A(f"    s_mov_b32 s{S_K}, 8")
    A("    s_waitcnt lgkmcnt(0)")
    if opt.skip:
        dma_partial(A, S_K, True)
    else:
        for q in range(8):
            dma_one(A, q)
    A(f"    s_mov_b32 s{S_M0}, s{S_REG}")
    A.label("MAIN_PRO_DONE")
    stamp(A, 4)
    tstamp(A, 5)
    if opt.prio == 1:
        A(f"    s_setprio 1")
    for ks in range(opt.w3):
        w_load(A, ks, wslot(ks))
    WX = 2 * opt.w3
    A(f"    s_cmp_eq_u32 s{S_NU}, 0")
    A("    s_cbranch_scc1 MAIN_LOOP")
    tstamp(A, 6)
    wait_vm_dyn(A, S_K, WX, 0, 8)
    tstamp(A, 7)
    A("    s_waitcnt lgkmcnt(0)")
    s_prefetch(A)
    if opt.stamps and opt.ustamps:
        A("    s_memtime s[98:99]")
    A.label("MAIN_LOOP")
    A(f"    s_cmp_eq_u32 s{S_P}, s{S_NB}")
    A("    s_cbranch_scc1 MAIN_FINB")
    A.label("MAIN_LOOP2")
    A(f"    s_cmp_ge_u32 s{S_P}, s{S_NU}")
    A("    s_cbranch_scc1 MAIN_DONE")

    def dispatch(tag, agg, firsts, minleft, dest, par):
        for first in firsts:
            if len(firsts) > 1:
                if first == firsts[0]:
                    A(f"    s_cmp_eq_u32 s{S_FIRST}, 0")
                    A(f"    s_cbranch_scc0 {tag}_F1")
                else:
                    A.label(f"{tag}_F1")
            A(f"    s_cmp_ge_u32 s{S_T0}, 3")
            A(f"    s_cbranch_scc0 {tag}_{first}_R2")
            if opt.skip:
                A(f"    s_cmp_eq_u32 s{S_K}, 8")
                A(f"    s_cbranch_scc0 {tag}_{first}_PART")
            unit_tail(A, "full", True, agg, first, par)
            A(f"    s_branch {dest}")
            if opt.skip:
                A.label(f"{tag}_{first}_PART")
                unit_tail(A, "part", True, agg, first, par)
                A(f"    s_branch {dest}")
            A.label(f"{tag}_{first}_R2")
            if minleft <= 1:
                A(f"    s_cmp_eq_u32 s{S_T0}, 2")
                A(f"    s_cbranch_scc0 {tag}_{first}_R1")
            unit_tail(A, None, True, agg, first, par)
            A(f"    s_branch {dest}")
            if minleft <= 1:
                A.label(f"{tag}_{first}_R1")
                unit_tail(A, None, False, agg, first, par)
                A(f"    s_branch {dest}")

    def set_prio():
        if opt.prio == 2:
            l1 = uid("PR"); l2 = uid("PR"); le = uid("PR")
            A(f"    s_cmp_ge_u32 s{S_P}, {opt.pa}")
            A(f"    s_cbranch_scc1 {l1}")
            A("    s_setprio 3")
            A(f"    s_branch {le}")
            A.label(l1)
            A(f"    s_cmp_ge_u32 s{S_P}, {opt.pb}")
            A(f"    s_cbranch_scc1 {l2}")
            A("    s_setprio 2")
            A(f"    s_branch {le}")
            A.label(l2)
            A("    s_setprio 1")
            A.label(le)

    def k_next():
        set_prio()
        if opt.skip:
            A(f"    s_add_u32 s{S_T1}, s{S_P}, 2")
            unit_k(A, S_T1)

    pstamp(A)
    ustamp(A, opt.up, 0); ustamp(A, opt.up + 1, 4)
    A(f"    s_add_u32 s{S_P2}, s{S_PTR}, 128")
    k_next()
    unit_front(A, 0)
    ustamp(A, opt.up, 1); ustamp(A, opt.up + 1, 5)
    A(f"    s_sub_u32 s{S_T0}, s{S_NU}, s{S_P}")
    A(f"    s_add_u32 s{S_T1}, s{S_P}, 1")
    A(f"    s_cmp_eq_u32 s{S_T1}, s{S_NB}")
    A("    s_cbranch_scc1 TL_LAST")
    A(f"    s_cmp_eq_u32 s{S_T1}, s{S_NU}")
    A("    s_cbranch_scc1 TL_LAST")
    dispatch("TE", None, [0], 2, "MAIN_ODD", 0)
    A.label("TL_LAST")
    dispatch("TL", "k16", [0, 1], 1, "MAIN_NEXT", 0)
    A.label("MAIN_ODD")
    pstamp(A)
    ustamp(A, opt.up + 1, 2); ustamp(A, opt.up + 2, 6)
    ustamp(A, opt.up, 0); ustamp(A, opt.up + 1, 4)
    A(f"    s_add_u32 s{S_P2}, s{S_PTR}, 128")
    k_next()
    unit_front(A, 1)
    ustamp(A, opt.up, 1); ustamp(A, opt.up + 1, 5)
    A(f"    s_sub_u32 s{S_T0}, s{S_NU}, s{S_P}")
    dispatch("TO", "k32", [0, 1], 1, "MAIN_NEXT", 1)
    A.label("MAIN_NEXT")
    ustamp(A, opt.up + 1, 2); ustamp(A, opt.up + 2, 6)
    A("    s_branch MAIN_LOOP")

    A.label("MAIN_FINB")
    fstamp(A, 0)
    A("    s_nop 3")
    emit_finb(A)
    A("    s_branch MAIN_LOOP2")

    A.label("MAIN_DONE")
    if opt.prio:
        A("    s_setprio 0")
    stamp(A, 5)
    if opt.stamps and opt.pstamps:
        A("    s_memtime s[98:99]")
    A(f"    s_cmp_lg_u32 s{S_NA}, 0")
    A("    s_cbranch_scc1 MAIN_DONE2")
    zero_acc(A)
    A.label("MAIN_DONE2")
    VC2 = V_T2; VG2 = V_T3
    lane_cg(A, V_T1, VC2, VG2)
    A(f"    v_lshrrev_b32 v{V_TMP}, 2, v{VC2}                 ; w'")
    A(f"    v_mul_u32_u24 v1, {REGSZ}, v{V_TMP}")
    A(f"    v_and_b32 v{V_TMP}, 1, v{V_TMP}")
    A(f"    v_lshl_add_u32 v1, v{V_TMP}, 7, v1")
    A(f"    v_and_b32 v{V_TMP}, 3, v{VC2}")
    A(f"    v_mul_u32_u24 v{V_TMP}, {RROW}, v{V_TMP}")
    A(f"    v_add_u32 v1, v1, v{V_TMP}")
    A(f"    v_and_b32 v{V_TMP}, 7, v{VC2}")
    A(f"    v_mul_u32_u24 v5, {RROW}, v{V_TMP}")
    A(f"    v_add_u32 v5, {AGG1}, v5")
    A(f"    v_lshlrev_b32 v{V_TMP}, 4, v{VG2}                 ; g*16")
    A(f"    v_xor_b32 v{V_T1}, 16, v{V_TMP}                   ; (g^1)*16")
    A(f"    v_add_u32 v2, v1, v{V_T1}")
    A(f"    v_add_u32 v1, v1, v{V_TMP}")
    A(f"    v_add_u32 v3, {4*REGSZ}, v1")
    A(f"    v_add_u32 v4, {4*REGSZ}, v2")
    A(f"    v_add_u32 v6, v5, v{V_T1}")
    A(f"    v_add_u32 v5, v5, v{V_TMP}")
    A(f"    s_mul_i32 s{S_T0}, s2, {TILE*512}")
    A(f"    s_lshl_b32 s{S_T1}, s{S_W}, 6")
    A(f"    s_add_u32 s{S_T0}, s{S_T0}, s{S_T1}")
    A(f"    v_lshlrev_b32 v8, 9, v{VC2}")
    A(f"    v_lshl_add_u32 v8, v{VG2}, 4, v8")
    A(f"    v_add_u32 v8, s{S_T0}, v8")
    A(f"    v_add_u32 v9, {16*512}, v8")
    A(f"    v_add_u32 v10, {32*512}, v8")
    A(f"    v_mov_b32 v{V_TMP}, 0x7ffffff0")
    A(f"    v_cmp_gt_u32 vcc, 8, v{VC2}")
    A(f"    v_mov_b32 v7, v{V_WOFF}")
    A(f"    s_nop 0")
    A(f"    s_mov_b64 s[{S_EX}:{S_EX+1}], vcc")
    A(f"    v_cndmask_b32 v10, v{V_TMP}, v10, vcc")
    NPRE = opt.wpre
    W3 = opt.w3
    def pre(u):
        for k in range((NPRE * u) // 8, (NPRE * (u + 1)) // 8):
            w_load(A, W3 + k, wslot(W3 + k), 7)
    finalize(A, 12, after_pair=pre)
    A("    s_waitcnt lgkmcnt(0)")
    A("    s_barrier")
    stamp(A, 6)
    NB = opt.bring
    BR = V_ACC
    def b_reads(ks, zero2=False):
        h = ks >> 3; u = ks & 7; h0 = h & 1; h1 = h >> 1
        imm = h * 512 + ((u ^ h1) * 64)
        st = BR + 12 * (ks % NB)
        for T in range(3):
            if T == 2 and opt.zero2:
                A(f"    s_mov_b64 exec, s[{S_EX}:{S_EX+1}]")
            A(f"    ds_read_b128 v[{st+4*T}:{st+4*T+3}], v{1+2*T+h0} offset:{imm}")
            if T == 2 and opt.zero2:
                A(f"    s_mov_b64 exec, -1")
    if opt.zero2:
        for st_ in range(NB):
            for i in range(4):
                A(f"    v_mov_b32 v{BR+12*st_+8+i}, 0")
    for ks in range(NB - 1):
        b_reads(ks)
    q = [("w", k) for k in range(W3 + NPRE) for _ in range(2)]
    def wait_for(tag):
        idx = max(i for i, t in enumerate(q) if t == tag)
        return len(q) - 1 - idx
    nxt_w = W3 + NPRE
    nrem = 32 - nxt_w
    sched = {}
    for j in range(nrem):
        k2 = nxt_w + j
        st_ = max((j * opt.wlast) // max(nrem - 1, 1), k2 - 16)
        st_ = min(st_, k2 - opt.wmin)
        sched.setdefault(st_, []).append(k2)
    if opt.gprio:
        l = uid("GP")
        A(f"    s_cmp_lt_u32 s{S_W}, 4")
        A(f"    s_cbranch_scc1 {l}")
        A("    s_setprio 1")
        A.label(l)
    for ks in range(32):
        if opt.gprio and ks == opt.gpa:
            l = uid("GP")
            A(f"    s_cmp_lt_u32 s{S_W}, 4")
            A(f"    s_cbranch_scc0 {l}")
            A("    s_setprio 1")
            A.label(l)
        if opt.gprio and ks == opt.gpb:
            l = uid("GP")
            A(f"    s_cmp_lt_u32 s{S_W}, 4")
            A(f"    s_cbranch_scc1 {l}")
            A("    s_setprio 0")
            A.label(l)
        if ks % 4 == 0:
            gstamp(A, ks // 4)
        if ks + NB - 1 < 32:
            b_reads(ks + NB - 1, zero2=opt.zero2)
        lg = 3 * min(NB - 1, 31 - ks)
        A(f"    s_waitcnt vmcnt({min(wait_for(('w', ks)), 63)}) lgkmcnt({lg})")
        st = BR + 12 * (ks % NB)
        wb = wslot(ks)
        for T in range(3):
            for t in range(2):
                a = V_ACC2 + 4 * (2 * T + t)
                c = "0" if ks == 0 else f"v[{a}:{a+3}]"
                A(f"    v_mfma_f32_16x16x32_bf16 v[{a}:{a+3}], v[{wb+4*t}:{wb+4*t+3}], v[{st+4*T}:{st+4*T+3}], {c}")
        for k2 in sched.get(ks, []):
            assert k2 - 16 <= ks < k2
            assert k2 == nxt_w
            w_load(A, k2, wslot(k2), 7)
            q.append(("w", k2)); q.append(("w", k2))
            nxt_w += 1
    assert nxt_w == 32
    stamp(A, 7)
    gstamp(A, 8)
    A("    s_nop 7")
    for T in range(3):
        a0 = V_ACC2 + 4 * (2 * T); a1 = a0 + 4
        st = 12 + 4 * T
        A(f"    v_cvt_pk_bf16_f32 v{st}, v{a0}, v{a0+1}")
        A(f"    v_cvt_pk_bf16_f32 v{st+1}, v{a0+2}, v{a0+3}")
        A(f"    v_cvt_pk_bf16_f32 v{st+2}, v{a1}, v{a1+1}")
        A(f"    v_cvt_pk_bf16_f32 v{st+3}, v{a1+2}, v{a1+3}")
        A(f"    buffer_store_dwordx4 v[{st}:{st+3}], v{8+T}, s[{S_OUT}:{S_OUT+3}], 0 offen")
    if opt.stamps:
        A("    s_waitcnt vmcnt(0)")
    stamp(A, 8)
    stamp_flush(A, 60, 0)
    A("    s_endpgm")

    A.label("MAIN_SLOW")
    A("    s_waitcnt vmcnt(0)")
    v_reads()
    emit_t(A)
    for ks in range(opt.w3):
        w_load(A, ks, wslot(ks))
    gen_slow(A)
    A.label("MAIN_END")
    A("    s_endpgm")


def gen_slow(A):
    S_GRP = 62; S_POS = 63; S_CNT = 64; S_LO = 65; S_HIB = 66; S_BASE = 67
    A("    s_waitcnt vmcnt(0)")
    zero_acc(A)
    A(f"    s_mul_i32 s{S_BASE}, s2, {TILE}")
    A(f"    s_mov_b32 s{S_GRP}, 0")
    A(f"    s_mov_b32 s{S_NB}, 1")
    A(f"    s_mov_b32 s{S_NA}, 1")
    A.label("SLOW_GROUP")
    A(f"    s_add_u32 s{S_LO}, s{S_W}, 32")
    A(f"    s_add_u32 s{S_HIB}, s{S_LO}, 1")
    A(f"    s_cmp_eq_u32 s{S_GRP}, 0")
    A("    s_cbranch_scc1 SLOW_RANGE")
    A(f"    s_lshl_b32 s{S_LO}, s{S_W}, 2")
    A(f"    s_add_u32 s{S_HIB}, s{S_LO}, 4")
    A.label("SLOW_RANGE")
    A(f"    s_mov_b32 s{S_POS}, 0")
    A.label("SLOW_REFILL")
    L4 = V_T1; X1 = V_T2; X2 = V_T3; X3 = V_TMP
    A(f"    v_mbcnt_lo_u32_b32 v{L4}, -1, 0")
    A(f"    v_mbcnt_hi_u32_b32 v{L4}, -1, v{L4}")
    A(f"    v_lshlrev_b32 v{L4}, 2, v{L4}")
    A(f"    v_mov_b32 v{X1}, {hex(SENT_LIST)}")
    A(f"    v_add_u32 v{X2}, s{S_ABASE}, v{L4}")
    A(f"    ds_write_b32 v{X2}, v{X1}")
    A(f"    ds_write_b32 v{X2}, v{X1} offset:256")
    A(f"    s_mov_b32 s{S_CNT}, 0")
    A.label("SLOW_SCAN")
    A(f"    s_cmp_ge_u32 s{S_POS}, {E*4}")
    A("    s_cbranch_scc1 SLOW_FLUSH")
    A(f"    s_cmp_gt_u32 s{S_CNT}, 64")
    A("    s_cbranch_scc1 SLOW_FLUSH")
    A(f"    buffer_load_dword v{X1}, v{L4}, s[{S_DST}:{S_DST+3}], s{S_POS} offen")
    A(f"    buffer_load_dword v{X2}, v{L4}, s[{S_SRC}:{S_SRC+3}], s{S_POS} offen")
    A(f"    s_add_u32 s{S_POS}, s{S_POS}, 256")
    A("    s_waitcnt vmcnt(0)")
    A(f"    v_subrev_u32 v{X1}, s{S_BASE}, v{X1}")
    A(f"    v_cmp_le_u32 s[68:69], s{S_LO}, v{X1}")
    A(f"    v_cmp_gt_u32 vcc, s{S_HIB}, v{X1}")
    A(f"    s_and_b64 vcc, vcc, s[68:69]")
    A(f"    v_lshl_or_b32 v{X2}, v{X2}, 9, v{X1}")
    A(f"    s_nop 0")
    A(f"    v_mbcnt_lo_u32_b32 v{X3}, vcc_lo, 0")
    A(f"    v_mbcnt_hi_u32_b32 v{X3}, vcc_hi, v{X3}")
    A(f"    v_add_u32 v{X3}, s{S_CNT}, v{X3}")
    A(f"    v_lshlrev_b32 v{X3}, 2, v{X3}")
    A(f"    v_add_u32 v{X3}, s{S_ABASE}, v{X3}")
    A(f"    s_bcnt1_i32_b64 s{S_T0}, vcc")
    A(f"    s_add_u32 s{S_CNT}, s{S_CNT}, s{S_T0}")
    A(f"    s_and_saveexec_b64 s[{S_EX}:{S_EX+1}], vcc")
    A(f"    ds_write_b32 v{X3}, v{X2}")
    A(f"    s_mov_b64 exec, s[{S_EX}:{S_EX+1}]")
    A("    s_branch SLOW_SCAN")
    A.label("SLOW_FLUSH")
    A(f"    s_add_u32 s{S_NU}, s{S_CNT}, 15")
    A(f"    s_lshr_b32 s{S_NU}, s{S_NU}, 4")
    A(f"    s_mov_b32 s{S_P}, 0")
    A(f"    s_mov_b32 s{S_PTR}, s{S_ABASE}")
    A("    s_waitcnt lgkmcnt(0)")
    A.label("SLOW_UNIT")
    A(f"    s_cmp_ge_u32 s{S_P}, s{S_NU}")
    A("    s_cbranch_scc1 SLOW_UNITS_DONE")
    A(f"    v_add_u32 v{V_T1}, s{S_PTR}, v{V_H4}")
    dma_entry_reads(A, V_T1)
    A("    s_waitcnt lgkmcnt(0)")
    for q in range(8):
        dma_one(A, q)
    A(f"    s_mov_b32 s{S_P2}, s{S_PTR}")
    A("    s_waitcnt vmcnt(0)")
    s_prefetch(A)
    unit_front(A, 0)
    unit_finish_plain(A, 0)
    den_mfma(A)
    for ft in range(16):
        agg_mfma(A, ft)
    A(f"    s_add_u32 s{S_P}, s{S_P}, 1")
    A(f"    s_add_u32 s{S_PTR}, s{S_PTR}, 64")
    A("    s_branch SLOW_UNIT")
    A.label("SLOW_UNITS_DONE")
    A(f"    s_cmp_lt_u32 s{S_POS}, {E*4}")
    A("    s_cbranch_scc1 SLOW_REFILL")
    A(f"    s_cmp_eq_u32 s{S_GRP}, 1")
    A("    s_cbranch_scc1 MAIN_DONE")
    A("    s_nop 7")
    emit_finb(A, after_loop=False)
    zero_acc(A)
    A(f"    s_mov_b32 s{S_GRP}, 1")
    A("    s_branch SLOW_GROUP")


def kd(name, vgpr, sgpr):
    return f""".amdhsa_kernel {name}
  .amdhsa_next_free_vgpr {vgpr}
  .amdhsa_next_free_sgpr {sgpr}
  .amdhsa_accum_offset {((vgpr+3)//4)*4}
  .amdhsa_group_segment_fixed_size 0
  .amdhsa_kernarg_size 72
  .amdhsa_user_sgpr_count 2
  .amdhsa_user_sgpr_kernarg_segment_ptr 1
  .amdhsa_system_sgpr_workgroup_id_x 1
  .amdhsa_float_denorm_mode_32 3
.end_amdhsa_kernel
"""


HEADER = """; Kernarg layout for this problem (72 bytes, ptrs only, base s[0:1]):
"""


def main():
    ap = argparse.ArgumentParser()
    ap.add_argument("-o", default="gather_scatter__graph_attention_gat__graph.s")
    ap.add_argument("--stamps", action="store_true")
    ap.add_argument("--ustamps", action="store_true")
    ap.add_argument("--gstamps", action="store_true")
    ap.add_argument("--fstamps", action="store_true")
    ap.add_argument("--tstamps", action="store_true")
    ap.add_argument("--nopk", type=int, default=0)
    ap.add_argument("--pstamps", action="store_true")
    ap.add_argument("--clk", action="store_true")
    ap.add_argument("--up", type=int, default=1)
    ap.add_argument("--wpos", default="A")
    ap.add_argument("--copies", type=int, default=1)
    ap.add_argument("--xpre", type=int, default=0)
    ap.add_argument("--wpre", type=int, default=10)
    ap.add_argument("--w3", type=int, default=2)
    ap.add_argument("--wlast", type=int, default=24)
    ap.add_argument("--wmin", type=int, default=6)
    ap.add_argument("--prio", type=int, default=2)
    ap.add_argument("--skip", type=int, default=0)
    ap.add_argument("--bar0", type=int, default=0)
    ap.add_argument("--xt", type=int, default=0)
    ap.add_argument("--vlate", type=int, default=1)
    ap.add_argument("--gprio", type=int, default=1)
    ap.add_argument("--gpa", type=int, default=13)
    ap.add_argument("--gpb", type=int, default=19)
    ap.add_argument("--mall", type=int, default=0)
    ap.add_argument("--xoff", type=int, default=0)
    ap.add_argument("--xhalf", type=int, default=0)
    ap.add_argument("--pa", type=int, default=2)
    ap.add_argument("--pb", type=int, default=4)
    ap.add_argument("--wlook", type=int, default=12)
    ap.add_argument("--wone", type=int, default=1)
    ap.add_argument("--zero2", type=int, default=1)
    ap.add_argument("--bring", type=int, default=4)
    ap.add_argument("--wspread", type=int, default=8)
    a = ap.parse_args()
    opt.__dict__.update(a.__dict__)
    A = Asm()
    B = Asm()
    gen_prep(B)
    gen_main(B)
    A(HEADER.rstrip("\n"))
    A(f"; @launch kernel=gat_prep_kernel grid=({opt.nprep},1,1) block=(640,1,1) lds=43520")
    A(f"; @launch kernel=gather_scatter__graph_attention_gat__graph_kernel grid=({NT},1,1) block=(512,1,1) lds={LDS_MAIN}")
    A('.amdgcn_target "amdgcn-amd-amdhsa--gfx950"')
    A(".text")
    A.lines += B.lines
    A('.section .rodata,"a"')
    A(".p2align 6")
    A(kd("gat_prep_kernel", 80, 102 if opt.stamps else 48))
    A(".p2align 6")
    A(kd("gather_scatter__graph_attention_gat__graph_kernel", 256, 102 if opt.stamps else 96))
    open(opt.o, "w").write(A.text())
    print("wrote", opt.o, len(A.lines), "lines")


if __name__ == "__main__":
    main()
```

```python
import sys, argparse

N = 10000; E = 160000; TILE = 40; NT = 250; G = 64; CH = 2500
WS_SLOTS = 0
WS_V = 0x1F8000
WS_WF = 0x200000
WS_STAMP = 0x700000
REGSZ = 17408; UNIT = 8704; PAIR = 1088; RROW = 2080
AGG1 = 8 * REGSZ
LISTS = AGG1 + 8 * RROW
LSZ = 704
TBUF = LISTS + 8 * LSZ
CNT = TBUF + 768
OVF = CNT + 64
LDS_MAIN = CNT + 128
VLDS = AGG1
CAPA = 128; CAPB = 48
SENT_LIST = 0x7FFFFE3F
LOG2E = 0x3FB8AA3B


class Asm:
    def __init__(self):
        self.lines = []
    def __call__(self, s=""):
        for l in s.split("\n"):
            self.lines.append(l)
    def label(self, n):
        self.lines.append(n + ":")
    def text(self):
        return "\n".join(self.lines) + "\n"


class Opt:
    pass
opt = Opt()
_ul = [0]
def uid(p):
    _ul[0] += 1
    return f"{p}_{_ul[0]}"


def stamp(A, i):
    if opt.stamps and not opt.ustamps and not opt.gstamps and not opt.pstamps and not opt.fstamps and not opt.tstamps:
        A(f"    {'s_memtime' if opt.clk else 's_memrealtime'} s[{82+2*i}:{83+2*i}]")
def ustamp(A, p, i):
    if opt.stamps and opt.ustamps:
        l = uid("US")
        A(f"    s_cmp_eq_u32 s{S_P}, {p}")
        A(f"    s_cbranch_scc0 {l}")
        A(f"    s_memtime s[{82+2*i}:{83+2*i}]")
        A.label(l)
def pstamp(A):
    if opt.stamps and opt.pstamps:
        for p in range(8):
            l = uid("PS")
            A(f"    s_cmp_eq_u32 s{S_P}, {p}")
            A(f"    s_cbranch_scc0 {l}")
            A(f"    s_memtime s[{82+2*p}:{83+2*p}]")
            A.label(l)
def fstamp(A, i):
    if opt.stamps and opt.fstamps:
        A(f"    s_memtime s[{82+2*i}:{83+2*i}]")
def tstamp(A, i):
    if opt.stamps and opt.tstamps:
        A(f"    s_memtime s[{82+2*i}:{83+2*i}]")
def gstamp(A, i):
    if opt.stamps and opt.gstamps:
        A(f"    s_memtime s[{82+2*i}:{83+2*i}]")
def stamp_flush(A, wsbase, area):
    if not opt.stamps:
        return
    A("    s_waitcnt lgkmcnt(0)")
    A(f"    s_mov_b32 s76, s{wsbase}\n    s_mov_b32 s77, s{wsbase+1}\n    s_mov_b32 s78, 0x800000\n    s_mov_b32 s79, 0x00020000")
    A(f"    s_lshl_b32 s80, s2, 4")
    A(f"    s_add_u32 s80, s80, s100")
    A(f"    s_lshl_b32 s80, s80, 6")
    A(f"    s_add_u32 s80, s80, {WS_STAMP+area}")
    A("    s_mov_b64 exec, 1")
    A("    v_mov_b32 v1, 0")
    for i in range(9):
        A(f"    v_mov_b32 v2, s{82+2*i}")
        A(f"    buffer_store_dword v2, v1, s[76:79], s80 offen offset:{4*i}")
        A("    s_nop 1")


def srd(A, d, base, nbytes):
    A(f"    s_mov_b32 s{d}, s{base}")
    A(f"    s_mov_b32 s{d+1}, s{base+1}")
    A(f"    s_mov_b32 s{d+2}, {nbytes}")
    A(f"    s_mov_b32 s{d+3}, 0x00020000")


def x_touch(A, sbase, vaddr, vdst, ssrd, stmp):
    if not opt.xpre:
        return
    srd(A, ssrd, sbase, N * 512)
    A(f"    s_lshr_b32 s{stmp}, s2, 3")
    A(f"    s_mul_i32 s{stmp}, s{stmp}, 640")
    A(f"    v_add_u32 v{vaddr}, s{stmp}, v0")
    A(f"    v_lshlrev_b32 v{vaddr}, 7, v{vaddr}")
    for r in range(opt.xpre):
        A(f"    s_mov_b32 s{stmp}, {r*20480*128}")
        A(f"    buffer_load_dword v{vdst}, v{vaddr}, s[{ssrd}:{ssrd+3}], s{stmp} offen")


def ws_bytes():
    return WS_WF + opt.copies * 524288


def gen_prep(A):
    K = "gat_prep_kernel"
    NWG_W = 16 * opt.copies
    V0 = 64 + NWG_W
    X0 = V0 + 32
    NPREP = 256 if opt.xpre else X0 + (63 if opt.mall else 0)
    opt.nprep = NPREP
    A(f".globl {K}\n.p2align 8\n.type {K},@function\n{K}:")
    A(f"    s_cmp_ge_u32 s2, {NPREP}")
    A("    s_cbranch_scc1 PREP_END")
    stamp(A, 0)
    if opt.stamps:
        A("    v_lshrrev_b32 v1, 6, v0\n    s_nop 1\n    v_readfirstlane_b32 s100, v1")
    A("    s_cmp_ge_u32 s2, 64")
    A("    s_cbranch_scc1 PREP_NB")
    A("    s_load_dwordx4 s[4:7], s[0:1], 8")
    A("    s_load_dwordx2 s[10:11], s[0:1], 64     ; ws")
    A("    s_load_dwordx2 s[12:13], s[0:1], 0      ; x")
    A("    v_lshlrev_b32 v1, 4, v0")
    for i in range(4):
        A(f"    v_mov_b32 v{4+i}, -1")
    A("    v_lshlrev_b32 v2, 2, v0")
    A("    v_mov_b32 v3, 0")
    A("    s_mul_i32 s28, s2, 10000")
    A("    v_add_u32 v30, s28, v1")
    A("    s_waitcnt lgkmcnt(0)")
    stamp(A, 1)
    srd(A, 20, 6, E * 4)
    A("    buffer_load_dwordx4 v[8:11], v30, s[20:23], 0 offen      ; dst")
    srd(A, 16, 4, E * 4)
    A("    buffer_load_dwordx4 v[12:15], v30, s[16:19], 0 offen     ; src")
    srd(A, 24, 10, ws_bytes())
    x_touch(A, 12, 31, 32, 36, 40)
    for r in range(4):
        A(f"    ds_write_b128 v1, v[4:7] offset:{10240*r}")
    A("    ds_write_b32 v2, v3 offset:40960")
    A("    v_cmp_gt_u32 vcc, 625, v0")
    A("    s_mov_b32 s29, 52429")
    A("    v_mov_b32 v3, 1")
    A("    v_mov_b32 v28, 32000")
    A("    s_waitcnt lgkmcnt(0)")
    A("    s_barrier")
    A("    s_and_saveexec_b64 s[30:31], vcc")
    A(f"    s_waitcnt vmcnt({1+opt.xpre})")
    stamp(A, 2)
    for i in range(4):
        A(f"    v_mul_u32_u24 v{16+i}, s29, v{8+i}")
        A(f"    v_lshrrev_b32 v{16+i}, 21, v{16+i}       ; tile")
        A(f"    v_lshlrev_b32 v{20+i}, 2, v{16+i}")
        A(f"    ds_add_rtn_u32 v{24+i}, v{20+i}, v3 offset:40960")
    A(f"    s_waitcnt vmcnt({opt.xpre})")
    for i in range(4):
        A(f"    v_mul_u32_u24 v4, 40, v{16+i}")
        A(f"    v_sub_u32 v4, v{8+i}, v4")
        A(f"    v_lshl_or_b32 v{12+i}, v{12+i}, 9, v4    ; entry")
        A(f"    v_lshlrev_b32 v{16+i}, 7, v{16+i}        ; tile*128")
    for i in range(4):
        A(f"    s_waitcnt lgkmcnt({3-i})")
        A(f"    v_cmp_gt_u32 vcc, 32, v{24+i}")
        A(f"    v_lshl_add_u32 v4, v{24+i}, 2, v{16+i}")
        A(f"    s_nop 0")
        A(f"    v_cndmask_b32 v{20+i}, v28, v4, vcc")
    for i in range(4):
        A(f"    ds_write_b32 v{20+i}, v{12+i}")
    A("    s_mov_b64 exec, s[30:31]")
    A("    s_lshl_b32 s28, s2, 7                    ; chunk*128")
    A("    v_and_b32 v2, 7, v0                      ; part (640 % 8 == 0)")
    A("    v_lshrrev_b32 v3, 3, v0")
    A("    v_lshlrev_b32 v29, 2, v3")
    A("    v_lshlrev_b32 v4, 4, v2")
    A("    v_lshl_add_u32 v4, v3, 13, v4")
    A("    v_add_u32 v4, s28, v4")
    A("    v_cmp_eq_u32 s[32:33], 7, v2")
    A("    v_cmp_gt_u32 vcc, 80, v0")
    A("    s_mov_b64 s[34:35], vcc")
    A("    v_mov_b32 v5, 0x7ffffff0")
    A("    v_mov_b32 v6, -2")
    A("    s_waitcnt lgkmcnt(0)")
    A("    s_barrier")
    stamp(A, 3)
    for r in range(4):
        A(f"    ds_read_b128 v[{8+4*r}:{11+4*r}], v1 offset:{10240*r}")
        A(f"    ds_read_b32 v{24+r}, v29 offset:{40960 + 320*r}")
    for r in range(4):
        A(f"    s_waitcnt lgkmcnt({6-2*r})")
        A(f"    v_cmp_lt_u32 vcc, 32, v{24+r}")
        A(f"    s_and_b64 vcc, vcc, s[32:33]")
        A(f"    v_add_u32 v7, {80*8192*r}, v4")
        if r == 3:
            A(f"    v_cndmask_b32 v7, v5, v7, s[34:35]")
        A(f"    s_nop 0")
        A(f"    v_cndmask_b32 v{11+4*r}, v{11+4*r}, v6, vcc")
        A(f"    buffer_store_dwordx4 v[{8+4*r}:{11+4*r}], v7, s[24:27], 0 offen")
    stamp(A, 4)
    if opt.stamps:
        A("    s_waitcnt vmcnt(0)")
    stamp(A, 5)
    stamp_flush(A, 10, 0x40000)
    A("    s_endpgm")
    A.label("PREP_NB")
    if opt.mall:
        A(f"    s_cmp_ge_u32 s2, {X0}")
        A("    s_cbranch_scc1 PREP_M")
    if opt.xpre:
        A(f"    s_cmp_ge_u32 s2, {X0}")
        A("    s_cbranch_scc1 PREP_X")
    A("    s_load_dwordx2 s[8:9], s[0:1], 24       ; w")
    A("    s_load_dwordx4 s[12:15], s[0:1], 32")
    A("    s_load_dwordx2 s[10:11], s[0:1], 64     ; ws")
    A("    s_load_dwordx2 s[42:43], s[0:1], 0      ; x")
    A("    s_sub_u32 s28, s2, 64                    ; idx")
    A("    v_lshrrev_b32 v1, 6, v0")
    A("    s_nop 0")
    cs = {1: 0, 2: 1, 4: 2, 8: 3}[opt.copies]
    A(f"    s_and_b32 s27, s28, {opt.copies-1}       ; copy")
    A(f"    s_lshr_b32 s28, s28, {cs}")
    A("    v_readfirstlane_b32 s29, v1              ; wave")
    A("    s_waitcnt lgkmcnt(0)")
    stamp(A, 1)
    srd(A, 16, 8, 524288)
    srd(A, 36, 10, ws_bytes())
    A(f"    s_cmp_ge_u32 s2, {V0}")
    A("    s_cbranch_scc1 PREP_V")
    A("    s_cmp_ge_u32 s29, 8")
    A("    s_cbranch_scc1 PREP_END")
    A("    s_lshl_b32 s30, s28, 15                  ; kp*2*16384")
    A("    s_add_u32 s33, s30, 16384")
    A("    v_lshrrev_b32 v1, 7, v0                  ; g")
    A("    v_and_b32 v2, 127, v0                    ; fp")
    A("    v_lshlrev_b32 v3, 11, v1")
    A("    v_lshl_add_u32 v3, v2, 2, v3             ; g*2048 + fp*4")
    A("    v_add_u32 v4, 8192, v3")
    for half, so in ((0, 30), (1, 33)):
        for j in range(4):
            A(f"    buffer_load_dword v{8+8*half+j}, v3, s[16:19], s{so} offen offset:{512*j}")
        for j in range(4):
            A(f"    buffer_load_dword v{12+8*half+j}, v4, s[16:19], s{so} offen offset:{512*j}")
    x_touch(A, 42, 41, 42, 44, 40)
    A("    v_lshrrev_b32 v5, 4, v2")
    A("    v_lshlrev_b32 v5, 16, v5")
    A("    v_bfe_u32 v6, v2, 1, 1")
    A("    v_lshl_add_u32 v5, v6, 10, v5")
    A("    v_lshl_add_u32 v5, v1, 8, v5             ; 16g*16")
    A("    v_bfe_u32 v6, v2, 2, 2")
    A("    v_lshl_add_u32 v5, v6, 6, v5             ; 4*gi*16")
    A("    v_and_b32 v6, 1, v2")
    A("    v_lshl_add_u32 v5, v6, 5, v5             ; 2*(fp&1)*16")
    A("    s_lshl_b32 s31, s28, 12                  ; kp*2*2048")
    A("    s_lshl_b32 s32, s27, 19                  ; copy*524288")
    A("    s_add_u32 s31, s31, s32")
    A(f"    s_add_u32 s31, s31, {WS_WF}")
    A("    s_mov_b32 s34, 0x05040100")
    A("    s_mov_b32 s35, 0x07060302")
    for half in range(2):
        A(f"    s_waitcnt vmcnt({(8 if half == 0 else 2) + opt.xpre})")
        if half == 0:
            stamp(A, 2)
        b = 8 + 8 * half; d = 24 + 8 * half
        for i in range(4):
            A(f"    v_perm_b32 v{d+i}, v{b+1+2*i}, v{b+2*i}, s34")
            A(f"    v_perm_b32 v{d+4+i}, v{b+1+2*i}, v{b+2*i}, s35")
        A(f"    buffer_store_dwordx4 v[{d}:{d+3}], v5, s[36:39], s31 offen offset:{2048*half}")
        A(f"    buffer_store_dwordx4 v[{d+4}:{d+7}], v5, s[36:39], s31 offen offset:{2048*half+16}")
    stamp(A, 4)
    if opt.stamps:
        A("    s_waitcnt vmcnt(0)")
    stamp(A, 5)
    stamp_flush(A, 10, 0x40000)
    A("    s_endpgm")
    A.label("PREP_V")
    A("    s_cmp_ge_u32 s29, 2")
    A("    s_cbranch_scc1 PREP_END")
    A(f"    s_sub_u32 s30, s2, {V0}")
    A("    s_lshl_b32 s30, s30, 1")
    A("    s_add_u32 s30, s30, s29")
    A("    s_lshr_b32 s31, s30, 4                   ; h")
    srd(A, 20, 12, 2048)
    srd(A, 24, 14, 2048)
    A("    v_and_b32 v1, 63, v0")
    A("    v_and_b32 v2, 15, v1                     ; i / c")
    A("    v_lshrrev_b32 v3, 4, v1                  ; g")
    A("    v_lshlrev_b32 v4, 9, v2")
    A("    v_lshl_add_u32 v4, v3, 4, v4             ; i*512 + g*16")
    A("    s_lshl_b32 s32, s30, 13")
    A("    v_lshlrev_b32 v5, 4, v3                  ; g*16")
    A("    s_lshl_b32 s33, s31, 9                   ; h*512")
    for kk in range(8):
        A(f"    buffer_load_dwordx4 v[{8+4*kk}:{11+4*kk}], v4, s[16:19], s32 offen offset:{64*kk}")
    A("    v_and_b32 v6, 1, v2")
    A("    v_cmp_eq_u32 vcc, 0, v6")
    A("    s_mov_b64 s[40:41], exec")
    A("    s_mov_b64 exec, vcc")
    for kk in range(8):
        A(f"    buffer_load_dwordx4 v[{40+4*kk}:{43+4*kk}], v5, s[20:23], s33 offen offset:{64*kk}")
    A("    s_andn2_b64 exec, s[40:41], vcc")
    for kk in range(8):
        A(f"    buffer_load_dwordx4 v[{40+4*kk}:{43+4*kk}], v5, s[24:27], s33 offen offset:{64*kk}")
    A("    s_mov_b64 exec, s[40:41]")
    A("    s_lshl_b32 s32, s30, 5")
    A(f"    s_add_u32 s32, s32, {WS_V}")
    A("    v_lshlrev_b32 v7, 3, v3")
    A("    v_lshl_add_u32 v7, v6, 11, v7")
    A("    v_cmp_gt_u32 vcc, 2, v2")
    A(f"    s_mov_b32 s33, {LOG2E}")
    A("    s_waitcnt vmcnt(0)")
    for kk in range(8):
        c = "0" if kk == 0 else "v[72:75]"
        A(f"    v_mfma_f32_16x16x32_bf16 v[72:75], v[{8+4*kk}:{11+4*kk}], v[{40+4*kk}:{43+4*kk}], {c}")
    A("    s_nop 7")
    for r in range(4):
        A(f"    v_mul_f32 v{72+r}, s33, v{72+r}")
    A("    v_cvt_pk_bf16_f32 v76, v72, v73")
    A("    v_cvt_pk_bf16_f32 v77, v74, v75")
    A("    s_and_saveexec_b64 s[40:41], vcc")
    A("    buffer_store_dwordx2 v[76:77], v7, s[36:39], s32 offen")
    stamp(A, 4)
    if opt.stamps:
        A("    s_waitcnt vmcnt(0)")
    stamp(A, 5)
    stamp_flush(A, 10, 0x40000)
    A("    s_endpgm")
    if opt.xpre:
        A.label("PREP_X")
        A("    s_load_dwordx2 s[8:9], s[0:1], 0         ; x")
        if opt.stamps:
            A("    s_load_dwordx2 s[10:11], s[0:1], 64     ; ws")
        A("    s_waitcnt lgkmcnt(0)")
        stamp(A, 1)
        x_touch(A, 8, 1, 2, 16, 28)
        if opt.stamps:
            A("    s_waitcnt vmcnt(0)")
        stamp(A, 4)
        stamp(A, 5)
        stamp_flush(A, 10, 0x40000)
    if opt.mall:
        A("    s_endpgm")
        A.label("PREP_M")
        A("    s_load_dwordx2 s[8:9], s[0:1], 0         ; x")
        A(f"    s_sub_u32 s28, s2, {X0}")
        A("    s_mul_i32 s28, s28, 640")
        A("    v_add_u32 v1, s28, v0")
        A("    v_lshlrev_b32 v1, 7, v1")
        A("    s_waitcnt lgkmcnt(0)")
        srd(A, 16, 8, N * 512)
        A("    buffer_load_dword v2, v1, s[16:19], 0 offen")
    A.label("PREP_END")
    A("    s_endpgm")


V_TMP = 0; V_DMAC = 1; V_SADDR = 2; V_TE = 3; V_TO = 4; V_G16 = 5; V_H4 = 6; V_TGT = 7; V_TQ = 8
V_PT = 12; V_E = 16; V_D = 20; V_S = 28; V_DEN = 32; V_X = 36; V_ONES = 224
V_TGTA = 40; V_TA = 41; V_T1 = 42; V_T2 = 43; V_T3 = 44; V_WOFF = 45; V_FE = 46; V_FO = 47
V_R = 48; V_SCR = 64; V_V = 128; V_ACC = 160
V_ACC2 = 40
S_X = 4; S_WS = 8; S_OUT = 12; S_SRC = 16; S_DST = 20
S_W = 24; S_NA = 25; S_NB = 26; S_NU = 27; S_P = 28; S_PTR = 29; S_M0 = 30; S_DELTA = 31
S_MSK = 32
S_HI = 40; S_T0 = 41; S_T1 = 42; S_T2 = 43; S_ABASE = 44; S_REG = 45; S_P2 = 46; S_WF = 47; S_EX = 48
S_C02 = 50; S_FIRST = 52; S_K = 53; S_KA = 54; S_KB = 55
S_J1 = 70; S_J2 = 72; S_J3 = 74


def lane_cg(A, vl, vc, vg):
    A(f"    v_mbcnt_lo_u32_b32 v{vl}, -1, 0")
    A(f"    v_mbcnt_hi_u32_b32 v{vl}, -1, v{vl}")
    A(f"    v_and_b32 v{vc}, 15, v{vl}")
    A(f"    v_lshrrev_b32 v{vg}, 4, v{vl}")


def dma_one(A, q, between=None):
    if q == 0:
        A(f"    s_mov_b32 m0, s{S_M0}")
    else:
        A(f"    s_add_u32 m0, s{S_M0}, {PAIR*q}")
    A(f"    v_and_or_b32 v{V_D+q}, v{V_D+q}, s{S_HI}, v{V_DMAC}")
    if between:
        between()
    A(f"    buffer_load_dwordx4 v{V_D+q}, s[{S_X}:{S_X+3}], 0 offen lds")


def wait_vm_dyn(A, sreg, base, lo=0, hi=8):
    end = uid("WV")
    def rec(a, b):
        if a == b:
            A(f"    s_waitcnt vmcnt({base + a})")
            A(f"    s_branch {end}")
            return
        m = (a + b + 1) // 2
        l = uid("WV")
        A(f"    s_cmp_ge_u32 s{sreg}, {m}")
        A(f"    s_cbranch_scc1 {l}")
        rec(a, m - 1)
        A.label(l)
        rec(m, b)
    rec(lo, hi)
    A.label(end)


def dma_partial(A, sreg, zero_fill, rev=False):
    end = uid("DP")
    zl = [uid("DZ") for _ in range(8)]
    order = list(range(7, -1, -1)) if rev else list(range(8))
    for n, q in enumerate(order):
        if n > 0:
            A(f"    s_cmp_gt_u32 s{sreg}, {n}")
            A(f"    s_cbranch_scc0 {zl[n] if zero_fill else end}")
        dma_one(A, q)
    if zero_fill:
        A(f"    s_branch {end}")
        for n in range(1, 8):
            A.label(zl[n])
            A(f"    ds_write_b128 v{V_T2}, v[{V_S}:{V_S+3}] offset:{PAIR*order[n]}")
    A.label(end)


def unit_k(A, sq):
    A(f"    s_add_u32 s{S_T2}, s{sq}, 1")
    A(f"    s_cmp_eq_u32 s{S_T2}, s{S_NU}")
    A(f"    s_cselect_b32 s{S_K}, s{S_KA}, 8")


def dma_entry_reads(A, addr_v):
    for i in range(4):
        A(f"    ds_read2_b32 v[{V_D+2*i}:{V_D+2*i+1}], v{addr_v} offset0:{4*i} offset1:{4*i+2}")


def s_prefetch(A, between=None):
    A(f"    v_add_u32 v{V_TMP}, s{S_PTR}, v{V_G16}")
    if between: between(0)
    A(f"    ds_read_b128 v[{V_E}:{V_E+3}], v{V_TMP}")
    for kk in range(4):
        if between: between(1 + kk)
        A(f"    ds_read_b128 v[{V_R+4*kk}:{V_R+4*kk+3}], v{V_SADDR} offset:{64*kk}")


def s_mfma(A, kk):
    c = f"v[{V_TQ}:{V_TQ+3}]" if kk == 0 else f"v[{V_S}:{V_S+3}]"
    r = V_R + 4 * (kk & 3)
    A(f"    v_mfma_f32_16x16x32_bf16 v[{V_S}:{V_S+3}], v[{r}:{r+3}], v[{V_V+4*kk}:{V_V+4*kk+3}], {c}")


def unit_front(A, par=0):
    q = ["E", "S0", "S1", "S2", "S3"]
    def wait(tag):
        idx = q.index(tag)
        return min(15, len(q) - 1 - idx)
    A(f"    v_add_u32 v{V_T1}, s{S_P2}, v{V_H4}")
    for kk in range(7):
        A(f"    s_waitcnt lgkmcnt({wait('S%d' % kk)})")
        s_mfma(A, kk)
        if kk < 4:
            r = V_R + 4 * kk
            A(f"    ds_read_b128 v[{r}:{r+3}], v{V_SADDR} offset:{64*(kk+4)}")
            q.append("S%d" % (kk + 4))
            for ft in range(4 * kk, 4 * kk + 4):
                a0 = V_SCR + 4 * ft + 2 * par
                A(f"    ds_read_b64_tr_b16 v[{a0}:{a0+1}], v{V_TE if ft % 2 == 0 else V_TO} offset:{32*ft}")
                q.append("T")
            if kk == 3:
                dma_entry_reads(A, V_T1)
                q += ["D"] * 4


def p_ops(par):
    ops = []
    for r in range(4):
        ops.append(f"    v_cmp_eq_u32_sdwa s[{S_MSK+2*r}:{S_MSK+2*r+1}], v{V_E+r}, v{V_TGT} src0_sel:BYTE_0 src1_sel:DWORD")
    grp = [ops]
    grp.append([f"    v_pk_mul_f32 v[{V_X}:{V_X+1}], v[{V_S}:{V_S+1}], s[{S_C02}:{S_C02+1}] op_sel_hi:[1,0]",
                f"    v_pk_mul_f32 v[{V_X+2}:{V_X+3}], v[{V_S+2}:{V_S+3}], s[{S_C02}:{S_C02+1}] op_sel_hi:[1,0]"])
    grp.append([f"    v_max_f32 v{V_X+r}, v{V_X+r}, v{V_S+r}" for r in range(4)])
    grp.append([f"    v_exp_f32 v{V_X+r}, v{V_X+r}" for r in range(4)])
    grp.append([f"    v_cndmask_b32 v{V_X+r}, 0, v{V_X+r}, s[{S_MSK+2*r}:{S_MSK+2*r+1}]" for r in range(4)])
    grp.append([f"    v_cvt_pk_bf16_f32 v{V_PT+2*par}, v{V_X}, v{V_X+1}",
                f"    v_cvt_pk_bf16_f32 v{V_PT+2*par+1}, v{V_X+2}, v{V_X+3}"])
    return grp


def unit_finish_plain(A, par=0):
    A("    s_waitcnt lgkmcnt(0)")
    s_mfma(A, 7)
    g = p_ops(par)
    for l in g[0]: A(l)
    A("    s_nop 3")
    for grp in g[1:]:
        for l in grp: A(l)
    A("    s_nop 1")


def agg_mfma(A, ft, first=False, k32=False):
    c = "0" if first else f"v[{V_ACC+4*ft}:{V_ACC+4*ft+3}]"
    a = V_SCR + 4 * ft
    if k32:
        A(f"    v_mfma_f32_16x16x32_bf16 v[{V_ACC+4*ft}:{V_ACC+4*ft+3}], v[{a}:{a+3}], v[{V_PT}:{V_PT+3}], {c}")
    else:
        A(f"    v_mfma_f32_16x16x16_bf16 v[{V_ACC+4*ft}:{V_ACC+4*ft+3}], v[{a}:{a+1}], v[{V_PT}:{V_PT+1}], {c}")


def den_mfma(A, first=False, k32=False):
    c = "0" if first else f"v[{V_DEN}:{V_DEN+3}]"
    if k32:
        A(f"    v_mfma_f32_16x16x32_bf16 v[{V_DEN}:{V_DEN+3}], v[{V_ONES}:{V_ONES+3}], v[{V_PT}:{V_PT+3}], {c}")
    else:
        A(f"    v_mfma_f32_16x16x16_bf16 v[{V_DEN}:{V_DEN+3}], v[{V_ONES}:{V_ONES+1}], v[{V_PT}:{V_PT+1}], {c}")


def unit_tail(A, dma, nxt, agg, first, par):
    k32 = agg == "k32"
    pend = list(range(16)) if agg else []
    def mf():
        if pend:
            agg_mfma(A, pend.pop(0), first, k32)
            return True
        return False
    g = p_ops(par)
    A("    s_waitcnt lgkmcnt(0)")
    s_mfma(A, 7)
    if dma == "full":
        for q in range(2):
            dma_one(A, q)
        for l in g[0]: A(l)
        for i, grp in enumerate(g[1:]):
            for l in grp: A(l)
            dma_one(A, 2 + i) if i < 5 else None
        dma_one(A, 7)
    elif dma == "part":
        for l in g[0]: A(l)
        dma_partial(A, S_K, False)
        A("    s_nop 1")
        for grp in g[1:]:
            for l in grp: A(l)
        A("    s_nop 1")
    else:
        for l in g[0]: A(l)
        A("    s_nop 3")
        for grp in g[1:]:
            for l in grp: A(l)
        A("    s_nop 1")
    if agg:
        den_mfma(A, first, k32)
    for q in range(8):
        mf()
    A(f"    v_add_u32 v{V_SADDR}, s{S_DELTA}, v{V_SADDR}")
    A(f"    s_add_u32 s{S_PTR}, s{S_PTR}, 64")
    if nxt:
        if dma == "part":
            wait_vm_dyn(A, S_K, 0, 1, 7)
        else:
            A(f"    s_waitcnt vmcnt({8 if dma else 0})")
        s_prefetch(A, between=lambda i: mf())
    while mf():
        pass
    A(f"    v_add_u32 v{V_TE}, s{S_DELTA}, v{V_TE}")
    A(f"    v_add_u32 v{V_TO}, s{S_DELTA}, v{V_TO}")
    A(f"    s_add_u32 s{S_M0}, s{S_M0}, s{S_DELTA}")
    A(f"    s_sub_u32 s{S_DELTA}, 0, s{S_DELTA}")
    A(f"    s_add_u32 s{S_P}, s{S_P}, 1")
    if agg:
        A(f"    s_mov_b32 s{S_FIRST}, 0")


def finalize(A, stage, after_pair=None, fs=False):
    A(f"    v_add_f32 v{V_X}, 0x3089705f, v{V_DEN}        ; + 1e-9")
    A(f"    v_rcp_f32 v{V_X}, v{V_X}")
    A("    s_nop 0")
    A(f"    v_mul_f32 v{V_X}, 0x3e800000, v{V_X}")
    if fs: fstamp(A, 1)
    for u in range(8):
        if fs and u == 4: fstamp(A, 2)
        sq = stage + 4 * (u & 3)
        for half in range(2):
            a = V_ACC + 4 * (2 * u + half)
            if opt.nopk:
                for r in range(4):
                    A(f"    v_mul_f32 v{a+r}, v{V_X}, v{a+r}")
            else:
                A(f"    v_pk_mul_f32 v[{a}:{a+1}], v[{a}:{a+1}], v[{V_X}:{V_X+1}] op_sel_hi:[1,0]")
                A(f"    v_pk_mul_f32 v[{a+2}:{a+3}], v[{a+2}:{a+3}], v[{V_X}:{V_X+1}] op_sel_hi:[1,0]")
        for half in range(2):
            a = V_ACC + 4 * (2 * u + half)
            A(f"    v_cvt_pk_bf16_f32 v{sq+2*half}, v{a}, v{a+1}")
            A(f"    v_cvt_pk_bf16_f32 v{sq+2*half+1}, v{a+2}, v{a+3}")
        ad = V_FE if u % 2 == 0 else V_FO
        A(f"    ds_write_b128 v{ad}, v[{sq}:{sq+3}] offset:{64*u}")
        if after_pair:
            after_pair(u)


def fin_addr(A, vc, vg):
    A(f"    v_and_b32 v{V_T1}, 3, v{vc}                ; h")
    A(f"    v_lshl_add_u32 v{V_FE}, v{V_T1}, 9, v{V_FE}")
    A(f"    v_and_b32 v{V_T2}, 1, v{V_T1}")
    A(f"    v_xor_b32 v{V_T2}, v{V_T2}, v{vg}")
    A(f"    v_lshl_add_u32 v{V_FE}, v{V_T2}, 4, v{V_FE}")
    A(f"    v_lshrrev_b32 v{V_T1}, 1, v{V_T1}")
    A(f"    v_lshlrev_b32 v{V_T1}, 6, v{V_T1}          ; 64*h1")
    A(f"    v_sub_u32 v{V_FO}, v{V_FE}, v{V_T1}")
    A(f"    v_add_u32 v{V_FE}, v{V_FE}, v{V_T1}")


def zero_acc(A):
    for i in range(64):
        A(f"    v_mov_b32 v{V_ACC+i}, 0")
    for i in range(4):
        A(f"    v_mov_b32 v{V_DEN+i}, 0")


def wslot(ks):
    k = ks & 15
    if k < 3:
        return 232 + 8 * k
    if k < 15:
        return 64 + 8 * (k - 3)
    return 224


def w_load(A, ks, dst, voff=V_WOFF):
    A(f"    s_add_u32 s{S_T0}, s{S_WF}, {ks*2048}")
    A(f"    buffer_load_dwordx4 v[{dst}:{dst+3}], v{voff}, s[{S_WS}:{S_WS+3}], s{S_T0} offen")
    A(f"    buffer_load_dwordx4 v[{dst+4}:{dst+7}], v{voff}, s[{S_WS}:{S_WS+3}], s{S_T0} offen offset:1024")


def emit_finb(A, after_loop=True):
    l = uid("FB")
    A(f"    s_cmp_lg_u32 s{S_NB}, 0")
    A(f"    s_cbranch_scc1 {l}")
    zero_acc(A)
    A.label(l)
    A(f"    v_add_f32 v{V_X}, 0x3089705f, v{V_DEN}        ; + 1e-9")
    A(f"    v_rcp_f32 v{V_X}, v{V_X}")
    for j, m in ((1, S_J1), (2, S_J2), (3, S_J3)):
        for i in range(16):
            A(f"    v_cndmask_b32 v{V_ACC+i}, v{V_ACC+i}, v{V_ACC+16*j+i}, s[{m}:{m+1}]")
            if j == 1 and i == 0:
                A(f"    v_mul_f32 v{V_X}, 0x3e800000, v{V_X}")
    if after_loop: fstamp(A, 1)
    for i in range(8):
        a = V_ACC + 2 * i
        A(f"    v_pk_mul_f32 v[{a}:{a+1}], v[{a}:{a+1}], v[{V_X}:{V_X+1}] op_sel_hi:[1,0]")
    for i in range(8):
        a = V_ACC + 2 * i
        A(f"    v_cvt_pk_bf16_f32 v{V_SCR+i}, v{a}, v{a+1}")
    if after_loop: fstamp(A, 2)
    A(f"    ds_write_b128 v{V_FE}, v[{V_SCR}:{V_SCR+3}]")
    A(f"    ds_write_b128 v{V_FO}, v[{V_SCR+4}:{V_SCR+7}] offset:64")
    if after_loop: fstamp(A, 3)
    A(f"    v_mov_b32 v{V_TGT}, v{V_TGTA}")
    for i in range(4):
        A(f"    v_mov_b32 v{V_TQ+i}, v{V_TA}")
    lane_cg(A, V_T3, V_X + 2, V_X + 3)
    A(f"    s_and_b32 s{S_T0}, s{S_W}, 1")
    A(f"    s_lshl_b32 s{S_T0}, s{S_T0}, 7")
    A(f"    s_add_u32 s{S_T0}, s{S_T0}, s{S_REG}")
    A(f"    v_lshrrev_b32 v{V_FE}, 2, v{V_X+2}")
    A(f"    v_mul_u32_u24 v{V_FE}, {RROW}, v{V_FE}")
    A(f"    v_add_u32 v{V_FE}, s{S_T0}, v{V_FE}")
    fin_addr(A, V_X + 2, V_X + 3)
    A(f"    s_mov_b32 s{S_FIRST}, 1")
    if after_loop: fstamp(A, 4)
    A("    s_waitcnt lgkmcnt(0)")
    if after_loop: fstamp(A, 5)


def gen_main(A):
    K = "gather_scatter__graph_attention_gat__graph_kernel"
    VC = 36; VG = 37; VL = 38
    A(f".globl {K}\n.p2align 8\n.type {K},@function\n{K}:")
    A(f"    s_cmp_ge_u32 s2, {NT}")
    A("    s_cbranch_scc1 MAIN_END")
    stamp(A, 0)
    A("    s_load_dwordx2 s[60:61], s[0:1], 64      ; ws")
    A("    s_load_dwordx2 s[52:53], s[0:1], 0       ; x")
    A("    s_load_dwordx2 s[54:55], s[0:1], 48      ; out")
    A("    s_load_dwordx4 s[56:59], s[0:1], 8")
    A(f"    v_and_b32 v{VL}, 63, v0")
    A(f"    v_lshrrev_b32 v{V_T1}, 6, v0")
    A(f"    v_and_b32 v{VC}, 15, v{VL}")
    A(f"    v_readfirstlane_b32 s{S_W}, v{V_T1}")
    A(f"    v_lshrrev_b32 v{VG}, 4, v{VL}")
    A(f"    v_lshlrev_b32 v20, 4, v0                 ; tid*16")
    A(f"    v_lshlrev_b32 v{V_WOFF}, 4, v{VL}        ; lane*16")
    A(f"    v_lshlrev_b32 v21, 9, v{VC}")
    A(f"    v_lshl_add_u32 v21, v{VG}, 4, v21")
    A(f"    s_mul_i32 s{S_REG}, s{S_W}, {REGSZ}")
    A(f"    s_and_b32 s{S_WF}, s2, {opt.copies-1}")
    A(f"    s_lshl_b32 s{S_WF}, s{S_WF}, 19")
    A(f"    s_lshl_b32 s{S_T0}, s{S_W}, 16")
    A(f"    s_add_u32 s{S_WF}, s{S_WF}, s{S_T0}")
    A(f"    s_add_u32 s{S_WF}, s{S_WF}, {WS_WF}")
    A("    s_waitcnt lgkmcnt(0)")
    stamp(A, 1)
    if opt.stamps:
        A(f"    s_mov_b32 s100, s{S_W}")
    srd(A, S_WS, 60, ws_bytes())
    A(f"    s_lshl_b32 s{S_T0}, s2, 13")
    A(f"    buffer_load_dwordx4 v[16:19], v20, s[{S_WS}:{S_WS+3}], s{S_T0} offen")
    srd(A, S_X, 52, N * 512)
    A(f"    v_and_b32 v{V_T1}, 31, v{VL}")
    A(f"    v_lshlrev_b32 v{V_T1}, 4, v{V_T1}")
    A(f"    v_lshrrev_b32 v{V_T2}, 5, v{VL}")
    A(f"    v_lshlrev_b32 v{V_H4}, 2, v{V_T2}")
    A(f"    v_lshlrev_b32 v21, 9, v{V_T2}            ; hi*512")
    A(f"    v_cmp_eq_u32 vcc, 0, v{V_T2}")
    A(f"    v_lshlrev_b32 v{V_T2}, 5, v{V_T2}")
    A(f"    v_xor_b32 v{V_DMAC}, v{V_T1}, v{V_T2}    ; DMAC = ((l&31)*16) ^ ((l>>5)*32)")
    A(f"    v_add_u32 v21, v21, v{V_DMAC}")
    A(f"    v_mov_b32 v22, 0x7ffffe00")
    A(f"    v_cndmask_b32 v22, v22, v{V_DMAC}, vcc")
    A(f"    s_mul_i32 s{S_T0}, s2, {TILE*512}")
    A(f"    s_lshl_b32 s{S_T1}, s{S_W}, 11            ; 4w rows")
    A(f"    s_add_u32 s{S_T1}, s{S_T1}, s{S_T0}")
    A(f"    s_add_u32 m0, s{S_REG}, {UNIT}")
    A(f"    s_add_u32 s{S_T2}, s{S_T1}, 1024")
    A(f"    buffer_load_dwordx4 v21, s[{S_X}:{S_X+3}], s{S_T1} offen lds")
    A(f"    s_add_u32 m0, s{S_REG}, {UNIT+PAIR}")
    A(f"    s_lshl_b32 s{S_T1}, s{S_W}, 9")
    A(f"    buffer_load_dwordx4 v21, s[{S_X}:{S_X+3}], s{S_T2} offen lds")
    A(f"    s_add_u32 m0, s{S_REG}, {UNIT+2*PAIR}")
    A(f"    s_add_u32 s{S_T1}, s{S_T1}, s{S_T0}")
    A(f"    s_add_u32 s{S_T1}, s{S_T1}, {32*512}")
    A(f"    buffer_load_dwordx4 v22, s[{S_X}:{S_X+3}], s{S_T1} offen lds")
    for i in range(4):
        A(f"    s_add_u32 m0, s{S_REG}, {UNIT+(3+i)*PAIR}")
        A(f"    s_mov_b32 s{S_T0}, {WS_V + 1024*i}")
        A(f"    buffer_load_dwordx4 v{V_WOFF}, s[{S_WS}:{S_WS+3}], s{S_T0} offen lds")
    NW0 = 0
    srd(A, S_OUT, 54, N * 512)
    srd(A, S_SRC, 56, E * 4)
    srd(A, S_DST, 58, E * 4)
    A(f"    v_mov_b32 v28, {hex(SENT_LIST)}")
    A(f"    v_mov_b32 v29, v28\n    v_mov_b32 v30, v28\n    v_mov_b32 v31, v28")
    A(f"    v_add_u32 v22, {LISTS}, v20")
    A(f"    v_cmp_gt_u32 vcc, 352, v0")
    A(f"    v_mov_b32 v32, 0")
    A(f"    v_lshlrev_b32 v23, 2, v0")
    A(f"    v_add_u32 v23, {CNT}, v23")
    A(f"    s_and_saveexec_b64 s[{S_EX}:{S_EX+1}], vcc")
    A(f"    s_cbranch_execz MAIN_NOCNT")
    A(f"    ds_write_b128 v22, v[28:31]")
    A(f"    v_cmp_gt_u32 vcc, 32, v0")
    A(f"    s_and_b64 exec, exec, vcc")
    A(f"    s_cbranch_execz MAIN_NOCNT")
    A(f"    ds_write_b32 v23, v32")
    A.label("MAIN_NOCNT")
    A(f"    s_mov_b64 exec, s[{S_EX}:{S_EX+1}]")
    T1, T2, T3 = V_T1, V_T2, V_T3
    A(f"    v_lshlrev_b32 v{V_G16}, 4, v{VG}")
    A(f"    v_lshrrev_b32 v{T1}, 1, v{VC}")
    A(f"    v_mul_u32_u24 v{V_SADDR}, {PAIR}, v{T1}")
    A(f"    v_and_b32 v{T1}, 1, v{VC}")
    A(f"    v_lshl_add_u32 v{V_SADDR}, v{T1}, 9, v{V_SADDR}")
    A(f"    v_lshrrev_b32 v{T2}, 1, v{VG}")
    A(f"    v_xor_b32 v{T1}, v{T1}, v{T2}")
    A(f"    v_lshl_add_u32 v{V_SADDR}, v{T1}, 5, v{V_SADDR}")
    A(f"    v_and_b32 v{T1}, 1, v{VG}")
    A(f"    v_lshl_add_u32 v{V_SADDR}, v{T1}, 4, v{V_SADDR}")
    A(f"    v_add_u32 v{V_SADDR}, s{S_REG}, v{V_SADDR}")
    A(f"    v_lshrrev_b32 v{T1}, 2, v{VC}")
    A(f"    v_lshl_add_u32 v{T1}, v{VG}, 2, v{T1}      ; row")
    A(f"    v_lshrrev_b32 v{T2}, 1, v{T1}")
    A(f"    v_mul_u32_u24 v{V_TE}, {PAIR}, v{T2}")
    A(f"    v_and_b32 v{T1}, 1, v{T1}                  ; hi")
    A(f"    v_lshl_add_u32 v{V_TE}, v{T1}, 9, v{V_TE}")
    A(f"    v_and_b32 v{T2}, 3, v{VC}")
    A(f"    v_lshl_add_u32 v{V_TE}, v{T2}, 3, v{V_TE}")
    A(f"    v_add_u32 v{V_TE}, s{S_REG}, v{V_TE}")
    A(f"    v_lshlrev_b32 v{T1}, 5, v{T1}              ; 32*hi")
    A(f"    v_sub_u32 v{V_TO}, v{V_TE}, v{T1}")
    A(f"    v_add_u32 v{V_TE}, v{V_TE}, v{T1}")
    for i in range(4):
        A(f"    v_mov_b32 v{V_ONES+i}, 0x3f803f80")
    A(f"    s_mov_b32 s{S_HI}, 0xfffffe00")
    A(f"    s_mov_b32 s{S_C02}, 0x3e4ccccd")
    A(f"    s_mul_i32 s{S_ABASE}, s{S_W}, {LSZ}")
    A(f"    s_add_u32 s{S_ABASE}, s{S_ABASE}, {LISTS+192}")
    A(f"    s_mul_i32 s{S_T0}, s{S_W}, {RROW}")
    A(f"    s_add_u32 s{S_T0}, s{S_T0}, {AGG1}")
    A(f"    v_lshrrev_b32 v{V_FE}, 2, v{VC}")
    A(f"    v_lshlrev_b32 v{V_FE}, 7, v{V_FE}          ; 128*j")
    A(f"    v_add_u32 v{V_FE}, s{S_T0}, v{V_FE}")
    fin_addr(A, VC, VG)
    A(f"    v_bfe_u32 v{T1}, v{VC}, 1, 1")
    A(f"    v_mul_u32_u24 v39, {PAIR}, v{T1}")
    A(f"    v_and_b32 v{T1}, 1, v{VC}")
    A(f"    v_lshl_add_u32 v39, v{T1}, 9, v39")
    A(f"    v_lshl_add_u32 v39, v{VG}, 4, v39")
    A(f"    s_add_u32 s{S_T0}, s{S_REG}, {UNIT+3*PAIR}")
    A(f"    v_add_u32 v39, s{S_T0}, v39")
    A(f"    v_lshrrev_b32 v{T1}, 2, v{VC}")
    A(f"    s_lshl_b32 s{S_T0}, s{S_W}, 2")
    A(f"    v_add_u32 v{V_TGTA}, s{S_T0}, v{T1}")
    A(f"    s_add_u32 s{S_T0}, s{S_W}, 32")
    A(f"    v_mov_b32 v{V_TGT}, s{S_T0}")
    A("    s_waitcnt lgkmcnt(0)")
    A("    s_barrier")
    if opt.xt:
        A(f"    s_lshr_b32 s{S_T0}, s2, 3")
        A(f"    s_lshl_b32 s{S_T0}, s{S_T0}, 9")
        A(f"    v_add_u32 v23, s{S_T0}, v0")
        A(f"    v_lshlrev_b32 v23, 7, v23")
        if opt.xhalf:
            A(f"    s_cmp_ge_u32 s{S_W}, 4")
            A(f"    s_cbranch_scc0 MAIN_XT")
            A(f"    v_mov_b32 v23, 0x7ffffe00")
            A.label("MAIN_XT")
        for r in range(opt.xt):
            A(f"    s_mov_b32 s{S_T0}, {opt.xoff + r*16384*128}")
            A(f"    buffer_load_dword v255, v23, s[{S_X}:{S_X+3}], s{S_T0} offen")
    A(f"    s_waitcnt vmcnt({7+opt.xt})")
    stamp(A, 2)
    EN = 16
    NN = 20; WV = 24; RK = 28; BS = 32
    A(f"    s_mov_b64 s[62:63], 0")
    for i in range(4):
        A(f"    v_and_b32 v{NN+i}, 63, v{EN+i}")
        A(f"    v_cmp_eq_u32 vcc, -2, v{EN+i}")
        A(f"    s_or_b64 s[62:63], s[62:63], vcc")
        A(f"    v_cmp_gt_u32 s[{64+2*i}:{65+2*i}], 40, v{NN+i}       ; valid")
        A(f"    v_cmp_le_u32 s[{72+2*i}:{73+2*i}], 32, v{NN+i}       ; group B")
        A(f"    v_lshrrev_b32 v{T1}, 2, v{NN+i}")
        A(f"    v_subrev_u32 v{T2}, 32, v{NN+i}")
        A(f"    v_subrev_u32 v{T3}, 24, v{NN+i}")
        A(f"    v_cndmask_b32 v{WV+i}, v{T1}, v{T2}, s[{72+2*i}:{73+2*i}]")
        A(f"    v_cndmask_b32 v{T1}, v{T1}, v{T3}, s[{72+2*i}:{73+2*i}]")
        A(f"    v_lshlrev_b32 v{BS+i}, 2, v{T1}")
        A(f"    v_add_u32 v{BS+i}, {CNT}, v{BS+i}")
    A(f"    v_mov_b32 v{V_TMP}, 1")
    for i in range(4):
        A(f"    s_mov_b64 exec, s[{64+2*i}:{65+2*i}]")
        A(f"    ds_add_rtn_u32 v{RK+i}, v{BS+i}, v{V_TMP}")
    A("    s_mov_b64 exec, -1")
    def v_reads():
        for kk in range(8):
            A(f"    ds_read_b128 v[{V_ACC+4*kk}:{V_ACC+4*kk+3}], v39 offset:{2*PAIR+64*kk}")
        for kk in range(8):
            A(f"    ds_read_b128 v[{V_V+4*kk}:{V_V+4*kk+3}], v39 offset:{64*kk}")
    A(f"    s_mov_b32 s{S_T0}, {LSZ}")
    A(f"    v_mov_b32 v{T1}, {LISTS+192}")
    for i in range(4):
        A(f"    v_mad_u32_u24 v{BS+i}, v{WV+i}, s{S_T0}, v{T1}")
    for i in range(4):
        A(f"    s_waitcnt lgkmcnt({3-i})")
        A(f"    v_lshlrev_b32 v{T1}, 2, v{RK+i}")
        A(f"    v_sub_u32 v{T2}, -4, v{T1}")
        A(f"    v_mov_b32 v{T3}, {CAPA}")
        A(f"    v_cndmask_b32 v{T1}, v{T1}, v{T2}, s[{72+2*i}:{73+2*i}]")
        A(f"    v_cndmask_b32 v{T3}, v{T3}, {CAPB}, s[{72+2*i}:{73+2*i}]")
        A(f"    v_add_u32 v{BS+i}, v{BS+i}, v{T1}")
        A(f"    v_cmp_lt_u32 vcc, v{RK+i}, v{T3}")
        A(f"    s_andn2_b64 s[80:81], s[{64+2*i}:{65+2*i}], vcc")
        A(f"    s_or_b64 s[62:63], s[62:63], s[80:81]")
        A(f"    s_and_b64 exec, s[{64+2*i}:{65+2*i}], vcc")
        A(f"    ds_write_b32 v{BS+i}, v{EN+i}")
        A(f"    s_mov_b64 exec, -1")
    A(f"    s_cmp_eq_u64 s[62:63], 0")
    A(f"    s_cbranch_scc1 MAIN_NOOVF")
    A(f"    v_mov_b32 v{T1}, {OVF}")
    A(f"    ds_write_b32 v{T1}, v{V_TMP}")
    A.label("MAIN_NOOVF")
    A("    s_waitcnt lgkmcnt(0)")
    A("    s_barrier")
    stamp(A, 3)
    tstamp(A, 0)
    A(f"    s_lshl_b32 s{S_T0}, s{S_W}, 2")
    A(f"    s_add_u32 s{S_T0}, s{S_T0}, {CNT}")
    A(f"    v_mov_b32 v16, s{S_T0}")
    A(f"    v_mov_b32 v17, {OVF}")
    A(f"    ds_read_b32 v18, v16                     ; cntA")
    A(f"    ds_read_b32 v19, v16 offset:32           ; cntB")
    A(f"    ds_read_b32 v20, v17")
    A(f"    v_lshrrev_b32 v{T1}, 2, v{VC}")
    A(f"    v_cmp_eq_u32 s[{S_J1}:{S_J1+1}], 1, v{T1}")
    A(f"    v_cmp_eq_u32 s[{S_J2}:{S_J2+1}], 2, v{T1}")
    A(f"    v_cmp_eq_u32 s[{S_J3}:{S_J3+1}], 3, v{T1}")
    A("    s_waitcnt lgkmcnt(0)")
    A(f"    v_readfirstlane_b32 s{S_NA}, v18")
    A(f"    v_readfirstlane_b32 s{S_NB}, v19")
    A(f"    v_readfirstlane_b32 s{S_T0}, v20")
    A(f"    s_mov_b32 s{S_M0}, s{S_REG}")
    A(f"    s_mov_b32 s{S_DELTA}, {UNIT}")
    A(f"    s_mov_b32 s{S_P}, 0")
    A(f"    s_mov_b32 s{S_FIRST}, 1")
    A(f"    s_cmp_lg_u32 s{S_T0}, 0")
    A("    s_cbranch_scc1 MAIN_SLOW")
    A(f"    s_sub_u32 s{S_KA}, s{S_NA}, 1")
    A(f"    s_and_b32 s{S_KA}, s{S_KA}, 15")
    A(f"    s_lshr_b32 s{S_KA}, s{S_KA}, 1")
    A(f"    s_add_u32 s{S_KA}, s{S_KA}, 1")
    A(f"    s_sub_u32 s{S_KB}, s{S_NB}, 1")
    A(f"    s_and_b32 s{S_KB}, s{S_KB}, 15")
    A(f"    s_lshr_b32 s{S_KB}, s{S_KB}, 1")
    A(f"    s_add_u32 s{S_KB}, s{S_KB}, 1")
    A(f"    s_cmp_eq_u32 s{S_NA}, 0")
    A(f"    s_cselect_b32 s{S_KA}, 8, s{S_KA}")
    A(f"    s_add_u32 s{S_NA}, s{S_NA}, 15")
    A(f"    s_lshr_b32 s{S_NA}, s{S_NA}, 4")
    A(f"    s_add_u32 s{S_NB}, s{S_NB}, 15")
    A(f"    s_lshr_b32 s{S_NB}, s{S_NB}, 4")
    A(f"    s_add_u32 s{S_NU}, s{S_NA}, s{S_NB}")
    A(f"    s_lshl_b32 s{S_T0}, s{S_NB}, 6")
    A(f"    s_sub_u32 s{S_PTR}, s{S_ABASE}, s{S_T0}")
    def emit_t(A):
        for kk in range(8):
            A(f"    ds_read_b128 v[{V_SCR+4*kk}:{V_SCR+4*kk+3}], v{V_SADDR} offset:{UNIT+64*kk}")
        A(f"    v_lshlrev_b32 v{T2}, 2, v{VC}")
        A(f"    v_and_b32 v{T3}, 3, v{VC}")
        A(f"    v_add_u32 v{T3}, 16, v{T3}")
        A(f"    v_lshlrev_b32 v{T3}, 2, v{T3}              ; lane 16 + h")
        for kk in range(8):
            A(f"    s_waitcnt lgkmcnt({7-kk})")
            c = "0" if kk == 0 else f"v[{V_S}:{V_S+3}]"
            A(f"    v_mfma_f32_16x16x32_bf16 v[{V_S}:{V_S+3}], v[{V_SCR+4*kk}:{V_SCR+4*kk+3}], v[{V_ACC+4*kk}:{V_ACC+4*kk+3}], {c}")
        A("    s_nop 7")
        A(f"    v_cndmask_b32 v{V_TA}, v{V_S}, v{V_S+1}, s[{S_J1}:{S_J1+1}]")
        A(f"    v_cndmask_b32 v{V_TA}, v{V_TA}, v{V_S+2}, s[{S_J2}:{S_J2+1}]")
        A(f"    v_cndmask_b32 v{V_TA}, v{V_TA}, v{V_S+3}, s[{S_J3}:{S_J3+1}]")
        A(f"    ds_bpermute_b32 v{V_TQ}, v{T3}, v{V_S}")
        A(f"    ds_bpermute_b32 v{V_TA}, v{T2}, v{V_TA}")
        A("    s_waitcnt lgkmcnt(0)")
        for i in range(1, 4):
            A(f"    v_mov_b32 v{V_TQ+i}, v{V_TQ}")

    def zero_prep(A, buf):
        if opt.skip:
            for i in range(4):
                A(f"    v_mov_b32 v{V_S+i}, 0")
            A(f"    v_mbcnt_lo_u32_b32 v{V_T2}, -1, 0")
            A(f"    v_mbcnt_hi_u32_b32 v{V_T2}, -1, v{V_T2}")
            A(f"    v_lshlrev_b32 v{V_T2}, 4, v{V_T2}")
            A(f"    s_add_u32 s{S_T1}, s{S_REG}, {UNIT*buf}")
            A(f"    v_add_u32 v{V_T2}, s{S_T1}, v{V_T2}")

    tstamp(A, 1)
    if opt.prio == 2:
        A("    s_setprio 3")
    A(f"    s_mov_b32 s{S_K}, 0")
    A(f"    s_cmp_eq_u32 s{S_NU}, 0")
    A("    s_cbranch_scc1 MAIN_PRO_T")
    A(f"    v_add_u32 v{T1}, s{S_PTR}, v{V_H4}")
    dma_entry_reads(A, T1)
    zero_prep(A, 0)
    A(f"    s_mov_b32 s{S_T1}, 0")
    if opt.skip:
        unit_k(A, S_T1)
    A("    s_waitcnt lgkmcnt(0)")
    if opt.skip:
        A(f"    s_cmp_eq_u32 s{S_NB}, 0")
        A("    s_cbranch_scc1 MAIN_U0A")
        A(f"    s_mov_b32 s{S_K}, s{S_KB}")
        dma_partial(A, S_K, True, rev=True)
        A("    s_branch MAIN_PRO_T")
        A.label("MAIN_U0A")
        dma_partial(A, S_K, True)
    else:
        A(f"    s_mov_b32 s{S_K}, 8")
        for q in range(8):
            dma_one(A, q)
    A.label("MAIN_PRO_T")
    tstamp(A, 2)
    wait_vm_dyn(A, S_K, opt.xt, 0, 8)
    tstamp(A, 3)
    v_reads()
    emit_t(A)
    tstamp(A, 4)
    A(f"    s_mov_b32 s{S_K}, 0")
    A(f"    s_cmp_le_u32 s{S_NU}, 1")
    A("    s_cbranch_scc1 MAIN_PRO_DONE")
    A(f"    v_add_u32 v{T1}, s{S_PTR}, v{V_H4}")
    A(f"    v_add_u32 v{T1}, 64, v{T1}")
    dma_entry_reads(A, T1)
    zero_prep(A, 1)
    A(f"    s_add_u32 s{S_M0}, s{S_REG}, {UNIT}")
    A(f"    s_mov_b32 s{S_T1}, 1")
    if opt.skip:
        unit_k(A, S_T1)
    else:
        A(f"    s_mov_b32 s{S_K}, 8")
    A("    s_waitcnt lgkmcnt(0)")
    if opt.skip:
        dma_partial(A, S_K, True)
    else:
        for q in range(8):
            dma_one(A, q)
    A(f"    s_mov_b32 s{S_M0}, s{S_REG}")
    A.label("MAIN_PRO_DONE")
    stamp(A, 4)
    tstamp(A, 5)
    if opt.prio == 1:
        A(f"    s_setprio 1")
    for ks in range(opt.w3):
        w_load(A, ks, wslot(ks))
    WX = 2 * opt.w3
    A(f"    s_cmp_eq_u32 s{S_NU}, 0")
    A("    s_cbranch_scc1 MAIN_LOOP")
    tstamp(A, 6)
    wait_vm_dyn(A, S_K, WX, 0, 8)
    tstamp(A, 7)
    A("    s_waitcnt lgkmcnt(0)")
    s_prefetch(A)
    if opt.stamps and opt.ustamps:
        A("    s_memtime s[98:99]")
    A.label("MAIN_LOOP")
    A(f"    s_cmp_eq_u32 s{S_P}, s{S_NB}")
    A("    s_cbranch_scc1 MAIN_FINB")
    A.label("MAIN_LOOP2")
    A(f"    s_cmp_ge_u32 s{S_P}, s{S_NU}")
    A("    s_cbranch_scc1 MAIN_DONE")

    def dispatch(tag, agg, firsts, minleft, dest, par):
        for first in firsts:
            if len(firsts) > 1:
                if first == firsts[0]:
                    A(f"    s_cmp_eq_u32 s{S_FIRST}, 0")
                    A(f"    s_cbranch_scc0 {tag}_F1")
                else:
                    A.label(f"{tag}_F1")
            A(f"    s_cmp_ge_u32 s{S_T0}, 3")
            A(f"    s_cbranch_scc0 {tag}_{first}_R2")
            if opt.skip:
                A(f"    s_cmp_eq_u32 s{S_K}, 8")
                A(f"    s_cbranch_scc0 {tag}_{first}_PART")
            unit_tail(A, "full", True, agg, first, par)
            A(f"    s_branch {dest}")
            if opt.skip:
                A.label(f"{tag}_{first}_PART")
                unit_tail(A, "part", True, agg, first, par)
                A(f"    s_branch {dest}")
            A.label(f"{tag}_{first}_R2")
            if minleft <= 1:
                A(f"    s_cmp_eq_u32 s{S_T0}, 2")
                A(f"    s_cbranch_scc0 {tag}_{first}_R1")
            unit_tail(A, None, True, agg, first, par)
            A(f"    s_branch {dest}")
            if minleft <= 1:
                A.label(f"{tag}_{first}_R1")
                unit_tail(A, None, False, agg, first, par)
                A(f"    s_branch {dest}")

    def set_prio():
        if opt.prio == 2:
            l1 = uid("PR"); l2 = uid("PR"); le = uid("PR")
            A(f"    s_cmp_ge_u32 s{S_P}, {opt.pa}")
            A(f"    s_cbranch_scc1 {l1}")
            A("    s_setprio 3")
            A(f"    s_branch {le}")
            A.label(l1)
            A(f"    s_cmp_ge_u32 s{S_P}, {opt.pb}")
            A(f"    s_cbranch_scc1 {l2}")
            A("    s_setprio 2")
            A(f"    s_branch {le}")
            A.label(l2)
            A("    s_setprio 1")
            A.label(le)

    def k_next():
        set_prio()
        if opt.skip:
            A(f"    s_add_u32 s{S_T1}, s{S_P}, 2")
            unit_k(A, S_T1)

    pstamp(A)
    ustamp(A, opt.up, 0); ustamp(A, opt.up + 1, 4)
    A(f"    s_add_u32 s{S_P2}, s{S_PTR}, 128")
    k_next()
    unit_front(A, 0)
    ustamp(A, opt.up, 1); ustamp(A, opt.up + 1, 5)
    A(f"    s_sub_u32 s{S_T0}, s{S_NU}, s{S_P}")
    A(f"    s_add_u32 s{S_T1}, s{S_P}, 1")
    A(f"    s_cmp_eq_u32 s{S_T1}, s{S_NB}")
    A("    s_cbranch_scc1 TL_LAST")
    A(f"    s_cmp_eq_u32 s{S_T1}, s{S_NU}")
    A("    s_cbranch_scc1 TL_LAST")
    dispatch("TE", None, [0], 2, "MAIN_ODD", 0)
    A.label("TL_LAST")
    dispatch("TL", "k16", [0, 1], 1, "MAIN_NEXT", 0)
    A.label("MAIN_ODD")
    pstamp(A)
    ustamp(A, opt.up + 1, 2); ustamp(A, opt.up + 2, 6)
    ustamp(A, opt.up, 0); ustamp(A, opt.up + 1, 4)
    A(f"    s_add_u32 s{S_P2}, s{S_PTR}, 128")
    k_next()
    unit_front(A, 1)
    ustamp(A, opt.up, 1); ustamp(A, opt.up + 1, 5)
    A(f"    s_sub_u32 s{S_T0}, s{S_NU}, s{S_P}")
    dispatch("TO", "k32", [0, 1], 1, "MAIN_NEXT", 1)
    A.label("MAIN_NEXT")
    ustamp(A, opt.up + 1, 2); ustamp(A, opt.up + 2, 6)
    A("    s_branch MAIN_LOOP")

    A.label("MAIN_FINB")
    fstamp(A, 0)
    A("    s_nop 3")
    emit_finb(A)
    A("    s_branch MAIN_LOOP2")

    A.label("MAIN_DONE")
    if opt.prio:
        A("    s_setprio 0")
    stamp(A, 5)
    if opt.stamps and opt.pstamps:
        A("    s_memtime s[98:99]")
    A(f"    s_cmp_lg_u32 s{S_NA}, 0")
    A("    s_cbranch_scc1 MAIN_DONE2")
    zero_acc(A)
    A.label("MAIN_DONE2")
    VC2 = V_T2; VG2 = V_T3
    lane_cg(A, V_T1, VC2, VG2)
    A(f"    v_lshrrev_b32 v{V_TMP}, 2, v{VC2}                 ; w'")
    A(f"    v_mul_u32_u24 v1, {REGSZ}, v{V_TMP}")
    A(f"    v_and_b32 v{V_TMP}, 1, v{V_TMP}")
    A(f"    v_lshl_add_u32 v1, v{V_TMP}, 7, v1")
    A(f"    v_and_b32 v{V_TMP}, 3, v{VC2}")
    A(f"    v_mul_u32_u24 v{V_TMP}, {RROW}, v{V_TMP}")
    A(f"    v_add_u32 v1, v1, v{V_TMP}")
    A(f"    v_and_b32 v{V_TMP}, 7, v{VC2}")
    A(f"    v_mul_u32_u24 v5, {RROW}, v{V_TMP}")
    A(f"    v_add_u32 v5, {AGG1}, v5")
    A(f"    v_lshlrev_b32 v{V_TMP}, 4, v{VG2}                 ; g*16")
    A(f"    v_xor_b32 v{V_T1}, 16, v{V_TMP}                   ; (g^1)*16")
    A(f"    v_add_u32 v2, v1, v{V_T1}")
    A(f"    v_add_u32 v1, v1, v{V_TMP}")
    A(f"    v_add_u32 v3, {4*REGSZ}, v1")
    A(f"    v_add_u32 v4, {4*REGSZ}, v2")
    A(f"    v_add_u32 v6, v5, v{V_T1}")
    A(f"    v_add_u32 v5, v5, v{V_TMP}")
    A(f"    s_mul_i32 s{S_T0}, s2, {TILE*512}")
    A(f"    s_lshl_b32 s{S_T1}, s{S_W}, 6")
    A(f"    s_add_u32 s{S_T0}, s{S_T0}, s{S_T1}")
    A(f"    v_lshlrev_b32 v8, 9, v{VC2}")
    A(f"    v_lshl_add_u32 v8, v{VG2}, 4, v8")
    A(f"    v_add_u32 v8, s{S_T0}, v8")
    A(f"    v_add_u32 v9, {16*512}, v8")
    A(f"    v_add_u32 v10, {32*512}, v8")
    A(f"    v_mov_b32 v{V_TMP}, 0x7ffffff0")
    A(f"    v_cmp_gt_u32 vcc, 8, v{VC2}")
    A(f"    v_mov_b32 v7, v{V_WOFF}")
    A(f"    s_nop 0")
    A(f"    s_mov_b64 s[{S_EX}:{S_EX+1}], vcc")
    A(f"    v_cndmask_b32 v10, v{V_TMP}, v10, vcc")
    NPRE = opt.wpre
    W3 = opt.w3
    def pre(u):
        for k in range((NPRE * u) // 8, (NPRE * (u + 1)) // 8):
            w_load(A, W3 + k, wslot(W3 + k), 7)
    finalize(A, 12, after_pair=pre)
    A("    s_waitcnt lgkmcnt(0)")
    A("    s_barrier")
    stamp(A, 6)
    NB = opt.bring
    BR = V_ACC
    def b_reads(ks, zero2=False):
        h = ks >> 3; u = ks & 7; h0 = h & 1; h1 = h >> 1
        imm = h * 512 + ((u ^ h1) * 64)
        st = BR + 12 * (ks % NB)
        for T in range(3):
            if T == 2 and opt.zero2:
                A(f"    s_mov_b64 exec, s[{S_EX}:{S_EX+1}]")
            A(f"    ds_read_b128 v[{st+4*T}:{st+4*T+3}], v{1+2*T+h0} offset:{imm}")
            if T == 2 and opt.zero2:
                A(f"    s_mov_b64 exec, -1")
    if opt.zero2:
        for st_ in range(NB):
            for i in range(4):
                A(f"    v_mov_b32 v{BR+12*st_+8+i}, 0")
    for ks in range(NB - 1):
        b_reads(ks)
    q = [("w", k) for k in range(W3 + NPRE) for _ in range(2)]
    def wait_for(tag):
        idx = max(i for i, t in enumerate(q) if t == tag)
        return len(q) - 1 - idx
    nxt_w = W3 + NPRE
    nrem = 32 - nxt_w
    sched = {}
    for j in range(nrem):
        k2 = nxt_w + j
        st_ = max((j * opt.wlast) // max(nrem - 1, 1), k2 - 16)
        st_ = min(st_, k2 - opt.wmin)
        sched.setdefault(st_, []).append(k2)
    if opt.gprio:
        l = uid("GP")
        A(f"    s_cmp_lt_u32 s{S_W}, 4")
        A(f"    s_cbranch_scc1 {l}")
        A("    s_setprio 1")
        A.label(l)
    for ks in range(32):
        if opt.gprio and ks == opt.gpa:
            l = uid("GP")
            A(f"    s_cmp_lt_u32 s{S_W}, 4")
            A(f"    s_cbranch_scc0 {l}")
            A("    s_setprio 1")
            A.label(l)
        if opt.gprio and ks == opt.gpb:
            l = uid("GP")
            A(f"    s_cmp_lt_u32 s{S_W}, 4")
            A(f"    s_cbranch_scc1 {l}")
            A("    s_setprio 0")
            A.label(l)
        if ks % 4 == 0:
            gstamp(A, ks // 4)
        if ks + NB - 1 < 32:
            b_reads(ks + NB - 1, zero2=opt.zero2)
        lg = 3 * min(NB - 1, 31 - ks)
        A(f"    s_waitcnt vmcnt({min(wait_for(('w', ks)), 63)}) lgkmcnt({lg})")
        st = BR + 12 * (ks % NB)
        wb = wslot(ks)
        for T in range(3):
            for t in range(2):
                a = V_ACC2 + 4 * (2 * T + t)
                c = "0" if ks == 0 else f"v[{a}:{a+3}]"
                A(f"    v_mfma_f32_16x16x32_bf16 v[{a}:{a+3}], v[{wb+4*t}:{wb+4*t+3}], v[{st+4*T}:{st+4*T+3}], {c}")
        for k2 in sched.get(ks, []):
            assert k2 - 16 <= ks < k2
            assert k2 == nxt_w
            w_load(A, k2, wslot(k2), 7)
            q.append(("w", k2)); q.append(("w", k2))
            nxt_w += 1
    assert nxt_w == 32
    stamp(A, 7)
    gstamp(A, 8)
    A("    s_nop 7")
    for T in range(3):
        a0 = V_ACC2 + 4 * (2 * T); a1 = a0 + 4
        st = 12 + 4 * T
        A(f"    v_cvt_pk_bf16_f32 v{st}, v{a0}, v{a0+1}")
        A(f"    v_cvt_pk_bf16_f32 v{st+1}, v{a0+2}, v{a0+3}")
        A(f"    v_cvt_pk_bf16_f32 v{st+2}, v{a1}, v{a1+1}")
        A(f"    v_cvt_pk_bf16_f32 v{st+3}, v{a1+2}, v{a1+3}")
        A(f"    buffer_store_dwordx4 v[{st}:{st+3}], v{8+T}, s[{S_OUT}:{S_OUT+3}], 0 offen")
    if opt.stamps:
        A("    s_waitcnt vmcnt(0)")
    stamp(A, 8)
    stamp_flush(A, 60, 0)
    A("    s_endpgm")

    A.label("MAIN_SLOW")
    A("    s_waitcnt vmcnt(0)")
    v_reads()
    emit_t(A)
    for ks in range(opt.w3):
        w_load(A, ks, wslot(ks))
    gen_slow(A)
    A.label("MAIN_END")
    A("    s_endpgm")


def gen_slow(A):
    S_GRP = 62; S_POS = 63; S_CNT = 64; S_LO = 65; S_HIB = 66; S_BASE = 67
    A("    s_waitcnt vmcnt(0)")
    zero_acc(A)
    A(f"    s_mul_i32 s{S_BASE}, s2, {TILE}")
    A(f"    s_mov_b32 s{S_GRP}, 0")
    A(f"    s_mov_b32 s{S_NB}, 1")
    A(f"    s_mov_b32 s{S_NA}, 1")
    A.label("SLOW_GROUP")
    A(f"    s_add_u32 s{S_LO}, s{S_W}, 32")
    A(f"    s_add_u32 s{S_HIB}, s{S_LO}, 1")
    A(f"    s_cmp_eq_u32 s{S_GRP}, 0")
    A("    s_cbranch_scc1 SLOW_RANGE")
    A(f"    s_lshl_b32 s{S_LO}, s{S_W}, 2")
    A(f"    s_add_u32 s{S_HIB}, s{S_LO}, 4")
    A.label("SLOW_RANGE")
    A(f"    s_mov_b32 s{S_POS}, 0")
    A.label("SLOW_REFILL")
    L4 = V_T1; X1 = V_T2; X2 = V_T3; X3 = V_TMP
    A(f"    v_mbcnt_lo_u32_b32 v{L4}, -1, 0")
    A(f"    v_mbcnt_hi_u32_b32 v{L4}, -1, v{L4}")
    A(f"    v_lshlrev_b32 v{L4}, 2, v{L4}")
    A(f"    v_mov_b32 v{X1}, {hex(SENT_LIST)}")
    A(f"    v_add_u32 v{X2}, s{S_ABASE}, v{L4}")
    A(f"    ds_write_b32 v{X2}, v{X1}")
    A(f"    ds_write_b32 v{X2}, v{X1} offset:256")
    A(f"    s_mov_b32 s{S_CNT}, 0")
    A.label("SLOW_SCAN")
    A(f"    s_cmp_ge_u32 s{S_POS}, {E*4}")
    A("    s_cbranch_scc1 SLOW_FLUSH")
    A(f"    s_cmp_gt_u32 s{S_CNT}, 64")
    A("    s_cbranch_scc1 SLOW_FLUSH")
    A(f"    buffer_load_dword v{X1}, v{L4}, s[{S_DST}:{S_DST+3}], s{S_POS} offen")
    A(f"    buffer_load_dword v{X2}, v{L4}, s[{S_SRC}:{S_SRC+3}], s{S_POS} offen")
    A(f"    s_add_u32 s{S_POS}, s{S_POS}, 256")
    A("    s_waitcnt vmcnt(0)")
    A(f"    v_subrev_u32 v{X1}, s{S_BASE}, v{X1}")
    A(f"    v_cmp_le_u32 s[68:69], s{S_LO}, v{X1}")
    A(f"    v_cmp_gt_u32 vcc, s{S_HIB}, v{X1}")
    A(f"    s_and_b64 vcc, vcc, s[68:69]")
    A(f"    v_lshl_or_b32 v{X2}, v{X2}, 9, v{X1}")
    A(f"    s_nop 0")
    A(f"    v_mbcnt_lo_u32_b32 v{X3}, vcc_lo, 0")
    A(f"    v_mbcnt_hi_u32_b32 v{X3}, vcc_hi, v{X3}")
    A(f"    v_add_u32 v{X3}, s{S_CNT}, v{X3}")
    A(f"    v_lshlrev_b32 v{X3}, 2, v{X3}")
    A(f"    v_add_u32 v{X3}, s{S_ABASE}, v{X3}")
    A(f"    s_bcnt1_i32_b64 s{S_T0}, vcc")
    A(f"    s_add_u32 s{S_CNT}, s{S_CNT}, s{S_T0}")
    A(f"    s_and_saveexec_b64 s[{S_EX}:{S_EX+1}], vcc")
    A(f"    ds_write_b32 v{X3}, v{X2}")
    A(f"    s_mov_b64 exec, s[{S_EX}:{S_EX+1}]")
    A("    s_branch SLOW_SCAN")
    A.label("SLOW_FLUSH")
    A(f"    s_add_u32 s{S_NU}, s{S_CNT}, 15")
    A(f"    s_lshr_b32 s{S_NU}, s{S_NU}, 4")
    A(f"    s_mov_b32 s{S_P}, 0")
    A(f"    s_mov_b32 s{S_PTR}, s{S_ABASE}")
    A("    s_waitcnt lgkmcnt(0)")
    A.label("SLOW_UNIT")
    A(f"    s_cmp_ge_u32 s{S_P}, s{S_NU}")
    A("    s_cbranch_scc1 SLOW_UNITS_DONE")
    A(f"    v_add_u32 v{V_T1}, s{S_PTR}, v{V_H4}")
    dma_entry_reads(A, V_T1)
    A("    s_waitcnt lgkmcnt(0)")
    for q in range(8):
        dma_one(A, q)
    A(f"    s_mov_b32 s{S_P2}, s{S_PTR}")
    A("    s_waitcnt vmcnt(0)")
    s_prefetch(A)
    unit_front(A, 0)
    unit_finish_plain(A, 0)
    den_mfma(A)
    for ft in range(16):
        agg_mfma(A, ft)
    A(f"    s_add_u32 s{S_P}, s{S_P}, 1")
    A(f"    s_add_u32 s{S_PTR}, s{S_PTR}, 64")
    A("    s_branch SLOW_UNIT")
    A.label("SLOW_UNITS_DONE")
    A(f"    s_cmp_lt_u32 s{S_POS}, {E*4}")
    A("    s_cbranch_scc1 SLOW_REFILL")
    A(f"    s_cmp_eq_u32 s{S_GRP}, 1")
    A("    s_cbranch_scc1 MAIN_DONE")
    A("    s_nop 7")
    emit_finb(A, after_loop=False)
    zero_acc(A)
    A(f"    s_mov_b32 s{S_GRP}, 1")
    A("    s_branch SLOW_GROUP")


def kd(name, vgpr, sgpr):
    return f""".amdhsa_kernel {name}
  .amdhsa_next_free_vgpr {vgpr}
  .amdhsa_next_free_sgpr {sgpr}
  .amdhsa_accum_offset {((vgpr+3)//4)*4}
  .amdhsa_group_segment_fixed_size 0
  .amdhsa_kernarg_size 72
  .amdhsa_user_sgpr_count 2
  .amdhsa_user_sgpr_kernarg_segment_ptr 1
  .amdhsa_system_sgpr_workgroup_id_x 1
  .amdhsa_float_denorm_mode_32 3
.end_amdhsa_kernel
"""


HEADER = """; Kernarg layout for this problem (72 bytes, ptrs only, base s[0:1]):
"""


def main():
    ap = argparse.ArgumentParser()
    ap.add_argument("-o", default="gather_scatter__graph_attention_gat__graph.s")
    ap.add_argument("--stamps", action="store_true")
    ap.add_argument("--ustamps", action="store_true")
    ap.add_argument("--gstamps", action="store_true")
    ap.add_argument("--fstamps", action="store_true")
    ap.add_argument("--tstamps", action="store_true")
    ap.add_argument("--nopk", type=int, default=0)
    ap.add_argument("--pstamps", action="store_true")
    ap.add_argument("--clk", action="store_true")
    ap.add_argument("--up", type=int, default=1)
    ap.add_argument("--wpos", default="A")
    ap.add_argument("--copies", type=int, default=1)
    ap.add_argument("--xpre", type=int, default=0)
    ap.add_argument("--wpre", type=int, default=10)
    ap.add_argument("--w3", type=int, default=2)
    ap.add_argument("--wlast", type=int, default=24)
    ap.add_argument("--wmin", type=int, default=6)
    ap.add_argument("--prio", type=int, default=2)
    ap.add_argument("--skip", type=int, default=0)
    ap.add_argument("--bar0", type=int, default=0)
    ap.add_argument("--xt", type=int, default=0)
    ap.add_argument("--vlate", type=int, default=1)
    ap.add_argument("--gprio", type=int, default=1)
    ap.add_argument("--gpa", type=int, default=13)
    ap.add_argument("--gpb", type=int, default=19)
    ap.add_argument("--mall", type=int, default=1)
    ap.add_argument("--xoff", type=int, default=0)
    ap.add_argument("--xhalf", type=int, default=0)
    ap.add_argument("--pa", type=int, default=2)
    ap.add_argument("--pb", type=int, default=4)
    ap.add_argument("--wlook", type=int, default=12)
    ap.add_argument("--wone", type=int, default=1)
    ap.add_argument("--zero2", type=int, default=1)
    ap.add_argument("--bring", type=int, default=4)
    ap.add_argument("--wspread", type=int, default=8)
    a = ap.parse_args()
    opt.__dict__.update(a.__dict__)
    A = Asm()
    B = Asm()
    gen_prep(B)
    gen_main(B)
    A(HEADER.rstrip("\n"))
    A(f"; @launch kernel=gat_prep_kernel grid=({opt.nprep},1,1) block=(640,1,1) lds=43520")
    A(f"; @launch kernel=gather_scatter__graph_attention_gat__graph_kernel grid=({NT},1,1) block=(512,1,1) lds={LDS_MAIN}")
    A('.amdgcn_target "amdgcn-amd-amdhsa--gfx950"')
    A(".text")
    A.lines += B.lines
    A('.section .rodata,"a"')
    A(".p2align 6")
    A(kd("gat_prep_kernel", 80, 102 if opt.stamps else 48))
    A(".p2align 6")
    A(kd("gather_scatter__graph_attention_gat__graph_kernel", 256, 102 if opt.stamps else 96))
    open(opt.o, "w").write(A.text())
    print("wrote", opt.o, len(A.lines), "lines")


if __name__ == "__main__":
    main()
```

```python
import sys, argparse

N = 10000; E = 160000; TILE = 40; NT = 250; G = 64; CH = 2500
WS_SLOTS = 0
WS_V = 0x1F8000
WS_WF = 0x200000
WS_STAMP = 0x700000
REGSZ = 17408; UNIT = 8704; PAIR = 1088; RROW = 2080
AGG1 = 8 * REGSZ
LISTS = AGG1 + 8 * RROW
LSZ = 704
TBUF = LISTS + 8 * LSZ
CNT = TBUF + 768
OVF = CNT + 64
LDS_MAIN = CNT + 128
VLDS = AGG1
CAPA = 128; CAPB = 48
SENT_LIST = 0x7FFFFE3F
LOG2E = 0x3FB8AA3B


class Asm:
    def __init__(self):
        self.lines = []
    def __call__(self, s=""):
        for l in s.split("\n"):
            self.lines.append(l)
    def label(self, n):
        self.lines.append(n + ":")
    def text(self):
        return "\n".join(self.lines) + "\n"


class Opt:
    pass
opt = Opt()
_ul = [0]
def uid(p):
    _ul[0] += 1
    return f"{p}_{_ul[0]}"


def stamp(A, i):
    if opt.stamps and not opt.ustamps and not opt.gstamps and not opt.pstamps and not opt.fstamps and not opt.tstamps:
        A(f"    {'s_memtime' if opt.clk else 's_memrealtime'} s[{82+2*i}:{83+2*i}]")
def ustamp(A, p, i):
    if opt.stamps and opt.ustamps:
        l = uid("US")
        A(f"    s_cmp_eq_u32 s{S_P}, {p}")
        A(f"    s_cbranch_scc0 {l}")
        A(f"    s_memtime s[{82+2*i}:{83+2*i}]")
        A.label(l)
def pstamp(A):
    if opt.stamps and opt.pstamps:
        for p in range(8):
            l = uid("PS")
            A(f"    s_cmp_eq_u32 s{S_P}, {p}")
            A(f"    s_cbranch_scc0 {l}")
            A(f"    s_memtime s[{82+2*p}:{83+2*p}]")
            A.label(l)
def fstamp(A, i):
    if opt.stamps and opt.fstamps:
        A(f"    s_memtime s[{82+2*i}:{83+2*i}]")
def tstamp(A, i):
    if opt.stamps and opt.tstamps:
        A(f"    s_memtime s[{82+2*i}:{83+2*i}]")
def gstamp(A, i):
    if opt.stamps and opt.gstamps:
        A(f"    s_memtime s[{82+2*i}:{83+2*i}]")
def stamp_flush(A, wsbase, area):
    if not opt.stamps:
        return
    A("    s_waitcnt lgkmcnt(0)")
    A(f"    s_mov_b32 s76, s{wsbase}\n    s_mov_b32 s77, s{wsbase+1}\n    s_mov_b32 s78, 0x800000\n    s_mov_b32 s79, 0x00020000")
    A(f"    s_lshl_b32 s80, s2, 4")
    A(f"    s_add_u32 s80, s80, s100")
    A(f"    s_lshl_b32 s80, s80, 6")
    A(f"    s_add_u32 s80, s80, {WS_STAMP+area}")
    A("    s_mov_b64 exec, 1")
    A("    v_mov_b32 v1, 0")
    for i in range(9):
        A(f"    v_mov_b32 v2, s{82+2*i}")
        A(f"    buffer_store_dword v2, v1, s[76:79], s80 offen offset:{4*i}")
        A("    s_nop 1")


def srd(A, d, base, nbytes):
    A(f"    s_mov_b32 s{d}, s{base}")
    A(f"    s_mov_b32 s{d+1}, s{base+1}")
    A(f"    s_mov_b32 s{d+2}, {nbytes}")
    A(f"    s_mov_b32 s{d+3}, 0x00020000")


def x_touch(A, sbase, vaddr, vdst, ssrd, stmp):
    if not opt.xpre:
        return
    srd(A, ssrd, sbase, N * 512)
    A(f"    s_lshr_b32 s{stmp}, s2, 3")
    A(f"    s_mul_i32 s{stmp}, s{stmp}, 640")
    A(f"    v_add_u32 v{vaddr}, s{stmp}, v0")
    A(f"    v_lshlrev_b32 v{vaddr}, 7, v{vaddr}")
    for r in range(opt.xpre):
        A(f"    s_mov_b32 s{stmp}, {r*20480*128}")
        A(f"    buffer_load_dword v{vdst}, v{vaddr}, s[{ssrd}:{ssrd+3}], s{stmp} offen")


def ws_bytes():
    return WS_WF + opt.copies * 524288


def gen_prep(A):
    K = "gat_prep_kernel"
    NWG_W = 16 * opt.copies
    V0 = 64 + NWG_W
    X0 = V0 + 32
    NPREP = 256 if opt.xpre else X0 + (63 if opt.mall else 0)
    opt.nprep = NPREP
    A(f".globl {K}\n.p2align 8\n.type {K},@function\n{K}:")
    A(f"    s_cmp_ge_u32 s2, {NPREP}")
    A("    s_cbranch_scc1 PREP_END")
    stamp(A, 0)
    if opt.stamps:
        A("    v_lshrrev_b32 v1, 6, v0\n    s_nop 1\n    v_readfirstlane_b32 s100, v1")
    A("    s_cmp_ge_u32 s2, 64")
    A("    s_cbranch_scc1 PREP_NB")
    A("    s_load_dwordx4 s[4:7], s[0:1], 8")
    A("    s_load_dwordx2 s[10:11], s[0:1], 64     ; ws")
    A("    s_load_dwordx2 s[12:13], s[0:1], 0      ; x")
    A("    v_lshlrev_b32 v1, 4, v0")
    for i in range(4):
        A(f"    v_mov_b32 v{4+i}, -1")
    A("    v_lshlrev_b32 v2, 2, v0")
    A("    v_mov_b32 v3, 0")
    A("    s_mul_i32 s28, s2, 10000")
    A("    v_add_u32 v30, s28, v1")
    A("    s_waitcnt lgkmcnt(0)")
    stamp(A, 1)
    srd(A, 20, 6, E * 4)
    A("    buffer_load_dwordx4 v[8:11], v30, s[20:23], 0 offen      ; dst")
    srd(A, 16, 4, E * 4)
    A("    buffer_load_dwordx4 v[12:15], v30, s[16:19], 0 offen     ; src")
    srd(A, 24, 10, ws_bytes())
    x_touch(A, 12, 31, 32, 36, 40)
    for r in range(4):
        A(f"    ds_write_b128 v1, v[4:7] offset:{10240*r}")
    A("    ds_write_b32 v2, v3 offset:40960")
    A("    v_cmp_gt_u32 vcc, 625, v0")
    A("    s_mov_b32 s29, 52429")
    A("    v_mov_b32 v3, 1")
    A("    v_mov_b32 v28, 32000")
    A("    s_waitcnt lgkmcnt(0)")
    A("    s_barrier")
    A("    s_and_saveexec_b64 s[30:31], vcc")
    A(f"    s_waitcnt vmcnt({1+opt.xpre})")
    stamp(A, 2)
    for i in range(4):
        A(f"    v_mul_u32_u24 v{16+i}, s29, v{8+i}")
        A(f"    v_lshrrev_b32 v{16+i}, 21, v{16+i}       ; tile")
        A(f"    v_lshlrev_b32 v{20+i}, 2, v{16+i}")
        A(f"    ds_add_rtn_u32 v{24+i}, v{20+i}, v3 offset:40960")
    A(f"    s_waitcnt vmcnt({opt.xpre})")
    for i in range(4):
        A(f"    v_mul_u32_u24 v4, 40, v{16+i}")
        A(f"    v_sub_u32 v4, v{8+i}, v4")
        A(f"    v_lshl_or_b32 v{12+i}, v{12+i}, 9, v4    ; entry")
        A(f"    v_lshlrev_b32 v{16+i}, 7, v{16+i}        ; tile*128")
    for i in range(4):
        A(f"    s_waitcnt lgkmcnt({3-i})")
        A(f"    v_cmp_gt_u32 vcc, 32, v{24+i}")
        A(f"    v_lshl_add_u32 v4, v{24+i}, 2, v{16+i}")
        A(f"    s_nop 0")
        A(f"    v_cndmask_b32 v{20+i}, v28, v4, vcc")
    for i in range(4):
        A(f"    ds_write_b32 v{20+i}, v{12+i}")
    A("    s_mov_b64 exec, s[30:31]")
    A("    s_lshl_b32 s28, s2, 7                    ; chunk*128")
    A("    v_and_b32 v2, 7, v0                      ; part (640 % 8 == 0)")
    A("    v_lshrrev_b32 v3, 3, v0")
    A("    v_lshlrev_b32 v29, 2, v3")
    A("    v_lshlrev_b32 v4, 4, v2")
    A("    v_lshl_add_u32 v4, v3, 13, v4")
    A("    v_add_u32 v4, s28, v4")
    A("    v_cmp_eq_u32 s[32:33], 7, v2")
    A("    v_cmp_gt_u32 vcc, 80, v0")
    A("    s_mov_b64 s[34:35], vcc")
    A("    v_mov_b32 v5, 0x7ffffff0")
    A("    v_mov_b32 v6, -2")
    A("    s_waitcnt lgkmcnt(0)")
    A("    s_barrier")
    stamp(A, 3)
    for r in range(4):
        A(f"    ds_read_b128 v[{8+4*r}:{11+4*r}], v1 offset:{10240*r}")
        A(f"    ds_read_b32 v{24+r}, v29 offset:{40960 + 320*r}")
    for r in range(4):
        A(f"    s_waitcnt lgkmcnt({6-2*r})")
        A(f"    v_cmp_lt_u32 vcc, 32, v{24+r}")
        A(f"    s_and_b64 vcc, vcc, s[32:33]")
        A(f"    v_add_u32 v7, {80*8192*r}, v4")
        if r == 3:
            A(f"    v_cndmask_b32 v7, v5, v7, s[34:35]")
        A(f"    s_nop 0")
        A(f"    v_cndmask_b32 v{11+4*r}, v{11+4*r}, v6, vcc")
        A(f"    buffer_store_dwordx4 v[{8+4*r}:{11+4*r}], v7, s[24:27], 0 offen{opt.pst}")
    stamp(A, 4)
    if opt.stamps:
        A("    s_waitcnt vmcnt(0)")
    stamp(A, 5)
    stamp_flush(A, 10, 0x40000)
    A("    s_endpgm")
    A.label("PREP_NB")
    if opt.mall:
        A(f"    s_cmp_ge_u32 s2, {X0}")
        A("    s_cbranch_scc1 PREP_M")
    if opt.xpre:
        A(f"    s_cmp_ge_u32 s2, {X0}")
        A("    s_cbranch_scc1 PREP_X")
    A("    s_load_dwordx2 s[8:9], s[0:1], 24       ; w")
    A("    s_load_dwordx4 s[12:15], s[0:1], 32")
    A("    s_load_dwordx2 s[10:11], s[0:1], 64     ; ws")
    A("    s_load_dwordx2 s[42:43], s[0:1], 0      ; x")
    A("    s_sub_u32 s28, s2, 64                    ; idx")
    A("    v_lshrrev_b32 v1, 6, v0")
    A("    s_nop 0")
    cs = {1: 0, 2: 1, 4: 2, 8: 3}[opt.copies]
    A(f"    s_and_b32 s27, s28, {opt.copies-1}       ; copy")
    A(f"    s_lshr_b32 s28, s28, {cs}")
    A("    v_readfirstlane_b32 s29, v1              ; wave")
    A("    s_waitcnt lgkmcnt(0)")
    stamp(A, 1)
    srd(A, 16, 8, 524288)
    srd(A, 36, 10, ws_bytes())
    A(f"    s_cmp_ge_u32 s2, {V0}")
    A("    s_cbranch_scc1 PREP_V")
    A("    s_cmp_ge_u32 s29, 8")
    A("    s_cbranch_scc1 PREP_END")
    A("    s_lshl_b32 s30, s28, 15                  ; kp*2*16384")
    A("    s_add_u32 s33, s30, 16384")
    A("    v_lshrrev_b32 v1, 7, v0                  ; g")
    A("    v_and_b32 v2, 127, v0                    ; fp")
    A("    v_lshlrev_b32 v3, 11, v1")
    A("    v_lshl_add_u32 v3, v2, 2, v3             ; g*2048 + fp*4")
    A("    v_add_u32 v4, 8192, v3")
    for half, so in ((0, 30), (1, 33)):
        for j in range(4):
            A(f"    buffer_load_dword v{8+8*half+j}, v3, s[16:19], s{so} offen offset:{512*j}")
        for j in range(4):
            A(f"    buffer_load_dword v{12+8*half+j}, v4, s[16:19], s{so} offen offset:{512*j}")
    x_touch(A, 42, 41, 42, 44, 40)
    A("    v_lshrrev_b32 v5, 4, v2")
    A("    v_lshlrev_b32 v5, 16, v5")
    A("    v_bfe_u32 v6, v2, 1, 1")
    A("    v_lshl_add_u32 v5, v6, 10, v5")
    A("    v_lshl_add_u32 v5, v1, 8, v5             ; 16g*16")
    A("    v_bfe_u32 v6, v2, 2, 2")
    A("    v_lshl_add_u32 v5, v6, 6, v5             ; 4*gi*16")
    A("    v_and_b32 v6, 1, v2")
    A("    v_lshl_add_u32 v5, v6, 5, v5             ; 2*(fp&1)*16")
    A("    s_lshl_b32 s31, s28, 12                  ; kp*2*2048")
    A("    s_lshl_b32 s32, s27, 19                  ; copy*524288")
    A("    s_add_u32 s31, s31, s32")
    A(f"    s_add_u32 s31, s31, {WS_WF}")
    A("    s_mov_b32 s34, 0x05040100")
    A("    s_mov_b32 s35, 0x07060302")
    for half in range(2):
        A(f"    s_waitcnt vmcnt({(8 if half == 0 else 2) + opt.xpre})")
        if half == 0:
            stamp(A, 2)
        b = 8 + 8 * half; d = 24 + 8 * half
        for i in range(4):
            A(f"    v_perm_b32 v{d+i}, v{b+1+2*i}, v{b+2*i}, s34")
            A(f"    v_perm_b32 v{d+4+i}, v{b+1+2*i}, v{b+2*i}, s35")
        A(f"    buffer_store_dwordx4 v[{d}:{d+3}], v5, s[36:39], s31 offen offset:{2048*half}{opt.pst}")
        A(f"    buffer_store_dwordx4 v[{d+4}:{d+7}], v5, s[36:39], s31 offen offset:{2048*half+16}{opt.pst}")
    stamp(A, 4)
    if opt.stamps:
        A("    s_waitcnt vmcnt(0)")
    stamp(A, 5)
    stamp_flush(A, 10, 0x40000)
    A("    s_endpgm")
    A.label("PREP_V")
    A("    s_cmp_ge_u32 s29, 2")
    A("    s_cbranch_scc1 PREP_END")
    A(f"    s_sub_u32 s30, s2, {V0}")
    A("    s_lshl_b32 s30, s30, 1")
    A("    s_add_u32 s30, s30, s29")
    A("    s_lshr_b32 s31, s30, 4                   ; h")
    srd(A, 20, 12, 2048)
    srd(A, 24, 14, 2048)
    A("    v_and_b32 v1, 63, v0")
    A("    v_and_b32 v2, 15, v1                     ; i / c")
    A("    v_lshrrev_b32 v3, 4, v1                  ; g")
    A("    v_lshlrev_b32 v4, 9, v2")
    A("    v_lshl_add_u32 v4, v3, 4, v4             ; i*512 + g*16")
    A("    s_lshl_b32 s32, s30, 13")
    A("    v_lshlrev_b32 v5, 4, v3                  ; g*16")
    A("    s_lshl_b32 s33, s31, 9                   ; h*512")
    for kk in range(8):
        A(f"    buffer_load_dwordx4 v[{8+4*kk}:{11+4*kk}], v4, s[16:19], s32 offen offset:{64*kk}")
    A("    v_and_b32 v6, 1, v2")
    A("    v_cmp_eq_u32 vcc, 0, v6")
    A("    s_mov_b64 s[40:41], exec")
    A("    s_mov_b64 exec, vcc")
    for kk in range(8):
        A(f"    buffer_load_dwordx4 v[{40+4*kk}:{43+4*kk}], v5, s[20:23], s33 offen offset:{64*kk}")
    A("    s_andn2_b64 exec, s[40:41], vcc")
    for kk in range(8):
        A(f"    buffer_load_dwordx4 v[{40+4*kk}:{43+4*kk}], v5, s[24:27], s33 offen offset:{64*kk}")
    A("    s_mov_b64 exec, s[40:41]")
    A("    s_lshl_b32 s32, s30, 5")
    A(f"    s_add_u32 s32, s32, {WS_V}")
    A("    v_lshlrev_b32 v7, 3, v3")
    A("    v_lshl_add_u32 v7, v6, 11, v7")
    A("    v_cmp_gt_u32 vcc, 2, v2")
    A(f"    s_mov_b32 s33, {LOG2E}")
    A("    s_waitcnt vmcnt(0)")
    for kk in range(8):
        c = "0" if kk == 0 else "v[72:75]"
        A(f"    v_mfma_f32_16x16x32_bf16 v[72:75], v[{8+4*kk}:{11+4*kk}], v[{40+4*kk}:{43+4*kk}], {c}")
    A("    s_nop 7")
    for r in range(4):
        A(f"    v_mul_f32 v{72+r}, s33, v{72+r}")
    A("    v_cvt_pk_bf16_f32 v76, v72, v73")
    A("    v_cvt_pk_bf16_f32 v77, v74, v75")
    A("    s_and_saveexec_b64 s[40:41], vcc")
    A(f"    buffer_store_dwordx2 v[76:77], v7, s[36:39], s32 offen{opt.pst}")
    stamp(A, 4)
    if opt.stamps:
        A("    s_waitcnt vmcnt(0)")
    stamp(A, 5)
    stamp_flush(A, 10, 0x40000)
    A("    s_endpgm")
    if opt.xpre:
        A.label("PREP_X")
        A("    s_load_dwordx2 s[8:9], s[0:1], 0         ; x")
        if opt.stamps:
            A("    s_load_dwordx2 s[10:11], s[0:1], 64     ; ws")
        A("    s_waitcnt lgkmcnt(0)")
        stamp(A, 1)
        x_touch(A, 8, 1, 2, 16, 28)
        if opt.stamps:
            A("    s_waitcnt vmcnt(0)")
        stamp(A, 4)
        stamp(A, 5)
        stamp_flush(A, 10, 0x40000)
    if opt.mall:
        A("    s_endpgm")
        A.label("PREP_M")
        A("    s_load_dwordx2 s[8:9], s[0:1], 0         ; x")
        A(f"    s_sub_u32 s28, s2, {X0}")
        A("    s_mul_i32 s28, s28, 640")
        A("    v_add_u32 v1, s28, v0")
        A("    v_lshlrev_b32 v1, 7, v1")
        A("    s_waitcnt lgkmcnt(0)")
        srd(A, 16, 8, N * 512)
        A("    buffer_load_dword v2, v1, s[16:19], 0 offen")
    A.label("PREP_END")
    A("    s_endpgm")


V_TMP = 0; V_DMAC = 1; V_SADDR = 2; V_TE = 3; V_TO = 4; V_G16 = 5; V_H4 = 6; V_TGT = 7; V_TQ = 8
V_PT = 12; V_E = 16; V_D = 20; V_S = 28; V_DEN = 32; V_X = 36; V_ONES = 224
V_TGTA = 40; V_TA = 41; V_T1 = 42; V_T2 = 43; V_T3 = 44; V_WOFF = 45; V_FE = 46; V_FO = 47
V_R = 48; V_SCR = 64; V_V = 128; V_ACC = 160
V_ACC2 = 40
S_X = 4; S_WS = 8; S_OUT = 12; S_SRC = 16; S_DST = 20
S_W = 24; S_NA = 25; S_NB = 26; S_NU = 27; S_P = 28; S_PTR = 29; S_M0 = 30; S_DELTA = 31
S_MSK = 32
S_HI = 40; S_T0 = 41; S_T1 = 42; S_T2 = 43; S_ABASE = 44; S_REG = 45; S_P2 = 46; S_WF = 47; S_EX = 48
S_C02 = 50; S_FIRST = 52; S_K = 53; S_KA = 54; S_KB = 55
S_J1 = 70; S_J2 = 72; S_J3 = 74


def lane_cg(A, vl, vc, vg):
    A(f"    v_mbcnt_lo_u32_b32 v{vl}, -1, 0")
    A(f"    v_mbcnt_hi_u32_b32 v{vl}, -1, v{vl}")
    A(f"    v_and_b32 v{vc}, 15, v{vl}")
    A(f"    v_lshrrev_b32 v{vg}, 4, v{vl}")


def dma_one(A, q, between=None):
    if q == 0:
        A(f"    s_mov_b32 m0, s{S_M0}")
    else:
        A(f"    s_add_u32 m0, s{S_M0}, {PAIR*q}")
    A(f"    v_and_or_b32 v{V_D+q}, v{V_D+q}, s{S_HI}, v{V_DMAC}")
    if between:
        between()
    A(f"    buffer_load_dwordx4 v{V_D+q}, s[{S_X}:{S_X+3}], 0 offen lds")


def wait_vm_dyn(A, sreg, base, lo=0, hi=8):
    end = uid("WV")
    def rec(a, b):
        if a == b:
            A(f"    s_waitcnt vmcnt({base + a})")
            A(f"    s_branch {end}")
            return
        m = (a + b + 1) // 2
        l = uid("WV")
        A(f"    s_cmp_ge_u32 s{sreg}, {m}")
        A(f"    s_cbranch_scc1 {l}")
        rec(a, m - 1)
        A.label(l)
        rec(m, b)
    rec(lo, hi)
    A.label(end)


def dma_partial(A, sreg, zero_fill, rev=False):
    end = uid("DP")
    zl = [uid("DZ") for _ in range(8)]
    order = list(range(7, -1, -1)) if rev else list(range(8))
    for n, q in enumerate(order):
        if n > 0:
            A(f"    s_cmp_gt_u32 s{sreg}, {n}")
            A(f"    s_cbranch_scc0 {zl[n] if zero_fill else end}")
        dma_one(A, q)
    if zero_fill:
        A(f"    s_branch {end}")
        for n in range(1, 8):
            A.label(zl[n])
            A(f"    ds_write_b128 v{V_T2}, v[{V_S}:{V_S+3}] offset:{PAIR*order[n]}")
    A.label(end)


def unit_k(A, sq):
    A(f"    s_add_u32 s{S_T2}, s{sq}, 1")
    A(f"    s_cmp_eq_u32 s{S_T2}, s{S_NU}")
    A(f"    s_cselect_b32 s{S_K}, s{S_KA}, 8")


def dma_entry_reads(A, addr_v):
    for i in range(4):
        A(f"    ds_read2_b32 v[{V_D+2*i}:{V_D+2*i+1}], v{addr_v} offset0:{4*i} offset1:{4*i+2}")


def s_prefetch(A, between=None):
    A(f"    v_add_u32 v{V_TMP}, s{S_PTR}, v{V_G16}")
    if between: between(0)
    A(f"    ds_read_b128 v[{V_E}:{V_E+3}], v{V_TMP}")
    for kk in range(4):
        if between: between(1 + kk)
        A(f"    ds_read_b128 v[{V_R+4*kk}:{V_R+4*kk+3}], v{V_SADDR} offset:{64*kk}")


def s_mfma(A, kk):
    c = f"v[{V_TQ}:{V_TQ+3}]" if kk == 0 else f"v[{V_S}:{V_S+3}]"
    r = V_R + 4 * (kk & 3)
    A(f"    v_mfma_f32_16x16x32_bf16 v[{V_S}:{V_S+3}], v[{r}:{r+3}], v[{V_V+4*kk}:{V_V+4*kk+3}], {c}")


def unit_front(A, par=0):
    q = ["E", "S0", "S1", "S2", "S3"]
    def wait(tag):
        idx = q.index(tag)
        return min(15, len(q) - 1 - idx)
    A(f"    v_add_u32 v{V_T1}, s{S_P2}, v{V_H4}")
    for kk in range(7):
        A(f"    s_waitcnt lgkmcnt({wait('S%d' % kk)})")
        s_mfma(A, kk)
        if kk < 4:
            r = V_R + 4 * kk
            A(f"    ds_read_b128 v[{r}:{r+3}], v{V_SADDR} offset:{64*(kk+4)}")
            q.append("S%d" % (kk + 4))
            for ft in range(4 * kk, 4 * kk + 4):
                a0 = V_SCR + 4 * ft + 2 * par
                A(f"    ds_read_b64_tr_b16 v[{a0}:{a0+1}], v{V_TE if ft % 2 == 0 else V_TO} offset:{32*ft}")
                q.append("T")
            if kk == 3:
                dma_entry_reads(A, V_T1)
                q += ["D"] * 4


def p_ops(par):
    ops = []
    for r in range(4):
        ops.append(f"    v_cmp_eq_u32_sdwa s[{S_MSK+2*r}:{S_MSK+2*r+1}], v{V_E+r}, v{V_TGT} src0_sel:BYTE_0 src1_sel:DWORD")
    grp = [ops]
    grp.append([f"    v_pk_mul_f32 v[{V_X}:{V_X+1}], v[{V_S}:{V_S+1}], s[{S_C02}:{S_C02+1}] op_sel_hi:[1,0]",
                f"    v_pk_mul_f32 v[{V_X+2}:{V_X+3}], v[{V_S+2}:{V_S+3}], s[{S_C02}:{S_C02+1}] op_sel_hi:[1,0]"])
    grp.append([f"    v_max_f32 v{V_X+r}, v{V_X+r}, v{V_S+r}" for r in range(4)])
    grp.append([f"    v_exp_f32 v{V_X+r}, v{V_X+r}" for r in range(4)])
    grp.append([f"    v_cndmask_b32 v{V_X+r}, 0, v{V_X+r}, s[{S_MSK+2*r}:{S_MSK+2*r+1}]" for r in range(4)])
    grp.append([f"    v_cvt_pk_bf16_f32 v{V_PT+2*par}, v{V_X}, v{V_X+1}",
                f"    v_cvt_pk_bf16_f32 v{V_PT+2*par+1}, v{V_X+2}, v{V_X+3}"])
    return grp


def unit_finish_plain(A, par=0):
    A("    s_waitcnt lgkmcnt(0)")
    s_mfma(A, 7)
    g = p_ops(par)
    for l in g[0]: A(l)
    A("    s_nop 3")
    for grp in g[1:]:
        for l in grp: A(l)
    A("    s_nop 1")


def agg_mfma(A, ft, first=False, k32=False):
    c = "0" if first else f"v[{V_ACC+4*ft}:{V_ACC+4*ft+3}]"
    a = V_SCR + 4 * ft
    if k32:
        A(f"    v_mfma_f32_16x16x32_bf16 v[{V_ACC+4*ft}:{V_ACC+4*ft+3}], v[{a}:{a+3}], v[{V_PT}:{V_PT+3}], {c}")
    else:
        A(f"    v_mfma_f32_16x16x16_bf16 v[{V_ACC+4*ft}:{V_ACC+4*ft+3}], v[{a}:{a+1}], v[{V_PT}:{V_PT+1}], {c}")


def den_mfma(A, first=False, k32=False):
    c = "0" if first else f"v[{V_DEN}:{V_DEN+3}]"
    if k32:
        A(f"    v_mfma_f32_16x16x32_bf16 v[{V_DEN}:{V_DEN+3}], v[{V_ONES}:{V_ONES+3}], v[{V_PT}:{V_PT+3}], {c}")
    else:
        A(f"    v_mfma_f32_16x16x16_bf16 v[{V_DEN}:{V_DEN+3}], v[{V_ONES}:{V_ONES+1}], v[{V_PT}:{V_PT+1}], {c}")


def unit_tail(A, dma, nxt, agg, first, par):
    k32 = agg == "k32"
    pend = list(range(16)) if agg else []
    def mf():
        if pend:
            agg_mfma(A, pend.pop(0), first, k32)
            return True
        return False
    g = p_ops(par)
    A("    s_waitcnt lgkmcnt(0)")
    s_mfma(A, 7)
    if dma == "full":
        for q in range(2):
            dma_one(A, q)
        for l in g[0]: A(l)
        for i, grp in enumerate(g[1:]):
            for l in grp: A(l)
            dma_one(A, 2 + i) if i < 5 else None
        dma_one(A, 7)
    elif dma == "part":
        for l in g[0]: A(l)
        dma_partial(A, S_K, False)
        A("    s_nop 1")
        for grp in g[1:]:
            for l in grp: A(l)
        A("    s_nop 1")
    else:
        for l in g[0]: A(l)
        A("    s_nop 3")
        for grp in g[1:]:
            for l in grp: A(l)
        A("    s_nop 1")
    if agg:
        den_mfma(A, first, k32)
    for q in range(8):
        mf()
    A(f"    v_add_u32 v{V_SADDR}, s{S_DELTA}, v{V_SADDR}")
    A(f"    s_add_u32 s{S_PTR}, s{S_PTR}, 64")
    if nxt:
        if dma == "part":
            wait_vm_dyn(A, S_K, 0, 1, 7)
        else:
            A(f"    s_waitcnt vmcnt({8 if dma else 0})")
        s_prefetch(A, between=lambda i: mf())
    while mf():
        pass
    A(f"    v_add_u32 v{V_TE}, s{S_DELTA}, v{V_TE}")
    A(f"    v_add_u32 v{V_TO}, s{S_DELTA}, v{V_TO}")
    A(f"    s_add_u32 s{S_M0}, s{S_M0}, s{S_DELTA}")
    A(f"    s_sub_u32 s{S_DELTA}, 0, s{S_DELTA}")
    A(f"    s_add_u32 s{S_P}, s{S_P}, 1")
    if agg:
        A(f"    s_mov_b32 s{S_FIRST}, 0")


def finalize(A, stage, after_pair=None, fs=False):
    A(f"    v_add_f32 v{V_X}, 0x3089705f, v{V_DEN}        ; + 1e-9")
    A(f"    v_rcp_f32 v{V_X}, v{V_X}")
    A("    s_nop 0")
    A(f"    v_mul_f32 v{V_X}, 0x3e800000, v{V_X}")
    if fs: fstamp(A, 1)
    for u in range(8):
        if fs and u == 4: fstamp(A, 2)
        sq = stage + 4 * (u & 3)
        for half in range(2):
            a = V_ACC + 4 * (2 * u + half)
            if opt.nopk:
                for r in range(4):
                    A(f"    v_mul_f32 v{a+r}, v{V_X}, v{a+r}")
            else:
                A(f"    v_pk_mul_f32 v[{a}:{a+1}], v[{a}:{a+1}], v[{V_X}:{V_X+1}] op_sel_hi:[1,0]")
                A(f"    v_pk_mul_f32 v[{a+2}:{a+3}], v[{a+2}:{a+3}], v[{V_X}:{V_X+1}] op_sel_hi:[1,0]")
        for half in range(2):
            a = V_ACC + 4 * (2 * u + half)
            A(f"    v_cvt_pk_bf16_f32 v{sq+2*half}, v{a}, v{a+1}")
            A(f"    v_cvt_pk_bf16_f32 v{sq+2*half+1}, v{a+2}, v{a+3}")
        ad = V_FE if u % 2 == 0 else V_FO
        A(f"    ds_write_b128 v{ad}, v[{sq}:{sq+3}] offset:{64*u}")
        if after_pair:
            after_pair(u)


def fin_addr(A, vc, vg):
    A(f"    v_and_b32 v{V_T1}, 3, v{vc}                ; h")
    A(f"    v_lshl_add_u32 v{V_FE}, v{V_T1}, 9, v{V_FE}")
    A(f"    v_and_b32 v{V_T2}, 1, v{V_T1}")
    A(f"    v_xor_b32 v{V_T2}, v{V_T2}, v{vg}")
    A(f"    v_lshl_add_u32 v{V_FE}, v{V_T2}, 4, v{V_FE}")
    A(f"    v_lshrrev_b32 v{V_T1}, 1, v{V_T1}")
    A(f"    v_lshlrev_b32 v{V_T1}, 6, v{V_T1}          ; 64*h1")
    A(f"    v_sub_u32 v{V_FO}, v{V_FE}, v{V_T1}")
    A(f"    v_add_u32 v{V_FE}, v{V_FE}, v{V_T1}")


def zero_acc(A):
    for i in range(64):
        A(f"    v_mov_b32 v{V_ACC+i}, 0")
    for i in range(4):
        A(f"    v_mov_b32 v{V_DEN+i}, 0")


def wslot(ks):
    k = ks & 15
    if k < 3:
        return 232 + 8 * k
    if k < 15:
        return 64 + 8 * (k - 3)
    return 224


def w_load(A, ks, dst, voff=V_WOFF):
    A(f"    s_add_u32 s{S_T0}, s{S_WF}, {ks*2048}")
    A(f"    buffer_load_dwordx4 v[{dst}:{dst+3}], v{voff}, s[{S_WS}:{S_WS+3}], s{S_T0} offen")
    A(f"    buffer_load_dwordx4 v[{dst+4}:{dst+7}], v{voff}, s[{S_WS}:{S_WS+3}], s{S_T0} offen offset:1024")


def emit_finb(A, after_loop=True):
    l = uid("FB")
    A(f"    s_cmp_lg_u32 s{S_NB}, 0")
    A(f"    s_cbranch_scc1 {l}")
    zero_acc(A)
    A.label(l)
    A(f"    v_add_f32 v{V_X}, 0x3089705f, v{V_DEN}        ; + 1e-9")
    A(f"    v_rcp_f32 v{V_X}, v{V_X}")
    for j, m in ((1, S_J1), (2, S_J2), (3, S_J3)):
        for i in range(16):
            A(f"    v_cndmask_b32 v{V_ACC+i}, v{V_ACC+i}, v{V_ACC+16*j+i}, s[{m}:{m+1}]")
            if j == 1 and i == 0:
                A(f"    v_mul_f32 v{V_X}, 0x3e800000, v{V_X}")
    if after_loop: fstamp(A, 1)
    for i in range(8):
        a = V_ACC + 2 * i
        A(f"    v_pk_mul_f32 v[{a}:{a+1}], v[{a}:{a+1}], v[{V_X}:{V_X+1}] op_sel_hi:[1,0]")
    for i in range(8):
        a = V_ACC + 2 * i
        A(f"    v_cvt_pk_bf16_f32 v{V_SCR+i}, v{a}, v{a+1}")
    if after_loop: fstamp(A, 2)
    A(f"    ds_write_b128 v{V_FE}, v[{V_SCR}:{V_SCR+3}]")
    A(f"    ds_write_b128 v{V_FO}, v[{V_SCR+4}:{V_SCR+7}] offset:64")
    if after_loop: fstamp(A, 3)
    A(f"    v_mov_b32 v{V_TGT}, v{V_TGTA}")
    for i in range(4):
        A(f"    v_mov_b32 v{V_TQ+i}, v{V_TA}")
    lane_cg(A, V_T3, V_X + 2, V_X + 3)
    A(f"    s_and_b32 s{S_T0}, s{S_W}, 1")
    A(f"    s_lshl_b32 s{S_T0}, s{S_T0}, 7")
    A(f"    s_add_u32 s{S_T0}, s{S_T0}, s{S_REG}")
    A(f"    v_lshrrev_b32 v{V_FE}, 2, v{V_X+2}")
    A(f"    v_mul_u32_u24 v{V_FE}, {RROW}, v{V_FE}")
    A(f"    v_add_u32 v{V_FE}, s{S_T0}, v{V_FE}")
    fin_addr(A, V_X + 2, V_X + 3)
    A(f"    s_mov_b32 s{S_FIRST}, 1")
    if after_loop: fstamp(A, 4)
    A("    s_waitcnt lgkmcnt(0)")
    if after_loop: fstamp(A, 5)


def gen_main(A):
    K = "gather_scatter__graph_attention_gat__graph_kernel"
    VC = 36; VG = 37; VL = 38
    A(f".globl {K}\n.p2align 8\n.type {K},@function\n{K}:")
    A(f"    s_cmp_ge_u32 s2, {NT}")
    A("    s_cbranch_scc1 MAIN_END")
    stamp(A, 0)
    A("    s_load_dwordx2 s[60:61], s[0:1], 64      ; ws")
    A("    s_load_dwordx2 s[52:53], s[0:1], 0       ; x")
    A("    s_load_dwordx2 s[54:55], s[0:1], 48      ; out")
    A("    s_load_dwordx4 s[56:59], s[0:1], 8")
    A(f"    v_and_b32 v{VL}, 63, v0")
    A(f"    v_lshrrev_b32 v{V_T1}, 6, v0")
    A(f"    v_and_b32 v{VC}, 15, v{VL}")
    A(f"    v_readfirstlane_b32 s{S_W}, v{V_T1}")
    A(f"    v_lshrrev_b32 v{VG}, 4, v{VL}")
    A(f"    v_lshlrev_b32 v20, 4, v0                 ; tid*16")
    A(f"    v_lshlrev_b32 v{V_WOFF}, 4, v{VL}        ; lane*16")
    A(f"    v_lshlrev_b32 v21, 9, v{VC}")
    A(f"    v_lshl_add_u32 v21, v{VG}, 4, v21")
    A(f"    s_mul_i32 s{S_REG}, s{S_W}, {REGSZ}")
    A(f"    s_and_b32 s{S_WF}, s2, {opt.copies-1}")
    A(f"    s_lshl_b32 s{S_WF}, s{S_WF}, 19")
    A(f"    s_lshl_b32 s{S_T0}, s{S_W}, 16")
    A(f"    s_add_u32 s{S_WF}, s{S_WF}, s{S_T0}")
    A(f"    s_add_u32 s{S_WF}, s{S_WF}, {WS_WF}")
    A("    s_waitcnt lgkmcnt(0)")
    stamp(A, 1)
    if opt.stamps:
        A(f"    s_mov_b32 s100, s{S_W}")
    srd(A, S_WS, 60, ws_bytes())
    A(f"    s_lshl_b32 s{S_T0}, s2, 13")
    A(f"    buffer_load_dwordx4 v[16:19], v20, s[{S_WS}:{S_WS+3}], s{S_T0} offen")
    srd(A, S_X, 52, N * 512)
    A(f"    v_and_b32 v{V_T1}, 31, v{VL}")
    A(f"    v_lshlrev_b32 v{V_T1}, 4, v{V_T1}")
    A(f"    v_lshrrev_b32 v{V_T2}, 5, v{VL}")
    A(f"    v_lshlrev_b32 v{V_H4}, 2, v{V_T2}")
    A(f"    v_lshlrev_b32 v21, 9, v{V_T2}            ; hi*512")
    A(f"    v_cmp_eq_u32 vcc, 0, v{V_T2}")
    A(f"    v_lshlrev_b32 v{V_T2}, 5, v{V_T2}")
    A(f"    v_xor_b32 v{V_DMAC}, v{V_T1}, v{V_T2}    ; DMAC = ((l&31)*16) ^ ((l>>5)*32)")
    A(f"    v_add_u32 v21, v21, v{V_DMAC}")
    A(f"    v_mov_b32 v22, 0x7ffffe00")
    A(f"    v_cndmask_b32 v22, v22, v{V_DMAC}, vcc")
    A(f"    s_mul_i32 s{S_T0}, s2, {TILE*512}")
    A(f"    s_lshl_b32 s{S_T1}, s{S_W}, 11            ; 4w rows")
    A(f"    s_add_u32 s{S_T1}, s{S_T1}, s{S_T0}")
    A(f"    s_add_u32 m0, s{S_REG}, {UNIT}")
    A(f"    s_add_u32 s{S_T2}, s{S_T1}, 1024")
    A(f"    buffer_load_dwordx4 v21, s[{S_X}:{S_X+3}], s{S_T1} offen lds")
    A(f"    s_add_u32 m0, s{S_REG}, {UNIT+PAIR}")
    A(f"    s_lshl_b32 s{S_T1}, s{S_W}, 9")
    A(f"    buffer_load_dwordx4 v21, s[{S_X}:{S_X+3}], s{S_T2} offen lds")
    A(f"    s_add_u32 m0, s{S_REG}, {UNIT+2*PAIR}")
    A(f"    s_add_u32 s{S_T1}, s{S_T1}, s{S_T0}")
    A(f"    s_add_u32 s{S_T1}, s{S_T1}, {32*512}")
    A(f"    buffer_load_dwordx4 v22, s[{S_X}:{S_X+3}], s{S_T1} offen lds")
    for i in range(4):
        A(f"    s_add_u32 m0, s{S_REG}, {UNIT+(3+i)*PAIR}")
        A(f"    s_mov_b32 s{S_T0}, {WS_V + 1024*i}")
        A(f"    buffer_load_dwordx4 v{V_WOFF}, s[{S_WS}:{S_WS+3}], s{S_T0} offen lds")
    NW0 = 0
    srd(A, S_OUT, 54, N * 512)
    srd(A, S_SRC, 56, E * 4)
    srd(A, S_DST, 58, E * 4)
    A(f"    v_mov_b32 v28, {hex(SENT_LIST)}")
    A(f"    v_mov_b32 v29, v28\n    v_mov_b32 v30, v28\n    v_mov_b32 v31, v28")
    A(f"    v_add_u32 v22, {LISTS}, v20")
    A(f"    v_cmp_gt_u32 vcc, 352, v0")
    A(f"    v_mov_b32 v32, 0")
    A(f"    v_lshlrev_b32 v23, 2, v0")
    A(f"    v_add_u32 v23, {CNT}, v23")
    A(f"    s_and_saveexec_b64 s[{S_EX}:{S_EX+1}], vcc")
    A(f"    s_cbranch_execz MAIN_NOCNT")
    A(f"    ds_write_b128 v22, v[28:31]")
    A(f"    v_cmp_gt_u32 vcc, 32, v0")
    A(f"    s_and_b64 exec, exec, vcc")
    A(f"    s_cbranch_execz MAIN_NOCNT")
    A(f"    ds_write_b32 v23, v32")
    A.label("MAIN_NOCNT")
    A(f"    s_mov_b64 exec, s[{S_EX}:{S_EX+1}]")
    T1, T2, T3 = V_T1, V_T2, V_T3
    A(f"    v_lshlrev_b32 v{V_G16}, 4, v{VG}")
    A(f"    v_lshrrev_b32 v{T1}, 1, v{VC}")
    A(f"    v_mul_u32_u24 v{V_SADDR}, {PAIR}, v{T1}")
    A(f"    v_and_b32 v{T1}, 1, v{VC}")
    A(f"    v_lshl_add_u32 v{V_SADDR}, v{T1}, 9, v{V_SADDR}")
    A(f"    v_lshrrev_b32 v{T2}, 1, v{VG}")
    A(f"    v_xor_b32 v{T1}, v{T1}, v{T2}")
    A(f"    v_lshl_add_u32 v{V_SADDR}, v{T1}, 5, v{V_SADDR}")
    A(f"    v_and_b32 v{T1}, 1, v{VG}")
    A(f"    v_lshl_add_u32 v{V_SADDR}, v{T1}, 4, v{V_SADDR}")
    A(f"    v_add_u32 v{V_SADDR}, s{S_REG}, v{V_SADDR}")
    A(f"    v_lshrrev_b32 v{T1}, 2, v{VC}")
    A(f"    v_lshl_add_u32 v{T1}, v{VG}, 2, v{T1}      ; row")
    A(f"    v_lshrrev_b32 v{T2}, 1, v{T1}")
    A(f"    v_mul_u32_u24 v{V_TE}, {PAIR}, v{T2}")
    A(f"    v_and_b32 v{T1}, 1, v{T1}                  ; hi")
    A(f"    v_lshl_add_u32 v{V_TE}, v{T1}, 9, v{V_TE}")
    A(f"    v_and_b32 v{T2}, 3, v{VC}")
    A(f"    v_lshl_add_u32 v{V_TE}, v{T2}, 3, v{V_TE}")
    A(f"    v_add_u32 v{V_TE}, s{S_REG}, v{V_TE}")
    A(f"    v_lshlrev_b32 v{T1}, 5, v{T1}              ; 32*hi")
    A(f"    v_sub_u32 v{V_TO}, v{V_TE}, v{T1}")
    A(f"    v_add_u32 v{V_TE}, v{V_TE}, v{T1}")
    for i in range(4):
        A(f"    v_mov_b32 v{V_ONES+i}, 0x3f803f80")
    A(f"    s_mov_b32 s{S_HI}, 0xfffffe00")
    A(f"    s_mov_b32 s{S_C02}, 0x3e4ccccd")
    A(f"    s_mul_i32 s{S_ABASE}, s{S_W}, {LSZ}")
    A(f"    s_add_u32 s{S_ABASE}, s{S_ABASE}, {LISTS+192}")
    A(f"    s_mul_i32 s{S_T0}, s{S_W}, {RROW}")
    A(f"    s_add_u32 s{S_T0}, s{S_T0}, {AGG1}")
    A(f"    v_lshrrev_b32 v{V_FE}, 2, v{VC}")
    A(f"    v_lshlrev_b32 v{V_FE}, 7, v{V_FE}          ; 128*j")
    A(f"    v_add_u32 v{V_FE}, s{S_T0}, v{V_FE}")
    fin_addr(A, VC, VG)
    A(f"    v_bfe_u32 v{T1}, v{VC}, 1, 1")
    A(f"    v_mul_u32_u24 v39, {PAIR}, v{T1}")
    A(f"    v_and_b32 v{T1}, 1, v{VC}")
    A(f"    v_lshl_add_u32 v39, v{T1}, 9, v39")
    A(f"    v_lshl_add_u32 v39, v{VG}, 4, v39")
    A(f"    s_add_u32 s{S_T0}, s{S_REG}, {UNIT+3*PAIR}")
    A(f"    v_add_u32 v39, s{S_T0}, v39")
    A(f"    v_lshrrev_b32 v{T1}, 2, v{VC}")
    A(f"    s_lshl_b32 s{S_T0}, s{S_W}, 2")
    A(f"    v_add_u32 v{V_TGTA}, s{S_T0}, v{T1}")
    A(f"    s_add_u32 s{S_T0}, s{S_W}, 32")
    A(f"    v_mov_b32 v{V_TGT}, s{S_T0}")
    A("    s_waitcnt lgkmcnt(0)")
    A("    s_barrier")
    if opt.xt:
        A(f"    s_lshr_b32 s{S_T0}, s2, 3")
        A(f"    s_lshl_b32 s{S_T0}, s{S_T0}, 9")
        A(f"    v_add_u32 v23, s{S_T0}, v0")
        A(f"    v_lshlrev_b32 v23, 7, v23")
        if opt.xhalf:
            A(f"    s_cmp_ge_u32 s{S_W}, 4")
            A(f"    s_cbranch_scc0 MAIN_XT")
            A(f"    v_mov_b32 v23, 0x7ffffe00")
            A.label("MAIN_XT")
        for r in range(opt.xt):
            A(f"    s_mov_b32 s{S_T0}, {opt.xoff + r*16384*128}")
            A(f"    buffer_load_dword v255, v23, s[{S_X}:{S_X+3}], s{S_T0} offen")
    A(f"    s_waitcnt vmcnt({7+opt.xt})")
    stamp(A, 2)
    EN = 16
    NN = 20; WV = 24; RK = 28; BS = 32
    A(f"    s_mov_b64 s[62:63], 0")
    for i in range(4):
        A(f"    v_and_b32 v{NN+i}, 63, v{EN+i}")
        A(f"    v_cmp_eq_u32 vcc, -2, v{EN+i}")
        A(f"    s_or_b64 s[62:63], s[62:63], vcc")
        A(f"    v_cmp_gt_u32 s[{64+2*i}:{65+2*i}], 40, v{NN+i}       ; valid")
        A(f"    v_cmp_le_u32 s[{72+2*i}:{73+2*i}], 32, v{NN+i}       ; group B")
        A(f"    v_lshrrev_b32 v{T1}, 2, v{NN+i}")
        A(f"    v_subrev_u32 v{T2}, 32, v{NN+i}")
        A(f"    v_subrev_u32 v{T3}, 24, v{NN+i}")
        A(f"    v_cndmask_b32 v{WV+i}, v{T1}, v{T2}, s[{72+2*i}:{73+2*i}]")
        A(f"    v_cndmask_b32 v{T1}, v{T1}, v{T3}, s[{72+2*i}:{73+2*i}]")
        A(f"    v_lshlrev_b32 v{BS+i}, 2, v{T1}")
        A(f"    v_add_u32 v{BS+i}, {CNT}, v{BS+i}")
    A(f"    v_mov_b32 v{V_TMP}, 1")
    for i in range(4):
        A(f"    s_mov_b64 exec, s[{64+2*i}:{65+2*i}]")
        A(f"    ds_add_rtn_u32 v{RK+i}, v{BS+i}, v{V_TMP}")
    A("    s_mov_b64 exec, -1")
    def v_reads():
        for kk in range(8):
            A(f"    ds_read_b128 v[{V_ACC+4*kk}:{V_ACC+4*kk+3}], v39 offset:{2*PAIR+64*kk}")
        for kk in range(8):
            A(f"    ds_read_b128 v[{V_V+4*kk}:{V_V+4*kk+3}], v39 offset:{64*kk}")
    A(f"    s_mov_b32 s{S_T0}, {LSZ}")
    A(f"    v_mov_b32 v{T1}, {LISTS+192}")
    for i in range(4):
        A(f"    v_mad_u32_u24 v{BS+i}, v{WV+i}, s{S_T0}, v{T1}")
    for i in range(4):
        A(f"    s_waitcnt lgkmcnt({3-i})")
        A(f"    v_lshlrev_b32 v{T1}, 2, v{RK+i}")
        A(f"    v_sub_u32 v{T2}, -4, v{T1}")
        A(f"    v_mov_b32 v{T3}, {CAPA}")
        A(f"    v_cndmask_b32 v{T1}, v{T1}, v{T2}, s[{72+2*i}:{73+2*i}]")
        A(f"    v_cndmask_b32 v{T3}, v{T3}, {CAPB}, s[{72+2*i}:{73+2*i}]")
        A(f"    v_add_u32 v{BS+i}, v{BS+i}, v{T1}")
        A(f"    v_cmp_lt_u32 vcc, v{RK+i}, v{T3}")
        A(f"    s_andn2_b64 s[80:81], s[{64+2*i}:{65+2*i}], vcc")
        A(f"    s_or_b64 s[62:63], s[62:63], s[80:81]")
        A(f"    s_and_b64 exec, s[{64+2*i}:{65+2*i}], vcc")
        A(f"    ds_write_b32 v{BS+i}, v{EN+i}")
        A(f"    s_mov_b64 exec, -1")
    A(f"    s_cmp_eq_u64 s[62:63], 0")
    A(f"    s_cbranch_scc1 MAIN_NOOVF")
    A(f"    v_mov_b32 v{T1}, {OVF}")
    A(f"    ds_write_b32 v{T1}, v{V_TMP}")
    A.label("MAIN_NOOVF")
    A("    s_waitcnt lgkmcnt(0)")
    A("    s_barrier")
    stamp(A, 3)
    tstamp(A, 0)
    A(f"    s_lshl_b32 s{S_T0}, s{S_W}, 2")
    A(f"    s_add_u32 s{S_T0}, s{S_T0}, {CNT}")
    A(f"    v_mov_b32 v16, s{S_T0}")
    A(f"    v_mov_b32 v17, {OVF}")
    A(f"    ds_read_b32 v18, v16                     ; cntA")
    A(f"    ds_read_b32 v19, v16 offset:32           ; cntB")
    A(f"    ds_read_b32 v20, v17")
    A(f"    v_lshrrev_b32 v{T1}, 2, v{VC}")
    A(f"    v_cmp_eq_u32 s[{S_J1}:{S_J1+1}], 1, v{T1}")
    A(f"    v_cmp_eq_u32 s[{S_J2}:{S_J2+1}], 2, v{T1}")
    A(f"    v_cmp_eq_u32 s[{S_J3}:{S_J3+1}], 3, v{T1}")
    A("    s_waitcnt lgkmcnt(0)")
    A(f"    v_readfirstlane_b32 s{S_NA}, v18")
    A(f"    v_readfirstlane_b32 s{S_NB}, v19")
    A(f"    v_readfirstlane_b32 s{S_T0}, v20")
    A(f"    s_mov_b32 s{S_M0}, s{S_REG}")
    A(f"    s_mov_b32 s{S_DELTA}, {UNIT}")
    A(f"    s_mov_b32 s{S_P}, 0")
    A(f"    s_mov_b32 s{S_FIRST}, 1")
    A(f"    s_cmp_lg_u32 s{S_T0}, 0")
    A("    s_cbranch_scc1 MAIN_SLOW")
    A(f"    s_sub_u32 s{S_KA}, s{S_NA}, 1")
    A(f"    s_and_b32 s{S_KA}, s{S_KA}, 15")
    A(f"    s_lshr_b32 s{S_KA}, s{S_KA}, 1")
    A(f"    s_add_u32 s{S_KA}, s{S_KA}, 1")
    A(f"    s_sub_u32 s{S_KB}, s{S_NB}, 1")
    A(f"    s_and_b32 s{S_KB}, s{S_KB}, 15")
    A(f"    s_lshr_b32 s{S_KB}, s{S_KB}, 1")
    A(f"    s_add_u32 s{S_KB}, s{S_KB}, 1")
    A(f"    s_cmp_eq_u32 s{S_NA}, 0")
    A(f"    s_cselect_b32 s{S_KA}, 8, s{S_KA}")
    A(f"    s_add_u32 s{S_NA}, s{S_NA}, 15")
    A(f"    s_lshr_b32 s{S_NA}, s{S_NA}, 4")
    A(f"    s_add_u32 s{S_NB}, s{S_NB}, 15")
    A(f"    s_lshr_b32 s{S_NB}, s{S_NB}, 4")
    A(f"    s_add_u32 s{S_NU}, s{S_NA}, s{S_NB}")
    A(f"    s_lshl_b32 s{S_T0}, s{S_NB}, 6")
    A(f"    s_sub_u32 s{S_PTR}, s{S_ABASE}, s{S_T0}")
    def emit_t(A):
        for kk in range(8):
            A(f"    ds_read_b128 v[{V_SCR+4*kk}:{V_SCR+4*kk+3}], v{V_SADDR} offset:{UNIT+64*kk}")
        A(f"    v_lshlrev_b32 v{T2}, 2, v{VC}")
        A(f"    v_and_b32 v{T3}, 3, v{VC}")
        A(f"    v_add_u32 v{T3}, 16, v{T3}")
        A(f"    v_lshlrev_b32 v{T3}, 2, v{T3}              ; lane 16 + h")
        for kk in range(8):
            A(f"    s_waitcnt lgkmcnt({7-kk})")
            c = "0" if kk == 0 else f"v[{V_S}:{V_S+3}]"
            A(f"    v_mfma_f32_16x16x32_bf16 v[{V_S}:{V_S+3}], v[{V_SCR+4*kk}:{V_SCR+4*kk+3}], v[{V_ACC+4*kk}:{V_ACC+4*kk+3}], {c}")
        A("    s_nop 7")
        A(f"    v_cndmask_b32 v{V_TA}, v{V_S}, v{V_S+1}, s[{S_J1}:{S_J1+1}]")
        A(f"    v_cndmask_b32 v{V_TA}, v{V_TA}, v{V_S+2}, s[{S_J2}:{S_J2+1}]")
        A(f"    v_cndmask_b32 v{V_TA}, v{V_TA}, v{V_S+3}, s[{S_J3}:{S_J3+1}]")
        A(f"    ds_bpermute_b32 v{V_TQ}, v{T3}, v{V_S}")
        A(f"    ds_bpermute_b32 v{V_TA}, v{T2}, v{V_TA}")
        A("    s_waitcnt lgkmcnt(0)")
        for i in range(1, 4):
            A(f"    v_mov_b32 v{V_TQ+i}, v{V_TQ}")

    def zero_prep(A, buf):
        if opt.skip:
            for i in range(4):
                A(f"    v_mov_b32 v{V_S+i}, 0")
            A(f"    v_mbcnt_lo_u32_b32 v{V_T2}, -1, 0")
            A(f"    v_mbcnt_hi_u32_b32 v{V_T2}, -1, v{V_T2}")
            A(f"    v_lshlrev_b32 v{V_T2}, 4, v{V_T2}")
            A(f"    s_add_u32 s{S_T1}, s{S_REG}, {UNIT*buf}")
            A(f"    v_add_u32 v{V_T2}, s{S_T1}, v{V_T2}")

    tstamp(A, 1)
    if opt.prio == 2:
        A("    s_setprio 3")
    A(f"    s_mov_b32 s{S_K}, 0")
    A(f"    s_cmp_eq_u32 s{S_NU}, 0")
    A("    s_cbranch_scc1 MAIN_PRO_T")
    A(f"    v_add_u32 v{T1}, s{S_PTR}, v{V_H4}")
    dma_entry_reads(A, T1)
    zero_prep(A, 0)
    A(f"    s_mov_b32 s{S_T1}, 0")
    if opt.skip:
        unit_k(A, S_T1)
    A("    s_waitcnt lgkmcnt(0)")
    if opt.skip:
        A(f"    s_cmp_eq_u32 s{S_NB}, 0")
        A("    s_cbranch_scc1 MAIN_U0A")
        A(f"    s_mov_b32 s{S_K}, s{S_KB}")
        dma_partial(A, S_K, True, rev=True)
        A("    s_branch MAIN_PRO_T")
        A.label("MAIN_U0A")
        dma_partial(A, S_K, True)
    else:
        A(f"    s_mov_b32 s{S_K}, 8")
        for q in range(8):
            dma_one(A, q)
    A.label("MAIN_PRO_T")
    tstamp(A, 2)
    wait_vm_dyn(A, S_K, opt.xt, 0, 8)
    tstamp(A, 3)
    v_reads()
    emit_t(A)
    tstamp(A, 4)
    A(f"    s_mov_b32 s{S_K}, 0")
    A(f"    s_cmp_le_u32 s{S_NU}, 1")
    A("    s_cbranch_scc1 MAIN_PRO_DONE")
    A(f"    v_add_u32 v{T1}, s{S_PTR}, v{V_H4}")
    A(f"    v_add_u32 v{T1}, 64, v{T1}")
    dma_entry_reads(A, T1)
    zero_prep(A, 1)
    A(f"    s_add_u32 s{S_M0}, s{S_REG}, {UNIT}")
    A(f"    s_mov_b32 s{S_T1}, 1")
    if opt.skip:
        unit_k(A, S_T1)
    else:
        A(f"    s_mov_b32 s{S_K}, 8")
    A("    s_waitcnt lgkmcnt(0)")
    if opt.skip:
        dma_partial(A, S_K, True)
    else:
        for q in range(8):
            dma_one(A, q)
    A(f"    s_mov_b32 s{S_M0}, s{S_REG}")
    A.label("MAIN_PRO_DONE")
    stamp(A, 4)
    tstamp(A, 5)
    if opt.prio == 1:
        A(f"    s_setprio 1")
    for ks in range(opt.w3):
        w_load(A, ks, wslot(ks))
    WX = 2 * opt.w3
    A(f"    s_cmp_eq_u32 s{S_NU}, 0")
    A("    s_cbranch_scc1 MAIN_LOOP")
    tstamp(A, 6)
    wait_vm_dyn(A, S_K, WX, 0, 8)
    tstamp(A, 7)
    A("    s_waitcnt lgkmcnt(0)")
    s_prefetch(A)
    if opt.stamps and opt.ustamps:
        A("    s_memtime s[98:99]")
    A.label("MAIN_LOOP")
    A(f"    s_cmp_eq_u32 s{S_P}, s{S_NB}")
    A("    s_cbranch_scc1 MAIN_FINB")
    A.label("MAIN_LOOP2")
    A(f"    s_cmp_ge_u32 s{S_P}, s{S_NU}")
    A("    s_cbranch_scc1 MAIN_DONE")

    def dispatch(tag, agg, firsts, minleft, dest, par):
        for first in firsts:
            if len(firsts) > 1:
                if first == firsts[0]:
                    A(f"    s_cmp_eq_u32 s{S_FIRST}, 0")
                    A(f"    s_cbranch_scc0 {tag}_F1")
                else:
                    A.label(f"{tag}_F1")
            A(f"    s_cmp_ge_u32 s{S_T0}, 3")
            A(f"    s_cbranch_scc0 {tag}_{first}_R2")
            if opt.skip:
                A(f"    s_cmp_eq_u32 s{S_K}, 8")
                A(f"    s_cbranch_scc0 {tag}_{first}_PART")
            unit_tail(A, "full", True, agg, first, par)
            A(f"    s_branch {dest}")
            if opt.skip:
                A.label(f"{tag}_{first}_PART")
                unit_tail(A, "part", True, agg, first, par)
                A(f"    s_branch {dest}")
            A.label(f"{tag}_{first}_R2")
            if minleft <= 1:
                A(f"    s_cmp_eq_u32 s{S_T0}, 2")
                A(f"    s_cbranch_scc0 {tag}_{first}_R1")
            unit_tail(A, None, True, agg, first, par)
            A(f"    s_branch {dest}")
            if minleft <= 1:
                A.label(f"{tag}_{first}_R1")
                unit_tail(A, None, False, agg, first, par)
                A(f"    s_branch {dest}")

    def set_prio():
        if opt.prio == 2:
            l1 = uid("PR"); l2 = uid("PR"); le = uid("PR")
            A(f"    s_cmp_ge_u32 s{S_P}, {opt.pa}")
            A(f"    s_cbranch_scc1 {l1}")
            A("    s_setprio 3")
            A(f"    s_branch {le}")
            A.label(l1)
            A(f"    s_cmp_ge_u32 s{S_P}, {opt.pb}")
            A(f"    s_cbranch_scc1 {l2}")
            A("    s_setprio 2")
            A(f"    s_branch {le}")
            A.label(l2)
            A("    s_setprio 1")
            A.label(le)

    def k_next():
        set_prio()
        if opt.skip:
            A(f"    s_add_u32 s{S_T1}, s{S_P}, 2")
            unit_k(A, S_T1)

    pstamp(A)
    ustamp(A, opt.up, 0); ustamp(A, opt.up + 1, 4)
    A(f"    s_add_u32 s{S_P2}, s{S_PTR}, 128")
    k_next()
    unit_front(A, 0)
    ustamp(A, opt.up, 1); ustamp(A, opt.up + 1, 5)
    A(f"    s_sub_u32 s{S_T0}, s{S_NU}, s{S_P}")
    A(f"    s_add_u32 s{S_T1}, s{S_P}, 1")
    A(f"    s_cmp_eq_u32 s{S_T1}, s{S_NB}")
    A("    s_cbranch_scc1 TL_LAST")
    A(f"    s_cmp_eq_u32 s{S_T1}, s{S_NU}")
    A("    s_cbranch_scc1 TL_LAST")
    dispatch("TE", None, [0], 2, "MAIN_ODD", 0)
    A.label("TL_LAST")
    dispatch("TL", "k16", [0, 1], 1, "MAIN_NEXT", 0)
    A.label("MAIN_ODD")
    pstamp(A)
    ustamp(A, opt.up + 1, 2); ustamp(A, opt.up + 2, 6)
    ustamp(A, opt.up, 0); ustamp(A, opt.up + 1, 4)
    A(f"    s_add_u32 s{S_P2}, s{S_PTR}, 128")
    k_next()
    unit_front(A, 1)
    ustamp(A, opt.up, 1); ustamp(A, opt.up + 1, 5)
    A(f"    s_sub_u32 s{S_T0}, s{S_NU}, s{S_P}")
    dispatch("TO", "k32", [0, 1], 1, "MAIN_NEXT", 1)
    A.label("MAIN_NEXT")
    ustamp(A, opt.up + 1, 2); ustamp(A, opt.up + 2, 6)
    A("    s_branch MAIN_LOOP")

    A.label("MAIN_FINB")
    fstamp(A, 0)
    A("    s_nop 3")
    emit_finb(A)
    A("    s_branch MAIN_LOOP2")

    A.label("MAIN_DONE")
    if opt.prio:
        A("    s_setprio 0")
    stamp(A, 5)
    if opt.stamps and opt.pstamps:
        A("    s_memtime s[98:99]")
    A(f"    s_cmp_lg_u32 s{S_NA}, 0")
    A("    s_cbranch_scc1 MAIN_DONE2")
    zero_acc(A)
    A.label("MAIN_DONE2")
    VC2 = V_T2; VG2 = V_T3
    lane_cg(A, V_T1, VC2, VG2)
    A(f"    v_lshrrev_b32 v{V_TMP}, 2, v{VC2}                 ; w'")
    A(f"    v_mul_u32_u24 v1, {REGSZ}, v{V_TMP}")
    A(f"    v_and_b32 v{V_TMP}, 1, v{V_TMP}")
    A(f"    v_lshl_add_u32 v1, v{V_TMP}, 7, v1")
    A(f"    v_and_b32 v{V_TMP}, 3, v{VC2}")
    A(f"    v_mul_u32_u24 v{V_TMP}, {RROW}, v{V_TMP}")
    A(f"    v_add_u32 v1, v1, v{V_TMP}")
    A(f"    v_and_b32 v{V_TMP}, 7, v{VC2}")
    A(f"    v_mul_u32_u24 v5, {RROW}, v{V_TMP}")
    A(f"    v_add_u32 v5, {AGG1}, v5")
    A(f"    v_lshlrev_b32 v{V_TMP}, 4, v{VG2}                 ; g*16")
    A(f"    v_xor_b32 v{V_T1}, 16, v{V_TMP}                   ; (g^1)*16")
    A(f"    v_add_u32 v2, v1, v{V_T1}")
    A(f"    v_add_u32 v1, v1, v{V_TMP}")
    A(f"    v_add_u32 v3, {4*REGSZ}, v1")
    A(f"    v_add_u32 v4, {4*REGSZ}, v2")
    A(f"    v_add_u32 v6, v5, v{V_T1}")
    A(f"    v_add_u32 v5, v5, v{V_TMP}")
    A(f"    s_mul_i32 s{S_T0}, s2, {TILE*512}")
    A(f"    s_lshl_b32 s{S_T1}, s{S_W}, 6")
    A(f"    s_add_u32 s{S_T0}, s{S_T0}, s{S_T1}")
    A(f"    v_lshlrev_b32 v8, 9, v{VC2}")
    A(f"    v_lshl_add_u32 v8, v{VG2}, 4, v8")
    A(f"    v_add_u32 v8, s{S_T0}, v8")
    A(f"    v_add_u32 v9, {16*512}, v8")
    A(f"    v_add_u32 v10, {32*512}, v8")
    A(f"    v_mov_b32 v{V_TMP}, 0x7ffffff0")
    A(f"    v_cmp_gt_u32 vcc, 8, v{VC2}")
    A(f"    v_mov_b32 v7, v{V_WOFF}")
    A(f"    s_nop 0")
    A(f"    s_mov_b64 s[{S_EX}:{S_EX+1}], vcc")
    A(f"    v_cndmask_b32 v10, v{V_TMP}, v10, vcc")
    NPRE = opt.wpre
    W3 = opt.w3
    def pre(u):
        for k in range((NPRE * u) // 8, (NPRE * (u + 1)) // 8):
            w_load(A, W3 + k, wslot(W3 + k), 7)
    finalize(A, 12, after_pair=pre)
    A("    s_waitcnt lgkmcnt(0)")
    A("    s_barrier")
    stamp(A, 6)
    NB = opt.bring
    BR = V_ACC
    def b_reads(ks, zero2=False):
        h = ks >> 3; u = ks & 7; h0 = h & 1; h1 = h >> 1
        imm = h * 512 + ((u ^ h1) * 64)
        st = BR + 12 * (ks % NB)
        for T in range(3):
            if T == 2 and opt.zero2:
                A(f"    s_mov_b64 exec, s[{S_EX}:{S_EX+1}]")
            A(f"    ds_read_b128 v[{st+4*T}:{st+4*T+3}], v{1+2*T+h0} offset:{imm}")
            if T == 2 and opt.zero2:
                A(f"    s_mov_b64 exec, -1")
    if opt.zero2:
        for st_ in range(NB):
            for i in range(4):
                A(f"    v_mov_b32 v{BR+12*st_+8+i}, 0")
    for ks in range(NB - 1):
        b_reads(ks)
    q = [("w", k) for k in range(W3 + NPRE) for _ in range(2)]
    def wait_for(tag):
        idx = max(i for i, t in enumerate(q) if t == tag)
        return len(q) - 1 - idx
    nxt_w = W3 + NPRE
    nrem = 32 - nxt_w
    sched = {}
    for j in range(nrem):
        k2 = nxt_w + j
        st_ = max((j * opt.wlast) // max(nrem - 1, 1), k2 - 16)
        st_ = min(st_, k2 - opt.wmin)
        sched.setdefault(st_, []).append(k2)
    if opt.gprio:
        l = uid("GP")
        A(f"    s_cmp_lt_u32 s{S_W}, 4")
        A(f"    s_cbranch_scc1 {l}")
        A("    s_setprio 1")
        A.label(l)
    for ks in range(32):
        if opt.gprio and ks == opt.gpa:
            l = uid("GP")
            A(f"    s_cmp_lt_u32 s{S_W}, 4")
            A(f"    s_cbranch_scc0 {l}")
            A("    s_setprio 1")
            A.label(l)
        if opt.gprio and ks == opt.gpb:
            l = uid("GP")
            A(f"    s_cmp_lt_u32 s{S_W}, 4")
            A(f"    s_cbranch_scc1 {l}")
            A("    s_setprio 0")
            A.label(l)
        if ks % 4 == 0:
            gstamp(A, ks // 4)
        if ks + NB - 1 < 32:
            b_reads(ks + NB - 1, zero2=opt.zero2)
        lg = 3 * min(NB - 1, 31 - ks)
        A(f"    s_waitcnt vmcnt({min(wait_for(('w', ks)), 63)}) lgkmcnt({lg})")
        st = BR + 12 * (ks % NB)
        wb = wslot(ks)
        for T in range(3):
            for t in range(2):
                a = V_ACC2 + 4 * (2 * T + t)
                c = "0" if ks == 0 else f"v[{a}:{a+3}]"
                A(f"    v_mfma_f32_16x16x32_bf16 v[{a}:{a+3}], v[{wb+4*t}:{wb+4*t+3}], v[{st+4*T}:{st+4*T+3}], {c}")
        for k2 in sched.get(ks, []):
            assert k2 - 16 <= ks < k2
            assert k2 == nxt_w
            w_load(A, k2, wslot(k2), 7)
            q.append(("w", k2)); q.append(("w", k2))
            nxt_w += 1
    assert nxt_w == 32
    stamp(A, 7)
    gstamp(A, 8)
    A("    s_nop 7")
    for T in range(3):
        a0 = V_ACC2 + 4 * (2 * T); a1 = a0 + 4
        st = 12 + 4 * T
        A(f"    v_cvt_pk_bf16_f32 v{st}, v{a0}, v{a0+1}")
        A(f"    v_cvt_pk_bf16_f32 v{st+1}, v{a0+2}, v{a0+3}")
        A(f"    v_cvt_pk_bf16_f32 v{st+2}, v{a1}, v{a1+1}")
        A(f"    v_cvt_pk_bf16_f32 v{st+3}, v{a1+2}, v{a1+3}")
        A(f"    buffer_store_dwordx4 v[{st}:{st+3}], v{8+T}, s[{S_OUT}:{S_OUT+3}], 0 offen{opt.ost}")
    if opt.stamps:
        A("    s_waitcnt vmcnt(0)")
    stamp(A, 8)
    stamp_flush(A, 60, 0)
    A("    s_endpgm")

    A.label("MAIN_SLOW")
    A("    s_waitcnt vmcnt(0)")
    v_reads()
    emit_t(A)
    for ks in range(opt.w3):
        w_load(A, ks, wslot(ks))
    gen_slow(A)
    A.label("MAIN_END")
    A("    s_endpgm")


def gen_slow(A):
    S_GRP = 62; S_POS = 63; S_CNT = 64; S_LO = 65; S_HIB = 66; S_BASE = 67
    A("    s_waitcnt vmcnt(0)")
    zero_acc(A)
    A(f"    s_mul_i32 s{S_BASE}, s2, {TILE}")
    A(f"    s_mov_b32 s{S_GRP}, 0")
    A(f"    s_mov_b32 s{S_NB}, 1")
    A(f"    s_mov_b32 s{S_NA}, 1")
    A.label("SLOW_GROUP")
    A(f"    s_add_u32 s{S_LO}, s{S_W}, 32")
    A(f"    s_add_u32 s{S_HIB}, s{S_LO}, 1")
    A(f"    s_cmp_eq_u32 s{S_GRP}, 0")
    A("    s_cbranch_scc1 SLOW_RANGE")
    A(f"    s_lshl_b32 s{S_LO}, s{S_W}, 2")
    A(f"    s_add_u32 s{S_HIB}, s{S_LO}, 4")
    A.label("SLOW_RANGE")
    A(f"    s_mov_b32 s{S_POS}, 0")
    A.label("SLOW_REFILL")
    L4 = V_T1; X1 = V_T2; X2 = V_T3; X3 = V_TMP
    A(f"    v_mbcnt_lo_u32_b32 v{L4}, -1, 0")
    A(f"    v_mbcnt_hi_u32_b32 v{L4}, -1, v{L4}")
    A(f"    v_lshlrev_b32 v{L4}, 2, v{L4}")
    A(f"    v_mov_b32 v{X1}, {hex(SENT_LIST)}")
    A(f"    v_add_u32 v{X2}, s{S_ABASE}, v{L4}")
    A(f"    ds_write_b32 v{X2}, v{X1}")
    A(f"    ds_write_b32 v{X2}, v{X1} offset:256")
    A(f"    s_mov_b32 s{S_CNT}, 0")
    A.label("SLOW_SCAN")
    A(f"    s_cmp_ge_u32 s{S_POS}, {E*4}")
    A("    s_cbranch_scc1 SLOW_FLUSH")
    A(f"    s_cmp_gt_u32 s{S_CNT}, 64")
    A("    s_cbranch_scc1 SLOW_FLUSH")
    A(f"    buffer_load_dword v{X1}, v{L4}, s[{S_DST}:{S_DST+3}], s{S_POS} offen")
    A(f"    buffer_load_dword v{X2}, v{L4}, s[{S_SRC}:{S_SRC+3}], s{S_POS} offen")
    A(f"    s_add_u32 s{S_POS}, s{S_POS}, 256")
    A("    s_waitcnt vmcnt(0)")
    A(f"    v_subrev_u32 v{X1}, s{S_BASE}, v{X1}")
    A(f"    v_cmp_le_u32 s[68:69], s{S_LO}, v{X1}")
    A(f"    v_cmp_gt_u32 vcc, s{S_HIB}, v{X1}")
    A(f"    s_and_b64 vcc, vcc, s[68:69]")
    A(f"    v_lshl_or_b32 v{X2}, v{X2}, 9, v{X1}")
    A(f"    s_nop 0")
    A(f"    v_mbcnt_lo_u32_b32 v{X3}, vcc_lo, 0")
    A(f"    v_mbcnt_hi_u32_b32 v{X3}, vcc_hi, v{X3}")
    A(f"    v_add_u32 v{X3}, s{S_CNT}, v{X3}")
    A(f"    v_lshlrev_b32 v{X3}, 2, v{X3}")
    A(f"    v_add_u32 v{X3}, s{S_ABASE}, v{X3}")
    A(f"    s_bcnt1_i32_b64 s{S_T0}, vcc")
    A(f"    s_add_u32 s{S_CNT}, s{S_CNT}, s{S_T0}")
    A(f"    s_and_saveexec_b64 s[{S_EX}:{S_EX+1}], vcc")
    A(f"    ds_write_b32 v{X3}, v{X2}")
    A(f"    s_mov_b64 exec, s[{S_EX}:{S_EX+1}]")
    A("    s_branch SLOW_SCAN")
    A.label("SLOW_FLUSH")
    A(f"    s_add_u32 s{S_NU}, s{S_CNT}, 15")
    A(f"    s_lshr_b32 s{S_NU}, s{S_NU}, 4")
    A(f"    s_mov_b32 s{S_P}, 0")
    A(f"    s_mov_b32 s{S_PTR}, s{S_ABASE}")
    A("    s_waitcnt lgkmcnt(0)")
    A.label("SLOW_UNIT")
    A(f"    s_cmp_ge_u32 s{S_P}, s{S_NU}")
    A("    s_cbranch_scc1 SLOW_UNITS_DONE")
    A(f"    v_add_u32 v{V_T1}, s{S_PTR}, v{V_H4}")
    dma_entry_reads(A, V_T1)
    A("    s_waitcnt lgkmcnt(0)")
    for q in range(8):
        dma_one(A, q)
    A(f"    s_mov_b32 s{S_P2}, s{S_PTR}")
    A("    s_waitcnt vmcnt(0)")
    s_prefetch(A)
    unit_front(A, 0)
    unit_finish_plain(A, 0)
    den_mfma(A)
    for ft in range(16):
        agg_mfma(A, ft)
    A(f"    s_add_u32 s{S_P}, s{S_P}, 1")
    A(f"    s_add_u32 s{S_PTR}, s{S_PTR}, 64")
    A("    s_branch SLOW_UNIT")
    A.label("SLOW_UNITS_DONE")
    A(f"    s_cmp_lt_u32 s{S_POS}, {E*4}")
    A("    s_cbranch_scc1 SLOW_REFILL")
    A(f"    s_cmp_eq_u32 s{S_GRP}, 1")
    A("    s_cbranch_scc1 MAIN_DONE")
    A("    s_nop 7")
    emit_finb(A, after_loop=False)
    zero_acc(A)
    A(f"    s_mov_b32 s{S_GRP}, 1")
    A("    s_branch SLOW_GROUP")


def kd(name, vgpr, sgpr):
    return f""".amdhsa_kernel {name}
  .amdhsa_next_free_vgpr {vgpr}
  .amdhsa_next_free_sgpr {sgpr}
  .amdhsa_accum_offset {((vgpr+3)//4)*4}
  .amdhsa_group_segment_fixed_size 0
  .amdhsa_kernarg_size 72
  .amdhsa_user_sgpr_count 2
  .amdhsa_user_sgpr_kernarg_segment_ptr 1
  .amdhsa_system_sgpr_workgroup_id_x 1
  .amdhsa_float_denorm_mode_32 3
.end_amdhsa_kernel
"""


HEADER = """; Kernarg layout for this problem (72 bytes, ptrs only, base s[0:1]):
"""


def main():
    ap = argparse.ArgumentParser()
    ap.add_argument("-o", default="gather_scatter__graph_attention_gat__graph.s")
    ap.add_argument("--stamps", action="store_true")
    ap.add_argument("--ustamps", action="store_true")
    ap.add_argument("--gstamps", action="store_true")
    ap.add_argument("--fstamps", action="store_true")
    ap.add_argument("--tstamps", action="store_true")
    ap.add_argument("--nopk", type=int, default=0)
    ap.add_argument("--pstamps", action="store_true")
    ap.add_argument("--clk", action="store_true")
    ap.add_argument("--up", type=int, default=1)
    ap.add_argument("--wpos", default="A")
    ap.add_argument("--copies", type=int, default=1)
    ap.add_argument("--xpre", type=int, default=0)
    ap.add_argument("--wpre", type=int, default=10)
    ap.add_argument("--w3", type=int, default=2)
    ap.add_argument("--wlast", type=int, default=24)
    ap.add_argument("--wmin", type=int, default=6)
    ap.add_argument("--prio", type=int, default=2)
    ap.add_argument("--skip", type=int, default=0)
    ap.add_argument("--bar0", type=int, default=0)
    ap.add_argument("--xt", type=int, default=0)
    ap.add_argument("--ost", default="")
    ap.add_argument("--pst", default="")
    ap.add_argument("--vlate", type=int, default=1)
    ap.add_argument("--gprio", type=int, default=1)
    ap.add_argument("--gpa", type=int, default=13)
    ap.add_argument("--gpb", type=int, default=19)
    ap.add_argument("--mall", type=int, default=1)
    ap.add_argument("--xoff", type=int, default=0)
    ap.add_argument("--xhalf", type=int, default=0)
    ap.add_argument("--pa", type=int, default=2)
    ap.add_argument("--pb", type=int, default=4)
    ap.add_argument("--wlook", type=int, default=12)
    ap.add_argument("--wone", type=int, default=1)
    ap.add_argument("--zero2", type=int, default=1)
    ap.add_argument("--bring", type=int, default=4)
    ap.add_argument("--wspread", type=int, default=8)
    a = ap.parse_args()
    opt.__dict__.update(a.__dict__)
    opt.ost = (" " + opt.ost.replace("_", " ")) if opt.ost else ""
    opt.pst = (" " + opt.pst.replace("_", " ")) if opt.pst else ""
    A = Asm()
    B = Asm()
    gen_prep(B)
    gen_main(B)
    A(HEADER.rstrip("\n"))
    A(f"; @launch kernel=gat_prep_kernel grid=({opt.nprep},1,1) block=(640,1,1) lds=43520")
    A(f"; @launch kernel=gather_scatter__graph_attention_gat__graph_kernel grid=({NT},1,1) block=(512,1,1) lds={LDS_MAIN}")
    A('.amdgcn_target "amdgcn-amd-amdhsa--gfx950"')
    A(".text")
    A.lines += B.lines
    A('.section .rodata,"a"')
    A(".p2align 6")
    A(kd("gat_prep_kernel", 80, 102 if opt.stamps else 48))
    A(".p2align 6")
    A(kd("gather_scatter__graph_attention_gat__graph_kernel", 256, 102 if opt.stamps else 96))
    open(opt.o, "w").write(A.text())
    print("wrote", opt.o, len(A.lines), "lines")


if __name__ == "__main__":
    main()
```

```python
import sys, argparse

N = 10000; E = 160000; TILE = 40; NT = 250; G = 64; CH = 2500
WS_SLOTS = 0
WS_V = 0x1F8000
WS_WF = 0x200000
WS_STAMP = 0x700000
REGSZ = 17408; UNIT = 8704; PAIR = 1088; RROW = 2080
AGG1 = 8 * REGSZ
LISTS = AGG1 + 8 * RROW
LSZ = 704
TBUF = LISTS + 8 * LSZ
CNT = TBUF + 768
OVF = CNT + 64
LDS_MAIN = CNT + 128
VLDS = AGG1
CAPA = 128; CAPB = 48
SENT_LIST = 0x7FFFFE3F
LOG2E = 0x3FB8AA3B


class Asm:
    def __init__(self):
        self.lines = []
    def __call__(self, s=""):
        for l in s.split("\n"):
            self.lines.append(l)
    def label(self, n):
        self.lines.append(n + ":")
    def text(self):
        return "\n".join(self.lines) + "\n"


class Opt:
    pass
opt = Opt()
_ul = [0]
def uid(p):
    _ul[0] += 1
    return f"{p}_{_ul[0]}"


def stamp(A, i):
    if opt.stamps and not opt.ustamps and not opt.gstamps and not opt.pstamps and not opt.fstamps and not opt.tstamps:
        A(f"    {'s_memtime' if opt.clk else 's_memrealtime'} s[{82+2*i}:{83+2*i}]")
def ustamp(A, p, i):
    if opt.stamps and opt.ustamps:
        l = uid("US")
        A(f"    s_cmp_eq_u32 s{S_P}, {p}")
        A(f"    s_cbranch_scc0 {l}")
        A(f"    s_memtime s[{82+2*i}:{83+2*i}]")
        A.label(l)
def pstamp(A):
    if opt.stamps and opt.pstamps:
        for p in range(8):
            l = uid("PS")
            A(f"    s_cmp_eq_u32 s{S_P}, {p}")
            A(f"    s_cbranch_scc0 {l}")
            A(f"    s_memtime s[{82+2*p}:{83+2*p}]")
            A.label(l)
def fstamp(A, i):
    if opt.stamps and opt.fstamps:
        A(f"    s_memtime s[{82+2*i}:{83+2*i}]")
def tstamp(A, i):
    if opt.stamps and opt.tstamps:
        A(f"    s_memtime s[{82+2*i}:{83+2*i}]")
def gstamp(A, i):
    if opt.stamps and opt.gstamps:
        A(f"    s_memtime s[{82+2*i}:{83+2*i}]")
def stamp_flush(A, wsbase, area):
    if not opt.stamps:
        return
    A("    s_waitcnt lgkmcnt(0)")
    A(f"    s_mov_b32 s76, s{wsbase}\n    s_mov_b32 s77, s{wsbase+1}\n    s_mov_b32 s78, 0x800000\n    s_mov_b32 s79, 0x00020000")
    A(f"    s_lshl_b32 s80, s2, 4")
    A(f"    s_add_u32 s80, s80, s100")
    A(f"    s_lshl_b32 s80, s80, 6")
    A(f"    s_add_u32 s80, s80, {WS_STAMP+area}")
    A("    s_mov_b64 exec, 1")
    A("    v_mov_b32 v1, 0")
    for i in range(9):
        A(f"    v_mov_b32 v2, s{82+2*i}")
        A(f"    buffer_store_dword v2, v1, s[76:79], s80 offen offset:{4*i}")
        A("    s_nop 1")


def srd(A, d, base, nbytes):
    A(f"    s_mov_b32 s{d}, s{base}")
    A(f"    s_mov_b32 s{d+1}, s{base+1}")
    A(f"    s_mov_b32 s{d+2}, {nbytes}")
    A(f"    s_mov_b32 s{d+3}, 0x00020000")


def x_touch(A, sbase, vaddr, vdst, ssrd, stmp):
    if not opt.xpre:
        return
    srd(A, ssrd, sbase, N * 512)
    A(f"    s_lshr_b32 s{stmp}, s2, 3")
    A(f"    s_mul_i32 s{stmp}, s{stmp}, 640")
    A(f"    v_add_u32 v{vaddr}, s{stmp}, v0")
    A(f"    v_lshlrev_b32 v{vaddr}, 7, v{vaddr}")
    for r in range(opt.xpre):
        A(f"    s_mov_b32 s{stmp}, {r*20480*128}")
        A(f"    buffer_load_dword v{vdst}, v{vaddr}, s[{ssrd}:{ssrd+3}], s{stmp} offen")


def ws_bytes():
    return WS_WF + opt.copies * 524288


def gen_prep(A):
    K = "gat_prep_kernel"
    NWG_W = 16 * opt.copies
    V0 = 64 + NWG_W
    X0 = V0 + 32
    NPREP = 256 if opt.xpre else X0 + (63 if opt.mall else 0)
    opt.nprep = NPREP
    A(f".globl {K}\n.p2align 8\n.type {K},@function\n{K}:")
    A(f"    s_cmp_ge_u32 s2, {NPREP}")
    A("    s_cbranch_scc1 PREP_END")
    stamp(A, 0)
    if opt.stamps:
        A("    v_lshrrev_b32 v1, 6, v0\n    s_nop 1\n    v_readfirstlane_b32 s100, v1")
    A("    s_cmp_ge_u32 s2, 64")
    A("    s_cbranch_scc1 PREP_NB")
    A("    s_load_dwordx4 s[4:7], s[0:1], 8")
    A("    s_load_dwordx2 s[10:11], s[0:1], 64     ; ws")
    A("    s_load_dwordx2 s[12:13], s[0:1], 0      ; x")
    A("    v_lshlrev_b32 v1, 4, v0")
    for i in range(4):
        A(f"    v_mov_b32 v{4+i}, -1")
    A("    v_lshlrev_b32 v2, 2, v0")
    A("    v_mov_b32 v3, 0")
    A("    s_mul_i32 s28, s2, 10000")
    A("    v_add_u32 v30, s28, v1")
    A("    s_waitcnt lgkmcnt(0)")
    stamp(A, 1)
    srd(A, 20, 6, E * 4)
    A("    buffer_load_dwordx4 v[8:11], v30, s[20:23], 0 offen      ; dst")
    srd(A, 16, 4, E * 4)
    A("    buffer_load_dwordx4 v[12:15], v30, s[16:19], 0 offen     ; src")
    srd(A, 24, 10, ws_bytes())
    x_touch(A, 12, 31, 32, 36, 40)
    for r in range(4):
        A(f"    ds_write_b128 v1, v[4:7] offset:{10240*r}")
    A("    ds_write_b32 v2, v3 offset:40960")
    A("    v_cmp_gt_u32 vcc, 625, v0")
    A("    s_mov_b32 s29, 52429")
    A("    v_mov_b32 v3, 1")
    A("    v_mov_b32 v28, 32000")
    A("    s_waitcnt lgkmcnt(0)")
    A("    s_barrier")
    A("    s_and_saveexec_b64 s[30:31], vcc")
    A(f"    s_waitcnt vmcnt({1+opt.xpre})")
    stamp(A, 2)
    for i in range(4):
        A(f"    v_mul_u32_u24 v{16+i}, s29, v{8+i}")
        A(f"    v_lshrrev_b32 v{16+i}, 21, v{16+i}       ; tile")
        A(f"    v_lshlrev_b32 v{20+i}, 2, v{16+i}")
        A(f"    ds_add_rtn_u32 v{24+i}, v{20+i}, v3 offset:40960")
    A(f"    s_waitcnt vmcnt({opt.xpre})")
    for i in range(4):
        A(f"    v_mul_u32_u24 v4, 40, v{16+i}")
        A(f"    v_sub_u32 v4, v{8+i}, v4")
        A(f"    v_lshl_or_b32 v{12+i}, v{12+i}, 9, v4    ; entry")
        A(f"    v_lshlrev_b32 v{16+i}, 7, v{16+i}        ; tile*128")
    for i in range(4):
        A(f"    s_waitcnt lgkmcnt({3-i})")
        A(f"    v_cmp_gt_u32 vcc, 32, v{24+i}")
        A(f"    v_lshl_add_u32 v4, v{24+i}, 2, v{16+i}")
        A(f"    s_nop 0")
        A(f"    v_cndmask_b32 v{20+i}, v28, v4, vcc")
    for i in range(4):
        A(f"    ds_write_b32 v{20+i}, v{12+i}")
    A("    s_mov_b64 exec, s[30:31]")
    A("    s_lshl_b32 s28, s2, 7                    ; chunk*128")
    A("    v_and_b32 v2, 7, v0                      ; part (640 % 8 == 0)")
    A("    v_lshrrev_b32 v3, 3, v0")
    A("    v_lshlrev_b32 v29, 2, v3")
    A("    v_lshlrev_b32 v4, 4, v2")
    A("    v_lshl_add_u32 v4, v3, 13, v4")
    A("    v_add_u32 v4, s28, v4")
    A("    v_cmp_eq_u32 s[32:33], 7, v2")
    A("    v_cmp_gt_u32 vcc, 80, v0")
    A("    s_mov_b64 s[34:35], vcc")
    A("    v_mov_b32 v5, 0x7ffffff0")
    A("    v_mov_b32 v6, -2")
    A("    s_waitcnt lgkmcnt(0)")
    A("    s_barrier")
    stamp(A, 3)
    for r in range(4):
        A(f"    ds_read_b128 v[{8+4*r}:{11+4*r}], v1 offset:{10240*r}")
        A(f"    ds_read_b32 v{24+r}, v29 offset:{40960 + 320*r}")
    for r in range(4):
        A(f"    s_waitcnt lgkmcnt({6-2*r})")
        A(f"    v_cmp_lt_u32 vcc, 32, v{24+r}")
        A(f"    s_and_b64 vcc, vcc, s[32:33]")
        A(f"    v_add_u32 v7, {80*8192*r}, v4")
        if r == 3:
            A(f"    v_cndmask_b32 v7, v5, v7, s[34:35]")
        A(f"    s_nop 0")
        A(f"    v_cndmask_b32 v{11+4*r}, v{11+4*r}, v6, vcc")
        A(f"    buffer_store_dwordx4 v[{8+4*r}:{11+4*r}], v7, s[24:27], 0 offen{opt.pst}")
    stamp(A, 4)
    if opt.stamps:
        A("    s_waitcnt vmcnt(0)")
    stamp(A, 5)
    stamp_flush(A, 10, 0x40000)
    A("    s_endpgm")
    A.label("PREP_NB")
    if opt.mall:
        A(f"    s_cmp_ge_u32 s2, {X0}")
        A("    s_cbranch_scc1 PREP_M")
    if opt.xpre:
        A(f"    s_cmp_ge_u32 s2, {X0}")
        A("    s_cbranch_scc1 PREP_X")
    A("    s_load_dwordx2 s[8:9], s[0:1], 24       ; w")
    A("    s_load_dwordx4 s[12:15], s[0:1], 32")
    A("    s_load_dwordx2 s[10:11], s[0:1], 64     ; ws")
    A("    s_load_dwordx2 s[42:43], s[0:1], 0      ; x")
    A("    s_sub_u32 s28, s2, 64                    ; idx")
    A("    v_lshrrev_b32 v1, 6, v0")
    A("    s_nop 0")
    cs = {1: 0, 2: 1, 4: 2, 8: 3}[opt.copies]
    A(f"    s_and_b32 s27, s28, {opt.copies-1}       ; copy")
    A(f"    s_lshr_b32 s28, s28, {cs}")
    A("    v_readfirstlane_b32 s29, v1              ; wave")
    A("    s_waitcnt lgkmcnt(0)")
    stamp(A, 1)
    srd(A, 16, 8, 524288)
    srd(A, 36, 10, ws_bytes())
    A(f"    s_cmp_ge_u32 s2, {V0}")
    A("    s_cbranch_scc1 PREP_V")
    A("    s_cmp_ge_u32 s29, 8")
    A("    s_cbranch_scc1 PREP_END")
    A("    s_lshl_b32 s30, s28, 15                  ; kp*2*16384")
    A("    s_add_u32 s33, s30, 16384")
    A("    v_lshrrev_b32 v1, 7, v0                  ; g")
    A("    v_and_b32 v2, 127, v0                    ; fp")
    A("    v_lshlrev_b32 v3, 11, v1")
    A("    v_lshl_add_u32 v3, v2, 2, v3             ; g*2048 + fp*4")
    A("    v_add_u32 v4, 8192, v3")
    for half, so in ((0, 30), (1, 33)):
        for j in range(4):
            A(f"    buffer_load_dword v{8+8*half+j}, v3, s[16:19], s{so} offen offset:{512*j}")
        for j in range(4):
            A(f"    buffer_load_dword v{12+8*half+j}, v4, s[16:19], s{so} offen offset:{512*j}")
    x_touch(A, 42, 41, 42, 44, 40)
    A("    v_lshrrev_b32 v5, 4, v2")
    A("    v_lshlrev_b32 v5, 16, v5")
    A("    v_bfe_u32 v6, v2, 1, 1")
    A("    v_lshl_add_u32 v5, v6, 10, v5")
    A("    v_lshl_add_u32 v5, v1, 8, v5             ; 16g*16")
    A("    v_bfe_u32 v6, v2, 2, 2")
    A("    v_lshl_add_u32 v5, v6, 6, v5             ; 4*gi*16")
    A("    v_and_b32 v6, 1, v2")
    A("    v_lshl_add_u32 v5, v6, 5, v5             ; 2*(fp&1)*16")
    A("    s_lshl_b32 s31, s28, 12                  ; kp*2*2048")
    A("    s_lshl_b32 s32, s27, 19                  ; copy*524288")
    A("    s_add_u32 s31, s31, s32")
    A(f"    s_add_u32 s31, s31, {WS_WF}")
    A("    s_mov_b32 s34, 0x05040100")
    A("    s_mov_b32 s35, 0x07060302")
    for half in range(2):
        A(f"    s_waitcnt vmcnt({(8 if half == 0 else 2) + opt.xpre})")
        if half == 0:
            stamp(A, 2)
        b = 8 + 8 * half; d = 24 + 8 * half
        for i in range(4):
            A(f"    v_perm_b32 v{d+i}, v{b+1+2*i}, v{b+2*i}, s34")
            A(f"    v_perm_b32 v{d+4+i}, v{b+1+2*i}, v{b+2*i}, s35")
        A(f"    buffer_store_dwordx4 v[{d}:{d+3}], v5, s[36:39], s31 offen offset:{2048*half}{opt.pst}")
        A(f"    buffer_store_dwordx4 v[{d+4}:{d+7}], v5, s[36:39], s31 offen offset:{2048*half+16}{opt.pst}")
    stamp(A, 4)
    if opt.stamps:
        A("    s_waitcnt vmcnt(0)")
    stamp(A, 5)
    stamp_flush(A, 10, 0x40000)
    A("    s_endpgm")
    A.label("PREP_V")
    A("    s_cmp_ge_u32 s29, 2")
    A("    s_cbranch_scc1 PREP_END")
    A(f"    s_sub_u32 s30, s2, {V0}")
    A("    s_lshl_b32 s30, s30, 1")
    A("    s_add_u32 s30, s30, s29")
    A("    s_lshr_b32 s31, s30, 4                   ; h")
    srd(A, 20, 12, 2048)
    srd(A, 24, 14, 2048)
    A("    v_and_b32 v1, 63, v0")
    A("    v_and_b32 v2, 15, v1                     ; i / c")
    A("    v_lshrrev_b32 v3, 4, v1                  ; g")
    A("    v_lshlrev_b32 v4, 9, v2")
    A("    v_lshl_add_u32 v4, v3, 4, v4             ; i*512 + g*16")
    A("    s_lshl_b32 s32, s30, 13")
    A("    v_lshlrev_b32 v5, 4, v3                  ; g*16")
    A("    s_lshl_b32 s33, s31, 9                   ; h*512")
    for kk in range(8):
        A(f"    buffer_load_dwordx4 v[{8+4*kk}:{11+4*kk}], v4, s[16:19], s32 offen offset:{64*kk}")
    A("    v_and_b32 v6, 1, v2")
    A("    v_cmp_eq_u32 vcc, 0, v6")
    A("    s_mov_b64 s[40:41], exec")
    A("    s_mov_b64 exec, vcc")
    for kk in range(8):
        A(f"    buffer_load_dwordx4 v[{40+4*kk}:{43+4*kk}], v5, s[20:23], s33 offen offset:{64*kk}")
    A("    s_andn2_b64 exec, s[40:41], vcc")
    for kk in range(8):
        A(f"    buffer_load_dwordx4 v[{40+4*kk}:{43+4*kk}], v5, s[24:27], s33 offen offset:{64*kk}")
    A("    s_mov_b64 exec, s[40:41]")
    A("    s_lshl_b32 s32, s30, 5")
    A(f"    s_add_u32 s32, s32, {WS_V}")
    A("    v_lshlrev_b32 v7, 3, v3")
    A("    v_lshl_add_u32 v7, v6, 11, v7")
    A("    v_cmp_gt_u32 vcc, 2, v2")
    A(f"    s_mov_b32 s33, {LOG2E}")
    A("    s_waitcnt vmcnt(0)")
    for kk in range(8):
        c = "0" if kk == 0 else "v[72:75]"
        A(f"    v_mfma_f32_16x16x32_bf16 v[72:75], v[{8+4*kk}:{11+4*kk}], v[{40+4*kk}:{43+4*kk}], {c}")
    A("    s_nop 7")
    for r in range(4):
        A(f"    v_mul_f32 v{72+r}, s33, v{72+r}")
    A("    v_cvt_pk_bf16_f32 v76, v72, v73")
    A("    v_cvt_pk_bf16_f32 v77, v74, v75")
    A("    s_and_saveexec_b64 s[40:41], vcc")
    A(f"    buffer_store_dwordx2 v[76:77], v7, s[36:39], s32 offen{opt.pst}")
    stamp(A, 4)
    if opt.stamps:
        A("    s_waitcnt vmcnt(0)")
    stamp(A, 5)
    stamp_flush(A, 10, 0x40000)
    A("    s_endpgm")
    if opt.xpre:
        A.label("PREP_X")
        A("    s_load_dwordx2 s[8:9], s[0:1], 0         ; x")
        if opt.stamps:
            A("    s_load_dwordx2 s[10:11], s[0:1], 64     ; ws")
        A("    s_waitcnt lgkmcnt(0)")
        stamp(A, 1)
        x_touch(A, 8, 1, 2, 16, 28)
        if opt.stamps:
            A("    s_waitcnt vmcnt(0)")
        stamp(A, 4)
        stamp(A, 5)
        stamp_flush(A, 10, 0x40000)
    if opt.mall:
        A("    s_endpgm")
        A.label("PREP_M")
        A("    s_load_dwordx2 s[8:9], s[0:1], 0         ; x")
        A(f"    s_sub_u32 s28, s2, {X0}")
        A("    s_mul_i32 s28, s28, 640")
        A("    v_add_u32 v1, s28, v0")
        A("    v_lshlrev_b32 v1, 7, v1")
        A("    s_waitcnt lgkmcnt(0)")
        srd(A, 16, 8, N * 512)
        A("    buffer_load_dword v2, v1, s[16:19], 0 offen")
    A.label("PREP_END")
    A("    s_endpgm")


V_TMP = 0; V_DMAC = 1; V_SADDR = 2; V_TE = 3; V_TO = 4; V_G16 = 5; V_H4 = 6; V_TGT = 7; V_TQ = 8
V_PT = 12; V_E = 16; V_D = 20; V_S = 28; V_DEN = 32; V_X = 36; V_ONES = 224
V_TGTA = 40; V_TA = 41; V_T1 = 42; V_T2 = 43; V_T3 = 44; V_WOFF = 45; V_FE = 46; V_FO = 47
V_R = 48; V_SCR = 64; V_V = 128; V_ACC = 160
V_ACC2 = 40
S_X = 4; S_WS = 8; S_OUT = 12; S_SRC = 16; S_DST = 20
S_W = 24; S_NA = 25; S_NB = 26; S_NU = 27; S_P = 28; S_PTR = 29; S_M0 = 30; S_DELTA = 31
S_MSK = 32
S_HI = 40; S_T0 = 41; S_T1 = 42; S_T2 = 43; S_ABASE = 44; S_REG = 45; S_P2 = 46; S_WF = 47; S_EX = 48
S_C02 = 50; S_FIRST = 52; S_K = 53; S_KA = 54; S_KB = 55
S_J1 = 70; S_J2 = 72; S_J3 = 74


def lane_cg(A, vl, vc, vg):
    A(f"    v_mbcnt_lo_u32_b32 v{vl}, -1, 0")
    A(f"    v_mbcnt_hi_u32_b32 v{vl}, -1, v{vl}")
    A(f"    v_and_b32 v{vc}, 15, v{vl}")
    A(f"    v_lshrrev_b32 v{vg}, 4, v{vl}")


def dma_one(A, q, between=None):
    if q == 0:
        A(f"    s_mov_b32 m0, s{S_M0}")
    else:
        A(f"    s_add_u32 m0, s{S_M0}, {PAIR*q}")
    A(f"    v_and_or_b32 v{V_D+q}, v{V_D+q}, s{S_HI}, v{V_DMAC}")
    if between:
        between()
    A(f"    buffer_load_dwordx4 v{V_D+q}, s[{S_X}:{S_X+3}], 0 offen lds")


def wait_vm_dyn(A, sreg, base, lo=0, hi=8):
    end = uid("WV")
    def rec(a, b):
        if a == b:
            A(f"    s_waitcnt vmcnt({base + a})")
            A(f"    s_branch {end}")
            return
        m = (a + b + 1) // 2
        l = uid("WV")
        A(f"    s_cmp_ge_u32 s{sreg}, {m}")
        A(f"    s_cbranch_scc1 {l}")
        rec(a, m - 1)
        A.label(l)
        rec(m, b)
    rec(lo, hi)
    A.label(end)


def dma_partial(A, sreg, zero_fill, rev=False):
    end = uid("DP")
    zl = [uid("DZ") for _ in range(8)]
    order = list(range(7, -1, -1)) if rev else list(range(8))
    for n, q in enumerate(order):
        if n > 0:
            A(f"    s_cmp_gt_u32 s{sreg}, {n}")
            A(f"    s_cbranch_scc0 {zl[n] if zero_fill else end}")
        dma_one(A, q)
    if zero_fill:
        A(f"    s_branch {end}")
        for n in range(1, 8):
            A.label(zl[n])
            A(f"    ds_write_b128 v{V_T2}, v[{V_S}:{V_S+3}] offset:{PAIR*order[n]}")
    A.label(end)


def unit_k(A, sq):
    A(f"    s_add_u32 s{S_T2}, s{sq}, 1")
    A(f"    s_cmp_eq_u32 s{S_T2}, s{S_NU}")
    A(f"    s_cselect_b32 s{S_K}, s{S_KA}, 8")


def dma_entry_reads(A, addr_v):
    for i in range(4):
        A(f"    ds_read2_b32 v[{V_D+2*i}:{V_D+2*i+1}], v{addr_v} offset0:{4*i} offset1:{4*i+2}")


def s_prefetch(A, between=None):
    A(f"    v_add_u32 v{V_TMP}, s{S_PTR}, v{V_G16}")
    if between: between(0)
    A(f"    ds_read_b128 v[{V_E}:{V_E+3}], v{V_TMP}")
    for kk in range(4):
        if between: between(1 + kk)
        A(f"    ds_read_b128 v[{V_R+4*kk}:{V_R+4*kk+3}], v{V_SADDR} offset:{64*kk}")


def s_mfma(A, kk):
    c = f"v[{V_TQ}:{V_TQ+3}]" if kk == 0 else f"v[{V_S}:{V_S+3}]"
    r = V_R + 4 * (kk & 3)
    if opt.exp == "nos" and kk > 0:
        A("    s_nop 0")
        return
    A(f"    v_mfma_f32_16x16x32_bf16 v[{V_S}:{V_S+3}], v[{r}:{r+3}], v[{V_V+4*kk}:{V_V+4*kk+3}], {c}")


def unit_front(A, par=0):
    q = ["E", "S0", "S1", "S2", "S3"]
    def wait(tag):
        idx = q.index(tag)
        return min(14, len(q) - 1 - idx)
    A(f"    v_add_u32 v{V_T1}, s{S_P2}, v{V_H4}")
    for kk in range(7):
        A(f"    s_waitcnt lgkmcnt({wait('S%d' % kk)})")
        s_mfma(A, kk)
        if kk < 4:
            r = V_R + 4 * kk
            A(f"    ds_read_b128 v[{r}:{r+3}], v{V_SADDR} offset:{64*(kk+4)}")
            q.append("S%d" % (kk + 4))
            for ft in range(4 * kk, 4 * kk + 4):
                a0 = V_SCR + 4 * ft + 2 * par
                A(f"    ds_read_b64_tr_b16 v[{a0}:{a0+1}], v{V_TE if ft % 2 == 0 else V_TO} offset:{32*ft}")
                q.append("T")
            if kk == 3:
                dma_entry_reads(A, V_T1)
                q += ["D"] * 4


def p_ops(par):
    ops = []
    for r in range(4):
        ops.append(f"    v_cmp_eq_u32_sdwa s[{S_MSK+2*r}:{S_MSK+2*r+1}], v{V_E+r}, v{V_TGT} src0_sel:BYTE_0 src1_sel:DWORD")
    grp = [ops]
    grp.append([f"    v_pk_mul_f32 v[{V_X}:{V_X+1}], v[{V_S}:{V_S+1}], s[{S_C02}:{S_C02+1}] op_sel_hi:[1,0]",
                f"    v_pk_mul_f32 v[{V_X+2}:{V_X+3}], v[{V_S+2}:{V_S+3}], s[{S_C02}:{S_C02+1}] op_sel_hi:[1,0]"])
    grp.append([f"    v_max_f32 v{V_X+r}, v{V_X+r}, v{V_S+r}" for r in range(4)])
    grp.append([f"    v_exp_f32 v{V_X+r}, v{V_X+r}" for r in range(4)])
    grp.append([f"    v_cndmask_b32 v{V_X+r}, 0, v{V_X+r}, s[{S_MSK+2*r}:{S_MSK+2*r+1}]" for r in range(4)])
    grp.append([f"    v_cvt_pk_bf16_f32 v{V_PT+2*par}, v{V_X}, v{V_X+1}",
                f"    v_cvt_pk_bf16_f32 v{V_PT+2*par+1}, v{V_X+2}, v{V_X+3}"])
    return grp


def unit_finish_plain(A, par=0):
    A("    s_waitcnt lgkmcnt(0)")
    s_mfma(A, 7)
    g = p_ops(par)
    for l in g[0]: A(l)
    A("    s_nop 3")
    for grp in g[1:]:
        for l in grp: A(l)
    A("    s_nop 1")


def agg_mfma(A, ft, first=False, k32=False):
    c = "0" if first else f"v[{V_ACC+4*ft}:{V_ACC+4*ft+3}]"
    a = V_SCR + 4 * ft
    if k32:
        A(f"    v_mfma_f32_16x16x32_bf16 v[{V_ACC+4*ft}:{V_ACC+4*ft+3}], v[{a}:{a+3}], v[{V_PT}:{V_PT+3}], {c}")
    else:
        A(f"    v_mfma_f32_16x16x16_bf16 v[{V_ACC+4*ft}:{V_ACC+4*ft+3}], v[{a}:{a+1}], v[{V_PT}:{V_PT+1}], {c}")


def den_mfma(A, first=False, k32=False):
    c = "0" if first else f"v[{V_DEN}:{V_DEN+3}]"
    if k32:
        A(f"    v_mfma_f32_16x16x32_bf16 v[{V_DEN}:{V_DEN+3}], v[{V_ONES}:{V_ONES+3}], v[{V_PT}:{V_PT+3}], {c}")
    else:
        A(f"    v_mfma_f32_16x16x16_bf16 v[{V_DEN}:{V_DEN+3}], v[{V_ONES}:{V_ONES+1}], v[{V_PT}:{V_PT+1}], {c}")


def unit_tail(A, dma, nxt, agg, first, par):
    k32 = agg == "k32"
    pend = list(range(16)) if agg else []
    def mf():
        if pend:
            agg_mfma(A, pend.pop(0), first, k32)
            return True
        return False
    g = p_ops(par)
    A("    s_waitcnt lgkmcnt(0)")
    s_mfma(A, 7)
    if dma == "full":
        for q in range(2):
            dma_one(A, q)
        for l in g[0]: A(l)
        for i, grp in enumerate(g[1:]):
            for l in grp: A(l)
            dma_one(A, 2 + i) if i < 5 else None
        dma_one(A, 7)
    elif dma == "part":
        for l in g[0]: A(l)
        dma_partial(A, S_K, False)
        A("    s_nop 1")
        for grp in g[1:]:
            for l in grp: A(l)
        A("    s_nop 1")
    else:
        for l in g[0]: A(l)
        A("    s_nop 3")
        for grp in g[1:]:
            for l in grp: A(l)
        A("    s_nop 1")
    if agg:
        den_mfma(A, first, k32)
    for q in range(8):
        mf()
    A(f"    v_add_u32 v{V_SADDR}, s{S_DELTA}, v{V_SADDR}")
    A(f"    s_add_u32 s{S_PTR}, s{S_PTR}, 64")
    if nxt:
        if dma == "part":
            wait_vm_dyn(A, S_K, 0, 1, 7)
        else:
            A(f"    s_waitcnt vmcnt({8 if dma else 0})")
        s_prefetch(A, between=lambda i: mf())
    while mf():
        pass
    A(f"    v_add_u32 v{V_TE}, s{S_DELTA}, v{V_TE}")
    A(f"    v_add_u32 v{V_TO}, s{S_DELTA}, v{V_TO}")
    A(f"    s_add_u32 s{S_M0}, s{S_M0}, s{S_DELTA}")
    A(f"    s_sub_u32 s{S_DELTA}, 0, s{S_DELTA}")
    A(f"    s_add_u32 s{S_P}, s{S_P}, 1")
    if agg:
        A(f"    s_mov_b32 s{S_FIRST}, 0")


def finalize(A, stage, after_pair=None, fs=False):
    A(f"    v_add_f32 v{V_X}, 0x3089705f, v{V_DEN}        ; + 1e-9")
    A(f"    v_rcp_f32 v{V_X}, v{V_X}")
    A("    s_nop 0")
    A(f"    v_mul_f32 v{V_X}, 0x3e800000, v{V_X}")
    if fs: fstamp(A, 1)
    for u in range(8):
        if fs and u == 4: fstamp(A, 2)
        sq = stage + 4 * (u & 3)
        for half in range(2):
            a = V_ACC + 4 * (2 * u + half)
            if opt.nopk:
                for r in range(4):
                    A(f"    v_mul_f32 v{a+r}, v{V_X}, v{a+r}")
            else:
                A(f"    v_pk_mul_f32 v[{a}:{a+1}], v[{a}:{a+1}], v[{V_X}:{V_X+1}] op_sel_hi:[1,0]")
                A(f"    v_pk_mul_f32 v[{a+2}:{a+3}], v[{a+2}:{a+3}], v[{V_X}:{V_X+1}] op_sel_hi:[1,0]")
        for half in range(2):
            a = V_ACC + 4 * (2 * u + half)
            A(f"    v_cvt_pk_bf16_f32 v{sq+2*half}, v{a}, v{a+1}")
            A(f"    v_cvt_pk_bf16_f32 v{sq+2*half+1}, v{a+2}, v{a+3}")
        ad = V_FE if u % 2 == 0 else V_FO
        A(f"    ds_write_b128 v{ad}, v[{sq}:{sq+3}] offset:{64*u}")
        if after_pair:
            after_pair(u)


def fin_addr(A, vc, vg):
    A(f"    v_and_b32 v{V_T1}, 3, v{vc}                ; h")
    A(f"    v_lshl_add_u32 v{V_FE}, v{V_T1}, 9, v{V_FE}")
    A(f"    v_and_b32 v{V_T2}, 1, v{V_T1}")
    A(f"    v_xor_b32 v{V_T2}, v{V_T2}, v{vg}")
    A(f"    v_lshl_add_u32 v{V_FE}, v{V_T2}, 4, v{V_FE}")
    A(f"    v_lshrrev_b32 v{V_T1}, 1, v{V_T1}")
    A(f"    v_lshlrev_b32 v{V_T1}, 6, v{V_T1}          ; 64*h1")
    A(f"    v_sub_u32 v{V_FO}, v{V_FE}, v{V_T1}")
    A(f"    v_add_u32 v{V_FE}, v{V_FE}, v{V_T1}")


def zero_acc(A):
    for i in range(64):
        A(f"    v_mov_b32 v{V_ACC+i}, 0")
    for i in range(4):
        A(f"    v_mov_b32 v{V_DEN+i}, 0")


def wslot(ks):
    k = ks & 15
    if k < 3:
        return 232 + 8 * k
    if k < 15:
        return 64 + 8 * (k - 3)
    return 224


def w_load(A, ks, dst, voff=V_WOFF):
    A(f"    s_add_u32 s{S_T0}, s{S_WF}, {ks*2048}")
    A(f"    buffer_load_dwordx4 v[{dst}:{dst+3}], v{voff}, s[{S_WS}:{S_WS+3}], s{S_T0} offen")
    A(f"    buffer_load_dwordx4 v[{dst+4}:{dst+7}], v{voff}, s[{S_WS}:{S_WS+3}], s{S_T0} offen offset:1024")


def emit_finb(A, after_loop=True):
    l = uid("FB")
    A(f"    s_cmp_lg_u32 s{S_NB}, 0")
    A(f"    s_cbranch_scc1 {l}")
    zero_acc(A)
    A.label(l)
    A(f"    v_add_f32 v{V_X}, 0x3089705f, v{V_DEN}        ; + 1e-9")
    A(f"    v_rcp_f32 v{V_X}, v{V_X}")
    for j, m in ((1, S_J1), (2, S_J2), (3, S_J3)):
        for i in range(16):
            A(f"    v_cndmask_b32 v{V_ACC+i}, v{V_ACC+i}, v{V_ACC+16*j+i}, s[{m}:{m+1}]")
            if j == 1 and i == 0:
                A(f"    v_mul_f32 v{V_X}, 0x3e800000, v{V_X}")
    if after_loop: fstamp(A, 1)
    for i in range(8):
        a = V_ACC + 2 * i
        A(f"    v_pk_mul_f32 v[{a}:{a+1}], v[{a}:{a+1}], v[{V_X}:{V_X+1}] op_sel_hi:[1,0]")
    for i in range(8):
        a = V_ACC + 2 * i
        A(f"    v_cvt_pk_bf16_f32 v{V_SCR+i}, v{a}, v{a+1}")
    if after_loop: fstamp(A, 2)
    A(f"    ds_write_b128 v{V_FE}, v[{V_SCR}:{V_SCR+3}]")
    A(f"    ds_write_b128 v{V_FO}, v[{V_SCR+4}:{V_SCR+7}] offset:64")
    if after_loop: fstamp(A, 3)
    A(f"    v_mov_b32 v{V_TGT}, v{V_TGTA}")
    for i in range(4):
        A(f"    v_mov_b32 v{V_TQ+i}, v{V_TA}")
    lane_cg(A, V_T3, V_X + 2, V_X + 3)
    A(f"    s_and_b32 s{S_T0}, s{S_W}, 1")
    A(f"    s_lshl_b32 s{S_T0}, s{S_T0}, 7")
    A(f"    s_add_u32 s{S_T0}, s{S_T0}, s{S_REG}")
    A(f"    v_lshrrev_b32 v{V_FE}, 2, v{V_X+2}")
    A(f"    v_mul_u32_u24 v{V_FE}, {RROW}, v{V_FE}")
    A(f"    v_add_u32 v{V_FE}, s{S_T0}, v{V_FE}")
    fin_addr(A, V_X + 2, V_X + 3)
    A(f"    s_mov_b32 s{S_FIRST}, 1")
    if after_loop: fstamp(A, 4)
    A("    s_waitcnt lgkmcnt(0)")
    if after_loop: fstamp(A, 5)


def gen_main(A):
    K = "gather_scatter__graph_attention_gat__graph_kernel"
    VC = 36; VG = 37; VL = 38
    A(f".globl {K}\n.p2align 8\n.type {K},@function\n{K}:")
    A(f"    s_cmp_ge_u32 s2, {NT}")
    A("    s_cbranch_scc1 MAIN_END")
    stamp(A, 0)
    A("    s_load_dwordx2 s[60:61], s[0:1], 64      ; ws")
    A("    s_load_dwordx2 s[52:53], s[0:1], 0       ; x")
    A("    s_load_dwordx2 s[54:55], s[0:1], 48      ; out")
    A("    s_load_dwordx4 s[56:59], s[0:1], 8")
    A(f"    v_and_b32 v{VL}, 63, v0")
    A(f"    v_lshrrev_b32 v{V_T1}, 6, v0")
    A(f"    v_and_b32 v{VC}, 15, v{VL}")
    A(f"    v_readfirstlane_b32 s{S_W}, v{V_T1}")
    A(f"    v_lshrrev_b32 v{VG}, 4, v{VL}")
    A(f"    v_lshlrev_b32 v20, 4, v0                 ; tid*16")
    A(f"    v_lshlrev_b32 v{V_WOFF}, 4, v{VL}        ; lane*16")
    A(f"    v_lshlrev_b32 v21, 9, v{VC}")
    A(f"    v_lshl_add_u32 v21, v{VG}, 4, v21")
    A(f"    s_mul_i32 s{S_REG}, s{S_W}, {REGSZ}")
    A(f"    s_and_b32 s{S_WF}, s2, {opt.copies-1}")
    A(f"    s_lshl_b32 s{S_WF}, s{S_WF}, 19")
    A(f"    s_lshl_b32 s{S_T0}, s{S_W}, 16")
    A(f"    s_add_u32 s{S_WF}, s{S_WF}, s{S_T0}")
    A(f"    s_add_u32 s{S_WF}, s{S_WF}, {WS_WF}")
    A("    s_waitcnt lgkmcnt(0)")
    stamp(A, 1)
    if opt.stamps:
        A(f"    s_mov_b32 s100, s{S_W}")
    srd(A, S_WS, 60, ws_bytes())
    A(f"    s_lshl_b32 s{S_T0}, s2, 13")
    A(f"    buffer_load_dwordx4 v[16:19], v20, s[{S_WS}:{S_WS+3}], s{S_T0} offen")
    srd(A, S_X, 52, N * 512)
    A(f"    v_and_b32 v{V_T1}, 31, v{VL}")
    A(f"    v_lshlrev_b32 v{V_T1}, 4, v{V_T1}")
    A(f"    v_lshrrev_b32 v{V_T2}, 5, v{VL}")
    A(f"    v_lshlrev_b32 v{V_H4}, 2, v{V_T2}")
    A(f"    v_lshlrev_b32 v21, 9, v{V_T2}            ; hi*512")
    A(f"    v_cmp_eq_u32 vcc, 0, v{V_T2}")
    A(f"    v_lshlrev_b32 v{V_T2}, 5, v{V_T2}")
    A(f"    v_xor_b32 v{V_DMAC}, v{V_T1}, v{V_T2}    ; DMAC = ((l&31)*16) ^ ((l>>5)*32)")
    A(f"    v_add_u32 v21, v21, v{V_DMAC}")
    A(f"    v_mov_b32 v22, 0x7ffffe00")
    A(f"    v_cndmask_b32 v22, v22, v{V_DMAC}, vcc")
    A(f"    s_mul_i32 s{S_T0}, s2, {TILE*512}")
    A(f"    s_lshl_b32 s{S_T1}, s{S_W}, 11            ; 4w rows")
    A(f"    s_add_u32 s{S_T1}, s{S_T1}, s{S_T0}")
    A(f"    s_add_u32 m0, s{S_REG}, {UNIT}")
    A(f"    s_add_u32 s{S_T2}, s{S_T1}, 1024")
    A(f"    buffer_load_dwordx4 v21, s[{S_X}:{S_X+3}], s{S_T1} offen lds")
    A(f"    s_add_u32 m0, s{S_REG}, {UNIT+PAIR}")
    A(f"    s_lshl_b32 s{S_T1}, s{S_W}, 9")
    A(f"    buffer_load_dwordx4 v21, s[{S_X}:{S_X+3}], s{S_T2} offen lds")
    A(f"    s_add_u32 m0, s{S_REG}, {UNIT+2*PAIR}")
    A(f"    s_add_u32 s{S_T1}, s{S_T1}, s{S_T0}")
    A(f"    s_add_u32 s{S_T1}, s{S_T1}, {32*512}")
    A(f"    buffer_load_dwordx4 v22, s[{S_X}:{S_X+3}], s{S_T1} offen lds")
    for i in range(4):
        A(f"    s_add_u32 m0, s{S_REG}, {UNIT+(3+i)*PAIR}")
        A(f"    s_mov_b32 s{S_T0}, {WS_V + 1024*i}")
        A(f"    buffer_load_dwordx4 v{V_WOFF}, s[{S_WS}:{S_WS+3}], s{S_T0} offen lds")
    NW0 = 0
    srd(A, S_OUT, 54, N * 512)
    srd(A, S_SRC, 56, E * 4)
    srd(A, S_DST, 58, E * 4)
    A(f"    v_mov_b32 v28, {hex(SENT_LIST)}")
    A(f"    v_mov_b32 v29, v28\n    v_mov_b32 v30, v28\n    v_mov_b32 v31, v28")
    A(f"    v_add_u32 v22, {LISTS}, v20")
    A(f"    v_cmp_gt_u32 vcc, 352, v0")
    A(f"    v_mov_b32 v32, 0")
    A(f"    v_lshlrev_b32 v23, 2, v0")
    A(f"    v_add_u32 v23, {CNT}, v23")
    A(f"    s_and_saveexec_b64 s[{S_EX}:{S_EX+1}], vcc")
    A(f"    s_cbranch_execz MAIN_NOCNT")
    A(f"    ds_write_b128 v22, v[28:31]")
    A(f"    v_cmp_gt_u32 vcc, 32, v0")
    A(f"    s_and_b64 exec, exec, vcc")
    A(f"    s_cbranch_execz MAIN_NOCNT")
    A(f"    ds_write_b32 v23, v32")
    A.label("MAIN_NOCNT")
    A(f"    s_mov_b64 exec, s[{S_EX}:{S_EX+1}]")
    T1, T2, T3 = V_T1, V_T2, V_T3
    A(f"    v_lshlrev_b32 v{V_G16}, 4, v{VG}")
    A(f"    v_lshrrev_b32 v{T1}, 1, v{VC}")
    A(f"    v_mul_u32_u24 v{V_SADDR}, {PAIR}, v{T1}")
    A(f"    v_and_b32 v{T1}, 1, v{VC}")
    A(f"    v_lshl_add_u32 v{V_SADDR}, v{T1}, 9, v{V_SADDR}")
    A(f"    v_lshrrev_b32 v{T2}, 1, v{VG}")
    A(f"    v_xor_b32 v{T1}, v{T1}, v{T2}")
    A(f"    v_lshl_add_u32 v{V_SADDR}, v{T1}, 5, v{V_SADDR}")
    A(f"    v_and_b32 v{T1}, 1, v{VG}")
    A(f"    v_lshl_add_u32 v{V_SADDR}, v{T1}, 4, v{V_SADDR}")
    A(f"    v_add_u32 v{V_SADDR}, s{S_REG}, v{V_SADDR}")
    A(f"    v_lshrrev_b32 v{T1}, 2, v{VC}")
    A(f"    v_lshl_add_u32 v{T1}, v{VG}, 2, v{T1}      ; row")
    A(f"    v_lshrrev_b32 v{T2}, 1, v{T1}")
    A(f"    v_mul_u32_u24 v{V_TE}, {PAIR}, v{T2}")
    A(f"    v_and_b32 v{T1}, 1, v{T1}                  ; hi")
    A(f"    v_lshl_add_u32 v{V_TE}, v{T1}, 9, v{V_TE}")
    A(f"    v_and_b32 v{T2}, 3, v{VC}")
    A(f"    v_lshl_add_u32 v{V_TE}, v{T2}, 3, v{V_TE}")
    A(f"    v_add_u32 v{V_TE}, s{S_REG}, v{V_TE}")
    A(f"    v_lshlrev_b32 v{T1}, 5, v{T1}              ; 32*hi")
    A(f"    v_sub_u32 v{V_TO}, v{V_TE}, v{T1}")
    A(f"    v_add_u32 v{V_TE}, v{V_TE}, v{T1}")
    for i in range(4):
        A(f"    v_mov_b32 v{V_ONES+i}, 0x3f803f80")
    A(f"    s_mov_b32 s{S_HI}, 0xfffffe00")
    A(f"    s_mov_b32 s{S_C02}, 0x3e4ccccd")
    A(f"    s_mul_i32 s{S_ABASE}, s{S_W}, {LSZ}")
    A(f"    s_add_u32 s{S_ABASE}, s{S_ABASE}, {LISTS+192}")
    A(f"    s_mul_i32 s{S_T0}, s{S_W}, {RROW}")
    A(f"    s_add_u32 s{S_T0}, s{S_T0}, {AGG1}")
    A(f"    v_lshrrev_b32 v{V_FE}, 2, v{VC}")
    A(f"    v_lshlrev_b32 v{V_FE}, 7, v{V_FE}          ; 128*j")
    A(f"    v_add_u32 v{V_FE}, s{S_T0}, v{V_FE}")
    fin_addr(A, VC, VG)
    A(f"    v_bfe_u32 v{T1}, v{VC}, 1, 1")
    A(f"    v_mul_u32_u24 v39, {PAIR}, v{T1}")
    A(f"    v_and_b32 v{T1}, 1, v{VC}")
    A(f"    v_lshl_add_u32 v39, v{T1}, 9, v39")
    A(f"    v_lshl_add_u32 v39, v{VG}, 4, v39")
    A(f"    s_add_u32 s{S_T0}, s{S_REG}, {UNIT+3*PAIR}")
    A(f"    v_add_u32 v39, s{S_T0}, v39")
    A(f"    v_lshrrev_b32 v{T1}, 2, v{VC}")
    A(f"    s_lshl_b32 s{S_T0}, s{S_W}, 2")
    A(f"    v_add_u32 v{V_TGTA}, s{S_T0}, v{T1}")
    A(f"    s_add_u32 s{S_T0}, s{S_W}, 32")
    A(f"    v_mov_b32 v{V_TGT}, s{S_T0}")
    A("    s_waitcnt lgkmcnt(0)")
    A("    s_barrier")
    if opt.wt:
        A(f"    s_lshr_b32 s{S_T0}, s2, 3")
        A(f"    s_and_b32 s{S_T0}, s{S_T0}, 31")
        A(f"    s_lshl_b32 s{S_T0}, s{S_T0}, 14")
        A(f"    s_add_u32 s{S_T0}, s{S_T0}, {WS_WF}")
        A(f"    v_lshlrev_b32 v23, 7, v0")
        A(f"    s_cmp_ge_u32 s{S_W}, 2")
        A(f"    s_cbranch_scc0 MAIN_WT")
        A(f"    v_mov_b32 v23, 0x7ffffe00")
        A.label("MAIN_WT")
        A(f"    buffer_load_dword v255, v23, s[{S_WS}:{S_WS+3}], s{S_T0} offen")
    if opt.xt:
        A(f"    s_lshr_b32 s{S_T0}, s2, 3")
        A(f"    s_lshl_b32 s{S_T0}, s{S_T0}, 9")
        A(f"    v_add_u32 v23, s{S_T0}, v0")
        A(f"    v_lshlrev_b32 v23, 7, v23")
        if opt.xhalf:
            A(f"    s_cmp_ge_u32 s{S_W}, 4")
            A(f"    s_cbranch_scc0 MAIN_XT")
            A(f"    v_mov_b32 v23, 0x7ffffe00")
            A.label("MAIN_XT")
        for r in range(opt.xt):
            A(f"    s_mov_b32 s{S_T0}, {opt.xoff + r*16384*128}")
            A(f"    buffer_load_dword v255, v23, s[{S_X}:{S_X+3}], s{S_T0} offen")
    A(f"    s_waitcnt vmcnt({7+opt.xt+opt.wt})")
    stamp(A, 2)
    EN = 16
    NN = 20; WV = 24; RK = 28; BS = 32
    A(f"    s_mov_b64 s[62:63], 0")
    for i in range(4):
        A(f"    v_and_b32 v{NN+i}, 63, v{EN+i}")
        A(f"    v_cmp_eq_u32 vcc, -2, v{EN+i}")
        A(f"    s_or_b64 s[62:63], s[62:63], vcc")
        A(f"    v_cmp_gt_u32 s[{64+2*i}:{65+2*i}], 40, v{NN+i}       ; valid")
        A(f"    v_cmp_le_u32 s[{72+2*i}:{73+2*i}], 32, v{NN+i}       ; group B")
        A(f"    v_lshrrev_b32 v{T1}, 2, v{NN+i}")
        A(f"    v_subrev_u32 v{T2}, 32, v{NN+i}")
        A(f"    v_subrev_u32 v{T3}, 24, v{NN+i}")
        A(f"    v_cndmask_b32 v{WV+i}, v{T1}, v{T2}, s[{72+2*i}:{73+2*i}]")
        A(f"    v_cndmask_b32 v{T1}, v{T1}, v{T3}, s[{72+2*i}:{73+2*i}]")
        A(f"    v_lshlrev_b32 v{BS+i}, 2, v{T1}")
        A(f"    v_add_u32 v{BS+i}, {CNT}, v{BS+i}")
    A(f"    v_mov_b32 v{V_TMP}, 1")
    for i in range(4):
        A(f"    s_mov_b64 exec, s[{64+2*i}:{65+2*i}]")
        A(f"    ds_add_rtn_u32 v{RK+i}, v{BS+i}, v{V_TMP}")
    A("    s_mov_b64 exec, -1")
    def v_reads():
        for kk in range(8):
            A(f"    ds_read_b128 v[{V_ACC+4*kk}:{V_ACC+4*kk+3}], v39 offset:{2*PAIR+64*kk}")
        for kk in range(8):
            A(f"    ds_read_b128 v[{V_V+4*kk}:{V_V+4*kk+3}], v39 offset:{64*kk}")
    A(f"    s_mov_b32 s{S_T0}, {LSZ}")
    A(f"    v_mov_b32 v{T1}, {LISTS+192}")
    for i in range(4):
        A(f"    v_mad_u32_u24 v{BS+i}, v{WV+i}, s{S_T0}, v{T1}")
    for i in range(4):
        A(f"    s_waitcnt lgkmcnt({3-i})")
        A(f"    v_lshlrev_b32 v{T1}, 2, v{RK+i}")
        A(f"    v_sub_u32 v{T2}, -4, v{T1}")
        A(f"    v_mov_b32 v{T3}, {CAPA}")
        A(f"    v_cndmask_b32 v{T1}, v{T1}, v{T2}, s[{72+2*i}:{73+2*i}]")
        A(f"    v_cndmask_b32 v{T3}, v{T3}, {CAPB}, s[{72+2*i}:{73+2*i}]")
        A(f"    v_add_u32 v{BS+i}, v{BS+i}, v{T1}")
        A(f"    v_cmp_lt_u32 vcc, v{RK+i}, v{T3}")
        A(f"    s_andn2_b64 s[80:81], s[{64+2*i}:{65+2*i}], vcc")
        A(f"    s_or_b64 s[62:63], s[62:63], s[80:81]")
        A(f"    s_and_b64 exec, s[{64+2*i}:{65+2*i}], vcc")
        A(f"    ds_write_b32 v{BS+i}, v{EN+i}")
        A(f"    s_mov_b64 exec, -1")
    A(f"    s_cmp_eq_u64 s[62:63], 0")
    A(f"    s_cbranch_scc1 MAIN_NOOVF")
    A(f"    v_mov_b32 v{T1}, {OVF}")
    A(f"    ds_write_b32 v{T1}, v{V_TMP}")
    A.label("MAIN_NOOVF")
    A("    s_waitcnt lgkmcnt(0)")
    A("    s_barrier")
    stamp(A, 3)
    tstamp(A, 0)
    A(f"    s_lshl_b32 s{S_T0}, s{S_W}, 2")
    A(f"    s_add_u32 s{S_T0}, s{S_T0}, {CNT}")
    A(f"    v_mov_b32 v16, s{S_T0}")
    A(f"    v_mov_b32 v17, {OVF}")
    A(f"    ds_read_b32 v18, v16                     ; cntA")
    A(f"    ds_read_b32 v19, v16 offset:32           ; cntB")
    A(f"    ds_read_b32 v20, v17")
    A(f"    v_lshrrev_b32 v{T1}, 2, v{VC}")
    A(f"    v_cmp_eq_u32 s[{S_J1}:{S_J1+1}], 1, v{T1}")
    A(f"    v_cmp_eq_u32 s[{S_J2}:{S_J2+1}], 2, v{T1}")
    A(f"    v_cmp_eq_u32 s[{S_J3}:{S_J3+1}], 3, v{T1}")
    A("    s_waitcnt lgkmcnt(0)")
    A(f"    v_readfirstlane_b32 s{S_NA}, v18")
    A(f"    v_readfirstlane_b32 s{S_NB}, v19")
    A(f"    v_readfirstlane_b32 s{S_T0}, v20")
    A(f"    s_mov_b32 s{S_M0}, s{S_REG}")
    A(f"    s_mov_b32 s{S_DELTA}, {UNIT}")
    A(f"    s_mov_b32 s{S_P}, 0")
    A(f"    s_mov_b32 s{S_FIRST}, 1")
    A(f"    s_cmp_lg_u32 s{S_T0}, 0")
    A("    s_cbranch_scc1 MAIN_SLOW")
    A(f"    s_sub_u32 s{S_KA}, s{S_NA}, 1")
    A(f"    s_and_b32 s{S_KA}, s{S_KA}, 15")
    A(f"    s_lshr_b32 s{S_KA}, s{S_KA}, 1")
    A(f"    s_add_u32 s{S_KA}, s{S_KA}, 1")
    A(f"    s_sub_u32 s{S_KB}, s{S_NB}, 1")
    A(f"    s_and_b32 s{S_KB}, s{S_KB}, 15")
    A(f"    s_lshr_b32 s{S_KB}, s{S_KB}, 1")
    A(f"    s_add_u32 s{S_KB}, s{S_KB}, 1")
    A(f"    s_cmp_eq_u32 s{S_NA}, 0")
    A(f"    s_cselect_b32 s{S_KA}, 8, s{S_KA}")
    A(f"    s_add_u32 s{S_NA}, s{S_NA}, 15")
    A(f"    s_lshr_b32 s{S_NA}, s{S_NA}, 4")
    A(f"    s_add_u32 s{S_NB}, s{S_NB}, 15")
    A(f"    s_lshr_b32 s{S_NB}, s{S_NB}, 4")
    A(f"    s_add_u32 s{S_NU}, s{S_NA}, s{S_NB}")
    A(f"    s_lshl_b32 s{S_T0}, s{S_NB}, 6")
    A(f"    s_sub_u32 s{S_PTR}, s{S_ABASE}, s{S_T0}")
    def emit_t(A):
        for kk in range(8):
            A(f"    ds_read_b128 v[{V_SCR+4*kk}:{V_SCR+4*kk+3}], v{V_SADDR} offset:{UNIT+64*kk}")
        A(f"    v_lshlrev_b32 v{T2}, 2, v{VC}")
        A(f"    v_and_b32 v{T3}, 3, v{VC}")
        A(f"    v_add_u32 v{T3}, 16, v{T3}")
        A(f"    v_lshlrev_b32 v{T3}, 2, v{T3}              ; lane 16 + h")
        for kk in range(8):
            A(f"    s_waitcnt lgkmcnt({7-kk})")
            c = "0" if kk == 0 else f"v[{V_S}:{V_S+3}]"
            A(f"    v_mfma_f32_16x16x32_bf16 v[{V_S}:{V_S+3}], v[{V_SCR+4*kk}:{V_SCR+4*kk+3}], v[{V_ACC+4*kk}:{V_ACC+4*kk+3}], {c}")
        A("    s_nop 7")
        A(f"    v_cndmask_b32 v{V_TA}, v{V_S}, v{V_S+1}, s[{S_J1}:{S_J1+1}]")
        A(f"    v_cndmask_b32 v{V_TA}, v{V_TA}, v{V_S+2}, s[{S_J2}:{S_J2+1}]")
        A(f"    v_cndmask_b32 v{V_TA}, v{V_TA}, v{V_S+3}, s[{S_J3}:{S_J3+1}]")
        A(f"    ds_bpermute_b32 v{V_TQ}, v{T3}, v{V_S}")
        A(f"    ds_bpermute_b32 v{V_TA}, v{T2}, v{V_TA}")
        A("    s_waitcnt lgkmcnt(0)")
        for i in range(1, 4):
            A(f"    v_mov_b32 v{V_TQ+i}, v{V_TQ}")

    def zero_prep(A, buf):
        if opt.skip:
            for i in range(4):
                A(f"    v_mov_b32 v{V_S+i}, 0")
            A(f"    v_mbcnt_lo_u32_b32 v{V_T2}, -1, 0")
            A(f"    v_mbcnt_hi_u32_b32 v{V_T2}, -1, v{V_T2}")
            A(f"    v_lshlrev_b32 v{V_T2}, 4, v{V_T2}")
            A(f"    s_add_u32 s{S_T1}, s{S_REG}, {UNIT*buf}")
            A(f"    v_add_u32 v{V_T2}, s{S_T1}, v{V_T2}")

    tstamp(A, 1)
    if opt.prio == 2:
        A("    s_setprio 3")
    A(f"    s_mov_b32 s{S_K}, 0")
    A(f"    s_cmp_eq_u32 s{S_NU}, 0")
    A("    s_cbranch_scc1 MAIN_PRO_T")
    A(f"    v_add_u32 v{T1}, s{S_PTR}, v{V_H4}")
    dma_entry_reads(A, T1)
    zero_prep(A, 0)
    A(f"    s_mov_b32 s{S_T1}, 0")
    if opt.skip:
        unit_k(A, S_T1)
    A("    s_waitcnt lgkmcnt(0)")
    if opt.skip:
        A(f"    s_cmp_eq_u32 s{S_NB}, 0")
        A("    s_cbranch_scc1 MAIN_U0A")
        A(f"    s_mov_b32 s{S_K}, s{S_KB}")
        dma_partial(A, S_K, True, rev=True)
        A("    s_branch MAIN_PRO_T")
        A.label("MAIN_U0A")
        dma_partial(A, S_K, True)
    else:
        A(f"    s_mov_b32 s{S_K}, 8")
        for q in range(8):
            dma_one(A, q)
    A.label("MAIN_PRO_T")
    tstamp(A, 2)
    wait_vm_dyn(A, S_K, opt.xt+opt.wt, 0, 8)
    tstamp(A, 3)
    v_reads()
    emit_t(A)
    tstamp(A, 4)
    A(f"    s_mov_b32 s{S_K}, 0")
    A(f"    s_cmp_le_u32 s{S_NU}, 1")
    A("    s_cbranch_scc1 MAIN_PRO_DONE")
    A(f"    v_add_u32 v{T1}, s{S_PTR}, v{V_H4}")
    A(f"    v_add_u32 v{T1}, 64, v{T1}")
    dma_entry_reads(A, T1)
    zero_prep(A, 1)
    A(f"    s_add_u32 s{S_M0}, s{S_REG}, {UNIT}")
    A(f"    s_mov_b32 s{S_T1}, 1")
    if opt.skip:
        unit_k(A, S_T1)
    else:
        A(f"    s_mov_b32 s{S_K}, 8")
    A("    s_waitcnt lgkmcnt(0)")
    if opt.skip:
        dma_partial(A, S_K, True)
    else:
        for q in range(8):
            dma_one(A, q)
    A(f"    s_mov_b32 s{S_M0}, s{S_REG}")
    A.label("MAIN_PRO_DONE")
    stamp(A, 4)
    tstamp(A, 5)
    if opt.prio == 1:
        A(f"    s_setprio 1")
    for ks in range(opt.w3):
        w_load(A, ks, wslot(ks))
    WX = 2 * opt.w3
    A(f"    s_cmp_eq_u32 s{S_NU}, 0")
    A("    s_cbranch_scc1 MAIN_LOOP")
    tstamp(A, 6)
    wait_vm_dyn(A, S_K, WX, 0, 8)
    tstamp(A, 7)
    A("    s_waitcnt lgkmcnt(0)")
    s_prefetch(A)
    if opt.stamps and opt.ustamps:
        A("    s_memtime s[98:99]")
    A.label("MAIN_LOOP")
    A(f"    s_cmp_eq_u32 s{S_P}, s{S_NB}")
    A("    s_cbranch_scc1 MAIN_FINB")
    A.label("MAIN_LOOP2")
    A(f"    s_cmp_ge_u32 s{S_P}, s{S_NU}")
    A("    s_cbranch_scc1 MAIN_DONE")

    def dispatch(tag, agg, firsts, minleft, dest, par):
        for first in firsts:
            if len(firsts) > 1:
                if first == firsts[0]:
                    A(f"    s_cmp_eq_u32 s{S_FIRST}, 0")
                    A(f"    s_cbranch_scc0 {tag}_F1")
                else:
                    A.label(f"{tag}_F1")
            A(f"    s_cmp_ge_u32 s{S_T0}, 3")
            A(f"    s_cbranch_scc0 {tag}_{first}_R2")
            if opt.skip:
                A(f"    s_cmp_eq_u32 s{S_K}, 8")
                A(f"    s_cbranch_scc0 {tag}_{first}_PART")
            unit_tail(A, "full", True, agg, first, par)
            A(f"    s_branch {dest}")
            if opt.skip:
                A.label(f"{tag}_{first}_PART")
                unit_tail(A, "part", True, agg, first, par)
                A(f"    s_branch {dest}")
            A.label(f"{tag}_{first}_R2")
            if minleft <= 1:
                A(f"    s_cmp_eq_u32 s{S_T0}, 2")
                A(f"    s_cbranch_scc0 {tag}_{first}_R1")
            unit_tail(A, None, True, agg, first, par)
            A(f"    s_branch {dest}")
            if minleft <= 1:
                A.label(f"{tag}_{first}_R1")
                unit_tail(A, None, False, agg, first, par)
                A(f"    s_branch {dest}")

    def set_prio():
        if opt.prio == 2:
            l1 = uid("PR"); l2 = uid("PR"); le = uid("PR")
            A(f"    s_cmp_ge_u32 s{S_P}, {opt.pa}")
            A(f"    s_cbranch_scc1 {l1}")
            A("    s_setprio 3")
            A(f"    s_branch {le}")
            A.label(l1)
            A(f"    s_cmp_ge_u32 s{S_P}, {opt.pb}")
            A(f"    s_cbranch_scc1 {l2}")
            A("    s_setprio 2")
            A(f"    s_branch {le}")
            A.label(l2)
            A("    s_setprio 1")
            A.label(le)

    def k_next():
        set_prio()
        if opt.skip:
            A(f"    s_add_u32 s{S_T1}, s{S_P}, 2")
            unit_k(A, S_T1)

    pstamp(A)
    ustamp(A, opt.up, 0); ustamp(A, opt.up + 1, 4)
    A(f"    s_add_u32 s{S_P2}, s{S_PTR}, 128")
    k_next()
    unit_front(A, 0)
    ustamp(A, opt.up, 1); ustamp(A, opt.up + 1, 5)
    A(f"    s_sub_u32 s{S_T0}, s{S_NU}, s{S_P}")
    A(f"    s_add_u32 s{S_T1}, s{S_P}, 1")
    A(f"    s_cmp_eq_u32 s{S_T1}, s{S_NB}")
    A("    s_cbranch_scc1 TL_LAST")
    A(f"    s_cmp_eq_u32 s{S_T1}, s{S_NU}")
    A("    s_cbranch_scc1 TL_LAST")
    dispatch("TE", None, [0], 2, "MAIN_ODD", 0)
    A.label("TL_LAST")
    dispatch("TL", "k16", [0, 1], 1, "MAIN_NEXT", 0)
    A.label("MAIN_ODD")
    pstamp(A)
    ustamp(A, opt.up + 1, 2); ustamp(A, opt.up + 2, 6)
    ustamp(A, opt.up, 0); ustamp(A, opt.up + 1, 4)
    A(f"    s_add_u32 s{S_P2}, s{S_PTR}, 128")
    k_next()
    unit_front(A, 1)
    ustamp(A, opt.up, 1); ustamp(A, opt.up + 1, 5)
    A(f"    s_sub_u32 s{S_T0}, s{S_NU}, s{S_P}")
    dispatch("TO", "k32", [0, 1], 1, "MAIN_NEXT", 1)
    A.label("MAIN_NEXT")
    ustamp(A, opt.up + 1, 2); ustamp(A, opt.up + 2, 6)
    A("    s_branch MAIN_LOOP")

    A.label("MAIN_FINB")
    fstamp(A, 0)
    A("    s_nop 3")
    emit_finb(A)
    A("    s_branch MAIN_LOOP2")

    A.label("MAIN_DONE")
    if opt.prio:
        A("    s_setprio 0")
    stamp(A, 5)
    if opt.stamps and opt.pstamps:
        A("    s_memtime s[98:99]")
    A(f"    s_cmp_lg_u32 s{S_NA}, 0")
    A("    s_cbranch_scc1 MAIN_DONE2")
    zero_acc(A)
    A.label("MAIN_DONE2")
    VC2 = V_T2; VG2 = V_T3
    lane_cg(A, V_T1, VC2, VG2)
    A(f"    v_lshrrev_b32 v{V_TMP}, 2, v{VC2}                 ; w'")
    A(f"    v_mul_u32_u24 v1, {REGSZ}, v{V_TMP}")
    A(f"    v_and_b32 v{V_TMP}, 1, v{V_TMP}")
    A(f"    v_lshl_add_u32 v1, v{V_TMP}, 7, v1")
    A(f"    v_and_b32 v{V_TMP}, 3, v{VC2}")
    A(f"    v_mul_u32_u24 v{V_TMP}, {RROW}, v{V_TMP}")
    A(f"    v_add_u32 v1, v1, v{V_TMP}")
    A(f"    v_and_b32 v{V_TMP}, 7, v{VC2}")
    A(f"    v_mul_u32_u24 v5, {RROW}, v{V_TMP}")
    A(f"    v_add_u32 v5, {AGG1}, v5")
    A(f"    v_lshlrev_b32 v{V_TMP}, 4, v{VG2}                 ; g*16")
    A(f"    v_xor_b32 v{V_T1}, 16, v{V_TMP}                   ; (g^1)*16")
    A(f"    v_add_u32 v2, v1, v{V_T1}")
    A(f"    v_add_u32 v1, v1, v{V_TMP}")
    A(f"    v_add_u32 v3, {4*REGSZ}, v1")
    A(f"    v_add_u32 v4, {4*REGSZ}, v2")
    A(f"    v_add_u32 v6, v5, v{V_T1}")
    A(f"    v_add_u32 v5, v5, v{V_TMP}")
    A(f"    s_mul_i32 s{S_T0}, s2, {TILE*512}")
    A(f"    s_lshl_b32 s{S_T1}, s{S_W}, 6")
    A(f"    s_add_u32 s{S_T0}, s{S_T0}, s{S_T1}")
    A(f"    v_lshlrev_b32 v8, 9, v{VC2}")
    A(f"    v_lshl_add_u32 v8, v{VG2}, 4, v8")
    A(f"    v_add_u32 v8, s{S_T0}, v8")
    A(f"    v_add_u32 v9, {16*512}, v8")
    A(f"    v_add_u32 v10, {32*512}, v8")
    A(f"    v_mov_b32 v{V_TMP}, 0x7ffffff0")
    A(f"    v_cmp_gt_u32 vcc, 8, v{VC2}")
    A(f"    v_mov_b32 v7, v{V_WOFF}")
    A(f"    s_nop 0")
    A(f"    s_mov_b64 s[{S_EX}:{S_EX+1}], vcc")
    A(f"    v_cndmask_b32 v10, v{V_TMP}, v10, vcc")
    NPRE = opt.wpre
    W3 = opt.w3
    def pre(u):
        for k in range((NPRE * u) // 8, (NPRE * (u + 1)) // 8):
            w_load(A, W3 + k, wslot(W3 + k), 7)
    finalize(A, 12, after_pair=pre)
    A("    s_waitcnt lgkmcnt(0)")
    A("    s_barrier")
    stamp(A, 6)
    NB = opt.bring
    BR = V_ACC
    def b_reads(ks, zero2=False):
        h = ks >> 3; u = ks & 7; h0 = h & 1; h1 = h >> 1
        imm = h * 512 + ((u ^ h1) * 64)
        st = BR + 12 * (ks % NB)
        for T in range(3):
            if opt.exp == "nob" and ks >= NB:
                continue
            if T == 2 and opt.zero2:
                A(f"    s_mov_b64 exec, s[{S_EX}:{S_EX+1}]")
            A(f"    ds_read_b128 v[{st+4*T}:{st+4*T+3}], v{1+2*T+h0} offset:{imm}")
            if T == 2 and opt.zero2:
                A(f"    s_mov_b64 exec, -1")
    if opt.zero2:
        for st_ in range(NB):
            for i in range(4):
                A(f"    v_mov_b32 v{BR+12*st_+8+i}, 0")
    for ks in range(NB - 1):
        b_reads(ks)
    q = [("w", k) for k in range(W3 + NPRE) for _ in range(2)]
    def wait_for(tag):
        idx = max(i for i, t in enumerate(q) if t == tag)
        return len(q) - 1 - idx
    nxt_w = W3 + NPRE
    nrem = 32 - nxt_w
    sched = {}
    for j in range(nrem):
        k2 = nxt_w + j
        st_ = max((j * opt.wlast) // max(nrem - 1, 1), k2 - 16)
        st_ = min(st_, k2 - opt.wmin)
        sched.setdefault(st_, []).append(k2)
    if opt.gprio:
        l = uid("GP")
        A(f"    s_cmp_lt_u32 s{S_W}, 4")
        A(f"    s_cbranch_scc1 {l}")
        A("    s_setprio 1")
        A.label(l)
    for ks in range(32):
        if opt.gprio and ks == opt.gpa:
            l = uid("GP")
            A(f"    s_cmp_lt_u32 s{S_W}, 4")
            A(f"    s_cbranch_scc0 {l}")
            A("    s_setprio 1")
            A.label(l)
        if opt.gprio and ks == opt.gpb:
            l = uid("GP")
            A(f"    s_cmp_lt_u32 s{S_W}, 4")
            A(f"    s_cbranch_scc1 {l}")
            A("    s_setprio 0")
            A.label(l)
        if ks % 4 == 0:
            gstamp(A, ks // 4)
        if ks + NB - 1 < 32:
            b_reads(ks + NB - 1, zero2=opt.zero2)
        lg = 3 * min(NB - 1, 31 - ks)
        A(f"    s_waitcnt vmcnt({min(wait_for(('w', ks)), 63)}) lgkmcnt({lg})")
        st = BR + 12 * (ks % NB)
        wb = wslot(ks)
        for T in range(3):
            for t in range(2):
                a = V_ACC2 + 4 * (2 * T + t)
                c = "0" if ks == 0 else f"v[{a}:{a+3}]"
                if opt.exp == "not2" and T == 2 and ks > 0:
                    continue
                A(f"    v_mfma_f32_16x16x32_bf16 v[{a}:{a+3}], v[{wb+4*t}:{wb+4*t+3}], v[{st+4*T}:{st+4*T+3}], {c}")
        for k2 in sched.get(ks, []):
            assert k2 - 16 <= ks < k2
            assert k2 == nxt_w
            w_load(A, k2, wslot(k2), 7)
            q.append(("w", k2)); q.append(("w", k2))
            nxt_w += 1
    assert nxt_w == 32
    stamp(A, 7)
    gstamp(A, 8)
    A("    s_nop 7")
    for T in range(3):
        a0 = V_ACC2 + 4 * (2 * T); a1 = a0 + 4
        st = 12 + 4 * T
        A(f"    v_cvt_pk_bf16_f32 v{st}, v{a0}, v{a0+1}")
        A(f"    v_cvt_pk_bf16_f32 v{st+1}, v{a0+2}, v{a0+3}")
        A(f"    v_cvt_pk_bf16_f32 v{st+2}, v{a1}, v{a1+1}")
        A(f"    v_cvt_pk_bf16_f32 v{st+3}, v{a1+2}, v{a1+3}")
        A(f"    buffer_store_dwordx4 v[{st}:{st+3}], v{8+T}, s[{S_OUT}:{S_OUT+3}], 0 offen{opt.ost}")
    if opt.stamps:
        A("    s_waitcnt vmcnt(0)")
    stamp(A, 8)
    stamp_flush(A, 60, 0)
    A("    s_endpgm")

    A.label("MAIN_SLOW")
    A("    s_waitcnt vmcnt(0)")
    v_reads()
    emit_t(A)
    for ks in range(opt.w3):
        w_load(A, ks, wslot(ks))
    gen_slow(A)
    A.label("MAIN_END")
    A("    s_endpgm")


def gen_slow(A):
    S_GRP = 62; S_POS = 63; S_CNT = 64; S_LO = 65; S_HIB = 66; S_BASE = 67
    A("    s_waitcnt vmcnt(0)")
    zero_acc(A)
    A(f"    s_mul_i32 s{S_BASE}, s2, {TILE}")
    A(f"    s_mov_b32 s{S_GRP}, 0")
    A(f"    s_mov_b32 s{S_NB}, 1")
    A(f"    s_mov_b32 s{S_NA}, 1")
    A.label("SLOW_GROUP")
    A(f"    s_add_u32 s{S_LO}, s{S_W}, 32")
    A(f"    s_add_u32 s{S_HIB}, s{S_LO}, 1")
    A(f"    s_cmp_eq_u32 s{S_GRP}, 0")
    A("    s_cbranch_scc1 SLOW_RANGE")
    A(f"    s_lshl_b32 s{S_LO}, s{S_W}, 2")
    A(f"    s_add_u32 s{S_HIB}, s{S_LO}, 4")
    A.label("SLOW_RANGE")
    A(f"    s_mov_b32 s{S_POS}, 0")
    A.label("SLOW_REFILL")
    L4 = V_T1; X1 = V_T2; X2 = V_T3; X3 = V_TMP
    A(f"    v_mbcnt_lo_u32_b32 v{L4}, -1, 0")
    A(f"    v_mbcnt_hi_u32_b32 v{L4}, -1, v{L4}")
    A(f"    v_lshlrev_b32 v{L4}, 2, v{L4}")
    A(f"    v_mov_b32 v{X1}, {hex(SENT_LIST)}")
    A(f"    v_add_u32 v{X2}, s{S_ABASE}, v{L4}")
    A(f"    ds_write_b32 v{X2}, v{X1}")
    A(f"    ds_write_b32 v{X2}, v{X1} offset:256")
    A(f"    s_mov_b32 s{S_CNT}, 0")
    A.label("SLOW_SCAN")
    A(f"    s_cmp_ge_u32 s{S_POS}, {E*4}")
    A("    s_cbranch_scc1 SLOW_FLUSH")
    A(f"    s_cmp_gt_u32 s{S_CNT}, 64")
    A("    s_cbranch_scc1 SLOW_FLUSH")
    A(f"    buffer_load_dword v{X1}, v{L4}, s[{S_DST}:{S_DST+3}], s{S_POS} offen")
    A(f"    buffer_load_dword v{X2}, v{L4}, s[{S_SRC}:{S_SRC+3}], s{S_POS} offen")
    A(f"    s_add_u32 s{S_POS}, s{S_POS}, 256")
    A("    s_waitcnt vmcnt(0)")
    A(f"    v_subrev_u32 v{X1}, s{S_BASE}, v{X1}")
    A(f"    v_cmp_le_u32 s[68:69], s{S_LO}, v{X1}")
    A(f"    v_cmp_gt_u32 vcc, s{S_HIB}, v{X1}")
    A(f"    s_and_b64 vcc, vcc, s[68:69]")
    A(f"    v_lshl_or_b32 v{X2}, v{X2}, 9, v{X1}")
    A(f"    s_nop 0")
    A(f"    v_mbcnt_lo_u32_b32 v{X3}, vcc_lo, 0")
    A(f"    v_mbcnt_hi_u32_b32 v{X3}, vcc_hi, v{X3}")
    A(f"    v_add_u32 v{X3}, s{S_CNT}, v{X3}")
    A(f"    v_lshlrev_b32 v{X3}, 2, v{X3}")
    A(f"    v_add_u32 v{X3}, s{S_ABASE}, v{X3}")
    A(f"    s_bcnt1_i32_b64 s{S_T0}, vcc")
    A(f"    s_add_u32 s{S_CNT}, s{S_CNT}, s{S_T0}")
    A(f"    s_and_saveexec_b64 s[{S_EX}:{S_EX+1}], vcc")
    A(f"    ds_write_b32 v{X3}, v{X2}")
    A(f"    s_mov_b64 exec, s[{S_EX}:{S_EX+1}]")
    A("    s_branch SLOW_SCAN")
    A.label("SLOW_FLUSH")
    A(f"    s_add_u32 s{S_NU}, s{S_CNT}, 15")
    A(f"    s_lshr_b32 s{S_NU}, s{S_NU}, 4")
    A(f"    s_mov_b32 s{S_P}, 0")
    A(f"    s_mov_b32 s{S_PTR}, s{S_ABASE}")
    A("    s_waitcnt lgkmcnt(0)")
    A.label("SLOW_UNIT")
    A(f"    s_cmp_ge_u32 s{S_P}, s{S_NU}")
    A("    s_cbranch_scc1 SLOW_UNITS_DONE")
    A(f"    v_add_u32 v{V_T1}, s{S_PTR}, v{V_H4}")
    dma_entry_reads(A, V_T1)
    A("    s_waitcnt lgkmcnt(0)")
    for q in range(8):
        dma_one(A, q)
    A(f"    s_mov_b32 s{S_P2}, s{S_PTR}")
    A("    s_waitcnt vmcnt(0)")
    s_prefetch(A)
    unit_front(A, 0)
    unit_finish_plain(A, 0)
    den_mfma(A)
    for ft in range(16):
        agg_mfma(A, ft)
    A(f"    s_add_u32 s{S_P}, s{S_P}, 1")
    A(f"    s_add_u32 s{S_PTR}, s{S_PTR}, 64")
    A("    s_branch SLOW_UNIT")
    A.label("SLOW_UNITS_DONE")
    A(f"    s_cmp_lt_u32 s{S_POS}, {E*4}")
    A("    s_cbranch_scc1 SLOW_REFILL")
    A(f"    s_cmp_eq_u32 s{S_GRP}, 1")
    A("    s_cbranch_scc1 MAIN_DONE")
    A("    s_nop 7")
    emit_finb(A, after_loop=False)
    zero_acc(A)
    A(f"    s_mov_b32 s{S_GRP}, 1")
    A("    s_branch SLOW_GROUP")


def kd(name, vgpr, sgpr):
    return f""".amdhsa_kernel {name}
  .amdhsa_next_free_vgpr {vgpr}
  .amdhsa_next_free_sgpr {sgpr}
  .amdhsa_accum_offset {((vgpr+3)//4)*4}
  .amdhsa_group_segment_fixed_size 0
  .amdhsa_kernarg_size 72
  .amdhsa_user_sgpr_count 2
  .amdhsa_user_sgpr_kernarg_segment_ptr 1
  .amdhsa_system_sgpr_workgroup_id_x 1
  .amdhsa_float_denorm_mode_32 3
.end_amdhsa_kernel
"""


HEADER = """; Kernarg layout for this problem (72 bytes, ptrs only, base s[0:1]):
"""


def main():
    ap = argparse.ArgumentParser()
    ap.add_argument("-o", default="gather_scatter__graph_attention_gat__graph.s")
    ap.add_argument("--stamps", action="store_true")
    ap.add_argument("--ustamps", action="store_true")
    ap.add_argument("--gstamps", action="store_true")
    ap.add_argument("--fstamps", action="store_true")
    ap.add_argument("--tstamps", action="store_true")
    ap.add_argument("--nopk", type=int, default=0)
    ap.add_argument("--pstamps", action="store_true")
    ap.add_argument("--clk", action="store_true")
    ap.add_argument("--up", type=int, default=1)
    ap.add_argument("--wpos", default="A")
    ap.add_argument("--copies", type=int, default=1)
    ap.add_argument("--xpre", type=int, default=0)
    ap.add_argument("--wpre", type=int, default=10)
    ap.add_argument("--w3", type=int, default=2)
    ap.add_argument("--wlast", type=int, default=24)
    ap.add_argument("--wmin", type=int, default=6)
    ap.add_argument("--prio", type=int, default=2)
    ap.add_argument("--skip", type=int, default=0)
    ap.add_argument("--bar0", type=int, default=0)
    ap.add_argument("--xt", type=int, default=0)
    ap.add_argument("--wt", type=int, default=0)
    ap.add_argument("--exp", default="")
    ap.add_argument("--ost", default="")
    ap.add_argument("--pst", default="")
    ap.add_argument("--vlate", type=int, default=1)
    ap.add_argument("--gprio", type=int, default=1)
    ap.add_argument("--gpa", type=int, default=13)
    ap.add_argument("--gpb", type=int, default=19)
    ap.add_argument("--mall", type=int, default=1)
    ap.add_argument("--xoff", type=int, default=0)
    ap.add_argument("--xhalf", type=int, default=0)
    ap.add_argument("--pa", type=int, default=2)
    ap.add_argument("--pb", type=int, default=4)
    ap.add_argument("--wlook", type=int, default=12)
    ap.add_argument("--wone", type=int, default=1)
    ap.add_argument("--zero2", type=int, default=1)
    ap.add_argument("--bring", type=int, default=4)
    ap.add_argument("--wspread", type=int, default=8)
    a = ap.parse_args()
    opt.__dict__.update(a.__dict__)
    opt.ost = (" " + opt.ost.replace("_", " ")) if opt.ost else ""
    opt.pst = (" " + opt.pst.replace("_", " ")) if opt.pst else ""
    A = Asm()
    B = Asm()
    gen_prep(B)
    gen_main(B)
    A(HEADER.rstrip("\n"))
    A(f"; @launch kernel=gat_prep_kernel grid=({opt.nprep},1,1) block=(640,1,1) lds=43520")
    A(f"; @launch kernel=gather_scatter__graph_attention_gat__graph_kernel grid=({NT},1,1) block=(512,1,1) lds={LDS_MAIN}")
    A('.amdgcn_target "amdgcn-amd-amdhsa--gfx950"')
    A(".text")
    A.lines += B.lines
    A('.section .rodata,"a"')
    A(".p2align 6")
    A(kd("gat_prep_kernel", 80, 102 if opt.stamps else 48))
    A(".p2align 6")
    A(kd("gather_scatter__graph_attention_gat__graph_kernel", 256, 102 if opt.stamps else 96))
    open(opt.o, "w").write(A.text())
    print("wrote", opt.o, len(A.lines), "lines")


if __name__ == "__main__":
    main()
```

```python
import sys, argparse

N = 10000; E = 160000; TILE = 40; NT = 250; G = 64; CH = 2500
WS_SLOTS = 0
WS_V = 0x1F8000
WS_WF = 0x200000
WS_STAMP = 0x700000
REGSZ = 17408; UNIT = 8704; PAIR = 1088; RROW = 2080
AGG1 = 8 * REGSZ
LISTS = AGG1 + 8 * RROW
LSZ = 704
TBUF = LISTS + 8 * LSZ
CNT = TBUF + 768
OVF = CNT + 64
LDS_MAIN = CNT + 128
VLDS = AGG1
CAPA = 128; CAPB = 48
SENT_LIST = 0x7FFFFE3F
LOG2E = 0x3FB8AA3B


class Asm:
    def __init__(self):
        self.lines = []
    def __call__(self, s=""):
        for l in s.split("\n"):
            self.lines.append(l)
    def label(self, n):
        self.lines.append(n + ":")
    def text(self):
        return "\n".join(self.lines) + "\n"


class Opt:
    pass
opt = Opt()
_ul = [0]
def uid(p):
    _ul[0] += 1
    return f"{p}_{_ul[0]}"


def stamp(A, i):
    if opt.stamps and not opt.ustamps and not opt.gstamps and not opt.pstamps and not opt.fstamps:
        A(f"    {'s_memtime' if opt.clk else 's_memrealtime'} s[{82+2*i}:{83+2*i}]")
def ustamp(A, p, i):
    if opt.stamps and opt.ustamps:
        l = uid("US")
        A(f"    s_cmp_eq_u32 s{S_P}, {p}")
        A(f"    s_cbranch_scc0 {l}")
        A(f"    s_memtime s[{82+2*i}:{83+2*i}]")
        A.label(l)
def pstamp(A):
    if opt.stamps and opt.pstamps:
        for p in range(8):
            l = uid("PS")
            A(f"    s_cmp_eq_u32 s{S_P}, {p}")
            A(f"    s_cbranch_scc0 {l}")
            A(f"    s_memtime s[{82+2*p}:{83+2*p}]")
            A.label(l)
def fstamp(A, i):
    if opt.stamps and opt.fstamps:
        A(f"    s_memtime s[{82+2*i}:{83+2*i}]")
def gstamp(A, i):
    if opt.stamps and opt.gstamps:
        A(f"    s_memtime s[{82+2*i}:{83+2*i}]")
def stamp_flush(A, wsbase, area):
    if not opt.stamps:
        return
    A("    s_waitcnt lgkmcnt(0)")
    A(f"    s_mov_b32 s76, s{wsbase}\n    s_mov_b32 s77, s{wsbase+1}\n    s_mov_b32 s78, 0x800000\n    s_mov_b32 s79, 0x00020000")
    A(f"    s_lshl_b32 s80, s2, 4")
    A(f"    s_add_u32 s80, s80, s100")
    A(f"    s_lshl_b32 s80, s80, 6")
    A(f"    s_add_u32 s80, s80, {WS_STAMP+area}")
    A("    s_mov_b64 exec, 1")
    A("    v_mov_b32 v1, 0")
    for i in range(9):
        A(f"    v_mov_b32 v2, s{82+2*i}")
        A(f"    buffer_store_dword v2, v1, s[76:79], s80 offen offset:{4*i}")
        A("    s_nop 1")


def srd(A, d, base, nbytes):
    A(f"    s_mov_b32 s{d}, s{base}")
    A(f"    s_mov_b32 s{d+1}, s{base+1}")
    A(f"    s_mov_b32 s{d+2}, {nbytes}")
    A(f"    s_mov_b32 s{d+3}, 0x00020000")


def x_touch(A, sbase, vaddr, vdst, ssrd, stmp):
    if not opt.xpre:
        return
    srd(A, ssrd, sbase, N * 512)
    A(f"    s_lshr_b32 s{stmp}, s2, 3")
    A(f"    s_mul_i32 s{stmp}, s{stmp}, 640")
    A(f"    v_add_u32 v{vaddr}, s{stmp}, v0")
    A(f"    v_lshlrev_b32 v{vaddr}, 7, v{vaddr}")
    for r in range(opt.xpre):
        A(f"    s_mov_b32 s{stmp}, {r*20480*128}")
        A(f"    buffer_load_dword v{vdst}, v{vaddr}, s[{ssrd}:{ssrd+3}], s{stmp} offen")


def ws_bytes():
    return WS_WF + opt.copies * 524288


def gen_prep(A):
    K = "gat_prep_kernel"
    NWG_W = 16 * opt.copies
    V0 = 64 + NWG_W
    X0 = V0 + 32
    NPREP = 256 if opt.xpre else X0 + (63 if opt.mall else 0)
    opt.nprep = NPREP
    A(f".globl {K}\n.p2align 8\n.type {K},@function\n{K}:")
    A(f"    s_cmp_ge_u32 s2, {NPREP}")
    A("    s_cbranch_scc1 PREP_END")
    stamp(A, 0)
    if opt.stamps:
        A("    v_lshrrev_b32 v1, 6, v0\n    s_nop 1\n    v_readfirstlane_b32 s100, v1")
    A("    s_cmp_ge_u32 s2, 64")
    A("    s_cbranch_scc1 PREP_NB")
    A("    s_load_dwordx4 s[4:7], s[0:1], 8")
    A("    s_load_dwordx2 s[10:11], s[0:1], 64     ; ws")
    A("    s_load_dwordx2 s[12:13], s[0:1], 0      ; x")
    A("    v_lshlrev_b32 v1, 4, v0")
    for i in range(4):
        A(f"    v_mov_b32 v{4+i}, -1")
    A("    v_lshlrev_b32 v2, 2, v0")
    A("    v_mov_b32 v3, 0")
    A("    s_mul_i32 s28, s2, 10000")
    A("    v_add_u32 v30, s28, v1")
    A("    s_waitcnt lgkmcnt(0)")
    stamp(A, 1)
    srd(A, 20, 6, E * 4)
    A("    buffer_load_dwordx4 v[8:11], v30, s[20:23], 0 offen      ; dst")
    srd(A, 16, 4, E * 4)
    A("    buffer_load_dwordx4 v[12:15], v30, s[16:19], 0 offen     ; src")
    srd(A, 24, 10, ws_bytes())
    x_touch(A, 12, 31, 32, 36, 40)
    for r in range(4):
        A(f"    ds_write_b128 v1, v[4:7] offset:{10240*r}")
    A("    ds_write_b32 v2, v3 offset:40960")
    A("    v_cmp_gt_u32 vcc, 625, v0")
    A("    s_mov_b32 s29, 52429")
    A("    v_mov_b32 v3, 1")
    A("    v_mov_b32 v28, 32000")
    A("    s_waitcnt lgkmcnt(0)")
    A("    s_barrier")
    A("    s_and_saveexec_b64 s[30:31], vcc")
    A(f"    s_waitcnt vmcnt({1+opt.xpre})")
    stamp(A, 2)
    for i in range(4):
        A(f"    v_mul_u32_u24 v{16+i}, s29, v{8+i}")
        A(f"    v_lshrrev_b32 v{16+i}, 21, v{16+i}       ; tile")
        A(f"    v_lshlrev_b32 v{20+i}, 2, v{16+i}")
        A(f"    ds_add_rtn_u32 v{24+i}, v{20+i}, v3 offset:40960")
    A(f"    s_waitcnt vmcnt({opt.xpre})")
    for i in range(4):
        A(f"    v_mul_u32_u24 v4, 40, v{16+i}")
        A(f"    v_sub_u32 v4, v{8+i}, v4")
        A(f"    v_lshl_or_b32 v{12+i}, v{12+i}, 9, v4    ; entry")
        A(f"    v_lshlrev_b32 v{16+i}, 7, v{16+i}        ; tile*128")
    for i in range(4):
        A(f"    s_waitcnt lgkmcnt({3-i})")
        A(f"    v_cmp_gt_u32 vcc, 32, v{24+i}")
        A(f"    v_lshl_add_u32 v4, v{24+i}, 2, v{16+i}")
        A(f"    s_nop 0")
        A(f"    v_cndmask_b32 v{20+i}, v28, v4, vcc")
    for i in range(4):
        A(f"    ds_write_b32 v{20+i}, v{12+i}")
    A("    s_mov_b64 exec, s[30:31]")
    A("    s_lshl_b32 s28, s2, 7                    ; chunk*128")
    A("    v_and_b32 v2, 7, v0                      ; part (640 % 8 == 0)")
    A("    v_lshrrev_b32 v3, 3, v0")
    A("    v_lshlrev_b32 v29, 2, v3")
    A("    v_lshlrev_b32 v4, 4, v2")
    A("    v_lshl_add_u32 v4, v3, 13, v4")
    A("    v_add_u32 v4, s28, v4")
    A("    v_cmp_eq_u32 s[32:33], 7, v2")
    A("    v_cmp_gt_u32 vcc, 80, v0")
    A("    s_mov_b64 s[34:35], vcc")
    A("    v_mov_b32 v5, 0x7ffffff0")
    A("    v_mov_b32 v6, -2")
    A("    s_waitcnt lgkmcnt(0)")
    A("    s_barrier")
    stamp(A, 3)
    for r in range(4):
        A(f"    ds_read_b128 v[{8+4*r}:{11+4*r}], v1 offset:{10240*r}")
        A(f"    ds_read_b32 v{24+r}, v29 offset:{40960 + 320*r}")
    for r in range(4):
        A(f"    s_waitcnt lgkmcnt({6-2*r})")
        A(f"    v_cmp_lt_u32 vcc, 32, v{24+r}")
        A(f"    s_and_b64 vcc, vcc, s[32:33]")
        A(f"    v_add_u32 v7, {80*8192*r}, v4")
        if r == 3:
            A(f"    v_cndmask_b32 v7, v5, v7, s[34:35]")
        A(f"    s_nop 0")
        A(f"    v_cndmask_b32 v{11+4*r}, v{11+4*r}, v6, vcc")
        A(f"    buffer_store_dwordx4 v[{8+4*r}:{11+4*r}], v7, s[24:27], 0 offen")
    stamp(A, 4)
    if opt.stamps:
        A("    s_waitcnt vmcnt(0)")
    stamp(A, 5)
    stamp_flush(A, 10, 0x40000)
    A("    s_endpgm")
    A.label("PREP_NB")
    if opt.mall:
        A(f"    s_cmp_ge_u32 s2, {X0}")
        A("    s_cbranch_scc1 PREP_M")
    if opt.xpre:
        A(f"    s_cmp_ge_u32 s2, {X0}")
        A("    s_cbranch_scc1 PREP_X")
    A("    s_load_dwordx2 s[8:9], s[0:1], 24       ; w")
    A("    s_load_dwordx4 s[12:15], s[0:1], 32")
    A("    s_load_dwordx2 s[10:11], s[0:1], 64     ; ws")
    A("    s_load_dwordx2 s[42:43], s[0:1], 0      ; x")
    A("    s_sub_u32 s28, s2, 64                    ; idx")
    A("    v_lshrrev_b32 v1, 6, v0")
    A("    s_nop 0")
    cs = {1: 0, 2: 1, 4: 2, 8: 3}[opt.copies]
    A(f"    s_and_b32 s27, s28, {opt.copies-1}       ; copy")
    A(f"    s_lshr_b32 s28, s28, {cs}")
    A("    v_readfirstlane_b32 s29, v1              ; wave")
    A("    s_waitcnt lgkmcnt(0)")
    stamp(A, 1)
    srd(A, 16, 8, 524288)
    srd(A, 36, 10, ws_bytes())
    A(f"    s_cmp_ge_u32 s2, {V0}")
    A("    s_cbranch_scc1 PREP_V")
    A("    s_cmp_ge_u32 s29, 8")
    A("    s_cbranch_scc1 PREP_END")
    A("    s_lshl_b32 s30, s28, 15                  ; kp*2*16384")
    A("    s_add_u32 s33, s30, 16384")
    A("    v_lshrrev_b32 v1, 7, v0                  ; g")
    A("    v_and_b32 v2, 127, v0                    ; fp")
    A("    v_lshlrev_b32 v3, 11, v1")
    A("    v_lshl_add_u32 v3, v2, 2, v3             ; g*2048 + fp*4")
    A("    v_add_u32 v4, 8192, v3")
    for half, so in ((0, 30), (1, 33)):
        for j in range(4):
            A(f"    buffer_load_dword v{8+8*half+j}, v3, s[16:19], s{so} offen offset:{512*j}")
        for j in range(4):
            A(f"    buffer_load_dword v{12+8*half+j}, v4, s[16:19], s{so} offen offset:{512*j}")
    x_touch(A, 42, 41, 42, 44, 40)
    A("    v_lshrrev_b32 v5, 4, v2")
    A("    v_lshlrev_b32 v5, 16, v5")
    A("    v_bfe_u32 v6, v2, 1, 1")
    A("    v_lshl_add_u32 v5, v6, 10, v5")
    A("    v_lshl_add_u32 v5, v1, 8, v5             ; 16g*16")
    A("    v_bfe_u32 v6, v2, 2, 2")
    A("    v_lshl_add_u32 v5, v6, 6, v5             ; 4*gi*16")
    A("    v_and_b32 v6, 1, v2")
    A("    v_lshl_add_u32 v5, v6, 5, v5             ; 2*(fp&1)*16")
    A("    s_lshl_b32 s31, s28, 12                  ; kp*2*2048")
    A("    s_lshl_b32 s32, s27, 19                  ; copy*524288")
    A("    s_add_u32 s31, s31, s32")
    A(f"    s_add_u32 s31, s31, {WS_WF}")
    A("    s_mov_b32 s34, 0x05040100")
    A("    s_mov_b32 s35, 0x07060302")
    for half in range(2):
        A(f"    s_waitcnt vmcnt({(8 if half == 0 else 2) + opt.xpre})")
        if half == 0:
            stamp(A, 2)
        b = 8 + 8 * half; d = 24 + 8 * half
        for i in range(4):
            A(f"    v_perm_b32 v{d+i}, v{b+1+2*i}, v{b+2*i}, s34")
            A(f"    v_perm_b32 v{d+4+i}, v{b+1+2*i}, v{b+2*i}, s35")
        A(f"    buffer_store_dwordx4 v[{d}:{d+3}], v5, s[36:39], s31 offen offset:{2048*half}")
        A(f"    buffer_store_dwordx4 v[{d+4}:{d+7}], v5, s[36:39], s31 offen offset:{2048*half+16}")
    stamp(A, 4)
    if opt.stamps:
        A("    s_waitcnt vmcnt(0)")
    stamp(A, 5)
    stamp_flush(A, 10, 0x40000)
    A("    s_endpgm")
    A.label("PREP_V")
    if opt.tlb:
        A("    s_cmp_eq_u32 s29, 2")
        A("    s_cbranch_scc0 PREP_V2")
        srd(A, 44, 42, N * 512)
        A("    v_and_b32 v1, 63, v0")
        A(f"    s_mov_b32 s30, {opt.tlb}")
        A("    v_mul_lo_u32 v1, s30, v1")
        A(f"    s_sub_u32 s31, s2, {V0}")
        A("    s_lshr_b32 s31, s31, 3")
        A(f"    s_mul_i32 s31, s31, {opt.tlb // 4}")
        A("    buffer_load_dword v2, v1, s[44:47], s31 offen")
        A("    s_endpgm")
        A.label("PREP_V2")
    A("    s_cmp_ge_u32 s29, 2")
    A("    s_cbranch_scc1 PREP_END")
    A(f"    s_sub_u32 s30, s2, {V0}")
    A("    s_lshl_b32 s30, s30, 1")
    A("    s_add_u32 s30, s30, s29")
    A("    s_lshr_b32 s31, s30, 4                   ; h")
    srd(A, 20, 12, 2048)
    srd(A, 24, 14, 2048)
    A("    v_and_b32 v1, 63, v0")
    A("    v_and_b32 v2, 15, v1                     ; i / c")
    A("    v_lshrrev_b32 v3, 4, v1                  ; g")
    A("    v_lshlrev_b32 v4, 9, v2")
    A("    v_lshl_add_u32 v4, v3, 4, v4             ; i*512 + g*16")
    A("    s_lshl_b32 s32, s30, 13")
    A("    v_lshlrev_b32 v5, 4, v3                  ; g*16")
    A("    s_lshl_b32 s33, s31, 9                   ; h*512")
    for kk in range(8):
        A(f"    buffer_load_dwordx4 v[{8+4*kk}:{11+4*kk}], v4, s[16:19], s32 offen offset:{64*kk}")
    A("    v_and_b32 v6, 1, v2")
    A("    v_cmp_eq_u32 vcc, 0, v6")
    A("    s_mov_b64 s[40:41], exec")
    A("    s_mov_b64 exec, vcc")
    for kk in range(8):
        A(f"    buffer_load_dwordx4 v[{40+4*kk}:{43+4*kk}], v5, s[20:23], s33 offen offset:{64*kk}")
    A("    s_andn2_b64 exec, s[40:41], vcc")
    for kk in range(8):
        A(f"    buffer_load_dwordx4 v[{40+4*kk}:{43+4*kk}], v5, s[24:27], s33 offen offset:{64*kk}")
    A("    s_mov_b64 exec, s[40:41]")
    A("    s_lshl_b32 s32, s30, 5")
    A(f"    s_add_u32 s32, s32, {WS_V}")
    A("    v_lshlrev_b32 v7, 3, v3")
    A("    v_lshl_add_u32 v7, v6, 11, v7")
    A("    v_cmp_gt_u32 vcc, 2, v2")
    A(f"    s_mov_b32 s33, {LOG2E}")
    A("    s_waitcnt vmcnt(0)")
    for kk in range(8):
        c = "0" if kk == 0 else "v[72:75]"
        A(f"    v_mfma_f32_16x16x32_bf16 v[72:75], v[{8+4*kk}:{11+4*kk}], v[{40+4*kk}:{43+4*kk}], {c}")
    A("    s_nop 7")
    for r in range(4):
        A(f"    v_mul_f32 v{72+r}, s33, v{72+r}")
    A("    v_cvt_pk_bf16_f32 v76, v72, v73")
    A("    v_cvt_pk_bf16_f32 v77, v74, v75")
    A("    s_and_saveexec_b64 s[40:41], vcc")
    A("    buffer_store_dwordx2 v[76:77], v7, s[36:39], s32 offen")
    stamp(A, 4)
    if opt.stamps:
        A("    s_waitcnt vmcnt(0)")
    stamp(A, 5)
    stamp_flush(A, 10, 0x40000)
    A("    s_endpgm")
    if opt.xpre:
        A.label("PREP_X")
        A("    s_load_dwordx2 s[8:9], s[0:1], 0         ; x")
        if opt.stamps:
            A("    s_load_dwordx2 s[10:11], s[0:1], 64     ; ws")
        A("    s_waitcnt lgkmcnt(0)")
        stamp(A, 1)
        x_touch(A, 8, 1, 2, 16, 28)
        if opt.stamps:
            A("    s_waitcnt vmcnt(0)")
        stamp(A, 4)
        stamp(A, 5)
        stamp_flush(A, 10, 0x40000)
    if opt.mall:
        A("    s_endpgm")
        A.label("PREP_M")
        A("    s_load_dwordx2 s[8:9], s[0:1], 0         ; x")
        A(f"    s_sub_u32 s28, s2, {X0}")
        A("    s_mul_i32 s28, s28, 640")
        A("    v_add_u32 v1, s28, v0")
        A("    v_lshlrev_b32 v1, 7, v1")
        A("    s_waitcnt lgkmcnt(0)")
        srd(A, 16, 8, N * 512)
        A("    buffer_load_dword v2, v1, s[16:19], 0 offen")
    A.label("PREP_END")
    A("    s_endpgm")


V_TMP = 0; V_DMAC = 1; V_SADDR = 2; V_TE = 3; V_TO = 4; V_G16 = 5; V_H4 = 6; V_TGT = 7; V_TQ = 8
V_PT = 12; V_E = 16; V_D = 20; V_S = 28; V_DEN = 32; V_X = 36; V_ONES = 224
V_TGTA = 40; V_TA = 41; V_T1 = 42; V_T2 = 43; V_T3 = 44; V_WOFF = 45; V_FE = 46; V_FO = 47
V_R = 48; V_SCR = 64; V_V = 128; V_ACC = 160
V_ACC2 = 40
S_X = 4; S_WS = 8; S_OUT = 12; S_SRC = 16; S_DST = 20
S_W = 24; S_NA = 25; S_NB = 26; S_NU = 27; S_P = 28; S_PTR = 29; S_M0 = 30; S_DELTA = 31
S_MSK = 32
S_HI = 40; S_T0 = 41; S_T1 = 42; S_T2 = 43; S_ABASE = 44; S_REG = 45; S_P2 = 46; S_WF = 47; S_EX = 48
S_C02 = 50; S_FIRST = 52; S_K = 53; S_KA = 54; S_KB = 55
S_J1 = 70; S_J2 = 72; S_J3 = 74


def lane_cg(A, vl, vc, vg):
    A(f"    v_mbcnt_lo_u32_b32 v{vl}, -1, 0")
    A(f"    v_mbcnt_hi_u32_b32 v{vl}, -1, v{vl}")
    A(f"    v_and_b32 v{vc}, 15, v{vl}")
    A(f"    v_lshrrev_b32 v{vg}, 4, v{vl}")


def dma_one(A, q, between=None):
    if q == 0:
        A(f"    s_mov_b32 m0, s{S_M0}")
    else:
        A(f"    s_add_u32 m0, s{S_M0}, {PAIR*q}")
    A(f"    v_and_or_b32 v{V_D+q}, v{V_D+q}, s{S_HI}, v{V_DMAC}")
    if between:
        between()
    A(f"    buffer_load_dwordx4 v{V_D+q}, s[{S_X}:{S_X+3}], 0 offen lds")


def wait_vm_dyn(A, sreg, base, lo=0, hi=8):
    end = uid("WV")
    def rec(a, b):
        if a == b:
            A(f"    s_waitcnt vmcnt({base + a})")
            A(f"    s_branch {end}")
            return
        m = (a + b + 1) // 2
        l = uid("WV")
        A(f"    s_cmp_ge_u32 s{sreg}, {m}")
        A(f"    s_cbranch_scc1 {l}")
        rec(a, m - 1)
        A.label(l)
        rec(m, b)
    rec(lo, hi)
    A.label(end)


def dma_partial(A, sreg, zero_fill, rev=False):
    end = uid("DP")
    zl = [uid("DZ") for _ in range(8)]
    order = list(range(7, -1, -1)) if rev else list(range(8))
    for n, q in enumerate(order):
        if n > 0:
            A(f"    s_cmp_gt_u32 s{sreg}, {n}")
            A(f"    s_cbranch_scc0 {zl[n] if zero_fill else end}")
        dma_one(A, q)
    if zero_fill:
        A(f"    s_branch {end}")
        for n in range(1, 8):
            A.label(zl[n])
            A(f"    ds_write_b128 v{V_T2}, v[{V_S}:{V_S+3}] offset:{PAIR*order[n]}")
    A.label(end)


def unit_k(A, sq):
    A(f"    s_add_u32 s{S_T2}, s{sq}, 1")
    A(f"    s_cmp_eq_u32 s{S_T2}, s{S_NU}")
    A(f"    s_cselect_b32 s{S_K}, s{S_KA}, 8")


def dma_entry_reads(A, addr_v):
    for i in range(4):
        A(f"    ds_read2_b32 v[{V_D+2*i}:{V_D+2*i+1}], v{addr_v} offset0:{4*i} offset1:{4*i+2}")


def s_prefetch(A, between=None):
    A(f"    v_add_u32 v{V_TMP}, s{S_PTR}, v{V_G16}")
    if between: between(0)
    A(f"    ds_read_b128 v[{V_E}:{V_E+3}], v{V_TMP}")
    for kk in range(4):
        if between: between(1 + kk)
        A(f"    ds_read_b128 v[{V_R+4*kk}:{V_R+4*kk+3}], v{V_SADDR} offset:{64*kk}")


def s_mfma(A, kk):
    c = f"v[{V_TQ}:{V_TQ+3}]" if kk == 0 else f"v[{V_S}:{V_S+3}]"
    r = V_R + 4 * (kk & 3)
    A(f"    v_mfma_f32_16x16x32_bf16 v[{V_S}:{V_S+3}], v[{r}:{r+3}], v[{V_V+4*kk}:{V_V+4*kk+3}], {c}")


def unit_front(A, par=0):
    q = ["E", "S0", "S1", "S2", "S3"]
    def wait(tag):
        idx = q.index(tag)
        return min(14, len(q) - 1 - idx)
    A(f"    v_add_u32 v{V_T1}, s{S_P2}, v{V_H4}")
    for kk in range(7):
        A(f"    s_waitcnt lgkmcnt({wait('S%d' % kk)})")
        s_mfma(A, kk)
        if kk < 4:
            r = V_R + 4 * kk
            A(f"    ds_read_b128 v[{r}:{r+3}], v{V_SADDR} offset:{64*(kk+4)}")
            q.append("S%d" % (kk + 4))
            for ft in range(4 * kk, 4 * kk + 4):
                a0 = V_SCR + 4 * ft + 2 * par
                A(f"    ds_read_b64_tr_b16 v[{a0}:{a0+1}], v{V_TE if ft % 2 == 0 else V_TO} offset:{32*ft}")
                q.append("T")
            if kk == 3:
                dma_entry_reads(A, V_T1)
                q += ["D"] * 4


def p_ops(par):
    ops = []
    for r in range(4):
        ops.append(f"    v_cmp_eq_u32_sdwa s[{S_MSK+2*r}:{S_MSK+2*r+1}], v{V_E+r}, v{V_TGT} src0_sel:BYTE_0 src1_sel:DWORD")
    grp = [ops]
    grp.append([f"    v_pk_mul_f32 v[{V_X}:{V_X+1}], v[{V_S}:{V_S+1}], s[{S_C02}:{S_C02+1}] op_sel_hi:[1,0]",
                f"    v_pk_mul_f32 v[{V_X+2}:{V_X+3}], v[{V_S+2}:{V_S+3}], s[{S_C02}:{S_C02+1}] op_sel_hi:[1,0]"])
    grp.append([f"    v_max_f32 v{V_X+r}, v{V_X+r}, v{V_S+r}" for r in range(4)])
    grp.append([f"    v_exp_f32 v{V_X+r}, v{V_X+r}" for r in range(4)])
    grp.append([f"    v_cndmask_b32 v{V_X+r}, 0, v{V_X+r}, s[{S_MSK+2*r}:{S_MSK+2*r+1}]" for r in range(4)])
    grp.append([f"    v_cvt_pk_bf16_f32 v{V_PT+2*par}, v{V_X}, v{V_X+1}",
                f"    v_cvt_pk_bf16_f32 v{V_PT+2*par+1}, v{V_X+2}, v{V_X+3}"])
    return grp


def unit_finish_plain(A, par=0):
    A("    s_waitcnt lgkmcnt(0)")
    s_mfma(A, 7)
    g = p_ops(par)
    for l in g[0]: A(l)
    A("    s_nop 3")
    for grp in g[1:]:
        for l in grp: A(l)
    A("    s_nop 1")


def agg_mfma(A, ft, first=False, k32=False):
    c = "0" if first else f"v[{V_ACC+4*ft}:{V_ACC+4*ft+3}]"
    a = V_SCR + 4 * ft
    if k32:
        A(f"    v_mfma_f32_16x16x32_bf16 v[{V_ACC+4*ft}:{V_ACC+4*ft+3}], v[{a}:{a+3}], v[{V_PT}:{V_PT+3}], {c}")
    else:
        A(f"    v_mfma_f32_16x16x16_bf16 v[{V_ACC+4*ft}:{V_ACC+4*ft+3}], v[{a}:{a+1}], v[{V_PT}:{V_PT+1}], {c}")


def den_mfma(A, first=False, k32=False):
    c = "0" if first else f"v[{V_DEN}:{V_DEN+3}]"
    if k32:
        A(f"    v_mfma_f32_16x16x32_bf16 v[{V_DEN}:{V_DEN+3}], v[{V_ONES}:{V_ONES+3}], v[{V_PT}:{V_PT+3}], {c}")
    else:
        A(f"    v_mfma_f32_16x16x16_bf16 v[{V_DEN}:{V_DEN+3}], v[{V_ONES}:{V_ONES+1}], v[{V_PT}:{V_PT+1}], {c}")


def unit_tail(A, dma, nxt, agg, first, par):
    k32 = agg == "k32"
    pend = list(range(16)) if agg else []
    def mf():
        if pend:
            agg_mfma(A, pend.pop(0), first, k32)
            return True
        return False
    g = p_ops(par)
    A("    s_waitcnt lgkmcnt(0)")
    s_mfma(A, 7)
    if dma == "full":
        for q in range(2):
            dma_one(A, q)
        for l in g[0]: A(l)
        for i, grp in enumerate(g[1:]):
            for l in grp: A(l)
            dma_one(A, 2 + i) if i < 5 else None
        dma_one(A, 7)
    elif dma == "part":
        for l in g[0]: A(l)
        dma_partial(A, S_K, False)
        A("    s_nop 1")
        for grp in g[1:]:
            for l in grp: A(l)
        A("    s_nop 1")
    else:
        for l in g[0]: A(l)
        A("    s_nop 3")
        for grp in g[1:]:
            for l in grp: A(l)
        A("    s_nop 1")
    if agg:
        den_mfma(A, first, k32)
    for q in range(8):
        mf()
    A(f"    v_add_u32 v{V_SADDR}, s{S_DELTA}, v{V_SADDR}")
    A(f"    s_add_u32 s{S_PTR}, s{S_PTR}, 64")
    if nxt:
        if dma == "part":
            wait_vm_dyn(A, S_K, 0, 1, 7)
        else:
            A(f"    s_waitcnt vmcnt({8 if dma else 0})")
        s_prefetch(A, between=lambda i: mf())
    while mf():
        pass
    A(f"    v_add_u32 v{V_TE}, s{S_DELTA}, v{V_TE}")
    A(f"    v_add_u32 v{V_TO}, s{S_DELTA}, v{V_TO}")
    A(f"    s_add_u32 s{S_M0}, s{S_M0}, s{S_DELTA}")
    A(f"    s_sub_u32 s{S_DELTA}, 0, s{S_DELTA}")
    A(f"    s_add_u32 s{S_P}, s{S_P}, 1")
    if agg:
        A(f"    s_mov_b32 s{S_FIRST}, 0")


def finalize(A, stage, after_pair=None, fs=False):
    A(f"    v_add_f32 v{V_X}, 0x3089705f, v{V_DEN}        ; + 1e-9")
    A(f"    v_rcp_f32 v{V_X}, v{V_X}")
    A("    s_nop 0")
    A(f"    v_mul_f32 v{V_X}, 0x3e800000, v{V_X}")
    if fs: fstamp(A, 1)
    for u in range(8):
        if fs and u == 4: fstamp(A, 2)
        sq = stage + 4 * (u & 3)
        for half in range(2):
            a = V_ACC + 4 * (2 * u + half)
            if opt.nopk:
                for r in range(4):
                    A(f"    v_mul_f32 v{a+r}, v{V_X}, v{a+r}")
            else:
                A(f"    v_pk_mul_f32 v[{a}:{a+1}], v[{a}:{a+1}], v[{V_X}:{V_X+1}] op_sel_hi:[1,0]")
                A(f"    v_pk_mul_f32 v[{a+2}:{a+3}], v[{a+2}:{a+3}], v[{V_X}:{V_X+1}] op_sel_hi:[1,0]")
        for half in range(2):
            a = V_ACC + 4 * (2 * u + half)
            A(f"    v_cvt_pk_bf16_f32 v{sq+2*half}, v{a}, v{a+1}")
            A(f"    v_cvt_pk_bf16_f32 v{sq+2*half+1}, v{a+2}, v{a+3}")
        ad = V_FE if u % 2 == 0 else V_FO
        A(f"    ds_write_b128 v{ad}, v[{sq}:{sq+3}] offset:{64*u}")
        if after_pair:
            after_pair(u)


def fin_addr(A, vc, vg):
    A(f"    v_and_b32 v{V_T1}, 3, v{vc}                ; h")
    A(f"    v_lshl_add_u32 v{V_FE}, v{V_T1}, 9, v{V_FE}")
    A(f"    v_and_b32 v{V_T2}, 1, v{V_T1}")
    A(f"    v_xor_b32 v{V_T2}, v{V_T2}, v{vg}")
    A(f"    v_lshl_add_u32 v{V_FE}, v{V_T2}, 4, v{V_FE}")
    A(f"    v_lshrrev_b32 v{V_T1}, 1, v{V_T1}")
    A(f"    v_lshlrev_b32 v{V_T1}, 6, v{V_T1}          ; 64*h1")
    A(f"    v_sub_u32 v{V_FO}, v{V_FE}, v{V_T1}")
    A(f"    v_add_u32 v{V_FE}, v{V_FE}, v{V_T1}")


def zero_acc(A):
    for i in range(64):
        A(f"    v_mov_b32 v{V_ACC+i}, 0")
    for i in range(4):
        A(f"    v_mov_b32 v{V_DEN+i}, 0")


def wslot(ks):
    k = ks & 15
    if k < 3:
        return 232 + 8 * k
    if k < 15:
        return 64 + 8 * (k - 3)
    return 224


def w_load(A, ks, dst, voff=V_WOFF):
    A(f"    s_add_u32 s{S_T0}, s{S_WF}, {ks*2048}")
    A(f"    buffer_load_dwordx4 v[{dst}:{dst+3}], v{voff}, s[{S_WS}:{S_WS+3}], s{S_T0} offen")
    A(f"    buffer_load_dwordx4 v[{dst+4}:{dst+7}], v{voff}, s[{S_WS}:{S_WS+3}], s{S_T0} offen offset:1024")


def emit_finb(A, after_loop=True):
    l = uid("FB")
    A(f"    s_cmp_lg_u32 s{S_NB}, 0")
    A(f"    s_cbranch_scc1 {l}")
    zero_acc(A)
    A.label(l)
    A(f"    v_add_f32 v{V_X}, 0x3089705f, v{V_DEN}        ; + 1e-9")
    A(f"    v_rcp_f32 v{V_X}, v{V_X}")
    for j, m in ((1, S_J1), (2, S_J2), (3, S_J3)):
        for i in range(16):
            A(f"    v_cndmask_b32 v{V_ACC+i}, v{V_ACC+i}, v{V_ACC+16*j+i}, s[{m}:{m+1}]")
            if j == 1 and i == 0:
                A(f"    v_mul_f32 v{V_X}, 0x3e800000, v{V_X}")
    if after_loop: fstamp(A, 1)
    for i in range(8):
        a = V_ACC + 2 * i
        A(f"    v_pk_mul_f32 v[{a}:{a+1}], v[{a}:{a+1}], v[{V_X}:{V_X+1}] op_sel_hi:[1,0]")
    for i in range(8):
        a = V_ACC + 2 * i
        A(f"    v_cvt_pk_bf16_f32 v{V_SCR+i}, v{a}, v{a+1}")
    if after_loop: fstamp(A, 2)
    A(f"    ds_write_b128 v{V_FE}, v[{V_SCR}:{V_SCR+3}]")
    A(f"    ds_write_b128 v{V_FO}, v[{V_SCR+4}:{V_SCR+7}] offset:64")
    if after_loop: fstamp(A, 3)
    A(f"    v_mov_b32 v{V_TGT}, v{V_TGTA}")
    for i in range(4):
        A(f"    v_mov_b32 v{V_TQ+i}, v{V_TA}")
    lane_cg(A, V_T3, V_X + 2, V_X + 3)
    A(f"    s_and_b32 s{S_T0}, s{S_W}, 1")
    A(f"    s_lshl_b32 s{S_T0}, s{S_T0}, 7")
    A(f"    s_add_u32 s{S_T0}, s{S_T0}, s{S_REG}")
    A(f"    v_lshrrev_b32 v{V_FE}, 2, v{V_X+2}")
    A(f"    v_mul_u32_u24 v{V_FE}, {RROW}, v{V_FE}")
    A(f"    v_add_u32 v{V_FE}, s{S_T0}, v{V_FE}")
    fin_addr(A, V_X + 2, V_X + 3)
    A(f"    s_mov_b32 s{S_FIRST}, 1")
    if after_loop: fstamp(A, 4)
    A("    s_waitcnt lgkmcnt(0)")
    if after_loop: fstamp(A, 5)


def gen_main(A):
    K = "gather_scatter__graph_attention_gat__graph_kernel"
    VC = 36; VG = 37; VL = 38
    A(f".globl {K}\n.p2align 8\n.type {K},@function\n{K}:")
    A(f"    s_cmp_ge_u32 s2, {NT}")
    A("    s_cbranch_scc1 MAIN_END")
    stamp(A, 0)
    A("    s_load_dwordx2 s[60:61], s[0:1], 64      ; ws")
    A("    s_load_dwordx2 s[52:53], s[0:1], 0       ; x")
    A("    s_load_dwordx2 s[54:55], s[0:1], 48      ; out")
    A("    s_load_dwordx4 s[56:59], s[0:1], 8")
    A(f"    v_and_b32 v{VL}, 63, v0")
    A(f"    v_lshrrev_b32 v{V_T1}, 6, v0")
    A(f"    v_and_b32 v{VC}, 15, v{VL}")
    A(f"    v_readfirstlane_b32 s{S_W}, v{V_T1}")
    A(f"    v_lshrrev_b32 v{VG}, 4, v{VL}")
    A(f"    v_lshlrev_b32 v20, 4, v0                 ; tid*16")
    A(f"    v_lshlrev_b32 v{V_WOFF}, 4, v{VL}        ; lane*16")
    A(f"    v_lshlrev_b32 v21, 9, v{VC}")
    A(f"    v_lshl_add_u32 v21, v{VG}, 4, v21")
    A(f"    s_mul_i32 s{S_REG}, s{S_W}, {REGSZ}")
    A(f"    s_and_b32 s{S_WF}, s2, {opt.copies-1}")
    A(f"    s_lshl_b32 s{S_WF}, s{S_WF}, 19")
    A(f"    s_lshl_b32 s{S_T0}, s{S_W}, 16")
    A(f"    s_add_u32 s{S_WF}, s{S_WF}, s{S_T0}")
    A(f"    s_add_u32 s{S_WF}, s{S_WF}, {WS_WF}")
    A("    s_waitcnt lgkmcnt(0)")
    stamp(A, 1)
    if opt.stamps:
        A(f"    s_mov_b32 s100, s{S_W}")
    srd(A, S_WS, 60, ws_bytes())
    A(f"    s_lshl_b32 s{S_T0}, s2, 13")
    A(f"    buffer_load_dwordx4 v[16:19], v20, s[{S_WS}:{S_WS+3}], s{S_T0} offen")
    srd(A, S_X, 52, N * 512)
    A(f"    s_cmp_ge_u32 s{S_W}, 4")
    A("    s_cbranch_scc1 MAIN_NOV")
    A(f"    s_lshl_b32 s{S_T0}, s{S_W}, 10")
    A(f"    s_add_u32 s{S_T0}, s{S_T0}, {WS_V}")
    A(f"    buffer_load_dwordx4 v[24:27], v{V_WOFF}, s[{S_WS}:{S_WS+3}], s{S_T0} offen")
    A.label("MAIN_NOV")
    A(f"    v_and_b32 v{V_T1}, 31, v{VL}")
    A(f"    v_lshlrev_b32 v{V_T1}, 4, v{V_T1}")
    A(f"    v_lshrrev_b32 v{V_T2}, 5, v{VL}")
    A(f"    v_lshlrev_b32 v{V_H4}, 2, v{V_T2}")
    A(f"    v_lshlrev_b32 v21, 9, v{V_T2}            ; hi*512")
    A(f"    v_cmp_eq_u32 vcc, 0, v{V_T2}")
    A(f"    v_lshlrev_b32 v{V_T2}, 5, v{V_T2}")
    A(f"    v_xor_b32 v{V_DMAC}, v{V_T1}, v{V_T2}    ; DMAC = ((l&31)*16) ^ ((l>>5)*32)")
    A(f"    v_add_u32 v21, v21, v{V_DMAC}")
    A(f"    v_mov_b32 v22, 0x7ffffe00")
    A(f"    v_cndmask_b32 v22, v22, v{V_DMAC}, vcc")
    A(f"    s_mul_i32 s{S_T0}, s2, {TILE*512}")
    A(f"    s_lshl_b32 s{S_T1}, s{S_W}, 11            ; 4w rows")
    A(f"    s_add_u32 s{S_T1}, s{S_T1}, s{S_T0}")
    A(f"    s_add_u32 m0, s{S_REG}, {UNIT}")
    A(f"    s_add_u32 s{S_T2}, s{S_T1}, 1024")
    A(f"    buffer_load_dwordx4 v21, s[{S_X}:{S_X+3}], s{S_T1} offen lds")
    A(f"    s_add_u32 m0, s{S_REG}, {UNIT+PAIR}")
    A(f"    s_lshl_b32 s{S_T1}, s{S_W}, 9")
    A(f"    buffer_load_dwordx4 v21, s[{S_X}:{S_X+3}], s{S_T2} offen lds")
    A(f"    s_add_u32 m0, s{S_REG}, {UNIT+2*PAIR}")
    A(f"    s_add_u32 s{S_T1}, s{S_T1}, s{S_T0}")
    A(f"    s_add_u32 s{S_T1}, s{S_T1}, {32*512}")
    A(f"    buffer_load_dwordx4 v22, s[{S_X}:{S_X+3}], s{S_T1} offen lds")
    if opt.xt:
        A(f"    s_lshr_b32 s{S_T0}, s2, 3")
        A(f"    s_lshl_b32 s{S_T0}, s{S_T0}, 9")
        A(f"    v_add_u32 v23, s{S_T0}, v0")
        A(f"    v_lshlrev_b32 v23, 7, v23")
        for r in range(opt.xt):
            A(f"    s_mov_b32 s{S_T0}, {opt.xoff + r*16384*128}")
            A(f"    buffer_load_dword v255, v23, s[{S_X}:{S_X+3}], s{S_T0} offen")
    NW0 = 0
    srd(A, S_OUT, 54, N * 512)
    srd(A, S_SRC, 56, E * 4)
    srd(A, S_DST, 58, E * 4)
    A(f"    v_mov_b32 v28, {hex(SENT_LIST)}")
    A(f"    v_mov_b32 v29, v28\n    v_mov_b32 v30, v28\n    v_mov_b32 v31, v28")
    A(f"    v_add_u32 v22, {LISTS}, v20")
    A(f"    v_cmp_gt_u32 vcc, 352, v0")
    A(f"    v_mov_b32 v32, 0")
    A(f"    v_lshlrev_b32 v23, 2, v0")
    A(f"    v_add_u32 v23, {CNT}, v23")
    A(f"    s_and_saveexec_b64 s[{S_EX}:{S_EX+1}], vcc")
    A(f"    s_cbranch_execz MAIN_NOCNT")
    A(f"    ds_write_b128 v22, v[28:31]")
    A(f"    v_cmp_gt_u32 vcc, 32, v0")
    A(f"    s_and_b64 exec, exec, vcc")
    A(f"    s_cbranch_execz MAIN_NOCNT")
    A(f"    ds_write_b32 v23, v32")
    A.label("MAIN_NOCNT")
    A(f"    s_mov_b64 exec, s[{S_EX}:{S_EX+1}]")
    T1, T2, T3 = V_T1, V_T2, V_T3
    A(f"    v_lshlrev_b32 v{V_G16}, 4, v{VG}")
    A(f"    v_lshrrev_b32 v{T1}, 1, v{VC}")
    A(f"    v_mul_u32_u24 v{V_SADDR}, {PAIR}, v{T1}")
    A(f"    v_and_b32 v{T1}, 1, v{VC}")
    A(f"    v_lshl_add_u32 v{V_SADDR}, v{T1}, 9, v{V_SADDR}")
    A(f"    v_lshrrev_b32 v{T2}, 1, v{VG}")
    A(f"    v_xor_b32 v{T1}, v{T1}, v{T2}")
    A(f"    v_lshl_add_u32 v{V_SADDR}, v{T1}, 5, v{V_SADDR}")
    A(f"    v_and_b32 v{T1}, 1, v{VG}")
    A(f"    v_lshl_add_u32 v{V_SADDR}, v{T1}, 4, v{V_SADDR}")
    A(f"    v_add_u32 v{V_SADDR}, s{S_REG}, v{V_SADDR}")
    A(f"    v_lshrrev_b32 v{T1}, 2, v{VC}")
    A(f"    v_lshl_add_u32 v{T1}, v{VG}, 2, v{T1}      ; row")
    A(f"    v_lshrrev_b32 v{T2}, 1, v{T1}")
    A(f"    v_mul_u32_u24 v{V_TE}, {PAIR}, v{T2}")
    A(f"    v_and_b32 v{T1}, 1, v{T1}                  ; hi")
    A(f"    v_lshl_add_u32 v{V_TE}, v{T1}, 9, v{V_TE}")
    A(f"    v_and_b32 v{T2}, 3, v{VC}")
    A(f"    v_lshl_add_u32 v{V_TE}, v{T2}, 3, v{V_TE}")
    A(f"    v_add_u32 v{V_TE}, s{S_REG}, v{V_TE}")
    A(f"    v_lshlrev_b32 v{T1}, 5, v{T1}              ; 32*hi")
    A(f"    v_sub_u32 v{V_TO}, v{V_TE}, v{T1}")
    A(f"    v_add_u32 v{V_TE}, v{V_TE}, v{T1}")
    for i in range(4):
        A(f"    v_mov_b32 v{V_ONES+i}, 0x3f803f80")
    A(f"    s_mov_b32 s{S_HI}, 0xfffffe00")
    A(f"    s_mov_b32 s{S_C02}, 0x3e4ccccd")
    A(f"    s_mul_i32 s{S_ABASE}, s{S_W}, {LSZ}")
    A(f"    s_add_u32 s{S_ABASE}, s{S_ABASE}, {LISTS+192}")
    A(f"    s_mul_i32 s{S_T0}, s{S_W}, {RROW}")
    A(f"    s_add_u32 s{S_T0}, s{S_T0}, {AGG1}")
    A(f"    v_lshrrev_b32 v{V_FE}, 2, v{VC}")
    A(f"    v_lshlrev_b32 v{V_FE}, 7, v{V_FE}          ; 128*j")
    A(f"    v_add_u32 v{V_FE}, s{S_T0}, v{V_FE}")
    fin_addr(A, VC, VG)
    A(f"    v_and_b32 v{T1}, 3, v{VC}")
    A(f"    v_mul_u32_u24 v39, 576, v{T1}")
    A(f"    v_lshl_add_u32 v39, v{VG}, 4, v39")
    A(f"    v_add_u32 v39, {VLDS}, v39")
    A(f"    v_lshrrev_b32 v{T1}, 5, v{VL}")
    A(f"    s_lshl_b32 s{S_T0}, s{S_W}, 1")
    A(f"    v_add_u32 v{T1}, s{S_T0}, v{T1}")
    A(f"    v_mul_u32_u24 v22, 576, v{T1}")
    A(f"    v_and_b32 v{T1}, 31, v{VL}")
    A(f"    v_lshl_add_u32 v22, v{T1}, 4, v22")
    A(f"    v_add_u32 v22, {VLDS}, v22")
    A(f"    v_lshrrev_b32 v{T1}, 2, v{VC}")
    A(f"    s_lshl_b32 s{S_T0}, s{S_W}, 2")
    A(f"    v_add_u32 v{V_TGTA}, s{S_T0}, v{T1}")
    A(f"    s_add_u32 s{S_T0}, s{S_W}, 32")
    A(f"    v_mov_b32 v{V_TGT}, s{S_T0}")
    A(f"    s_waitcnt vmcnt({3+opt.xt})")
    A(f"    s_cmp_ge_u32 s{S_W}, 4")
    A("    s_cbranch_scc1 MAIN_WB")
    A(f"    ds_write_b128 v22, v[24:27]")
    A.label("MAIN_WB")
    stamp(A, 2)
    EN = 16
    NN = 20; WV = 24; RK = 28; BS = 32
    A(f"    s_mov_b64 s[62:63], 0")
    for i in range(4):
        A(f"    v_and_b32 v{NN+i}, 63, v{EN+i}")
        A(f"    v_cmp_eq_u32 vcc, -2, v{EN+i}")
        A(f"    s_or_b64 s[62:63], s[62:63], vcc")
        A(f"    v_cmp_gt_u32 s[{64+2*i}:{65+2*i}], 40, v{NN+i}       ; valid")
        A(f"    v_cmp_le_u32 s[{72+2*i}:{73+2*i}], 32, v{NN+i}       ; group B")
        A(f"    v_lshrrev_b32 v{T1}, 2, v{NN+i}")
        A(f"    v_subrev_u32 v{T2}, 32, v{NN+i}")
        A(f"    v_subrev_u32 v{T3}, 24, v{NN+i}")
        A(f"    v_cndmask_b32 v{WV+i}, v{T1}, v{T2}, s[{72+2*i}:{73+2*i}]")
        A(f"    v_cndmask_b32 v{T1}, v{T1}, v{T3}, s[{72+2*i}:{73+2*i}]")
        A(f"    v_lshlrev_b32 v{BS+i}, 2, v{T1}")
        A(f"    v_add_u32 v{BS+i}, {CNT}, v{BS+i}")
    A(f"    v_mov_b32 v{V_TMP}, 1")
    A("    s_waitcnt lgkmcnt(0)")
    A("    s_barrier")
    for i in range(4):
        A(f"    s_mov_b64 exec, s[{64+2*i}:{65+2*i}]")
        A(f"    ds_add_rtn_u32 v{RK+i}, v{BS+i}, v{V_TMP}")
    A("    s_mov_b64 exec, -1")
    def v_reads():
        for kk in range(8):
            A(f"    ds_read_b128 v[{V_ACC+4*kk}:{V_ACC+4*kk+3}], v39 offset:{4*576+64*kk}")
        for kk in range(8):
            A(f"    ds_read_b128 v[{V_V+4*kk}:{V_V+4*kk+3}], v39 offset:{64*kk}")
    if not opt.vlate:
        v_reads()
    A(f"    s_mov_b32 s{S_T0}, {LSZ}")
    A(f"    v_mov_b32 v{T1}, {LISTS+192}")
    for i in range(4):
        A(f"    v_mad_u32_u24 v{BS+i}, v{WV+i}, s{S_T0}, v{T1}")
    for i in range(4):
        A(f"    s_waitcnt lgkmcnt({(3-i) if opt.vlate else min(15, 16+3-i)})")
        A(f"    v_lshlrev_b32 v{T1}, 2, v{RK+i}")
        A(f"    v_sub_u32 v{T2}, -4, v{T1}")
        A(f"    v_mov_b32 v{T3}, {CAPA}")
        A(f"    v_cndmask_b32 v{T1}, v{T1}, v{T2}, s[{72+2*i}:{73+2*i}]")
        A(f"    v_cndmask_b32 v{T3}, v{T3}, {CAPB}, s[{72+2*i}:{73+2*i}]")
        A(f"    v_add_u32 v{BS+i}, v{BS+i}, v{T1}")
        A(f"    v_cmp_lt_u32 vcc, v{RK+i}, v{T3}")
        A(f"    s_andn2_b64 s[80:81], s[{64+2*i}:{65+2*i}], vcc")
        A(f"    s_or_b64 s[62:63], s[62:63], s[80:81]")
        A(f"    s_and_b64 exec, s[{64+2*i}:{65+2*i}], vcc")
        A(f"    ds_write_b32 v{BS+i}, v{EN+i}")
        A(f"    s_mov_b64 exec, -1")
    A(f"    s_cmp_eq_u64 s[62:63], 0")
    A(f"    s_cbranch_scc1 MAIN_NOOVF")
    A(f"    v_mov_b32 v{T1}, {OVF}")
    A(f"    ds_write_b32 v{T1}, v{V_TMP}")
    A.label("MAIN_NOOVF")
    A("    s_waitcnt lgkmcnt(0)")
    A("    s_barrier")
    stamp(A, 3)
    A(f"    s_lshl_b32 s{S_T0}, s{S_W}, 2")
    A(f"    s_add_u32 s{S_T0}, s{S_T0}, {CNT}")
    A(f"    v_mov_b32 v16, s{S_T0}")
    A(f"    v_mov_b32 v17, {OVF}")
    A(f"    ds_read_b32 v18, v16                     ; cntA")
    A(f"    ds_read_b32 v19, v16 offset:32           ; cntB")
    A(f"    ds_read_b32 v20, v17")
    A(f"    v_lshrrev_b32 v{T1}, 2, v{VC}")
    A(f"    v_cmp_eq_u32 s[{S_J1}:{S_J1+1}], 1, v{T1}")
    A(f"    v_cmp_eq_u32 s[{S_J2}:{S_J2+1}], 2, v{T1}")
    A(f"    v_cmp_eq_u32 s[{S_J3}:{S_J3+1}], 3, v{T1}")
    A("    s_waitcnt lgkmcnt(0)")
    A(f"    v_readfirstlane_b32 s{S_NA}, v18")
    A(f"    v_readfirstlane_b32 s{S_NB}, v19")
    A(f"    v_readfirstlane_b32 s{S_T0}, v20")
    A(f"    s_mov_b32 s{S_M0}, s{S_REG}")
    A(f"    s_mov_b32 s{S_DELTA}, {UNIT}")
    A(f"    s_mov_b32 s{S_P}, 0")
    A(f"    s_mov_b32 s{S_FIRST}, 1")
    A(f"    s_cmp_lg_u32 s{S_T0}, 0")
    A("    s_cbranch_scc1 MAIN_SLOW")
    A(f"    s_sub_u32 s{S_KA}, s{S_NA}, 1")
    A(f"    s_and_b32 s{S_KA}, s{S_KA}, 15")
    A(f"    s_lshr_b32 s{S_KA}, s{S_KA}, 1")
    A(f"    s_add_u32 s{S_KA}, s{S_KA}, 1")
    A(f"    s_sub_u32 s{S_KB}, s{S_NB}, 1")
    A(f"    s_and_b32 s{S_KB}, s{S_KB}, 15")
    A(f"    s_lshr_b32 s{S_KB}, s{S_KB}, 1")
    A(f"    s_add_u32 s{S_KB}, s{S_KB}, 1")
    A(f"    s_cmp_eq_u32 s{S_NA}, 0")
    A(f"    s_cselect_b32 s{S_KA}, 8, s{S_KA}")
    A(f"    s_add_u32 s{S_NA}, s{S_NA}, 15")
    A(f"    s_lshr_b32 s{S_NA}, s{S_NA}, 4")
    A(f"    s_add_u32 s{S_NB}, s{S_NB}, 15")
    A(f"    s_lshr_b32 s{S_NB}, s{S_NB}, 4")
    A(f"    s_add_u32 s{S_NU}, s{S_NA}, s{S_NB}")
    A(f"    s_lshl_b32 s{S_T0}, s{S_NB}, 6")
    A(f"    s_sub_u32 s{S_PTR}, s{S_ABASE}, s{S_T0}")
    def emit_t(A):
        for kk in range(8):
            A(f"    ds_read_b128 v[{V_SCR+4*kk}:{V_SCR+4*kk+3}], v{V_SADDR} offset:{UNIT+64*kk}")
        A(f"    v_lshlrev_b32 v{T2}, 2, v{VC}")
        A(f"    v_and_b32 v{T3}, 3, v{VC}")
        A(f"    v_add_u32 v{T3}, 16, v{T3}")
        A(f"    v_lshlrev_b32 v{T3}, 2, v{T3}              ; lane 16 + h")
        for kk in range(8):
            A(f"    s_waitcnt lgkmcnt({7-kk})")
            c = "0" if kk == 0 else f"v[{V_S}:{V_S+3}]"
            A(f"    v_mfma_f32_16x16x32_bf16 v[{V_S}:{V_S+3}], v[{V_SCR+4*kk}:{V_SCR+4*kk+3}], v[{V_ACC+4*kk}:{V_ACC+4*kk+3}], {c}")
        A("    s_nop 7")
        A(f"    v_cndmask_b32 v{V_TA}, v{V_S}, v{V_S+1}, s[{S_J1}:{S_J1+1}]")
        A(f"    v_cndmask_b32 v{V_TA}, v{V_TA}, v{V_S+2}, s[{S_J2}:{S_J2+1}]")
        A(f"    v_cndmask_b32 v{V_TA}, v{V_TA}, v{V_S+3}, s[{S_J3}:{S_J3+1}]")
        A(f"    ds_bpermute_b32 v{V_TQ}, v{T3}, v{V_S}")
        A(f"    ds_bpermute_b32 v{V_TA}, v{T2}, v{V_TA}")
        A("    s_waitcnt lgkmcnt(0)")
        for i in range(1, 4):
            A(f"    v_mov_b32 v{V_TQ+i}, v{V_TQ}")

    def zero_prep(A, buf):
        if opt.skip:
            for i in range(4):
                A(f"    v_mov_b32 v{V_S+i}, 0")
            A(f"    v_mbcnt_lo_u32_b32 v{V_T2}, -1, 0")
            A(f"    v_mbcnt_hi_u32_b32 v{V_T2}, -1, v{V_T2}")
            A(f"    v_lshlrev_b32 v{V_T2}, 4, v{V_T2}")
            A(f"    s_add_u32 s{S_T1}, s{S_REG}, {UNIT*buf}")
            A(f"    v_add_u32 v{V_T2}, s{S_T1}, v{V_T2}")

    if opt.prio == 2:
        A("    s_setprio 3")
    A(f"    s_mov_b32 s{S_K}, 0")
    A(f"    s_cmp_eq_u32 s{S_NU}, 0")
    A("    s_cbranch_scc1 MAIN_PRO_T")
    A(f"    v_add_u32 v{T1}, s{S_PTR}, v{V_H4}")
    dma_entry_reads(A, T1)
    zero_prep(A, 0)
    A(f"    s_mov_b32 s{S_T1}, 0")
    if opt.skip:
        unit_k(A, S_T1)
    A("    s_waitcnt lgkmcnt(0)")
    if opt.skip:
        A(f"    s_cmp_eq_u32 s{S_NB}, 0")
        A("    s_cbranch_scc1 MAIN_U0A")
        A(f"    s_mov_b32 s{S_K}, s{S_KB}")
        dma_partial(A, S_K, True, rev=True)
        A("    s_branch MAIN_PRO_T")
        A.label("MAIN_U0A")
        dma_partial(A, S_K, True)
    else:
        A(f"    s_mov_b32 s{S_K}, 8")
        for q in range(8):
            dma_one(A, q)
    A.label("MAIN_PRO_T")
    if opt.vlate:
        v_reads()
        A("    s_waitcnt lgkmcnt(0)")
    if opt.bar0 or opt.vlate:
        A("    s_barrier")
    wait_vm_dyn(A, S_K, opt.xt, 0, 8)
    emit_t(A)
    A(f"    s_mov_b32 s{S_K}, 0")
    A(f"    s_cmp_le_u32 s{S_NU}, 1")
    A("    s_cbranch_scc1 MAIN_PRO_DONE")
    A(f"    v_add_u32 v{T1}, s{S_PTR}, v{V_H4}")
    A(f"    v_add_u32 v{T1}, 64, v{T1}")
    dma_entry_reads(A, T1)
    zero_prep(A, 1)
    A(f"    s_add_u32 s{S_M0}, s{S_REG}, {UNIT}")
    A(f"    s_mov_b32 s{S_T1}, 1")
    if opt.skip:
        unit_k(A, S_T1)
    else:
        A(f"    s_mov_b32 s{S_K}, 8")
    A("    s_waitcnt lgkmcnt(0)")
    if opt.skip:
        dma_partial(A, S_K, True)
    else:
        for q in range(8):
            dma_one(A, q)
    A(f"    s_mov_b32 s{S_M0}, s{S_REG}")
    A.label("MAIN_PRO_DONE")
    stamp(A, 4)
    if opt.prio == 1:
        A(f"    s_setprio 1")
    for ks in range(opt.w3):
        w_load(A, ks, wslot(ks))
    WX = 2 * opt.w3
    A(f"    s_cmp_eq_u32 s{S_NU}, 0")
    A("    s_cbranch_scc1 MAIN_LOOP")
    wait_vm_dyn(A, S_K, WX, 0, 8)
    A("    s_waitcnt lgkmcnt(0)")
    s_prefetch(A)
    if opt.stamps and opt.ustamps:
        A("    s_memtime s[98:99]")
    A.label("MAIN_LOOP")
    A(f"    s_cmp_eq_u32 s{S_P}, s{S_NB}")
    A("    s_cbranch_scc1 MAIN_FINB")
    A.label("MAIN_LOOP2")
    A(f"    s_cmp_ge_u32 s{S_P}, s{S_NU}")
    A("    s_cbranch_scc1 MAIN_DONE")

    def dispatch(tag, agg, firsts, minleft, dest, par):
        for first in firsts:
            if len(firsts) > 1:
                if first == firsts[0]:
                    A(f"    s_cmp_eq_u32 s{S_FIRST}, 0")
                    A(f"    s_cbranch_scc0 {tag}_F1")
                else:
                    A.label(f"{tag}_F1")
            A(f"    s_cmp_ge_u32 s{S_T0}, 3")
            A(f"    s_cbranch_scc0 {tag}_{first}_R2")
            if opt.skip:
                A(f"    s_cmp_eq_u32 s{S_K}, 8")
                A(f"    s_cbranch_scc0 {tag}_{first}_PART")
            unit_tail(A, "full", True, agg, first, par)
            A(f"    s_branch {dest}")
            if opt.skip:
                A.label(f"{tag}_{first}_PART")
                unit_tail(A, "part", True, agg, first, par)
                A(f"    s_branch {dest}")
            A.label(f"{tag}_{first}_R2")
            if minleft <= 1:
                A(f"    s_cmp_eq_u32 s{S_T0}, 2")
                A(f"    s_cbranch_scc0 {tag}_{first}_R1")
            unit_tail(A, None, True, agg, first, par)
            A(f"    s_branch {dest}")
            if minleft <= 1:
                A.label(f"{tag}_{first}_R1")
                unit_tail(A, None, False, agg, first, par)
                A(f"    s_branch {dest}")

    def set_prio():
        if opt.prio == 2:
            l1 = uid("PR"); l2 = uid("PR"); le = uid("PR")
            A(f"    s_cmp_ge_u32 s{S_P}, {opt.pa}")
            A(f"    s_cbranch_scc1 {l1}")
            A("    s_setprio 3")
            A(f"    s_branch {le}")
            A.label(l1)
            A(f"    s_cmp_ge_u32 s{S_P}, {opt.pb}")
            A(f"    s_cbranch_scc1 {l2}")
            A("    s_setprio 2")
            A(f"    s_branch {le}")
            A.label(l2)
            A("    s_setprio 1")
            A.label(le)

    def k_next():
        set_prio()
        if opt.skip:
            A(f"    s_add_u32 s{S_T1}, s{S_P}, 2")
            unit_k(A, S_T1)

    pstamp(A)
    ustamp(A, opt.up, 0); ustamp(A, opt.up + 1, 4)
    A(f"    s_add_u32 s{S_P2}, s{S_PTR}, 128")
    k_next()
    unit_front(A, 0)
    ustamp(A, opt.up, 1); ustamp(A, opt.up + 1, 5)
    A(f"    s_sub_u32 s{S_T0}, s{S_NU}, s{S_P}")
    A(f"    s_add_u32 s{S_T1}, s{S_P}, 1")
    A(f"    s_cmp_eq_u32 s{S_T1}, s{S_NB}")
    A("    s_cbranch_scc1 TL_LAST")
    A(f"    s_cmp_eq_u32 s{S_T1}, s{S_NU}")
    A("    s_cbranch_scc1 TL_LAST")
    dispatch("TE", None, [0], 2, "MAIN_ODD", 0)
    A.label("TL_LAST")
    dispatch("TL", "k16", [0, 1], 1, "MAIN_NEXT", 0)
    A.label("MAIN_ODD")
    pstamp(A)
    ustamp(A, opt.up + 1, 2); ustamp(A, opt.up + 2, 6)
    ustamp(A, opt.up, 0); ustamp(A, opt.up + 1, 4)
    A(f"    s_add_u32 s{S_P2}, s{S_PTR}, 128")
    k_next()
    unit_front(A, 1)
    ustamp(A, opt.up, 1); ustamp(A, opt.up + 1, 5)
    A(f"    s_sub_u32 s{S_T0}, s{S_NU}, s{S_P}")
    dispatch("TO", "k32", [0, 1], 1, "MAIN_NEXT", 1)
    A.label("MAIN_NEXT")
    ustamp(A, opt.up + 1, 2); ustamp(A, opt.up + 2, 6)
    A("    s_branch MAIN_LOOP")

    A.label("MAIN_FINB")
    fstamp(A, 0)
    A("    s_nop 3")
    emit_finb(A)
    A("    s_branch MAIN_LOOP2")

    A.label("MAIN_DONE")
    if opt.prio:
        A("    s_setprio 0")
    stamp(A, 5)
    if opt.stamps and opt.pstamps:
        A("    s_memtime s[98:99]")
    A(f"    s_cmp_lg_u32 s{S_NA}, 0")
    A("    s_cbranch_scc1 MAIN_DONE2")
    zero_acc(A)
    A.label("MAIN_DONE2")
    VC2 = V_T2; VG2 = V_T3
    lane_cg(A, V_T1, VC2, VG2)
    A(f"    v_lshrrev_b32 v{V_TMP}, 2, v{VC2}                 ; w'")
    A(f"    v_mul_u32_u24 v1, {REGSZ}, v{V_TMP}")
    A(f"    v_and_b32 v{V_TMP}, 1, v{V_TMP}")
    A(f"    v_lshl_add_u32 v1, v{V_TMP}, 7, v1")
    A(f"    v_and_b32 v{V_TMP}, 3, v{VC2}")
    A(f"    v_mul_u32_u24 v{V_TMP}, {RROW}, v{V_TMP}")
    A(f"    v_add_u32 v1, v1, v{V_TMP}")
    A(f"    v_and_b32 v{V_TMP}, 7, v{VC2}")
    A(f"    v_mul_u32_u24 v5, {RROW}, v{V_TMP}")
    A(f"    v_add_u32 v5, {AGG1}, v5")
    A(f"    v_lshlrev_b32 v{V_TMP}, 4, v{VG2}                 ; g*16")
    A(f"    v_xor_b32 v{V_T1}, 16, v{V_TMP}                   ; (g^1)*16")
    A(f"    v_add_u32 v2, v1, v{V_T1}")
    A(f"    v_add_u32 v1, v1, v{V_TMP}")
    A(f"    v_add_u32 v3, {4*REGSZ}, v1")
    A(f"    v_add_u32 v4, {4*REGSZ}, v2")
    A(f"    v_add_u32 v6, v5, v{V_T1}")
    A(f"    v_add_u32 v5, v5, v{V_TMP}")
    A(f"    s_mul_i32 s{S_T0}, s2, {TILE*512}")
    A(f"    s_lshl_b32 s{S_T1}, s{S_W}, 6")
    A(f"    s_add_u32 s{S_T0}, s{S_T0}, s{S_T1}")
    A(f"    v_lshlrev_b32 v8, 9, v{VC2}")
    A(f"    v_lshl_add_u32 v8, v{VG2}, 4, v8")
    A(f"    v_add_u32 v8, s{S_T0}, v8")
    A(f"    v_add_u32 v9, {16*512}, v8")
    A(f"    v_add_u32 v10, {32*512}, v8")
    A(f"    v_mov_b32 v{V_TMP}, 0x7ffffff0")
    A(f"    v_cmp_gt_u32 vcc, 8, v{VC2}")
    A(f"    v_mov_b32 v7, v{V_WOFF}")
    A(f"    s_nop 0")
    A(f"    s_mov_b64 s[{S_EX}:{S_EX+1}], vcc")
    A(f"    v_cndmask_b32 v10, v{V_TMP}, v10, vcc")
    NPRE = opt.wpre
    W3 = opt.w3
    def pre(u):
        for k in range((NPRE * u) // 8, (NPRE * (u + 1)) // 8):
            w_load(A, W3 + k, wslot(W3 + k), 7)
    finalize(A, 12, after_pair=pre)
    A("    s_waitcnt lgkmcnt(0)")
    A("    s_barrier")
    stamp(A, 6)
    NB = opt.bring
    BR = V_ACC
    def b_reads(ks, zero2=False):
        h = ks >> 3; u = ks & 7; h0 = h & 1; h1 = h >> 1
        imm = h * 512 + ((u ^ h1) * 64)
        st = BR + 12 * (ks % NB)
        for T in range(3):
            if T == 2 and opt.zero2:
                A(f"    s_mov_b64 exec, s[{S_EX}:{S_EX+1}]")
            A(f"    ds_read_b128 v[{st+4*T}:{st+4*T+3}], v{1+2*T+h0} offset:{imm}")
            if T == 2 and opt.zero2:
                A(f"    s_mov_b64 exec, -1")
    if opt.zero2:
        for st_ in range(NB):
            for i in range(4):
                A(f"    v_mov_b32 v{BR+12*st_+8+i}, 0")
    for ks in range(NB - 1):
        b_reads(ks)
    q = [("w", k) for k in range(W3 + NPRE) for _ in range(2)]
    def wait_for(tag):
        idx = max(i for i, t in enumerate(q) if t == tag)
        return len(q) - 1 - idx
    nxt_w = W3 + NPRE
    nrem = 32 - nxt_w
    sched = {}
    for j in range(nrem):
        k2 = nxt_w + j
        st_ = max((j * opt.wlast) // max(nrem - 1, 1), k2 - 16)
        st_ = min(st_, k2 - opt.wmin)
        sched.setdefault(st_, []).append(k2)
    if opt.gprio:
        l = uid("GP")
        A(f"    s_cmp_lt_u32 s{S_W}, 4")
        A(f"    s_cbranch_scc1 {l}")
        A("    s_setprio 1")
        A.label(l)
    for ks in range(32):
        if opt.gprio and ks == opt.gpa:
            l = uid("GP")
            A(f"    s_cmp_lt_u32 s{S_W}, 4")
            A(f"    s_cbranch_scc0 {l}")
            A("    s_setprio 1")
            A.label(l)
        if opt.gprio and ks == opt.gpb:
            l = uid("GP")
            A(f"    s_cmp_lt_u32 s{S_W}, 4")
            A(f"    s_cbranch_scc1 {l}")
            A("    s_setprio 0")
            A.label(l)
        if ks % 4 == 0:
            gstamp(A, ks // 4)
        if ks + NB - 1 < 32:
            b_reads(ks + NB - 1, zero2=opt.zero2)
        lg = 3 * min(NB - 1, 31 - ks)
        A(f"    s_waitcnt vmcnt({min(wait_for(('w', ks)), 63)}) lgkmcnt({lg})")
        st = BR + 12 * (ks % NB)
        wb = wslot(ks)
        for T in range(3):
            for t in range(2):
                a = V_ACC2 + 4 * (2 * T + t)
                c = "0" if ks == 0 else f"v[{a}:{a+3}]"
                A(f"    v_mfma_f32_16x16x32_bf16 v[{a}:{a+3}], v[{wb+4*t}:{wb+4*t+3}], v[{st+4*T}:{st+4*T+3}], {c}")
        for k2 in sched.get(ks, []):
            assert k2 - 16 <= ks < k2
            assert k2 == nxt_w
            w_load(A, k2, wslot(k2), 7)
            q.append(("w", k2)); q.append(("w", k2))
            nxt_w += 1
    assert nxt_w == 32
    stamp(A, 7)
    gstamp(A, 8)
    A("    s_nop 7")
    for T in range(3):
        a0 = V_ACC2 + 4 * (2 * T); a1 = a0 + 4
        st = 12 + 4 * T
        A(f"    v_cvt_pk_bf16_f32 v{st}, v{a0}, v{a0+1}")
        A(f"    v_cvt_pk_bf16_f32 v{st+1}, v{a0+2}, v{a0+3}")
        A(f"    v_cvt_pk_bf16_f32 v{st+2}, v{a1}, v{a1+1}")
        A(f"    v_cvt_pk_bf16_f32 v{st+3}, v{a1+2}, v{a1+3}")
        A(f"    buffer_store_dwordx4 v[{st}:{st+3}], v{8+T}, s[{S_OUT}:{S_OUT+3}], 0 offen")
    if opt.stamps:
        A("    s_waitcnt vmcnt(0)")
    stamp(A, 8)
    stamp_flush(A, 60, 0)
    A("    s_endpgm")

    A.label("MAIN_SLOW")
    if opt.vlate:
        v_reads()
        A("    s_waitcnt lgkmcnt(0)")
    if opt.bar0 or opt.vlate:
        A("    s_barrier")
    A("    s_waitcnt vmcnt(0)")
    emit_t(A)
    for ks in range(opt.w3):
        w_load(A, ks, wslot(ks))
    gen_slow(A)
    A.label("MAIN_END")
    A("    s_endpgm")


def gen_slow(A):
    S_GRP = 62; S_POS = 63; S_CNT = 64; S_LO = 65; S_HIB = 66; S_BASE = 67
    A("    s_waitcnt vmcnt(0)")
    zero_acc(A)
    A(f"    s_mul_i32 s{S_BASE}, s2, {TILE}")
    A(f"    s_mov_b32 s{S_GRP}, 0")
    A(f"    s_mov_b32 s{S_NB}, 1")
    A(f"    s_mov_b32 s{S_NA}, 1")
    A.label("SLOW_GROUP")
    A(f"    s_add_u32 s{S_LO}, s{S_W}, 32")
    A(f"    s_add_u32 s{S_HIB}, s{S_LO}, 1")
    A(f"    s_cmp_eq_u32 s{S_GRP}, 0")
    A("    s_cbranch_scc1 SLOW_RANGE")
    A(f"    s_lshl_b32 s{S_LO}, s{S_W}, 2")
    A(f"    s_add_u32 s{S_HIB}, s{S_LO}, 4")
    A.label("SLOW_RANGE")
    A(f"    s_mov_b32 s{S_POS}, 0")
    A.label("SLOW_REFILL")
    L4 = V_T1; X1 = V_T2; X2 = V_T3; X3 = V_TMP
    A(f"    v_mbcnt_lo_u32_b32 v{L4}, -1, 0")
    A(f"    v_mbcnt_hi_u32_b32 v{L4}, -1, v{L4}")
    A(f"    v_lshlrev_b32 v{L4}, 2, v{L4}")
    A(f"    v_mov_b32 v{X1}, {hex(SENT_LIST)}")
    A(f"    v_add_u32 v{X2}, s{S_ABASE}, v{L4}")
    A(f"    ds_write_b32 v{X2}, v{X1}")
    A(f"    ds_write_b32 v{X2}, v{X1} offset:256")
    A(f"    s_mov_b32 s{S_CNT}, 0")
    A.label("SLOW_SCAN")
    A(f"    s_cmp_ge_u32 s{S_POS}, {E*4}")
    A("    s_cbranch_scc1 SLOW_FLUSH")
    A(f"    s_cmp_gt_u32 s{S_CNT}, 64")
    A("    s_cbranch_scc1 SLOW_FLUSH")
    A(f"    buffer_load_dword v{X1}, v{L4}, s[{S_DST}:{S_DST+3}], s{S_POS} offen")
    A(f"    buffer_load_dword v{X2}, v{L4}, s[{S_SRC}:{S_SRC+3}], s{S_POS} offen")
    A(f"    s_add_u32 s{S_POS}, s{S_POS}, 256")
    A("    s_waitcnt vmcnt(0)")
    A(f"    v_subrev_u32 v{X1}, s{S_BASE}, v{X1}")
    A(f"    v_cmp_le_u32 s[68:69], s{S_LO}, v{X1}")
    A(f"    v_cmp_gt_u32 vcc, s{S_HIB}, v{X1}")
    A(f"    s_and_b64 vcc, vcc, s[68:69]")
    A(f"    v_lshl_or_b32 v{X2}, v{X2}, 9, v{X1}")
    A(f"    s_nop 0")
    A(f"    v_mbcnt_lo_u32_b32 v{X3}, vcc_lo, 0")
    A(f"    v_mbcnt_hi_u32_b32 v{X3}, vcc_hi, v{X3}")
    A(f"    v_add_u32 v{X3}, s{S_CNT}, v{X3}")
    A(f"    v_lshlrev_b32 v{X3}, 2, v{X3}")
    A(f"    v_add_u32 v{X3}, s{S_ABASE}, v{X3}")
    A(f"    s_bcnt1_i32_b64 s{S_T0}, vcc")
    A(f"    s_add_u32 s{S_CNT}, s{S_CNT}, s{S_T0}")
    A(f"    s_and_saveexec_b64 s[{S_EX}:{S_EX+1}], vcc")
    A(f"    ds_write_b32 v{X3}, v{X2}")
    A(f"    s_mov_b64 exec, s[{S_EX}:{S_EX+1}]")
    A("    s_branch SLOW_SCAN")
    A.label("SLOW_FLUSH")
    A(f"    s_add_u32 s{S_NU}, s{S_CNT}, 15")
    A(f"    s_lshr_b32 s{S_NU}, s{S_NU}, 4")
    A(f"    s_mov_b32 s{S_P}, 0")
    A(f"    s_mov_b32 s{S_PTR}, s{S_ABASE}")
    A("    s_waitcnt lgkmcnt(0)")
    A.label("SLOW_UNIT")
    A(f"    s_cmp_ge_u32 s{S_P}, s{S_NU}")
    A("    s_cbranch_scc1 SLOW_UNITS_DONE")
    A(f"    v_add_u32 v{V_T1}, s{S_PTR}, v{V_H4}")
    dma_entry_reads(A, V_T1)
    A("    s_waitcnt lgkmcnt(0)")
    for q in range(8):
        dma_one(A, q)
    A(f"    s_mov_b32 s{S_P2}, s{S_PTR}")
    A("    s_waitcnt vmcnt(0)")
    s_prefetch(A)
    unit_front(A, 0)
    unit_finish_plain(A, 0)
    den_mfma(A)
    for ft in range(16):
        agg_mfma(A, ft)
    A(f"    s_add_u32 s{S_P}, s{S_P}, 1")
    A(f"    s_add_u32 s{S_PTR}, s{S_PTR}, 64")
    A("    s_branch SLOW_UNIT")
    A.label("SLOW_UNITS_DONE")
    A(f"    s_cmp_lt_u32 s{S_POS}, {E*4}")
    A("    s_cbranch_scc1 SLOW_REFILL")
    A(f"    s_cmp_eq_u32 s{S_GRP}, 1")
    A("    s_cbranch_scc1 MAIN_DONE")
    A("    s_nop 7")
    emit_finb(A, after_loop=False)
    zero_acc(A)
    A(f"    s_mov_b32 s{S_GRP}, 1")
    A("    s_branch SLOW_GROUP")


def kd(name, vgpr, sgpr):
    return f""".amdhsa_kernel {name}
  .amdhsa_next_free_vgpr {vgpr}
  .amdhsa_next_free_sgpr {sgpr}
  .amdhsa_accum_offset {((vgpr+3)//4)*4}
  .amdhsa_group_segment_fixed_size 0
  .amdhsa_kernarg_size 72
  .amdhsa_user_sgpr_count 2
  .amdhsa_user_sgpr_kernarg_segment_ptr 1
  .amdhsa_system_sgpr_workgroup_id_x 1
  .amdhsa_float_denorm_mode_32 3
.end_amdhsa_kernel
"""


HEADER = """; Kernarg layout for this problem (72 bytes, ptrs only, base s[0:1]):
"""


def main():
    ap = argparse.ArgumentParser()
    ap.add_argument("-o", default="gather_scatter__graph_attention_gat__graph.s")
    ap.add_argument("--stamps", action="store_true")
    ap.add_argument("--ustamps", action="store_true")
    ap.add_argument("--gstamps", action="store_true")
    ap.add_argument("--fstamps", action="store_true")
    ap.add_argument("--nopk", type=int, default=0)
    ap.add_argument("--pstamps", action="store_true")
    ap.add_argument("--clk", action="store_true")
    ap.add_argument("--up", type=int, default=1)
    ap.add_argument("--wpos", default="A")
    ap.add_argument("--copies", type=int, default=1)
    ap.add_argument("--xpre", type=int, default=0)
    ap.add_argument("--wpre", type=int, default=10)
    ap.add_argument("--w3", type=int, default=2)
    ap.add_argument("--wlast", type=int, default=24)
    ap.add_argument("--wmin", type=int, default=6)
    ap.add_argument("--prio", type=int, default=2)
    ap.add_argument("--skip", type=int, default=0)
    ap.add_argument("--bar0", type=int, default=0)
    ap.add_argument("--xt", type=int, default=0)
    ap.add_argument("--mall", type=int, default=0)
    ap.add_argument("--vlate", type=int, default=1)
    ap.add_argument("--gprio", type=int, default=1)
    ap.add_argument("--gpa", type=int, default=13)
    ap.add_argument("--gpb", type=int, default=19)
    ap.add_argument("--tlb", type=int, default=0)
    ap.add_argument("--xoff", type=int, default=0)
    ap.add_argument("--pa", type=int, default=2)
    ap.add_argument("--pb", type=int, default=4)
    ap.add_argument("--wlook", type=int, default=12)
    ap.add_argument("--wone", type=int, default=1)
    ap.add_argument("--zero2", type=int, default=1)
    ap.add_argument("--bring", type=int, default=4)
    ap.add_argument("--wspread", type=int, default=8)
    a = ap.parse_args()
    opt.__dict__.update(a.__dict__)
    A = Asm()
    B = Asm()
    gen_prep(B)
    gen_main(B)
    A(HEADER.rstrip("\n"))
    A(f"; @launch kernel=gat_prep_kernel grid=({opt.nprep},1,1) block=(640,1,1) lds=43520")
    A(f"; @launch kernel=gather_scatter__graph_attention_gat__graph_kernel grid=({NT},1,1) block=(512,1,1) lds={LDS_MAIN}")
    A('.amdgcn_target "amdgcn-amd-amdhsa--gfx950"')
    A(".text")
    A.lines += B.lines
    A('.section .rodata,"a"')
    A(".p2align 6")
    A(kd("gat_prep_kernel", 80, 102 if opt.stamps else 48))
    A(".p2align 6")
    A(kd("gather_scatter__graph_attention_gat__graph_kernel", 256, 102 if opt.stamps else 96))
    open(opt.o, "w").write(A.text())
    print("wrote", opt.o, len(A.lines), "lines")


if __name__ == "__main__":
    main()
```

```python
import sys, argparse

N = 10000; E = 160000; TILE = 40; NT = 250; G = 64; CH = 2500
WS_SLOTS = 0
WS_EPOCH = 0x1F4000
WS_FLAGS = 0x1F4100
WS_V = 0x1F8000
SPIN = 20000
WS_WF = 0x200000
WS_STAMP = 0x700000
REGSZ = 17408; UNIT = 8704; PAIR = 1088; RROW = 2080
AGG1 = 8 * REGSZ
LISTS = AGG1 + 8 * RROW
LSZ = 704
TBUF = LISTS + 8 * LSZ
CNT = TBUF + 768
OVF = CNT + 64
LDS_MAIN = CNT + 128
VLDS = AGG1
CAPA = 128; CAPB = 48
SENT_LIST = 0x7FFFFE3F
LOG2E = 0x3FB8AA3B


class Asm:
    def __init__(self):
        self.lines = []
    def __call__(self, s=""):
        for l in s.split("\n"):
            self.lines.append(l)
    def label(self, n):
        self.lines.append(n + ":")
    def text(self):
        return "\n".join(self.lines) + "\n"


class Opt:
    pass
opt = Opt()
_ul = [0]
def uid(p):
    _ul[0] += 1
    return f"{p}_{_ul[0]}"


def stamp(A, i):
    if opt.stamps and not opt.ustamps and not opt.gstamps and not opt.pstamps and not opt.fstamps:
        A(f"    {'s_memtime' if opt.clk else 's_memrealtime'} s[{82+2*i}:{83+2*i}]")
def ustamp(A, p, i):
    if opt.stamps and opt.ustamps:
        l = uid("US")
        A(f"    s_cmp_eq_u32 s{S_P}, {p}")
        A(f"    s_cbranch_scc0 {l}")
        A(f"    s_memtime s[{82+2*i}:{83+2*i}]")
        A.label(l)
def pstamp(A):
    if opt.stamps and opt.pstamps:
        for p in range(8):
            l = uid("PS")
            A(f"    s_cmp_eq_u32 s{S_P}, {p}")
            A(f"    s_cbranch_scc0 {l}")
            A(f"    s_memtime s[{82+2*p}:{83+2*p}]")
            A.label(l)
def fstamp(A, i):
    if opt.stamps and opt.fstamps:
        A(f"    s_memtime s[{82+2*i}:{83+2*i}]")
def gstamp(A, i):
    if opt.stamps and opt.gstamps:
        A(f"    s_memtime s[{82+2*i}:{83+2*i}]")
def stamp_flush(A, wsbase, area):
    if not opt.stamps:
        return
    A("    s_waitcnt lgkmcnt(0)")
    A(f"    s_mov_b32 s76, s{wsbase}\n    s_mov_b32 s77, s{wsbase+1}\n    s_mov_b32 s78, 0x800000\n    s_mov_b32 s79, 0x00020000")
    A(f"    s_lshl_b32 s80, s2, 4")
    A(f"    s_add_u32 s80, s80, s100")
    A(f"    s_lshl_b32 s80, s80, 6")
    A(f"    s_add_u32 s80, s80, {WS_STAMP+area}")
    A("    s_mov_b64 exec, 1")
    A("    v_mov_b32 v1, 0")
    for i in range(9):
        A(f"    v_mov_b32 v2, s{82+2*i}")
        A(f"    buffer_store_dword v2, v1, s[76:79], s80 offen offset:{4*i}")
        A("    s_nop 1")


def srd(A, d, base, nbytes):
    A(f"    s_mov_b32 s{d}, s{base}")
    A(f"    s_mov_b32 s{d+1}, s{base+1}")
    A(f"    s_mov_b32 s{d+2}, {nbytes}")
    A(f"    s_mov_b32 s{d+3}, 0x00020000")


def x_touch(A, sbase, vaddr, vdst, ssrd, stmp):
    if not opt.xpre:
        return
    srd(A, ssrd, sbase, N * 512)
    A(f"    s_lshr_b32 s{stmp}, s2, 3")
    A(f"    s_mul_i32 s{stmp}, s{stmp}, 640")
    A(f"    v_add_u32 v{vaddr}, s{stmp}, v0")
    A(f"    v_lshlrev_b32 v{vaddr}, 7, v{vaddr}")
    for r in range(opt.xpre):
        A(f"    s_mov_b32 s{stmp}, {r*20480*128}")
        A(f"    buffer_load_dword v{vdst}, v{vaddr}, s[{ssrd}:{ssrd+3}], s{stmp} offen")


def ws_bytes():
    return WS_WF + opt.copies * 524288


def gen_prep(A):
    K = "gat_prep_kernel"
    NWG_W = 16 * opt.copies
    V0 = 64 + NWG_W
    X0 = V0 + 32
    NPREP = 256 if opt.xpre else X0 + (63 if opt.mall else 0)
    opt.nprep = NPREP
    A(f".globl {K}\n.p2align 8\n.type {K},@function\n{K}:")
    A(f"    s_cmp_ge_u32 s2, {NPREP}")
    A("    s_cbranch_scc1 PREP_END")
    stamp(A, 0)
    if opt.stamps:
        A("    v_lshrrev_b32 v1, 6, v0\n    s_nop 1\n    v_readfirstlane_b32 s100, v1")
    A("    s_cmp_ge_u32 s2, 64")
    A("    s_cbranch_scc1 PREP_NB")
    A("    s_load_dwordx4 s[4:7], s[0:1], 8")
    A("    s_load_dwordx2 s[10:11], s[0:1], 64     ; ws")
    A("    s_load_dwordx2 s[12:13], s[0:1], 0      ; x")
    A("    v_lshlrev_b32 v1, 4, v0")
    for i in range(4):
        A(f"    v_mov_b32 v{4+i}, -1")
    A("    v_lshlrev_b32 v2, 2, v0")
    A("    v_mov_b32 v3, 0")
    A("    s_mul_i32 s28, s2, 10000")
    A("    v_add_u32 v30, s28, v1")
    A("    s_waitcnt lgkmcnt(0)")
    stamp(A, 1)
    srd(A, 20, 6, E * 4)
    A("    buffer_load_dwordx4 v[8:11], v30, s[20:23], 0 offen      ; dst")
    srd(A, 16, 4, E * 4)
    A("    buffer_load_dwordx4 v[12:15], v30, s[16:19], 0 offen     ; src")
    srd(A, 24, 10, ws_bytes())
    x_touch(A, 12, 31, 32, 36, 40)
    for r in range(4):
        A(f"    ds_write_b128 v1, v[4:7] offset:{10240*r}")
    A("    ds_write_b32 v2, v3 offset:40960")
    A("    v_cmp_gt_u32 vcc, 625, v0")
    A("    s_mov_b32 s29, 52429")
    A("    v_mov_b32 v3, 1")
    A("    v_mov_b32 v28, 32000")
    A("    s_waitcnt lgkmcnt(0)")
    A("    s_barrier")
    A("    s_and_saveexec_b64 s[30:31], vcc")
    A(f"    s_waitcnt vmcnt({1+opt.xpre})")
    stamp(A, 2)
    for i in range(4):
        A(f"    v_mul_u32_u24 v{16+i}, s29, v{8+i}")
        A(f"    v_lshrrev_b32 v{16+i}, 21, v{16+i}       ; tile")
        A(f"    v_lshlrev_b32 v{20+i}, 2, v{16+i}")
        A(f"    ds_add_rtn_u32 v{24+i}, v{20+i}, v3 offset:40960")
    A(f"    s_waitcnt vmcnt({opt.xpre})")
    for i in range(4):
        A(f"    v_mul_u32_u24 v4, 40, v{16+i}")
        A(f"    v_sub_u32 v4, v{8+i}, v4")
        A(f"    v_lshl_or_b32 v{12+i}, v{12+i}, 9, v4    ; entry")
        A(f"    v_lshlrev_b32 v{16+i}, 7, v{16+i}        ; tile*128")
    for i in range(4):
        A(f"    s_waitcnt lgkmcnt({3-i})")
        A(f"    v_cmp_gt_u32 vcc, 32, v{24+i}")
        A(f"    v_lshl_add_u32 v4, v{24+i}, 2, v{16+i}")
        A(f"    s_nop 0")
        A(f"    v_cndmask_b32 v{20+i}, v28, v4, vcc")
    for i in range(4):
        A(f"    ds_write_b32 v{20+i}, v{12+i}")
    A("    s_mov_b64 exec, s[30:31]")
    A("    s_lshl_b32 s28, s2, 7                    ; chunk*128")
    A("    v_and_b32 v2, 7, v0                      ; part (640 % 8 == 0)")
    A("    v_lshrrev_b32 v3, 3, v0")
    A("    v_lshlrev_b32 v29, 2, v3")
    A("    v_lshlrev_b32 v4, 4, v2")
    A("    v_lshl_add_u32 v4, v3, 13, v4")
    A("    v_add_u32 v4, s28, v4")
    A("    v_cmp_eq_u32 s[32:33], 7, v2")
    A("    v_cmp_gt_u32 vcc, 80, v0")
    A("    s_mov_b64 s[34:35], vcc")
    A("    v_mov_b32 v5, 0x7ffffff0")
    A("    v_mov_b32 v6, -2")
    A("    s_waitcnt lgkmcnt(0)")
    A("    s_barrier")
    stamp(A, 3)
    for r in range(4):
        A(f"    ds_read_b128 v[{8+4*r}:{11+4*r}], v1 offset:{10240*r}")
        A(f"    ds_read_b32 v{24+r}, v29 offset:{40960 + 320*r}")
    for r in range(4):
        A(f"    s_waitcnt lgkmcnt({6-2*r})")
        A(f"    v_cmp_lt_u32 vcc, 32, v{24+r}")
        A(f"    s_and_b64 vcc, vcc, s[32:33]")
        A(f"    v_add_u32 v7, {80*8192*r}, v4")
        if r == 3:
            A(f"    v_cndmask_b32 v7, v5, v7, s[34:35]")
        A(f"    s_nop 0")
        A(f"    v_cndmask_b32 v{11+4*r}, v{11+4*r}, v6, vcc")
        A(f"    buffer_store_dwordx4 v[{8+4*r}:{11+4*r}], v7, s[24:27], 0 offen")
    stamp(A, 4)
    if opt.stamps:
        A("    s_waitcnt vmcnt(0)")
    stamp(A, 5)
    stamp_flush(A, 10, 0x40000)
    A("    s_endpgm")
    A.label("PREP_NB")
    if opt.mall:
        A(f"    s_cmp_ge_u32 s2, {X0}")
        A("    s_cbranch_scc1 PREP_M")
    if opt.xpre:
        A(f"    s_cmp_ge_u32 s2, {X0}")
        A("    s_cbranch_scc1 PREP_X")
    A("    s_load_dwordx2 s[8:9], s[0:1], 24       ; w")
    A("    s_load_dwordx4 s[12:15], s[0:1], 32")
    A("    s_load_dwordx2 s[10:11], s[0:1], 64     ; ws")
    A("    s_load_dwordx2 s[42:43], s[0:1], 0      ; x")
    A("    s_sub_u32 s28, s2, 64                    ; idx")
    A("    v_lshrrev_b32 v1, 6, v0")
    A("    s_nop 0")
    cs = {1: 0, 2: 1, 4: 2, 8: 3}[opt.copies]
    A(f"    s_and_b32 s27, s28, {opt.copies-1}       ; copy")
    A(f"    s_lshr_b32 s28, s28, {cs}")
    A("    v_readfirstlane_b32 s29, v1              ; wave")
    A("    s_waitcnt lgkmcnt(0)")
    stamp(A, 1)
    srd(A, 16, 8, 524288)
    srd(A, 36, 10, ws_bytes())
    A(f"    s_cmp_ge_u32 s2, {V0}")
    A("    s_cbranch_scc1 PREP_V")
    A("    s_cmp_ge_u32 s29, 8")
    A("    s_cbranch_scc1 PREP_END")
    A("    s_lshl_b32 s30, s28, 15                  ; kp*2*16384")
    A("    s_add_u32 s33, s30, 16384")
    A("    v_lshrrev_b32 v1, 7, v0                  ; g")
    A("    v_and_b32 v2, 127, v0                    ; fp")
    A("    v_lshlrev_b32 v3, 11, v1")
    A("    v_lshl_add_u32 v3, v2, 2, v3             ; g*2048 + fp*4")
    A("    v_add_u32 v4, 8192, v3")
    for half, so in ((0, 30), (1, 33)):
        for j in range(4):
            A(f"    buffer_load_dword v{8+8*half+j}, v3, s[16:19], s{so} offen offset:{512*j}")
        for j in range(4):
            A(f"    buffer_load_dword v{12+8*half+j}, v4, s[16:19], s{so} offen offset:{512*j}")
    x_touch(A, 42, 41, 42, 44, 40)
    A("    v_lshrrev_b32 v5, 4, v2")
    A("    v_lshlrev_b32 v5, 16, v5")
    A("    v_bfe_u32 v6, v2, 1, 1")
    A("    v_lshl_add_u32 v5, v6, 10, v5")
    A("    v_lshl_add_u32 v5, v1, 8, v5             ; 16g*16")
    A("    v_bfe_u32 v6, v2, 2, 2")
    A("    v_lshl_add_u32 v5, v6, 6, v5             ; 4*gi*16")
    A("    v_and_b32 v6, 1, v2")
    A("    v_lshl_add_u32 v5, v6, 5, v5             ; 2*(fp&1)*16")
    A("    s_lshl_b32 s31, s28, 12                  ; kp*2*2048")
    A("    s_lshl_b32 s32, s27, 19                  ; copy*524288")
    A("    s_add_u32 s31, s31, s32")
    A(f"    s_add_u32 s31, s31, {WS_WF}")
    A("    s_mov_b32 s34, 0x05040100")
    A("    s_mov_b32 s35, 0x07060302")
    for half in range(2):
        A(f"    s_waitcnt vmcnt({(8 if half == 0 else 2) + opt.xpre})")
        if half == 0:
            stamp(A, 2)
        b = 8 + 8 * half; d = 24 + 8 * half
        for i in range(4):
            A(f"    v_perm_b32 v{d+i}, v{b+1+2*i}, v{b+2*i}, s34")
            A(f"    v_perm_b32 v{d+4+i}, v{b+1+2*i}, v{b+2*i}, s35")
        A(f"    buffer_store_dwordx4 v[{d}:{d+3}], v5, s[36:39], s31 offen offset:{2048*half}")
        A(f"    buffer_store_dwordx4 v[{d+4}:{d+7}], v5, s[36:39], s31 offen offset:{2048*half+16}")
    stamp(A, 4)
    if opt.stamps:
        A("    s_waitcnt vmcnt(0)")
    stamp(A, 5)
    stamp_flush(A, 10, 0x40000)
    A("    s_endpgm")
    A.label("PREP_V")
    if opt.tlb:
        A("    s_cmp_eq_u32 s29, 2")
        A("    s_cbranch_scc0 PREP_V2")
        srd(A, 44, 42, N * 512)
        A("    v_and_b32 v1, 63, v0")
        A(f"    s_mov_b32 s30, {opt.tlb}")
        A("    v_mul_lo_u32 v1, s30, v1")
        A(f"    s_sub_u32 s31, s2, {V0}")
        A("    s_lshr_b32 s31, s31, 3")
        A(f"    s_mul_i32 s31, s31, {opt.tlb // 4}")
        A("    buffer_load_dword v2, v1, s[44:47], s31 offen")
        A("    s_endpgm")
        A.label("PREP_V2")
    A("    s_cmp_ge_u32 s29, 2")
    A("    s_cbranch_scc1 PREP_END")
    A(f"    s_sub_u32 s30, s2, {V0}")
    A("    s_lshl_b32 s30, s30, 1")
    A("    s_add_u32 s30, s30, s29")
    A("    s_lshr_b32 s31, s30, 4                   ; h")
    srd(A, 20, 12, 2048)
    srd(A, 24, 14, 2048)
    A("    v_and_b32 v1, 63, v0")
    A("    v_and_b32 v2, 15, v1                     ; i / c")
    A("    v_lshrrev_b32 v3, 4, v1                  ; g")
    A("    v_lshlrev_b32 v4, 9, v2")
    A("    v_lshl_add_u32 v4, v3, 4, v4             ; i*512 + g*16")
    A("    s_lshl_b32 s32, s30, 13")
    A("    v_lshlrev_b32 v5, 4, v3                  ; g*16")
    A("    s_lshl_b32 s33, s31, 9                   ; h*512")
    for kk in range(8):
        A(f"    buffer_load_dwordx4 v[{8+4*kk}:{11+4*kk}], v4, s[16:19], s32 offen offset:{64*kk}")
    A("    v_and_b32 v6, 1, v2")
    A("    v_cmp_eq_u32 vcc, 0, v6")
    A("    s_mov_b64 s[40:41], exec")
    A("    s_mov_b64 exec, vcc")
    for kk in range(8):
        A(f"    buffer_load_dwordx4 v[{40+4*kk}:{43+4*kk}], v5, s[20:23], s33 offen offset:{64*kk}")
    A("    s_andn2_b64 exec, s[40:41], vcc")
    for kk in range(8):
        A(f"    buffer_load_dwordx4 v[{40+4*kk}:{43+4*kk}], v5, s[24:27], s33 offen offset:{64*kk}")
    A("    s_mov_b64 exec, s[40:41]")
    A("    s_lshl_b32 s32, s30, 5")
    A(f"    s_add_u32 s32, s32, {WS_V}")
    A("    v_lshlrev_b32 v7, 3, v3")
    A("    v_lshl_add_u32 v7, v6, 11, v7")
    A("    v_cmp_gt_u32 vcc, 2, v2")
    A(f"    s_mov_b32 s33, {LOG2E}")
    A("    s_waitcnt vmcnt(0)")
    for kk in range(8):
        c = "0" if kk == 0 else "v[72:75]"
        A(f"    v_mfma_f32_16x16x32_bf16 v[72:75], v[{8+4*kk}:{11+4*kk}], v[{40+4*kk}:{43+4*kk}], {c}")
    A("    s_nop 7")
    for r in range(4):
        A(f"    v_mul_f32 v{72+r}, s33, v{72+r}")
    A("    v_cvt_pk_bf16_f32 v76, v72, v73")
    A("    v_cvt_pk_bf16_f32 v77, v74, v75")
    A("    s_and_saveexec_b64 s[40:41], vcc")
    A("    buffer_store_dwordx2 v[76:77], v7, s[36:39], s32 offen")
    stamp(A, 4)
    if opt.stamps:
        A("    s_waitcnt vmcnt(0)")
    stamp(A, 5)
    stamp_flush(A, 10, 0x40000)
    A("    s_endpgm")
    if opt.xpre:
        A.label("PREP_X")
        A("    s_load_dwordx2 s[8:9], s[0:1], 0         ; x")
        if opt.stamps:
            A("    s_load_dwordx2 s[10:11], s[0:1], 64     ; ws")
        A("    s_waitcnt lgkmcnt(0)")
        stamp(A, 1)
        x_touch(A, 8, 1, 2, 16, 28)
        if opt.stamps:
            A("    s_waitcnt vmcnt(0)")
        stamp(A, 4)
        stamp(A, 5)
        stamp_flush(A, 10, 0x40000)
    if opt.mall:
        A("    s_endpgm")
        A.label("PREP_M")
        A("    s_load_dwordx2 s[8:9], s[0:1], 0         ; x")
        A(f"    s_sub_u32 s28, s2, {X0}")
        A("    s_mul_i32 s28, s28, 640")
        A("    v_add_u32 v1, s28, v0")
        A("    v_lshlrev_b32 v1, 7, v1")
        A("    s_waitcnt lgkmcnt(0)")
        srd(A, 16, 8, N * 512)
        A("    buffer_load_dword v2, v1, s[16:19], 0 offen")
    A.label("PREP_END")
    A("    s_endpgm")


V_TMP = 0; V_DMAC = 1; V_SADDR = 2; V_TE = 3; V_TO = 4; V_G16 = 5; V_H4 = 6; V_TGT = 7; V_TQ = 8
V_PT = 12; V_E = 16; V_D = 20; V_S = 28; V_DEN = 32; V_X = 36; V_ONES = 224
V_TGTA = 40; V_TA = 41; V_T1 = 42; V_T2 = 43; V_T3 = 44; V_WOFF = 45; V_FE = 46; V_FO = 47
V_R = 48; V_SCR = 64; V_V = 128; V_ACC = 160
V_ACC2 = 40
S_X = 4; S_WS = 8; S_OUT = 12; S_SRC = 16; S_DST = 20
S_W = 24; S_NA = 25; S_NB = 26; S_NU = 27; S_P = 28; S_PTR = 29; S_M0 = 30; S_DELTA = 31
S_MSK = 32
S_HI = 40; S_T0 = 41; S_T1 = 42; S_T2 = 43; S_ABASE = 44; S_REG = 45; S_P2 = 46; S_WF = 47; S_EX = 48
S_C02 = 50; S_FIRST = 52; S_K = 53; S_KA = 54; S_KB = 55
S_J1 = 70; S_J2 = 72; S_J3 = 74
S_EN = 56; S_TAG = 57


def lane_cg(A, vl, vc, vg):
    A(f"    v_mbcnt_lo_u32_b32 v{vl}, -1, 0")
    A(f"    v_mbcnt_hi_u32_b32 v{vl}, -1, v{vl}")
    A(f"    v_and_b32 v{vc}, 15, v{vl}")
    A(f"    v_lshrrev_b32 v{vg}, 4, v{vl}")


def dma_one(A, q, between=None):
    if q == 0:
        A(f"    s_mov_b32 m0, s{S_M0}")
    else:
        A(f"    s_add_u32 m0, s{S_M0}, {PAIR*q}")
    A(f"    v_and_or_b32 v{V_D+q}, v{V_D+q}, s{S_HI}, v{V_DMAC}")
    if between:
        between()
    A(f"    buffer_load_dwordx4 v{V_D+q}, s[{S_X}:{S_X+3}], 0 offen lds")


def wait_vm_dyn(A, sreg, base, lo=0, hi=8):
    end = uid("WV")
    def rec(a, b):
        if a == b:
            A(f"    s_waitcnt vmcnt({base + a})")
            A(f"    s_branch {end}")
            return
        m = (a + b + 1) // 2
        l = uid("WV")
        A(f"    s_cmp_ge_u32 s{sreg}, {m}")
        A(f"    s_cbranch_scc1 {l}")
        rec(a, m - 1)
        A.label(l)
        rec(m, b)
    rec(lo, hi)
    A.label(end)


def dma_partial(A, sreg, zero_fill, rev=False):
    end = uid("DP")
    zl = [uid("DZ") for _ in range(8)]
    order = list(range(7, -1, -1)) if rev else list(range(8))
    for n, q in enumerate(order):
        if n > 0:
            A(f"    s_cmp_gt_u32 s{sreg}, {n}")
            A(f"    s_cbranch_scc0 {zl[n] if zero_fill else end}")
        dma_one(A, q)
    if zero_fill:
        A(f"    s_branch {end}")
        for n in range(1, 8):
            A.label(zl[n])
            A(f"    ds_write_b128 v{V_T2}, v[{V_S}:{V_S+3}] offset:{PAIR*order[n]}")
    A.label(end)


def unit_k(A, sq):
    A(f"    s_add_u32 s{S_T2}, s{sq}, 1")
    A(f"    s_cmp_eq_u32 s{S_T2}, s{S_NU}")
    A(f"    s_cselect_b32 s{S_K}, s{S_KA}, 8")


def dma_entry_reads(A, addr_v):
    for i in range(4):
        A(f"    ds_read2_b32 v[{V_D+2*i}:{V_D+2*i+1}], v{addr_v} offset0:{4*i} offset1:{4*i+2}")


def s_prefetch(A, between=None):
    A(f"    v_add_u32 v{V_TMP}, s{S_PTR}, v{V_G16}")
    if between: between(0)
    A(f"    ds_read_b128 v[{V_E}:{V_E+3}], v{V_TMP}")
    for kk in range(4):
        if between: between(1 + kk)
        A(f"    ds_read_b128 v[{V_R+4*kk}:{V_R+4*kk+3}], v{V_SADDR} offset:{64*kk}")


def s_mfma(A, kk):
    c = f"v[{V_TQ}:{V_TQ+3}]" if kk == 0 else f"v[{V_S}:{V_S+3}]"
    r = V_R + 4 * (kk & 3)
    A(f"    v_mfma_f32_16x16x32_bf16 v[{V_S}:{V_S+3}], v[{r}:{r+3}], v[{V_V+4*kk}:{V_V+4*kk+3}], {c}")


def unit_front(A, par=0):
    q = ["E", "S0", "S1", "S2", "S3"]
    def wait(tag):
        idx = q.index(tag)
        return min(14, len(q) - 1 - idx)
    A(f"    v_add_u32 v{V_T1}, s{S_P2}, v{V_H4}")
    for kk in range(7):
        A(f"    s_waitcnt lgkmcnt({wait('S%d' % kk)})")
        s_mfma(A, kk)
        if kk < 4:
            r = V_R + 4 * kk
            A(f"    ds_read_b128 v[{r}:{r+3}], v{V_SADDR} offset:{64*(kk+4)}")
            q.append("S%d" % (kk + 4))
            for ft in range(4 * kk, 4 * kk + 4):
                a0 = V_SCR + 4 * ft + 2 * par
                A(f"    ds_read_b64_tr_b16 v[{a0}:{a0+1}], v{V_TE if ft % 2 == 0 else V_TO} offset:{32*ft}")
                q.append("T")
            if kk == 3:
                dma_entry_reads(A, V_T1)
                q += ["D"] * 4


def p_ops(par):
    ops = []
    for r in range(4):
        ops.append(f"    v_cmp_eq_u32_sdwa s[{S_MSK+2*r}:{S_MSK+2*r+1}], v{V_E+r}, v{V_TGT} src0_sel:BYTE_0 src1_sel:DWORD")
    grp = [ops]
    grp.append([f"    v_pk_mul_f32 v[{V_X}:{V_X+1}], v[{V_S}:{V_S+1}], s[{S_C02}:{S_C02+1}] op_sel_hi:[1,0]",
                f"    v_pk_mul_f32 v[{V_X+2}:{V_X+3}], v[{V_S+2}:{V_S+3}], s[{S_C02}:{S_C02+1}] op_sel_hi:[1,0]"])
    grp.append([f"    v_max_f32 v{V_X+r}, v{V_X+r}, v{V_S+r}" for r in range(4)])
    grp.append([f"    v_exp_f32 v{V_X+r}, v{V_X+r}" for r in range(4)])
    grp.append([f"    v_cndmask_b32 v{V_X+r}, 0, v{V_X+r}, s[{S_MSK+2*r}:{S_MSK+2*r+1}]" for r in range(4)])
    grp.append([f"    v_cvt_pk_bf16_f32 v{V_PT+2*par}, v{V_X}, v{V_X+1}",
                f"    v_cvt_pk_bf16_f32 v{V_PT+2*par+1}, v{V_X+2}, v{V_X+3}"])
    return grp


def unit_finish_plain(A, par=0):
    A("    s_waitcnt lgkmcnt(0)")
    s_mfma(A, 7)
    g = p_ops(par)
    for l in g[0]: A(l)
    A("    s_nop 3")
    for grp in g[1:]:
        for l in grp: A(l)
    A("    s_nop 1")


def agg_mfma(A, ft, first=False, k32=False):
    c = "0" if first else f"v[{V_ACC+4*ft}:{V_ACC+4*ft+3}]"
    a = V_SCR + 4 * ft
    if k32:
        A(f"    v_mfma_f32_16x16x32_bf16 v[{V_ACC+4*ft}:{V_ACC+4*ft+3}], v[{a}:{a+3}], v[{V_PT}:{V_PT+3}], {c}")
    else:
        A(f"    v_mfma_f32_16x16x16_bf16 v[{V_ACC+4*ft}:{V_ACC+4*ft+3}], v[{a}:{a+1}], v[{V_PT}:{V_PT+1}], {c}")


def den_mfma(A, first=False, k32=False):
    c = "0" if first else f"v[{V_DEN}:{V_DEN+3}]"
    if k32:
        A(f"    v_mfma_f32_16x16x32_bf16 v[{V_DEN}:{V_DEN+3}], v[{V_ONES}:{V_ONES+3}], v[{V_PT}:{V_PT+3}], {c}")
    else:
        A(f"    v_mfma_f32_16x16x16_bf16 v[{V_DEN}:{V_DEN+3}], v[{V_ONES}:{V_ONES+1}], v[{V_PT}:{V_PT+1}], {c}")


def unit_tail(A, dma, nxt, agg, first, par):
    k32 = agg == "k32"
    pend = list(range(16)) if agg else []
    def mf():
        if pend:
            agg_mfma(A, pend.pop(0), first, k32)
            return True
        return False
    g = p_ops(par)
    A("    s_waitcnt lgkmcnt(0)")
    s_mfma(A, 7)
    if dma == "full":
        for q in range(2):
            dma_one(A, q)
        for l in g[0]: A(l)
        for i, grp in enumerate(g[1:]):
            for l in grp: A(l)
            dma_one(A, 2 + i) if i < 5 else None
        dma_one(A, 7)
    elif dma == "part":
        for l in g[0]: A(l)
        dma_partial(A, S_K, False)
        A("    s_nop 1")
        for grp in g[1:]:
            for l in grp: A(l)
        A("    s_nop 1")
    else:
        for l in g[0]: A(l)
        A("    s_nop 3")
        for grp in g[1:]:
            for l in grp: A(l)
        A("    s_nop 1")
    if agg:
        den_mfma(A, first, k32)
    for q in range(8):
        mf()
    A(f"    v_add_u32 v{V_SADDR}, s{S_DELTA}, v{V_SADDR}")
    A(f"    s_add_u32 s{S_PTR}, s{S_PTR}, 64")
    if nxt:
        if dma == "part":
            wait_vm_dyn(A, S_K, 0, 1, 7)
        else:
            A(f"    s_waitcnt vmcnt({8 if dma else 0})")
        s_prefetch(A, between=lambda i: mf())
    while mf():
        pass
    A(f"    v_add_u32 v{V_TE}, s{S_DELTA}, v{V_TE}")
    A(f"    v_add_u32 v{V_TO}, s{S_DELTA}, v{V_TO}")
    A(f"    s_add_u32 s{S_M0}, s{S_M0}, s{S_DELTA}")
    A(f"    s_sub_u32 s{S_DELTA}, 0, s{S_DELTA}")
    A(f"    s_add_u32 s{S_P}, s{S_P}, 1")
    if agg:
        A(f"    s_mov_b32 s{S_FIRST}, 0")


def finalize(A, stage, after_pair=None, fs=False):
    A(f"    v_add_f32 v{V_X}, 0x3089705f, v{V_DEN}        ; + 1e-9")
    A(f"    v_rcp_f32 v{V_X}, v{V_X}")
    A("    s_nop 0")
    A(f"    v_mul_f32 v{V_X}, 0x3e800000, v{V_X}")
    if fs: fstamp(A, 1)
    for u in range(8):
        if fs and u == 4: fstamp(A, 2)
        sq = stage + 4 * (u & 3)
        for half in range(2):
            a = V_ACC + 4 * (2 * u + half)
            if opt.nopk:
                for r in range(4):
                    A(f"    v_mul_f32 v{a+r}, v{V_X}, v{a+r}")
            else:
                A(f"    v_pk_mul_f32 v[{a}:{a+1}], v[{a}:{a+1}], v[{V_X}:{V_X+1}] op_sel_hi:[1,0]")
                A(f"    v_pk_mul_f32 v[{a+2}:{a+3}], v[{a+2}:{a+3}], v[{V_X}:{V_X+1}] op_sel_hi:[1,0]")
        for half in range(2):
            a = V_ACC + 4 * (2 * u + half)
            A(f"    v_cvt_pk_bf16_f32 v{sq+2*half}, v{a}, v{a+1}")
            A(f"    v_cvt_pk_bf16_f32 v{sq+2*half+1}, v{a+2}, v{a+3}")
        ad = V_FE if u % 2 == 0 else V_FO
        A(f"    ds_write_b128 v{ad}, v[{sq}:{sq+3}] offset:{64*u}")
        if after_pair:
            after_pair(u)


def fin_addr(A, vc, vg):
    A(f"    v_and_b32 v{V_T1}, 3, v{vc}                ; h")
    A(f"    v_lshl_add_u32 v{V_FE}, v{V_T1}, 9, v{V_FE}")
    A(f"    v_and_b32 v{V_T2}, 1, v{V_T1}")
    A(f"    v_xor_b32 v{V_T2}, v{V_T2}, v{vg}")
    A(f"    v_lshl_add_u32 v{V_FE}, v{V_T2}, 4, v{V_FE}")
    A(f"    v_lshrrev_b32 v{V_T1}, 1, v{V_T1}")
    A(f"    v_lshlrev_b32 v{V_T1}, 6, v{V_T1}          ; 64*h1")
    A(f"    v_sub_u32 v{V_FO}, v{V_FE}, v{V_T1}")
    A(f"    v_add_u32 v{V_FE}, v{V_FE}, v{V_T1}")


def zero_acc(A):
    for i in range(64):
        A(f"    v_mov_b32 v{V_ACC+i}, 0")
    for i in range(4):
        A(f"    v_mov_b32 v{V_DEN+i}, 0")


def wslot(ks):
    k = ks & 15
    if k < 3:
        return 232 + 8 * k
    if k < 15:
        return 64 + 8 * (k - 3)
    return 224


def w_load(A, ks, dst, voff=V_WOFF):
    A(f"    s_add_u32 s{S_T0}, s{S_WF}, {ks*2048}")
    A(f"    buffer_load_dwordx4 v[{dst}:{dst+3}], v{voff}, s[{S_WS}:{S_WS+3}], s{S_T0} offen sc1")
    A(f"    buffer_load_dwordx4 v[{dst+4}:{dst+7}], v{voff}, s[{S_WS}:{S_WS+3}], s{S_T0} offen offset:1024 sc1")


def emit_finb(A, after_loop=True):
    l = uid("FB")
    A(f"    s_cmp_lg_u32 s{S_NB}, 0")
    A(f"    s_cbranch_scc1 {l}")
    zero_acc(A)
    A.label(l)
    A(f"    v_add_f32 v{V_X}, 0x3089705f, v{V_DEN}        ; + 1e-9")
    A(f"    v_rcp_f32 v{V_X}, v{V_X}")
    for j, m in ((1, S_J1), (2, S_J2), (3, S_J3)):
        for i in range(16):
            A(f"    v_cndmask_b32 v{V_ACC+i}, v{V_ACC+i}, v{V_ACC+16*j+i}, s[{m}:{m+1}]")
            if j == 1 and i == 0:
                A(f"    v_mul_f32 v{V_X}, 0x3e800000, v{V_X}")
    if after_loop: fstamp(A, 1)
    for i in range(8):
        a = V_ACC + 2 * i
        A(f"    v_pk_mul_f32 v[{a}:{a+1}], v[{a}:{a+1}], v[{V_X}:{V_X+1}] op_sel_hi:[1,0]")
    for i in range(8):
        a = V_ACC + 2 * i
        A(f"    v_cvt_pk_bf16_f32 v{V_SCR+i}, v{a}, v{a+1}")
    if after_loop: fstamp(A, 2)
    A(f"    ds_write_b128 v{V_FE}, v[{V_SCR}:{V_SCR+3}]")
    A(f"    ds_write_b128 v{V_FO}, v[{V_SCR+4}:{V_SCR+7}] offset:64")
    if after_loop: fstamp(A, 3)
    A(f"    v_mov_b32 v{V_TGT}, v{V_TGTA}")
    for i in range(4):
        A(f"    v_mov_b32 v{V_TQ+i}, v{V_TA}")
    lane_cg(A, V_T3, V_X + 2, V_X + 3)
    A(f"    s_and_b32 s{S_T0}, s{S_W}, 1")
    A(f"    s_lshl_b32 s{S_T0}, s{S_T0}, 7")
    A(f"    s_add_u32 s{S_T0}, s{S_T0}, s{S_REG}")
    A(f"    v_lshrrev_b32 v{V_FE}, 2, v{V_X+2}")
    A(f"    v_mul_u32_u24 v{V_FE}, {RROW}, v{V_FE}")
    A(f"    v_add_u32 v{V_FE}, s{S_T0}, v{V_FE}")
    fin_addr(A, V_X + 2, V_X + 3)
    A(f"    s_mov_b32 s{S_FIRST}, 1")
    if after_loop: fstamp(A, 4)
    A("    s_waitcnt lgkmcnt(0)")
    if after_loop: fstamp(A, 5)


def get_epoch(A, n_younger):
    A(f"    s_waitcnt vmcnt({n_younger})")
    A(f"    v_readfirstlane_b32 s{S_EN}, v2")
    A(f"    s_nop 3")
    A(f"    s_add_u32 s{S_EN}, s{S_EN}, 0x800000")
    A(f"    s_and_b32 s{S_TAG}, s{S_EN}, 0xff800000")


def publish_flag(A):
    l = uid("PF")
    A("    s_waitcnt vmcnt(0)")
    A("    s_barrier")
    A(f"    s_cmp_lg_u32 s{S_W}, 0")
    A(f"    s_cbranch_scc1 {l}")
    A(f"    s_sub_u32 s{S_T0}, s2, 64")
    A(f"    s_lshl_b32 s{S_T0}, s{S_T0}, 2")
    A(f"    s_add_u32 s{S_T0}, s{S_T0}, {WS_FLAGS}")
    A(f"    v_mov_b32 v3, s{S_EN}")
    A(f"    v_mov_b32 v4, 0")
    A(f"    s_mov_b64 exec, 1")
    A(f"    buffer_store_dword v3, v4, s[{S_WS}:{S_WS+3}], s{S_T0} offen sc1")
    A(f"    s_mov_b64 exec, -1")
    A.label(l)


def gen_roles(A):
    A("    s_cmp_ge_u32 s2, 64")
    A("    s_cbranch_scc1 ROLE_NB")
    A("    s_mul_i32 s28, s2, 10000")
    A("    v_add_u32 v30, s28, v20")
    A("    v_add_u32 v31, 8192, v30")
    A("    v_mov_b32 v29, 0x7ffffff0")
    A("    v_cmp_gt_u32 vcc, 113, v0")
    A("    s_mov_b64 s[30:31], vcc")
    A("    v_cndmask_b32 v31, v29, v31, vcc")
    A(f"    buffer_load_dwordx4 v[8:11], v30, s[{S_DST}:{S_DST+3}], 0 offen")
    A(f"    buffer_load_dwordx4 v[40:43], v31, s[{S_DST}:{S_DST+3}], 0 offen")
    A(f"    buffer_load_dwordx4 v[12:15], v30, s[{S_SRC}:{S_SRC+3}], 0 offen")
    A(f"    buffer_load_dwordx4 v[44:47], v31, s[{S_SRC}:{S_SRC+3}], 0 offen")
    for i in range(4):
        A(f"    v_mov_b32 v{4+i}, -1")
    A("    v_lshlrev_b32 v1, 2, v0")
    A("    v_mov_b32 v3, 0")
    for r in range(4):
        A(f"    ds_write_b128 v20, v[4:7] offset:{8192*r}")
    A("    ds_write_b32 v1, v3 offset:32768")
    A("    s_mov_b32 s29, 52429")
    A("    v_mov_b32 v3, 1")
    A("    v_mov_b32 v28, 34816")
    A("    s_waitcnt lgkmcnt(0)")
    A("    s_barrier")
    def tiles(D, T, R):
        for i in range(4):
            A(f"    v_mul_u32_u24 v{T+i}, s29, v{D+i}")
            A(f"    v_lshrrev_b32 v{T+i}, 21, v{T+i}       ; tile")
            A(f"    v_lshlrev_b32 v4, 2, v{T+i}")
            A(f"    ds_add_rtn_u32 v{R+i}, v4, v3 offset:32768")
    def place(D, S, T, R):
        for i in range(4):
            A(f"    v_mul_u32_u24 v4, 40, v{T+i}")
            A(f"    v_sub_u32 v4, v{D+i}, v4")
            A(f"    v_lshl_or_b32 v{S+i}, v{S+i}, 9, v4    ; entry")
            A(f"    v_cmp_gt_u32 vcc, 32, v{R+i}")
            A(f"    v_lshlrev_b32 v{T+i}, 7, v{T+i}        ; tile*128")
            A(f"    v_lshl_add_u32 v4, v{R+i}, 2, v{T+i}")
            A(f"    v_cndmask_b32 v4, v28, v4, vcc")
            A(f"    ds_write_b32 v4, v{S+i}")
    A("    s_waitcnt vmcnt(3)")
    tiles(8, 16, 24)
    A("    s_waitcnt vmcnt(2)")
    A("    s_mov_b64 exec, s[30:31]")
    A("    s_cbranch_execz ROLE_B1")
    tiles(40, 48, 52)
    A.label("ROLE_B1")
    A("    s_mov_b64 exec, -1")
    get_epoch(A, 0)
    A("    s_waitcnt lgkmcnt(0)")
    place(8, 12, 16, 24)
    A("    s_mov_b64 exec, s[30:31]")
    A("    s_cbranch_execz ROLE_B2")
    place(40, 44, 48, 52)
    A.label("ROLE_B2")
    A("    s_mov_b64 exec, -1")
    A("    s_lshl_b32 s28, s2, 7                    ; chunk*128")
    A("    v_and_b32 v2, 7, v0                      ; part")
    A("    v_lshrrev_b32 v3, 3, v0")
    A("    v_lshlrev_b32 v29, 2, v3")
    A("    v_lshlrev_b32 v4, 4, v2")
    A("    v_lshl_add_u32 v4, v3, 13, v4")
    A("    v_add_u32 v4, s28, v4")
    A("    v_cmp_eq_u32 s[32:33], 7, v2")
    A("    v_mov_b32 v5, 464")
    A("    v_cmp_gt_u32 s[34:35], v5, v0")
    A("    v_mov_b32 v5, 0x7ffffff0")
    A("    v_mov_b32 v6, -2")
    A(f"    v_mov_b32 v1, s{S_TAG}")
    A("    s_mov_b32 s29, 0x007fffff")
    A("    s_waitcnt lgkmcnt(0)")
    A("    s_barrier")
    for r in range(4):
        A(f"    ds_read_b128 v[{8+4*r}:{11+4*r}], v20 offset:{8192*r}")
        A(f"    ds_read_b32 v{24+r}, v29 offset:{32768 + 256*r}")
    for r in range(4):
        A(f"    s_waitcnt lgkmcnt({6-2*r})")
        A(f"    v_cmp_lt_u32 vcc, 32, v{24+r}")
        A(f"    s_and_b64 vcc, vcc, s[32:33]")
        A(f"    v_add_u32 v7, {64*8192*r}, v4")
        if r == 3:
            A(f"    v_cndmask_b32 v7, v5, v7, s[34:35]")
        A(f"    s_nop 0")
        A(f"    v_cndmask_b32 v{11+4*r}, v{11+4*r}, v6, vcc")
        for i in range(4):
            A(f"    v_and_or_b32 v{8+4*r+i}, v{8+4*r+i}, s29, v1")
        A(f"    buffer_store_dwordx4 v[{8+4*r}:{11+4*r}], v7, s[{S_WS}:{S_WS+3}], 0 offen sc1")
    A("    s_barrier")
    A("    s_branch ROLE_DONE")

    A.label("ROLE_NB")
    A("    s_cmp_ge_u32 s2, 80")
    A("    s_cbranch_scc1 ROLE_NW")
    srd(A, 72, 62, 524288)
    A("    s_sub_u32 s28, s2, 64")
    A("    s_lshl_b32 s30, s28, 15")
    A("    s_add_u32 s33, s30, 16384")
    A("    v_lshrrev_b32 v1, 7, v0                  ; g")
    A("    v_and_b32 v5, 127, v0                    ; fp")
    A("    v_lshlrev_b32 v3, 11, v1")
    A("    v_lshl_add_u32 v3, v5, 2, v3             ; g*2048 + fp*4")
    A("    v_add_u32 v4, 8192, v3")
    for half, so in ((0, 30), (1, 33)):
        for j in range(4):
            A(f"    buffer_load_dword v{8+8*half+j}, v3, s[72:75], s{so} offen offset:{512*j}")
        for j in range(4):
            A(f"    buffer_load_dword v{12+8*half+j}, v4, s[72:75], s{so} offen offset:{512*j}")
    A("    v_lshrrev_b32 v7, 4, v5")
    A("    v_lshlrev_b32 v7, 16, v7")
    A("    v_bfe_u32 v6, v5, 1, 1")
    A("    v_lshl_add_u32 v7, v6, 10, v7")
    A("    v_lshl_add_u32 v7, v1, 8, v7             ; 16g*16")
    A("    v_bfe_u32 v6, v5, 2, 2")
    A("    v_lshl_add_u32 v7, v6, 6, v7             ; 4*gi*16")
    A("    v_and_b32 v6, 1, v5")
    A("    v_lshl_add_u32 v7, v6, 5, v7             ; 2*(fp&1)*16")
    A("    s_lshl_b32 s31, s28, 12                  ; kp*2*2048")
    A(f"    s_add_u32 s31, s31, {WS_WF}")
    A("    s_mov_b32 s34, 0x05040100")
    A("    s_mov_b32 s35, 0x07060302")
    get_epoch(A, 16)
    for half in range(2):
        A(f"    s_waitcnt vmcnt({8 if half == 0 else 2})")
        b = 8 + 8 * half; d = 24 + 8 * half
        for i in range(4):
            A(f"    v_perm_b32 v{d+i}, v{b+1+2*i}, v{b+2*i}, s34")
            A(f"    v_perm_b32 v{d+4+i}, v{b+1+2*i}, v{b+2*i}, s35")
        A(f"    buffer_store_dwordx4 v[{d}:{d+3}], v7, s[{S_WS}:{S_WS+3}], s31 offen offset:{2048*half} sc1")
        A(f"    buffer_store_dwordx4 v[{d+4}:{d+7}], v7, s[{S_WS}:{S_WS+3}], s31 offen offset:{2048*half+16} sc1")
    publish_flag(A)
    A("    s_branch ROLE_DONE")

    A.label("ROLE_NW")
    A("    s_cmp_ge_u32 s2, 112")
    A("    s_cbranch_scc1 ROLE_X")
    A(f"    s_cmp_ge_u32 s{S_W}, 2")
    A("    s_cbranch_scc1 ROLE_VSKIP")
    srd(A, 72, 62, 524288)
    srd(A, 76, 64, 2048)
    srd(A, 80, 66, 2048)
    A("    s_sub_u32 s30, s2, 80")
    A("    s_lshl_b32 s30, s30, 1")
    A(f"    s_add_u32 s30, s30, s{S_W}")
    A("    s_lshr_b32 s31, s30, 4                   ; h")
    A("    v_and_b32 v1, 63, v0")
    A("    v_and_b32 v3, 15, v1                     ; i / c")
    A("    v_lshrrev_b32 v5, 4, v1                  ; g")
    A("    v_lshlrev_b32 v4, 9, v3")
    A("    v_lshl_add_u32 v4, v5, 4, v4             ; i*512 + g*16")
    A("    s_lshl_b32 s32, s30, 13")
    A("    v_lshlrev_b32 v7, 4, v5                  ; g*16")
    A("    s_lshl_b32 s33, s31, 9                   ; h*512")
    for kk in range(8):
        A(f"    buffer_load_dwordx4 v[{8+4*kk}:{11+4*kk}], v4, s[72:75], s32 offen offset:{64*kk}")
    A("    v_and_b32 v6, 1, v3")
    A("    v_cmp_eq_u32 vcc, 0, v6")
    A("    s_mov_b64 s[34:35], exec")
    A("    s_mov_b64 exec, vcc")
    for kk in range(8):
        A(f"    buffer_load_dwordx4 v[{40+4*kk}:{43+4*kk}], v7, s[76:79], s33 offen offset:{64*kk}")
    A("    s_andn2_b64 exec, s[34:35], vcc")
    for kk in range(8):
        A(f"    buffer_load_dwordx4 v[{40+4*kk}:{43+4*kk}], v7, s[80:83], s33 offen offset:{64*kk}")
    A("    s_mov_b64 exec, s[34:35]")
    A("    s_lshl_b32 s32, s30, 5")
    A(f"    s_add_u32 s32, s32, {WS_V}")
    A("    v_lshlrev_b32 v7, 3, v5")
    A("    v_lshl_add_u32 v7, v6, 11, v7")
    A(f"    s_mov_b32 s33, {LOG2E}")
    get_epoch(A, 24)
    A("    v_cmp_gt_u32 vcc, 2, v3")
    A("    s_waitcnt vmcnt(0)")
    for kk in range(8):
        c = "0" if kk == 0 else "v[72:75]"
        A(f"    v_mfma_f32_16x16x32_bf16 v[72:75], v[{8+4*kk}:{11+4*kk}], v[{40+4*kk}:{43+4*kk}], {c}")
    A("    s_nop 7")
    for r in range(4):
        A(f"    v_mul_f32 v{72+r}, s33, v{72+r}")
    A("    v_cvt_pk_bf16_f32 v76, v72, v73")
    A("    v_cvt_pk_bf16_f32 v77, v74, v75")
    A("    s_and_saveexec_b64 s[34:35], vcc")
    A(f"    buffer_store_dwordx2 v[76:77], v7, s[{S_WS}:{S_WS+3}], s32 offen sc1")
    A("    s_mov_b64 exec, s[34:35]")
    A("    s_branch ROLE_VPUB")
    A.label("ROLE_VSKIP")
    get_epoch(A, 0)
    A.label("ROLE_VPUB")
    publish_flag(A)
    A("    s_branch ROLE_DONE")

    A.label("ROLE_X")
    if opt.xr:
        A("    s_sub_u32 s28, s2, 112")
        A("    s_lshr_b32 s28, s28, 3                   ; j among the workgroups of this XCD (id % 8)")
        A("    s_min_u32 s28, s28, 16")
        A("    s_lshl_b32 s28, s28, 9")
        A("    v_add_u32 v1, s28, v0")
        A("    v_lshlrev_b32 v1, 7, v1")
        for r in range(opt.xr):
            A(f"    s_mov_b32 s28, {opt.xoff + r*17*512*128}")
            A(f"    buffer_load_dword v255, v1, s[{S_X}:{S_X+3}], s28 offen")
    get_epoch(A, opt.xr)
    A.label("ROLE_DONE")
    l = uid("CT")
    A(f"    s_cmp_lg_u32 s{S_W}, 0")
    A(f"    s_cbranch_scc1 {l}")
    srd(A, 72, 68, 256)
    A(f"    v_mov_b32 v3, 1")
    A(f"    v_mov_b32 v4, 0")
    A(f"    s_mov_b64 exec, 1")
    A(f"    buffer_atomic_add v3, v4, s[72:75], 0 offen")
    A(f"    s_mov_b64 exec, -1")
    A.label(l)


def gen_main(A):
    K = "gather_scatter__graph_attention_gat__graph_kernel"
    VC = 36; VG = 37; VL = 38
    A(f".globl {K}\n.p2align 8\n.type {K},@function\n{K}:")
    A(f"    s_cmp_ge_u32 s2, {NT}")
    A("    s_cbranch_scc1 MAIN_END")
    stamp(A, 0)
    A("    s_load_dwordx2 s[60:61], s[0:1], 64      ; ws")
    A("    s_load_dwordx2 s[52:53], s[0:1], 0       ; x")
    A("    s_load_dwordx2 s[54:55], s[0:1], 48      ; out")
    A("    s_load_dwordx4 s[56:59], s[0:1], 8")
    A("    s_load_dwordx2 s[62:63], s[0:1], 24      ; w")
    A("    s_load_dwordx4 s[64:67], s[0:1], 32")
    A("    s_load_dwordx2 s[68:69], s[0:1], 56")
    A(f"    v_lshrrev_b32 v1, 6, v0")
    A(f"    v_lshlrev_b32 v20, 4, v0                 ; tid*16")
    A(f"    v_readfirstlane_b32 s{S_W}, v1")
    A(f"    v_mov_b32 v1, 0")
    A(f"    s_mov_b32 s{S_T0}, {WS_EPOCH}")
    A("    s_waitcnt lgkmcnt(0)")
    srd(A, S_WS, 60, ws_bytes())
    A(f"    buffer_load_dword v2, v1, s[{S_WS}:{S_WS+3}], s{S_T0} offen sc1")
    srd(A, S_DST, 58, E * 4)
    srd(A, S_SRC, 56, E * 4)
    srd(A, S_X, 52, N * 512)
    srd(A, S_OUT, 54, N * 512)
    if opt.stamps:
        A(f"    s_mov_b32 s100, s{S_W}")
    gen_roles(A)
    stamp(A, 1)
    A(f"    v_and_b32 v{VL}, 63, v0")
    A(f"    v_and_b32 v{VC}, 15, v{VL}")
    A(f"    v_lshrrev_b32 v{VG}, 4, v{VL}")
    A(f"    v_lshlrev_b32 v20, 4, v0                 ; tid*16")
    A(f"    v_lshlrev_b32 v{V_WOFF}, 4, v{VL}        ; lane*16")
    A(f"    s_mul_i32 s{S_REG}, s{S_W}, {REGSZ}")
    A(f"    s_lshl_b32 s{S_WF}, s{S_W}, 16")
    A(f"    s_add_u32 s{S_WF}, s{S_WF}, {WS_WF}")
    A(f"    v_and_b32 v{V_T1}, 31, v{VL}")
    A(f"    v_lshlrev_b32 v{V_T1}, 4, v{V_T1}")
    A(f"    v_lshrrev_b32 v{V_T2}, 5, v{VL}")
    A(f"    v_lshlrev_b32 v{V_H4}, 2, v{V_T2}")
    A(f"    v_lshlrev_b32 v21, 9, v{V_T2}            ; hi*512")
    A(f"    v_cmp_eq_u32 vcc, 0, v{V_T2}")
    A(f"    v_lshlrev_b32 v{V_T2}, 5, v{V_T2}")
    A(f"    v_xor_b32 v{V_DMAC}, v{V_T1}, v{V_T2}    ; DMAC = ((l&31)*16) ^ ((l>>5)*32)")
    A(f"    v_add_u32 v21, v21, v{V_DMAC}")
    A(f"    v_mov_b32 v22, 0x7ffffe00")
    A(f"    v_cndmask_b32 v22, v22, v{V_DMAC}, vcc")
    A(f"    s_mul_i32 s{S_T0}, s2, {TILE*512}")
    A(f"    s_lshl_b32 s{S_T1}, s{S_W}, 11            ; 4w rows")
    A(f"    s_add_u32 s{S_T1}, s{S_T1}, s{S_T0}")
    A(f"    s_add_u32 m0, s{S_REG}, {UNIT}")
    A(f"    s_add_u32 s{S_T2}, s{S_T1}, 1024")
    A(f"    buffer_load_dwordx4 v21, s[{S_X}:{S_X+3}], s{S_T1} offen lds")
    A(f"    s_add_u32 m0, s{S_REG}, {UNIT+PAIR}")
    A(f"    s_lshl_b32 s{S_T1}, s{S_W}, 9")
    A(f"    buffer_load_dwordx4 v21, s[{S_X}:{S_X+3}], s{S_T2} offen lds")
    A(f"    s_add_u32 m0, s{S_REG}, {UNIT+2*PAIR}")
    A(f"    s_add_u32 s{S_T1}, s{S_T1}, s{S_T0}")
    A(f"    s_add_u32 s{S_T1}, s{S_T1}, {32*512}")
    A(f"    buffer_load_dwordx4 v22, s[{S_X}:{S_X+3}], s{S_T1} offen lds")
    A(f"    v_mov_b32 v28, {hex(SENT_LIST)}")
    A(f"    v_mov_b32 v29, v28\n    v_mov_b32 v30, v28\n    v_mov_b32 v31, v28")
    A(f"    v_add_u32 v22, {LISTS}, v20")
    A(f"    v_cmp_gt_u32 vcc, 352, v0")
    A(f"    v_mov_b32 v32, 0")
    A(f"    v_lshlrev_b32 v23, 2, v0")
    A(f"    v_add_u32 v23, {CNT}, v23")
    A(f"    s_and_saveexec_b64 s[{S_EX}:{S_EX+1}], vcc")
    A(f"    s_cbranch_execz MAIN_NOCNT")
    A(f"    ds_write_b128 v22, v[28:31]")
    A(f"    v_cmp_gt_u32 vcc, 32, v0")
    A(f"    s_and_b64 exec, exec, vcc")
    A(f"    s_cbranch_execz MAIN_NOCNT")
    A(f"    ds_write_b32 v23, v32")
    A.label("MAIN_NOCNT")
    A(f"    s_mov_b64 exec, s[{S_EX}:{S_EX+1}]")
    T1, T2, T3 = V_T1, V_T2, V_T3
    A(f"    v_lshlrev_b32 v{V_G16}, 4, v{VG}")
    A(f"    v_lshrrev_b32 v{T1}, 1, v{VC}")
    A(f"    v_mul_u32_u24 v{V_SADDR}, {PAIR}, v{T1}")
    A(f"    v_and_b32 v{T1}, 1, v{VC}")
    A(f"    v_lshl_add_u32 v{V_SADDR}, v{T1}, 9, v{V_SADDR}")
    A(f"    v_lshrrev_b32 v{T2}, 1, v{VG}")
    A(f"    v_xor_b32 v{T1}, v{T1}, v{T2}")
    A(f"    v_lshl_add_u32 v{V_SADDR}, v{T1}, 5, v{V_SADDR}")
    A(f"    v_and_b32 v{T1}, 1, v{VG}")
    A(f"    v_lshl_add_u32 v{V_SADDR}, v{T1}, 4, v{V_SADDR}")
    A(f"    v_add_u32 v{V_SADDR}, s{S_REG}, v{V_SADDR}")
    A(f"    v_lshrrev_b32 v{T1}, 2, v{VC}")
    A(f"    v_lshl_add_u32 v{T1}, v{VG}, 2, v{T1}      ; row")
    A(f"    v_lshrrev_b32 v{T2}, 1, v{T1}")
    A(f"    v_mul_u32_u24 v{V_TE}, {PAIR}, v{T2}")
    A(f"    v_and_b32 v{T1}, 1, v{T1}                  ; hi")
    A(f"    v_lshl_add_u32 v{V_TE}, v{T1}, 9, v{V_TE}")
    A(f"    v_and_b32 v{T2}, 3, v{VC}")
    A(f"    v_lshl_add_u32 v{V_TE}, v{T2}, 3, v{V_TE}")
    A(f"    v_add_u32 v{V_TE}, s{S_REG}, v{V_TE}")
    A(f"    v_lshlrev_b32 v{T1}, 5, v{T1}              ; 32*hi")
    A(f"    v_sub_u32 v{V_TO}, v{V_TE}, v{T1}")
    A(f"    v_add_u32 v{V_TE}, v{V_TE}, v{T1}")
    for i in range(4):
        A(f"    v_mov_b32 v{V_ONES+i}, 0x3f803f80")
    A(f"    s_mov_b32 s{S_HI}, 0xfffffe00")
    A(f"    s_mov_b32 s{S_C02}, 0x3e4ccccd")
    A(f"    s_mul_i32 s{S_ABASE}, s{S_W}, {LSZ}")
    A(f"    s_add_u32 s{S_ABASE}, s{S_ABASE}, {LISTS+192}")
    A(f"    s_mul_i32 s{S_T0}, s{S_W}, {RROW}")
    A(f"    s_add_u32 s{S_T0}, s{S_T0}, {AGG1}")
    A(f"    v_lshrrev_b32 v{V_FE}, 2, v{VC}")
    A(f"    v_lshlrev_b32 v{V_FE}, 7, v{V_FE}          ; 128*j")
    A(f"    v_add_u32 v{V_FE}, s{S_T0}, v{V_FE}")
    fin_addr(A, VC, VG)
    A(f"    v_and_b32 v{T1}, 3, v{VC}")
    A(f"    v_mul_u32_u24 v39, 576, v{T1}")
    A(f"    v_lshl_add_u32 v39, v{VG}, 4, v39")
    A(f"    v_add_u32 v39, {VLDS}, v39")
    A(f"    v_lshrrev_b32 v{T1}, 5, v{VL}")
    A(f"    s_lshl_b32 s{S_T0}, s{S_W}, 1")
    A(f"    v_add_u32 v{T1}, s{S_T0}, v{T1}")
    A(f"    v_mul_u32_u24 v22, 576, v{T1}")
    A(f"    v_and_b32 v{T1}, 31, v{VL}")
    A(f"    v_lshl_add_u32 v22, v{T1}, 4, v22")
    A(f"    v_add_u32 v22, {VLDS}, v22")
    A(f"    v_lshrrev_b32 v{T1}, 2, v{VC}")
    A(f"    s_lshl_b32 s{S_T0}, s{S_W}, 2")
    A(f"    v_add_u32 v{V_TGTA}, s{S_T0}, v{T1}")
    A(f"    s_add_u32 s{S_T0}, s{S_W}, 32")
    A(f"    v_mov_b32 v{V_TGT}, s{S_T0}")
    A(f"    s_cmp_lg_u32 s{S_W}, 0")
    A("    s_cbranch_scc1 MAIN_FW")
    A(f"    v_lshlrev_b32 v23, 2, v{VL}")
    A(f"    v_mov_b32 v24, 48")
    A(f"    v_cmp_gt_u32 s[62:63], v24, v{VL}")
    A(f"    s_mov_b32 s{S_T0}, {WS_FLAGS}")
    A(f"    s_mov_b32 s{S_T1}, 0")
    A.label("MAIN_FPOLL")
    A(f"    buffer_load_dword v24, v23, s[{S_WS}:{S_WS+3}], s{S_T0} offen sc1")
    A(f"    s_add_u32 s{S_T1}, s{S_T1}, 1")
    A("    s_waitcnt vmcnt(0)")
    A(f"    v_cmp_ne_u32 vcc, s{S_EN}, v24")
    A(f"    s_cmp_gt_u32 s{S_T1}, {SPIN}")
    A("    s_cbranch_scc1 MAIN_FW")
    A("    s_and_b64 vcc, vcc, s[62:63]")
    A("    s_cbranch_vccnz MAIN_FPOLL")
    A.label("MAIN_FW")
    A("    s_waitcnt lgkmcnt(0)")
    A("    s_barrier")
    A(f"    s_cmp_ge_u32 s{S_W}, 4")
    A("    s_cbranch_scc1 MAIN_NOV")
    A(f"    s_lshl_b32 s{S_T0}, s{S_W}, 10")
    A(f"    s_add_u32 s{S_T0}, s{S_T0}, {WS_V}")
    A(f"    buffer_load_dwordx4 v[24:27], v{V_WOFF}, s[{S_WS}:{S_WS+3}], s{S_T0} offen sc1")
    A.label("MAIN_NOV")
    A(f"    s_lshl_b32 s{S_T0}, s2, 13")
    A(f"    s_mov_b32 s{S_T1}, 0")
    A(f"    s_lshr_b32 s{S_T2}, s{S_TAG}, 23")
    A.label("MAIN_SPOLL")
    A(f"    buffer_load_dwordx4 v[16:19], v20, s[{S_WS}:{S_WS+3}], s{S_T0} offen sc1")
    A(f"    s_add_u32 s{S_T1}, s{S_T1}, 1")
    A("    s_waitcnt vmcnt(0)")
    for i in range(4):
        A(f"    v_lshrrev_b32 v{28+i}, 23, v{16+i}")
    A(f"    v_cmp_ne_u32 s[62:63], s{S_T2}, v28")
    A(f"    v_cmp_ne_u32 s[64:65], s{S_T2}, v29")
    A(f"    v_cmp_ne_u32 s[66:67], s{S_T2}, v30")
    A(f"    v_cmp_ne_u32 vcc, s{S_T2}, v31")
    A(f"    s_or_b64 s[62:63], s[62:63], s[64:65]")
    A(f"    s_or_b64 vcc, vcc, s[66:67]")
    A(f"    s_cmp_gt_u32 s{S_T1}, {SPIN}")
    A("    s_cbranch_scc1 MAIN_SGOT")
    A(f"    s_or_b64 vcc, vcc, s[62:63]")
    A("    s_cbranch_vccnz MAIN_SPOLL")
    A.label("MAIN_SGOT")
    A(f"    s_mov_b32 s{S_T0}, 0x007fffff")
    for i in range(4):
        A(f"    v_and_b32 v{16+i}, s{S_T0}, v{16+i}")
    A(f"    s_cmp_ge_u32 s{S_W}, 4")
    A("    s_cbranch_scc1 MAIN_WB")
    A(f"    ds_write_b128 v22, v[24:27]")
    A.label("MAIN_WB")
    stamp(A, 2)
    EN = 16
    NN = 20; WV = 24; RK = 28; BS = 32
    A(f"    s_mov_b64 s[62:63], 0")
    A(f"    s_mov_b32 s{S_T1}, 0x007ffffe")
    for i in range(4):
        A(f"    v_and_b32 v{NN+i}, 63, v{EN+i}")
        A(f"    v_cmp_eq_u32 vcc, s{S_T1}, v{EN+i}")
        A(f"    s_or_b64 s[62:63], s[62:63], vcc")
        A(f"    v_cmp_gt_u32 s[{64+2*i}:{65+2*i}], 40, v{NN+i}       ; valid")
        A(f"    v_cmp_le_u32 s[{72+2*i}:{73+2*i}], 32, v{NN+i}       ; group B")
        A(f"    v_lshrrev_b32 v{T1}, 2, v{NN+i}")
        A(f"    v_subrev_u32 v{T2}, 32, v{NN+i}")
        A(f"    v_subrev_u32 v{T3}, 24, v{NN+i}")
        A(f"    v_cndmask_b32 v{WV+i}, v{T1}, v{T2}, s[{72+2*i}:{73+2*i}]")
        A(f"    v_cndmask_b32 v{T1}, v{T1}, v{T3}, s[{72+2*i}:{73+2*i}]")
        A(f"    v_lshlrev_b32 v{BS+i}, 2, v{T1}")
        A(f"    v_add_u32 v{BS+i}, {CNT}, v{BS+i}")
    A(f"    v_mov_b32 v{V_TMP}, 1")
    for i in range(4):
        A(f"    s_mov_b64 exec, s[{64+2*i}:{65+2*i}]")
        A(f"    ds_add_rtn_u32 v{RK+i}, v{BS+i}, v{V_TMP}")
    A("    s_mov_b64 exec, -1")
    def v_reads():
        for kk in range(8):
            A(f"    ds_read_b128 v[{V_ACC+4*kk}:{V_ACC+4*kk+3}], v39 offset:{4*576+64*kk}")
        for kk in range(8):
            A(f"    ds_read_b128 v[{V_V+4*kk}:{V_V+4*kk+3}], v39 offset:{64*kk}")
    if not opt.vlate:
        v_reads()
    A(f"    s_mov_b32 s{S_T0}, {LSZ}")
    A(f"    v_mov_b32 v{T1}, {LISTS+192}")
    for i in range(4):
        A(f"    v_mad_u32_u24 v{BS+i}, v{WV+i}, s{S_T0}, v{T1}")
    for i in range(4):
        A(f"    s_waitcnt lgkmcnt({(3-i) if opt.vlate else min(15, 16+3-i)})")
        A(f"    v_lshlrev_b32 v{T1}, 2, v{RK+i}")
        A(f"    v_sub_u32 v{T2}, -4, v{T1}")
        A(f"    v_mov_b32 v{T3}, {CAPA}")
        A(f"    v_cndmask_b32 v{T1}, v{T1}, v{T2}, s[{72+2*i}:{73+2*i}]")
        A(f"    v_cndmask_b32 v{T3}, v{T3}, {CAPB}, s[{72+2*i}:{73+2*i}]")
        A(f"    v_add_u32 v{BS+i}, v{BS+i}, v{T1}")
        A(f"    v_cmp_lt_u32 vcc, v{RK+i}, v{T3}")
        A(f"    s_andn2_b64 s[80:81], s[{64+2*i}:{65+2*i}], vcc")
        A(f"    s_or_b64 s[62:63], s[62:63], s[80:81]")
        A(f"    s_and_b64 exec, s[{64+2*i}:{65+2*i}], vcc")
        A(f"    ds_write_b32 v{BS+i}, v{EN+i}")
        A(f"    s_mov_b64 exec, -1")
    A(f"    s_cmp_eq_u64 s[62:63], 0")
    A(f"    s_cbranch_scc1 MAIN_NOOVF")
    A(f"    v_mov_b32 v{T1}, {OVF}")
    A(f"    ds_write_b32 v{T1}, v{V_TMP}")
    A.label("MAIN_NOOVF")
    A("    s_waitcnt lgkmcnt(0)")
    A("    s_barrier")
    stamp(A, 3)
    A(f"    s_lshl_b32 s{S_T0}, s{S_W}, 2")
    A(f"    s_add_u32 s{S_T0}, s{S_T0}, {CNT}")
    A(f"    v_mov_b32 v16, s{S_T0}")
    A(f"    v_mov_b32 v17, {OVF}")
    A(f"    ds_read_b32 v18, v16                     ; cntA")
    A(f"    ds_read_b32 v19, v16 offset:32           ; cntB")
    A(f"    ds_read_b32 v20, v17")
    A(f"    v_lshrrev_b32 v{T1}, 2, v{VC}")
    A(f"    v_cmp_eq_u32 s[{S_J1}:{S_J1+1}], 1, v{T1}")
    A(f"    v_cmp_eq_u32 s[{S_J2}:{S_J2+1}], 2, v{T1}")
    A(f"    v_cmp_eq_u32 s[{S_J3}:{S_J3+1}], 3, v{T1}")
    A("    s_waitcnt lgkmcnt(0)")
    A(f"    v_readfirstlane_b32 s{S_NA}, v18")
    A(f"    v_readfirstlane_b32 s{S_NB}, v19")
    A(f"    v_readfirstlane_b32 s{S_T0}, v20")
    A(f"    s_mov_b32 s{S_M0}, s{S_REG}")
    A(f"    s_mov_b32 s{S_DELTA}, {UNIT}")
    A(f"    s_mov_b32 s{S_P}, 0")
    A(f"    s_mov_b32 s{S_FIRST}, 1")
    A(f"    s_cmp_lg_u32 s{S_T0}, 0")
    A("    s_cbranch_scc1 MAIN_SLOW")
    A(f"    s_sub_u32 s{S_KA}, s{S_NA}, 1")
    A(f"    s_and_b32 s{S_KA}, s{S_KA}, 15")
    A(f"    s_lshr_b32 s{S_KA}, s{S_KA}, 1")
    A(f"    s_add_u32 s{S_KA}, s{S_KA}, 1")
    A(f"    s_sub_u32 s{S_KB}, s{S_NB}, 1")
    A(f"    s_and_b32 s{S_KB}, s{S_KB}, 15")
    A(f"    s_lshr_b32 s{S_KB}, s{S_KB}, 1")
    A(f"    s_add_u32 s{S_KB}, s{S_KB}, 1")
    A(f"    s_cmp_eq_u32 s{S_NA}, 0")
    A(f"    s_cselect_b32 s{S_KA}, 8, s{S_KA}")
    A(f"    s_add_u32 s{S_NA}, s{S_NA}, 15")
    A(f"    s_lshr_b32 s{S_NA}, s{S_NA}, 4")
    A(f"    s_add_u32 s{S_NB}, s{S_NB}, 15")
    A(f"    s_lshr_b32 s{S_NB}, s{S_NB}, 4")
    A(f"    s_add_u32 s{S_NU}, s{S_NA}, s{S_NB}")
    A(f"    s_lshl_b32 s{S_T0}, s{S_NB}, 6")
    A(f"    s_sub_u32 s{S_PTR}, s{S_ABASE}, s{S_T0}")
    def emit_t(A):
        for kk in range(8):
            A(f"    ds_read_b128 v[{V_SCR+4*kk}:{V_SCR+4*kk+3}], v{V_SADDR} offset:{UNIT+64*kk}")
        A(f"    v_lshlrev_b32 v{T2}, 2, v{VC}")
        A(f"    v_and_b32 v{T3}, 3, v{VC}")
        A(f"    v_add_u32 v{T3}, 16, v{T3}")
        A(f"    v_lshlrev_b32 v{T3}, 2, v{T3}              ; lane 16 + h")
        for kk in range(8):
            A(f"    s_waitcnt lgkmcnt({7-kk})")
            c = "0" if kk == 0 else f"v[{V_S}:{V_S+3}]"
            A(f"    v_mfma_f32_16x16x32_bf16 v[{V_S}:{V_S+3}], v[{V_SCR+4*kk}:{V_SCR+4*kk+3}], v[{V_ACC+4*kk}:{V_ACC+4*kk+3}], {c}")
        A("    s_nop 7")
        A(f"    v_cndmask_b32 v{V_TA}, v{V_S}, v{V_S+1}, s[{S_J1}:{S_J1+1}]")
        A(f"    v_cndmask_b32 v{V_TA}, v{V_TA}, v{V_S+2}, s[{S_J2}:{S_J2+1}]")
        A(f"    v_cndmask_b32 v{V_TA}, v{V_TA}, v{V_S+3}, s[{S_J3}:{S_J3+1}]")
        A(f"    ds_bpermute_b32 v{V_TQ}, v{T3}, v{V_S}")
        A(f"    ds_bpermute_b32 v{V_TA}, v{T2}, v{V_TA}")
        A("    s_waitcnt lgkmcnt(0)")
        for i in range(1, 4):
            A(f"    v_mov_b32 v{V_TQ+i}, v{V_TQ}")

    def zero_prep(A, buf):
        if opt.skip:
            for i in range(4):
                A(f"    v_mov_b32 v{V_S+i}, 0")
            A(f"    v_mbcnt_lo_u32_b32 v{V_T2}, -1, 0")
            A(f"    v_mbcnt_hi_u32_b32 v{V_T2}, -1, v{V_T2}")
            A(f"    v_lshlrev_b32 v{V_T2}, 4, v{V_T2}")
            A(f"    s_add_u32 s{S_T1}, s{S_REG}, {UNIT*buf}")
            A(f"    v_add_u32 v{V_T2}, s{S_T1}, v{V_T2}")

    if opt.prio == 2:
        A("    s_setprio 3")
    A(f"    s_mov_b32 s{S_K}, 0")
    A(f"    s_cmp_eq_u32 s{S_NU}, 0")
    A("    s_cbranch_scc1 MAIN_PRO_T")
    A(f"    v_add_u32 v{T1}, s{S_PTR}, v{V_H4}")
    dma_entry_reads(A, T1)
    zero_prep(A, 0)
    A(f"    s_mov_b32 s{S_T1}, 0")
    if opt.skip:
        unit_k(A, S_T1)
    A("    s_waitcnt lgkmcnt(0)")
    if opt.skip:
        A(f"    s_cmp_eq_u32 s{S_NB}, 0")
        A("    s_cbranch_scc1 MAIN_U0A")
        A(f"    s_mov_b32 s{S_K}, s{S_KB}")
        dma_partial(A, S_K, True, rev=True)
        A("    s_branch MAIN_PRO_T")
        A.label("MAIN_U0A")
        dma_partial(A, S_K, True)
    else:
        A(f"    s_mov_b32 s{S_K}, 8")
        for q in range(8):
            dma_one(A, q)
    A.label("MAIN_PRO_T")
    if opt.vlate:
        v_reads()
        A("    s_waitcnt lgkmcnt(0)")
    if opt.bar0 or opt.vlate:
        A("    s_barrier")
    emit_t(A)
    A(f"    s_mov_b32 s{S_K}, 0")
    A(f"    s_cmp_le_u32 s{S_NU}, 1")
    A("    s_cbranch_scc1 MAIN_PRO_DONE")
    A(f"    v_add_u32 v{T1}, s{S_PTR}, v{V_H4}")
    A(f"    v_add_u32 v{T1}, 64, v{T1}")
    dma_entry_reads(A, T1)
    zero_prep(A, 1)
    A(f"    s_add_u32 s{S_M0}, s{S_REG}, {UNIT}")
    A(f"    s_mov_b32 s{S_T1}, 1")
    if opt.skip:
        unit_k(A, S_T1)
    else:
        A(f"    s_mov_b32 s{S_K}, 8")
    A("    s_waitcnt lgkmcnt(0)")
    if opt.skip:
        dma_partial(A, S_K, True)
    else:
        for q in range(8):
            dma_one(A, q)
    A(f"    s_mov_b32 s{S_M0}, s{S_REG}")
    A.label("MAIN_PRO_DONE")
    stamp(A, 4)
    if opt.prio == 1:
        A(f"    s_setprio 1")
    for ks in range(opt.w3):
        w_load(A, ks, wslot(ks))
    WX = 2 * opt.w3
    A(f"    s_cmp_eq_u32 s{S_NU}, 0")
    A("    s_cbranch_scc1 MAIN_LOOP")
    wait_vm_dyn(A, S_K, WX, 0, 8)
    A("    s_waitcnt lgkmcnt(0)")
    s_prefetch(A)
    if opt.stamps and opt.ustamps:
        A("    s_memtime s[98:99]")
    A.label("MAIN_LOOP")
    A(f"    s_cmp_eq_u32 s{S_P}, s{S_NB}")
    A("    s_cbranch_scc1 MAIN_FINB")
    A.label("MAIN_LOOP2")
    A(f"    s_cmp_ge_u32 s{S_P}, s{S_NU}")
    A("    s_cbranch_scc1 MAIN_DONE")

    def dispatch(tag, agg, firsts, minleft, dest, par):
        for first in firsts:
            if len(firsts) > 1:
                if first == firsts[0]:
                    A(f"    s_cmp_eq_u32 s{S_FIRST}, 0")
                    A(f"    s_cbranch_scc0 {tag}_F1")
                else:
                    A.label(f"{tag}_F1")
            A(f"    s_cmp_ge_u32 s{S_T0}, 3")
            A(f"    s_cbranch_scc0 {tag}_{first}_R2")
            if opt.skip:
                A(f"    s_cmp_eq_u32 s{S_K}, 8")
                A(f"    s_cbranch_scc0 {tag}_{first}_PART")
            unit_tail(A, "full", True, agg, first, par)
            A(f"    s_branch {dest}")
            if opt.skip:
                A.label(f"{tag}_{first}_PART")
                unit_tail(A, "part", True, agg, first, par)
                A(f"    s_branch {dest}")
            A.label(f"{tag}_{first}_R2")
            if minleft <= 1:
                A(f"    s_cmp_eq_u32 s{S_T0}, 2")
                A(f"    s_cbranch_scc0 {tag}_{first}_R1")
            unit_tail(A, None, True, agg, first, par)
            A(f"    s_branch {dest}")
            if minleft <= 1:
                A.label(f"{tag}_{first}_R1")
                unit_tail(A, None, False, agg, first, par)
                A(f"    s_branch {dest}")

    def set_prio():
        if opt.prio == 2:
            l1 = uid("PR"); l2 = uid("PR"); le = uid("PR")
            A(f"    s_cmp_ge_u32 s{S_P}, {opt.pa}")
            A(f"    s_cbranch_scc1 {l1}")
            A("    s_setprio 3")
            A(f"    s_branch {le}")
            A.label(l1)
            A(f"    s_cmp_ge_u32 s{S_P}, {opt.pb}")
            A(f"    s_cbranch_scc1 {l2}")
            A("    s_setprio 2")
            A(f"    s_branch {le}")
            A.label(l2)
            A("    s_setprio 1")
            A.label(le)

    def k_next():
        set_prio()
        if opt.skip:
            A(f"    s_add_u32 s{S_T1}, s{S_P}, 2")
            unit_k(A, S_T1)

    pstamp(A)
    ustamp(A, opt.up, 0); ustamp(A, opt.up + 1, 4)
    A(f"    s_add_u32 s{S_P2}, s{S_PTR}, 128")
    k_next()
    unit_front(A, 0)
    ustamp(A, opt.up, 1); ustamp(A, opt.up + 1, 5)
    A(f"    s_sub_u32 s{S_T0}, s{S_NU}, s{S_P}")
    A(f"    s_add_u32 s{S_T1}, s{S_P}, 1")
    A(f"    s_cmp_eq_u32 s{S_T1}, s{S_NB}")
    A("    s_cbranch_scc1 TL_LAST")
    A(f"    s_cmp_eq_u32 s{S_T1}, s{S_NU}")
    A("    s_cbranch_scc1 TL_LAST")
    dispatch("TE", None, [0], 2, "MAIN_ODD", 0)
    A.label("TL_LAST")
    dispatch("TL", "k16", [0, 1], 1, "MAIN_NEXT", 0)
    A.label("MAIN_ODD")
    pstamp(A)
    ustamp(A, opt.up + 1, 2); ustamp(A, opt.up + 2, 6)
    ustamp(A, opt.up, 0); ustamp(A, opt.up + 1, 4)
    A(f"    s_add_u32 s{S_P2}, s{S_PTR}, 128")
    k_next()
    unit_front(A, 1)
    ustamp(A, opt.up, 1); ustamp(A, opt.up + 1, 5)
    A(f"    s_sub_u32 s{S_T0}, s{S_NU}, s{S_P}")
    dispatch("TO", "k32", [0, 1], 1, "MAIN_NEXT", 1)
    A.label("MAIN_NEXT")
    ustamp(A, opt.up + 1, 2); ustamp(A, opt.up + 2, 6)
    A("    s_branch MAIN_LOOP")

    A.label("MAIN_FINB")
    fstamp(A, 0)
    A("    s_nop 3")
    emit_finb(A)
    A("    s_branch MAIN_LOOP2")

    A.label("MAIN_DONE")
    if opt.prio:
        A("    s_setprio 0")
    stamp(A, 5)
    if opt.stamps and opt.pstamps:
        A("    s_memtime s[98:99]")
    A(f"    s_cmp_lg_u32 s{S_NA}, 0")
    A("    s_cbranch_scc1 MAIN_DONE2")
    zero_acc(A)
    A.label("MAIN_DONE2")
    VC2 = V_T2; VG2 = V_T3
    lane_cg(A, V_T1, VC2, VG2)
    A(f"    v_lshrrev_b32 v{V_TMP}, 2, v{VC2}                 ; w'")
    A(f"    v_mul_u32_u24 v1, {REGSZ}, v{V_TMP}")
    A(f"    v_and_b32 v{V_TMP}, 1, v{V_TMP}")
    A(f"    v_lshl_add_u32 v1, v{V_TMP}, 7, v1")
    A(f"    v_and_b32 v{V_TMP}, 3, v{VC2}")
    A(f"    v_mul_u32_u24 v{V_TMP}, {RROW}, v{V_TMP}")
    A(f"    v_add_u32 v1, v1, v{V_TMP}")
    A(f"    v_and_b32 v{V_TMP}, 7, v{VC2}")
    A(f"    v_mul_u32_u24 v5, {RROW}, v{V_TMP}")
    A(f"    v_add_u32 v5, {AGG1}, v5")
    A(f"    v_lshlrev_b32 v{V_TMP}, 4, v{VG2}                 ; g*16")
    A(f"    v_xor_b32 v{V_T1}, 16, v{V_TMP}                   ; (g^1)*16")
    A(f"    v_add_u32 v2, v1, v{V_T1}")
    A(f"    v_add_u32 v1, v1, v{V_TMP}")
    A(f"    v_add_u32 v3, {4*REGSZ}, v1")
    A(f"    v_add_u32 v4, {4*REGSZ}, v2")
    A(f"    v_add_u32 v6, v5, v{V_T1}")
    A(f"    v_add_u32 v5, v5, v{V_TMP}")
    A(f"    s_mul_i32 s{S_T0}, s2, {TILE*512}")
    A(f"    s_lshl_b32 s{S_T1}, s{S_W}, 6")
    A(f"    s_add_u32 s{S_T0}, s{S_T0}, s{S_T1}")
    A(f"    v_lshlrev_b32 v8, 9, v{VC2}")
    A(f"    v_lshl_add_u32 v8, v{VG2}, 4, v8")
    A(f"    v_add_u32 v8, s{S_T0}, v8")
    A(f"    v_add_u32 v9, {16*512}, v8")
    A(f"    v_add_u32 v10, {32*512}, v8")
    A(f"    v_mov_b32 v{V_TMP}, 0x7ffffff0")
    A(f"    v_cmp_gt_u32 vcc, 8, v{VC2}")
    A(f"    v_mov_b32 v7, v{V_WOFF}")
    A(f"    s_nop 0")
    A(f"    s_mov_b64 s[{S_EX}:{S_EX+1}], vcc")
    A(f"    v_cndmask_b32 v10, v{V_TMP}, v10, vcc")
    NPRE = opt.wpre
    W3 = opt.w3
    def pre(u):
        for k in range((NPRE * u) // 8, (NPRE * (u + 1)) // 8):
            w_load(A, W3 + k, wslot(W3 + k), 7)
    finalize(A, 12, after_pair=pre)
    A("    s_waitcnt lgkmcnt(0)")
    A("    s_barrier")
    stamp(A, 6)
    NB = opt.bring
    BR = V_ACC
    def b_reads(ks, zero2=False):
        h = ks >> 3; u = ks & 7; h0 = h & 1; h1 = h >> 1
        imm = h * 512 + ((u ^ h1) * 64)
        st = BR + 12 * (ks % NB)
        for T in range(3):
            if T == 2 and opt.zero2:
                A(f"    s_mov_b64 exec, s[{S_EX}:{S_EX+1}]")
            A(f"    ds_read_b128 v[{st+4*T}:{st+4*T+3}], v{1+2*T+h0} offset:{imm}")
            if T == 2 and opt.zero2:
                A(f"    s_mov_b64 exec, -1")
    if opt.zero2:
        for st_ in range(NB):
            for i in range(4):
                A(f"    v_mov_b32 v{BR+12*st_+8+i}, 0")
    for ks in range(NB - 1):
        b_reads(ks)
    q = [("w", k) for k in range(W3 + NPRE) for _ in range(2)]
    def wait_for(tag):
        idx = max(i for i, t in enumerate(q) if t == tag)
        return len(q) - 1 - idx
    nxt_w = W3 + NPRE
    nrem = 32 - nxt_w
    sched = {}
    for j in range(nrem):
        k2 = nxt_w + j
        st_ = max((j * opt.wlast) // max(nrem - 1, 1), k2 - 16)
        st_ = min(st_, k2 - opt.wmin)
        sched.setdefault(st_, []).append(k2)
    if opt.gprio:
        l = uid("GP")
        A(f"    s_cmp_lt_u32 s{S_W}, 4")
        A(f"    s_cbranch_scc1 {l}")
        A("    s_setprio 1")
        A.label(l)
    for ks in range(32):
        if opt.gprio and ks == opt.gpa:
            l = uid("GP")
            A(f"    s_cmp_lt_u32 s{S_W}, 4")
            A(f"    s_cbranch_scc0 {l}")
            A("    s_setprio 1")
            A.label(l)
        if opt.gprio and ks == opt.gpb:
            l = uid("GP")
            A(f"    s_cmp_lt_u32 s{S_W}, 4")
            A(f"    s_cbranch_scc1 {l}")
            A("    s_setprio 0")
            A.label(l)
        if ks % 4 == 0:
            gstamp(A, ks // 4)
        if ks + NB - 1 < 32:
            b_reads(ks + NB - 1, zero2=opt.zero2)
        lg = 3 * min(NB - 1, 31 - ks)
        A(f"    s_waitcnt vmcnt({min(wait_for(('w', ks)), 63)}) lgkmcnt({lg})")
        st = BR + 12 * (ks % NB)
        wb = wslot(ks)
        for T in range(3):
            for t in range(2):
                a = V_ACC2 + 4 * (2 * T + t)
                c = "0" if ks == 0 else f"v[{a}:{a+3}]"
                A(f"    v_mfma_f32_16x16x32_bf16 v[{a}:{a+3}], v[{wb+4*t}:{wb+4*t+3}], v[{st+4*T}:{st+4*T+3}], {c}")
        for k2 in sched.get(ks, []):
            assert k2 - 16 <= ks < k2
            assert k2 == nxt_w
            w_load(A, k2, wslot(k2), 7)
            q.append(("w", k2)); q.append(("w", k2))
            nxt_w += 1
    assert nxt_w == 32
    stamp(A, 7)
    gstamp(A, 8)
    A("    s_nop 7")
    for T in range(3):
        a0 = V_ACC2 + 4 * (2 * T); a1 = a0 + 4
        st = 12 + 4 * T
        A(f"    v_cvt_pk_bf16_f32 v{st}, v{a0}, v{a0+1}")
        A(f"    v_cvt_pk_bf16_f32 v{st+1}, v{a0+2}, v{a0+3}")
        A(f"    v_cvt_pk_bf16_f32 v{st+2}, v{a1}, v{a1+1}")
        A(f"    v_cvt_pk_bf16_f32 v{st+3}, v{a1+2}, v{a1+3}")
        A(f"    buffer_store_dwordx4 v[{st}:{st+3}], v{8+T}, s[{S_OUT}:{S_OUT+3}], 0 offen")
    A(f"    s_cmp_lg_u32 s2, 0")
    A(f"    s_cbranch_scc1 MAIN_NOEP")
    A(f"    s_cmp_lg_u32 s{S_W}, 0")
    A(f"    s_cbranch_scc1 MAIN_NOEP")
    A("    s_load_dwordx2 s[68:69], s[0:1], 56")
    A("    s_waitcnt lgkmcnt(0)")
    srd(A, 72, 68, 256)
    A(f"    v_mov_b32 v1, 0")
    A(f"    s_mov_b32 s{S_T1}, 0")
    A.label("MAIN_EPOLL")
    A(f"    buffer_load_dword v2, v1, s[72:75], 0 offen sc1")
    A(f"    s_add_u32 s{S_T1}, s{S_T1}, 1")
    A("    s_waitcnt vmcnt(0)")
    A(f"    v_readfirstlane_b32 s{S_T0}, v2")
    A(f"    s_cmp_gt_u32 s{S_T1}, {SPIN}")
    A("    s_cbranch_scc1 MAIN_EPW")
    A(f"    s_cmp_lt_u32 s{S_T0}, {NT}")
    A("    s_cbranch_scc1 MAIN_EPOLL")
    A.label("MAIN_EPW")
    A(f"    v_mov_b32 v2, s{S_EN}")
    A(f"    s_mov_b32 s{S_T0}, {WS_EPOCH}")
    A(f"    s_mov_b64 exec, 1")
    A(f"    buffer_store_dword v2, v1, s[{S_WS}:{S_WS+3}], s{S_T0} offen sc1")
    A(f"    s_mov_b64 exec, -1")
    A.label("MAIN_NOEP")
    if opt.stamps:
        A("    s_waitcnt vmcnt(0)")
    stamp(A, 8)
    stamp_flush(A, 60, 0)
    A("    s_endpgm")

    A.label("MAIN_SLOW")
    if opt.vlate:
        v_reads()
        A("    s_waitcnt lgkmcnt(0)")
    if opt.bar0 or opt.vlate:
        A("    s_barrier")
    A("    s_waitcnt vmcnt(0)")
    emit_t(A)
    for ks in range(opt.w3):
        w_load(A, ks, wslot(ks))
    gen_slow(A)
    A.label("MAIN_END")
    A("    s_endpgm")


def gen_slow(A):
    S_GRP = 62; S_POS = 63; S_CNT = 64; S_LO = 65; S_HIB = 66; S_BASE = 67
    A("    s_waitcnt vmcnt(0)")
    zero_acc(A)
    A(f"    s_mul_i32 s{S_BASE}, s2, {TILE}")
    A(f"    s_mov_b32 s{S_GRP}, 0")
    A(f"    s_mov_b32 s{S_NB}, 1")
    A(f"    s_mov_b32 s{S_NA}, 1")
    A.label("SLOW_GROUP")
    A(f"    s_add_u32 s{S_LO}, s{S_W}, 32")
    A(f"    s_add_u32 s{S_HIB}, s{S_LO}, 1")
    A(f"    s_cmp_eq_u32 s{S_GRP}, 0")
    A("    s_cbranch_scc1 SLOW_RANGE")
    A(f"    s_lshl_b32 s{S_LO}, s{S_W}, 2")
    A(f"    s_add_u32 s{S_HIB}, s{S_LO}, 4")
    A.label("SLOW_RANGE")
    A(f"    s_mov_b32 s{S_POS}, 0")
    A.label("SLOW_REFILL")
    L4 = V_T1; X1 = V_T2; X2 = V_T3; X3 = V_TMP
    A(f"    v_mbcnt_lo_u32_b32 v{L4}, -1, 0")
    A(f"    v_mbcnt_hi_u32_b32 v{L4}, -1, v{L4}")
    A(f"    v_lshlrev_b32 v{L4}, 2, v{L4}")
    A(f"    v_mov_b32 v{X1}, {hex(SENT_LIST)}")
    A(f"    v_add_u32 v{X2}, s{S_ABASE}, v{L4}")
    A(f"    ds_write_b32 v{X2}, v{X1}")
    A(f"    ds_write_b32 v{X2}, v{X1} offset:256")
    A(f"    s_mov_b32 s{S_CNT}, 0")
    A.label("SLOW_SCAN")
    A(f"    s_cmp_ge_u32 s{S_POS}, {E*4}")
    A("    s_cbranch_scc1 SLOW_FLUSH")
    A(f"    s_cmp_gt_u32 s{S_CNT}, 64")
    A("    s_cbranch_scc1 SLOW_FLUSH")
    A(f"    buffer_load_dword v{X1}, v{L4}, s[{S_DST}:{S_DST+3}], s{S_POS} offen")
    A(f"    buffer_load_dword v{X2}, v{L4}, s[{S_SRC}:{S_SRC+3}], s{S_POS} offen")
    A(f"    s_add_u32 s{S_POS}, s{S_POS}, 256")
    A("    s_waitcnt vmcnt(0)")
    A(f"    v_subrev_u32 v{X1}, s{S_BASE}, v{X1}")
    A(f"    v_cmp_le_u32 s[68:69], s{S_LO}, v{X1}")
    A(f"    v_cmp_gt_u32 vcc, s{S_HIB}, v{X1}")
    A(f"    s_and_b64 vcc, vcc, s[68:69]")
    A(f"    v_lshl_or_b32 v{X2}, v{X2}, 9, v{X1}")
    A(f"    s_nop 0")
    A(f"    v_mbcnt_lo_u32_b32 v{X3}, vcc_lo, 0")
    A(f"    v_mbcnt_hi_u32_b32 v{X3}, vcc_hi, v{X3}")
    A(f"    v_add_u32 v{X3}, s{S_CNT}, v{X3}")
    A(f"    v_lshlrev_b32 v{X3}, 2, v{X3}")
    A(f"    v_add_u32 v{X3}, s{S_ABASE}, v{X3}")
    A(f"    s_bcnt1_i32_b64 s{S_T0}, vcc")
    A(f"    s_add_u32 s{S_CNT}, s{S_CNT}, s{S_T0}")
    A(f"    s_and_saveexec_b64 s[{S_EX}:{S_EX+1}], vcc")
    A(f"    ds_write_b32 v{X3}, v{X2}")
    A(f"    s_mov_b64 exec, s[{S_EX}:{S_EX+1}]")
    A("    s_branch SLOW_SCAN")
    A.label("SLOW_FLUSH")
    A(f"    s_add_u32 s{S_NU}, s{S_CNT}, 15")
    A(f"    s_lshr_b32 s{S_NU}, s{S_NU}, 4")
    A(f"    s_mov_b32 s{S_P}, 0")
    A(f"    s_mov_b32 s{S_PTR}, s{S_ABASE}")
    A("    s_waitcnt lgkmcnt(0)")
    A.label("SLOW_UNIT")
    A(f"    s_cmp_ge_u32 s{S_P}, s{S_NU}")
    A("    s_cbranch_scc1 SLOW_UNITS_DONE")
    A(f"    v_add_u32 v{V_T1}, s{S_PTR}, v{V_H4}")
    dma_entry_reads(A, V_T1)
    A("    s_waitcnt lgkmcnt(0)")
    for q in range(8):
        dma_one(A, q)
    A(f"    s_mov_b32 s{S_P2}, s{S_PTR}")
    A("    s_waitcnt vmcnt(0)")
    s_prefetch(A)
    unit_front(A, 0)
    unit_finish_plain(A, 0)
    den_mfma(A)
    for ft in range(16):
        agg_mfma(A, ft)
    A(f"    s_add_u32 s{S_P}, s{S_P}, 1")
    A(f"    s_add_u32 s{S_PTR}, s{S_PTR}, 64")
    A("    s_branch SLOW_UNIT")
    A.label("SLOW_UNITS_DONE")
    A(f"    s_cmp_lt_u32 s{S_POS}, {E*4}")
    A("    s_cbranch_scc1 SLOW_REFILL")
    A(f"    s_cmp_eq_u32 s{S_GRP}, 1")
    A("    s_cbranch_scc1 MAIN_DONE")
    A("    s_nop 7")
    emit_finb(A, after_loop=False)
    zero_acc(A)
    A(f"    s_mov_b32 s{S_GRP}, 1")
    A("    s_branch SLOW_GROUP")


def kd(name, vgpr, sgpr):
    return f""".amdhsa_kernel {name}
  .amdhsa_next_free_vgpr {vgpr}
  .amdhsa_next_free_sgpr {sgpr}
  .amdhsa_accum_offset {((vgpr+3)//4)*4}
  .amdhsa_group_segment_fixed_size 0
  .amdhsa_kernarg_size 72
  .amdhsa_user_sgpr_count 2
  .amdhsa_user_sgpr_kernarg_segment_ptr 1
  .amdhsa_system_sgpr_workgroup_id_x 1
  .amdhsa_float_denorm_mode_32 3
.end_amdhsa_kernel
"""


HEADER = """; Kernarg layout for this problem (72 bytes, ptrs only, base s[0:1]):
"""


def main():
    ap = argparse.ArgumentParser()
    ap.add_argument("-o", default="fused.s")
    ap.add_argument("--stamps", action="store_true")
    ap.add_argument("--ustamps", action="store_true")
    ap.add_argument("--gstamps", action="store_true")
    ap.add_argument("--fstamps", action="store_true")
    ap.add_argument("--nopk", type=int, default=0)
    ap.add_argument("--pstamps", action="store_true")
    ap.add_argument("--clk", action="store_true")
    ap.add_argument("--up", type=int, default=1)
    ap.add_argument("--wpos", default="A")
    ap.add_argument("--copies", type=int, default=1)
    ap.add_argument("--xpre", type=int, default=0)
    ap.add_argument("--wpre", type=int, default=10)
    ap.add_argument("--w3", type=int, default=2)
    ap.add_argument("--wlast", type=int, default=24)
    ap.add_argument("--wmin", type=int, default=6)
    ap.add_argument("--prio", type=int, default=2)
    ap.add_argument("--skip", type=int, default=0)
    ap.add_argument("--bar0", type=int, default=0)
    ap.add_argument("--xt", type=int, default=0)
    ap.add_argument("--xr", type=int, default=0)
    ap.add_argument("--mall", type=int, default=0)
    ap.add_argument("--vlate", type=int, default=1)
    ap.add_argument("--gprio", type=int, default=1)
    ap.add_argument("--gpa", type=int, default=13)
    ap.add_argument("--gpb", type=int, default=19)
    ap.add_argument("--tlb", type=int, default=0)
    ap.add_argument("--xoff", type=int, default=0)
    ap.add_argument("--pa", type=int, default=2)
    ap.add_argument("--pb", type=int, default=4)
    ap.add_argument("--wlook", type=int, default=12)
    ap.add_argument("--wone", type=int, default=1)
    ap.add_argument("--zero2", type=int, default=1)
    ap.add_argument("--bring", type=int, default=4)
    ap.add_argument("--wspread", type=int, default=8)
    a = ap.parse_args()
    opt.__dict__.update(a.__dict__)
    A = Asm()
    B = Asm()
    gen_main(B)
    A(HEADER.rstrip("\n"))
    A(f"; @launch grid=({NT},1,1) block=(512,1,1) lds={LDS_MAIN}")
    A('.amdgcn_target "amdgcn-amd-amdhsa--gfx950"')
    A(".text")
    A.lines += B.lines
    A('.section .rodata,"a"')
    A(".p2align 6")
    A(kd("gather_scatter__graph_attention_gat__graph_kernel", 256, 102 if opt.stamps else 96))
    open(opt.o, "w").write(A.text())
    print("wrote", opt.o, len(A.lines), "lines")


if __name__ == "__main__":
    main()
```

```python
import sys, argparse

N = 10000; E = 160000; TILE = 40; NT = 250; G = 64; CH = 2500
WS_SLOTS = 0
WS_EPOCH = 0x1F4000
WS_FLAGS = 0x1F4100
WS_V = 0x1F8000
SPIN = 20000
WS_WF = 0x200000
WS_STAMP = 0x700000
REGSZ = 17408; UNIT = 8704; PAIR = 1088; RROW = 2080
AGG1 = 8 * REGSZ
LISTS = AGG1 + 8 * RROW
LSZ = 704
TBUF = LISTS + 8 * LSZ
CNT = TBUF + 768
OVF = CNT + 64
LDS_MAIN = CNT + 128
VLDS = AGG1
CAPA = 128; CAPB = 48
SENT_LIST = 0x7FFFFE3F
LOG2E = 0x3FB8AA3B


class Asm:
    def __init__(self):
        self.lines = []
    def __call__(self, s=""):
        for l in s.split("\n"):
            self.lines.append(l)
    def label(self, n):
        self.lines.append(n + ":")
    def text(self):
        return "\n".join(self.lines) + "\n"


class Opt:
    pass
opt = Opt()
_ul = [0]
def uid(p):
    _ul[0] += 1
    return f"{p}_{_ul[0]}"


def stamp(A, i):
    if opt.stamps and not opt.ustamps and not opt.gstamps and not opt.pstamps and not opt.fstamps:
        A(f"    {'s_memtime' if opt.clk else 's_memrealtime'} s[{82+2*i}:{83+2*i}]")
def ustamp(A, p, i):
    if opt.stamps and opt.ustamps:
        l = uid("US")
        A(f"    s_cmp_eq_u32 s{S_P}, {p}")
        A(f"    s_cbranch_scc0 {l}")
        A(f"    s_memtime s[{82+2*i}:{83+2*i}]")
        A.label(l)
def pstamp(A):
    if opt.stamps and opt.pstamps:
        for p in range(8):
            l = uid("PS")
            A(f"    s_cmp_eq_u32 s{S_P}, {p}")
            A(f"    s_cbranch_scc0 {l}")
            A(f"    s_memtime s[{82+2*p}:{83+2*p}]")
            A.label(l)
def fstamp(A, i):
    if opt.stamps and opt.fstamps:
        A(f"    s_memtime s[{82+2*i}:{83+2*i}]")
def gstamp(A, i):
    if opt.stamps and opt.gstamps:
        A(f"    s_memtime s[{82+2*i}:{83+2*i}]")
def stamp_flush(A, wsbase, area):
    if not opt.stamps:
        return
    A("    s_waitcnt lgkmcnt(0)")
    A(f"    s_mov_b32 s76, s{wsbase}\n    s_mov_b32 s77, s{wsbase+1}\n    s_mov_b32 s78, 0x800000\n    s_mov_b32 s79, 0x00020000")
    A(f"    s_lshl_b32 s80, s2, 4")
    A(f"    s_add_u32 s80, s80, s100")
    A(f"    s_lshl_b32 s80, s80, 6")
    A(f"    s_add_u32 s80, s80, {WS_STAMP+area}")
    A("    s_mov_b64 exec, 1")
    A("    v_mov_b32 v1, 0")
    for i in range(9):
        A(f"    v_mov_b32 v2, s{82+2*i}")
        A(f"    buffer_store_dword v2, v1, s[76:79], s80 offen offset:{4*i}")
        A("    s_nop 1")


def srd(A, d, base, nbytes):
    A(f"    s_mov_b32 s{d}, s{base}")
    A(f"    s_mov_b32 s{d+1}, s{base+1}")
    A(f"    s_mov_b32 s{d+2}, {nbytes}")
    A(f"    s_mov_b32 s{d+3}, 0x00020000")


def x_touch(A, sbase, vaddr, vdst, ssrd, stmp):
    if not opt.xpre:
        return
    srd(A, ssrd, sbase, N * 512)
    A(f"    s_lshr_b32 s{stmp}, s2, 3")
    A(f"    s_mul_i32 s{stmp}, s{stmp}, 640")
    A(f"    v_add_u32 v{vaddr}, s{stmp}, v0")
    A(f"    v_lshlrev_b32 v{vaddr}, 7, v{vaddr}")
    for r in range(opt.xpre):
        A(f"    s_mov_b32 s{stmp}, {r*20480*128}")
        A(f"    buffer_load_dword v{vdst}, v{vaddr}, s[{ssrd}:{ssrd+3}], s{stmp} offen")


def ws_bytes():
    return WS_WF + opt.copies * 524288


def gen_prep(A):
    K = "gat_prep_kernel"
    NWG_W = 16 * opt.copies
    V0 = 64 + NWG_W
    X0 = V0 + 32
    NPREP = 256 if opt.xpre else X0 + (63 if opt.mall else 0)
    opt.nprep = NPREP
    A(f".globl {K}\n.p2align 8\n.type {K},@function\n{K}:")
    A(f"    s_cmp_ge_u32 s2, {NPREP}")
    A("    s_cbranch_scc1 PREP_END")
    stamp(A, 0)
    if opt.stamps:
        A("    v_lshrrev_b32 v1, 6, v0\n    s_nop 1\n    v_readfirstlane_b32 s100, v1")
    A("    s_cmp_ge_u32 s2, 64")
    A("    s_cbranch_scc1 PREP_NB")
    A("    s_load_dwordx4 s[4:7], s[0:1], 8")
    A("    s_load_dwordx2 s[10:11], s[0:1], 64     ; ws")
    A("    s_load_dwordx2 s[12:13], s[0:1], 0      ; x")
    A("    v_lshlrev_b32 v1, 4, v0")
    for i in range(4):
        A(f"    v_mov_b32 v{4+i}, -1")
    A("    v_lshlrev_b32 v2, 2, v0")
    A("    v_mov_b32 v3, 0")
    A("    s_mul_i32 s28, s2, 10000")
    A("    v_add_u32 v30, s28, v1")
    A("    s_waitcnt lgkmcnt(0)")
    stamp(A, 1)
    srd(A, 20, 6, E * 4)
    A("    buffer_load_dwordx4 v[8:11], v30, s[20:23], 0 offen      ; dst")
    srd(A, 16, 4, E * 4)
    A("    buffer_load_dwordx4 v[12:15], v30, s[16:19], 0 offen     ; src")
    srd(A, 24, 10, ws_bytes())
    x_touch(A, 12, 31, 32, 36, 40)
    for r in range(4):
        A(f"    ds_write_b128 v1, v[4:7] offset:{10240*r}")
    A("    ds_write_b32 v2, v3 offset:40960")
    A("    v_cmp_gt_u32 vcc, 625, v0")
    A("    s_mov_b32 s29, 52429")
    A("    v_mov_b32 v3, 1")
    A("    v_mov_b32 v28, 32000")
    A("    s_waitcnt lgkmcnt(0)")
    A("    s_barrier")
    A("    s_and_saveexec_b64 s[30:31], vcc")
    A(f"    s_waitcnt vmcnt({1+opt.xpre})")
    stamp(A, 2)
    for i in range(4):
        A(f"    v_mul_u32_u24 v{16+i}, s29, v{8+i}")
        A(f"    v_lshrrev_b32 v{16+i}, 21, v{16+i}       ; tile")
        A(f"    v_lshlrev_b32 v{20+i}, 2, v{16+i}")
        A(f"    ds_add_rtn_u32 v{24+i}, v{20+i}, v3 offset:40960")
    A(f"    s_waitcnt vmcnt({opt.xpre})")
    for i in range(4):
        A(f"    v_mul_u32_u24 v4, 40, v{16+i}")
        A(f"    v_sub_u32 v4, v{8+i}, v4")
        A(f"    v_lshl_or_b32 v{12+i}, v{12+i}, 9, v4    ; entry")
        A(f"    v_lshlrev_b32 v{16+i}, 7, v{16+i}        ; tile*128")
    for i in range(4):
        A(f"    s_waitcnt lgkmcnt({3-i})")
        A(f"    v_cmp_gt_u32 vcc, 32, v{24+i}")
        A(f"    v_lshl_add_u32 v4, v{24+i}, 2, v{16+i}")
        A(f"    s_nop 0")
        A(f"    v_cndmask_b32 v{20+i}, v28, v4, vcc")
    for i in range(4):
        A(f"    ds_write_b32 v{20+i}, v{12+i}")
    A("    s_mov_b64 exec, s[30:31]")
    A("    s_lshl_b32 s28, s2, 7                    ; chunk*128")
    A("    v_and_b32 v2, 7, v0                      ; part (640 % 8 == 0)")
    A("    v_lshrrev_b32 v3, 3, v0")
    A("    v_lshlrev_b32 v29, 2, v3")
    A("    v_lshlrev_b32 v4, 4, v2")
    A("    v_lshl_add_u32 v4, v3, 13, v4")
    A("    v_add_u32 v4, s28, v4")
    A("    v_cmp_eq_u32 s[32:33], 7, v2")
    A("    v_cmp_gt_u32 vcc, 80, v0")
    A("    s_mov_b64 s[34:35], vcc")
    A("    v_mov_b32 v5, 0x7ffffff0")
    A("    v_mov_b32 v6, -2")
    A("    s_waitcnt lgkmcnt(0)")
    A("    s_barrier")
    stamp(A, 3)
    for r in range(4):
        A(f"    ds_read_b128 v[{8+4*r}:{11+4*r}], v1 offset:{10240*r}")
        A(f"    ds_read_b32 v{24+r}, v29 offset:{40960 + 320*r}")
    for r in range(4):
        A(f"    s_waitcnt lgkmcnt({6-2*r})")
        A(f"    v_cmp_lt_u32 vcc, 32, v{24+r}")
        A(f"    s_and_b64 vcc, vcc, s[32:33]")
        A(f"    v_add_u32 v7, {80*8192*r}, v4")
        if r == 3:
            A(f"    v_cndmask_b32 v7, v5, v7, s[34:35]")
        A(f"    s_nop 0")
        A(f"    v_cndmask_b32 v{11+4*r}, v{11+4*r}, v6, vcc")
        A(f"    buffer_store_dwordx4 v[{8+4*r}:{11+4*r}], v7, s[24:27], 0 offen")
    stamp(A, 4)
    if opt.stamps:
        A("    s_waitcnt vmcnt(0)")
    stamp(A, 5)
    stamp_flush(A, 10, 0x40000)
    A("    s_endpgm")
    A.label("PREP_NB")
    if opt.mall:
        A(f"    s_cmp_ge_u32 s2, {X0}")
        A("    s_cbranch_scc1 PREP_M")
    if opt.xpre:
        A(f"    s_cmp_ge_u32 s2, {X0}")
        A("    s_cbranch_scc1 PREP_X")
    A("    s_load_dwordx2 s[8:9], s[0:1], 24       ; w")
    A("    s_load_dwordx4 s[12:15], s[0:1], 32")
    A("    s_load_dwordx2 s[10:11], s[0:1], 64     ; ws")
    A("    s_load_dwordx2 s[42:43], s[0:1], 0      ; x")
    A("    s_sub_u32 s28, s2, 64                    ; idx")
    A("    v_lshrrev_b32 v1, 6, v0")
    A("    s_nop 0")
    cs = {1: 0, 2: 1, 4: 2, 8: 3}[opt.copies]
    A(f"    s_and_b32 s27, s28, {opt.copies-1}       ; copy")
    A(f"    s_lshr_b32 s28, s28, {cs}")
    A("    v_readfirstlane_b32 s29, v1              ; wave")
    A("    s_waitcnt lgkmcnt(0)")
    stamp(A, 1)
    srd(A, 16, 8, 524288)
    srd(A, 36, 10, ws_bytes())
    A(f"    s_cmp_ge_u32 s2, {V0}")
    A("    s_cbranch_scc1 PREP_V")
    A("    s_cmp_ge_u32 s29, 8")
    A("    s_cbranch_scc1 PREP_END")
    A("    s_lshl_b32 s30, s28, 15                  ; kp*2*16384")
    A("    s_add_u32 s33, s30, 16384")
    A("    v_lshrrev_b32 v1, 7, v0                  ; g")
    A("    v_and_b32 v2, 127, v0                    ; fp")
    A("    v_lshlrev_b32 v3, 11, v1")
    A("    v_lshl_add_u32 v3, v2, 2, v3             ; g*2048 + fp*4")
    A("    v_add_u32 v4, 8192, v3")
    for half, so in ((0, 30), (1, 33)):
        for j in range(4):
            A(f"    buffer_load_dword v{8+8*half+j}, v3, s[16:19], s{so} offen offset:{512*j}")
        for j in range(4):
            A(f"    buffer_load_dword v{12+8*half+j}, v4, s[16:19], s{so} offen offset:{512*j}")
    x_touch(A, 42, 41, 42, 44, 40)
    A("    v_lshrrev_b32 v5, 4, v2")
    A("    v_lshlrev_b32 v5, 16, v5")
    A("    v_bfe_u32 v6, v2, 1, 1")
    A("    v_lshl_add_u32 v5, v6, 10, v5")
    A("    v_lshl_add_u32 v5, v1, 8, v5             ; 16g*16")
    A("    v_bfe_u32 v6, v2, 2, 2")
    A("    v_lshl_add_u32 v5, v6, 6, v5             ; 4*gi*16")
    A("    v_and_b32 v6, 1, v2")
    A("    v_lshl_add_u32 v5, v6, 5, v5             ; 2*(fp&1)*16")
    A("    s_lshl_b32 s31, s28, 12                  ; kp*2*2048")
    A("    s_lshl_b32 s32, s27, 19                  ; copy*524288")
    A("    s_add_u32 s31, s31, s32")
    A(f"    s_add_u32 s31, s31, {WS_WF}")
    A("    s_mov_b32 s34, 0x05040100")
    A("    s_mov_b32 s35, 0x07060302")
    for half in range(2):
        A(f"    s_waitcnt vmcnt({(8 if half == 0 else 2) + opt.xpre})")
        if half == 0:
            stamp(A, 2)
        b = 8 + 8 * half; d = 24 + 8 * half
        for i in range(4):
            A(f"    v_perm_b32 v{d+i}, v{b+1+2*i}, v{b+2*i}, s34")
            A(f"    v_perm_b32 v{d+4+i}, v{b+1+2*i}, v{b+2*i}, s35")
        A(f"    buffer_store_dwordx4 v[{d}:{d+3}], v5, s[36:39], s31 offen offset:{2048*half}")
        A(f"    buffer_store_dwordx4 v[{d+4}:{d+7}], v5, s[36:39], s31 offen offset:{2048*half+16}")
    stamp(A, 4)
    if opt.stamps:
        A("    s_waitcnt vmcnt(0)")
    stamp(A, 5)
    stamp_flush(A, 10, 0x40000)
    A("    s_endpgm")
    A.label("PREP_V")
    if opt.tlb:
        A("    s_cmp_eq_u32 s29, 2")
        A("    s_cbranch_scc0 PREP_V2")
        srd(A, 44, 42, N * 512)
        A("    v_and_b32 v1, 63, v0")
        A(f"    s_mov_b32 s30, {opt.tlb}")
        A("    v_mul_lo_u32 v1, s30, v1")
        A(f"    s_sub_u32 s31, s2, {V0}")
        A("    s_lshr_b32 s31, s31, 3")
        A(f"    s_mul_i32 s31, s31, {opt.tlb // 4}")
        A("    buffer_load_dword v2, v1, s[44:47], s31 offen")
        A("    s_endpgm")
        A.label("PREP_V2")
    A("    s_cmp_ge_u32 s29, 2")
    A("    s_cbranch_scc1 PREP_END")
    A(f"    s_sub_u32 s30, s2, {V0}")
    A("    s_lshl_b32 s30, s30, 1")
    A("    s_add_u32 s30, s30, s29")
    A("    s_lshr_b32 s31, s30, 4                   ; h")
    srd(A, 20, 12, 2048)
    srd(A, 24, 14, 2048)
    A("    v_and_b32 v1, 63, v0")
    A("    v_and_b32 v2, 15, v1                     ; i / c")
    A("    v_lshrrev_b32 v3, 4, v1                  ; g")
    A("    v_lshlrev_b32 v4, 9, v2")
    A("    v_lshl_add_u32 v4, v3, 4, v4             ; i*512 + g*16")
    A("    s_lshl_b32 s32, s30, 13")
    A("    v_lshlrev_b32 v5, 4, v3                  ; g*16")
    A("    s_lshl_b32 s33, s31, 9                   ; h*512")
    for kk in range(8):
        A(f"    buffer_load_dwordx4 v[{8+4*kk}:{11+4*kk}], v4, s[16:19], s32 offen offset:{64*kk}")
    A("    v_and_b32 v6, 1, v2")
    A("    v_cmp_eq_u32 vcc, 0, v6")
    A("    s_mov_b64 s[40:41], exec")
    A("    s_mov_b64 exec, vcc")
    for kk in range(8):
        A(f"    buffer_load_dwordx4 v[{40+4*kk}:{43+4*kk}], v5, s[20:23], s33 offen offset:{64*kk}")
    A("    s_andn2_b64 exec, s[40:41], vcc")
    for kk in range(8):
        A(f"    buffer_load_dwordx4 v[{40+4*kk}:{43+4*kk}], v5, s[24:27], s33 offen offset:{64*kk}")
    A("    s_mov_b64 exec, s[40:41]")
    A("    s_lshl_b32 s32, s30, 5")
    A(f"    s_add_u32 s32, s32, {WS_V}")
    A("    v_lshlrev_b32 v7, 3, v3")
    A("    v_lshl_add_u32 v7, v6, 11, v7")
    A("    v_cmp_gt_u32 vcc, 2, v2")
    A(f"    s_mov_b32 s33, {LOG2E}")
    A("    s_waitcnt vmcnt(0)")
    for kk in range(8):
        c = "0" if kk == 0 else "v[72:75]"
        A(f"    v_mfma_f32_16x16x32_bf16 v[72:75], v[{8+4*kk}:{11+4*kk}], v[{40+4*kk}:{43+4*kk}], {c}")
    A("    s_nop 7")
    for r in range(4):
        A(f"    v_mul_f32 v{72+r}, s33, v{72+r}")
    A("    v_cvt_pk_bf16_f32 v76, v72, v73")
    A("    v_cvt_pk_bf16_f32 v77, v74, v75")
    A("    s_and_saveexec_b64 s[40:41], vcc")
    A("    buffer_store_dwordx2 v[76:77], v7, s[36:39], s32 offen")
    stamp(A, 4)
    if opt.stamps:
        A("    s_waitcnt vmcnt(0)")
    stamp(A, 5)
    stamp_flush(A, 10, 0x40000)
    A("    s_endpgm")
    if opt.xpre:
        A.label("PREP_X")
        A("    s_load_dwordx2 s[8:9], s[0:1], 0         ; x")
        if opt.stamps:
            A("    s_load_dwordx2 s[10:11], s[0:1], 64     ; ws")
        A("    s_waitcnt lgkmcnt(0)")
        stamp(A, 1)
        x_touch(A, 8, 1, 2, 16, 28)
        if opt.stamps:
            A("    s_waitcnt vmcnt(0)")
        stamp(A, 4)
        stamp(A, 5)
        stamp_flush(A, 10, 0x40000)
    if opt.mall:
        A("    s_endpgm")
        A.label("PREP_M")
        A("    s_load_dwordx2 s[8:9], s[0:1], 0         ; x")
        A(f"    s_sub_u32 s28, s2, {X0}")
        A("    s_mul_i32 s28, s28, 640")
        A("    v_add_u32 v1, s28, v0")
        A("    v_lshlrev_b32 v1, 7, v1")
        A("    s_waitcnt lgkmcnt(0)")
        srd(A, 16, 8, N * 512)
        A("    buffer_load_dword v2, v1, s[16:19], 0 offen")
    A.label("PREP_END")
    A("    s_endpgm")


V_TMP = 0; V_DMAC = 1; V_SADDR = 2; V_TE = 3; V_TO = 4; V_G16 = 5; V_H4 = 6; V_TGT = 7; V_TQ = 8
V_PT = 12; V_E = 16; V_D = 20; V_S = 28; V_DEN = 32; V_X = 36; V_ONES = 224
V_TGTA = 40; V_TA = 41; V_T1 = 42; V_T2 = 43; V_T3 = 44; V_WOFF = 45; V_FE = 46; V_FO = 47
V_R = 48; V_SCR = 64; V_V = 128; V_ACC = 160
V_ACC2 = 40
S_X = 4; S_WS = 8; S_OUT = 12; S_SRC = 16; S_DST = 20
S_W = 24; S_NA = 25; S_NB = 26; S_NU = 27; S_P = 28; S_PTR = 29; S_M0 = 30; S_DELTA = 31
S_MSK = 32
S_HI = 40; S_T0 = 41; S_T1 = 42; S_T2 = 43; S_ABASE = 44; S_REG = 45; S_P2 = 46; S_WF = 47; S_EX = 48
S_C02 = 50; S_FIRST = 52; S_K = 53; S_KA = 54; S_KB = 55
S_J1 = 70; S_J2 = 72; S_J3 = 74
S_EN = 56; S_TAG = 57


def lane_cg(A, vl, vc, vg):
    A(f"    v_mbcnt_lo_u32_b32 v{vl}, -1, 0")
    A(f"    v_mbcnt_hi_u32_b32 v{vl}, -1, v{vl}")
    A(f"    v_and_b32 v{vc}, 15, v{vl}")
    A(f"    v_lshrrev_b32 v{vg}, 4, v{vl}")


def dma_one(A, q, between=None):
    if q == 0:
        A(f"    s_mov_b32 m0, s{S_M0}")
    else:
        A(f"    s_add_u32 m0, s{S_M0}, {PAIR*q}")
    A(f"    v_and_or_b32 v{V_D+q}, v{V_D+q}, s{S_HI}, v{V_DMAC}")
    if between:
        between()
    A(f"    buffer_load_dwordx4 v{V_D+q}, s[{S_X}:{S_X+3}], 0 offen lds")


def wait_vm_dyn(A, sreg, base, lo=0, hi=8):
    end = uid("WV")
    def rec(a, b):
        if a == b:
            A(f"    s_waitcnt vmcnt({base + a})")
            A(f"    s_branch {end}")
            return
        m = (a + b + 1) // 2
        l = uid("WV")
        A(f"    s_cmp_ge_u32 s{sreg}, {m}")
        A(f"    s_cbranch_scc1 {l}")
        rec(a, m - 1)
        A.label(l)
        rec(m, b)
    rec(lo, hi)
    A.label(end)


def dma_partial(A, sreg, zero_fill, rev=False):
    end = uid("DP")
    zl = [uid("DZ") for _ in range(8)]
    order = list(range(7, -1, -1)) if rev else list(range(8))
    for n, q in enumerate(order):
        if n > 0:
            A(f"    s_cmp_gt_u32 s{sreg}, {n}")
            A(f"    s_cbranch_scc0 {zl[n] if zero_fill else end}")
        dma_one(A, q)
    if zero_fill:
        A(f"    s_branch {end}")
        for n in range(1, 8):
            A.label(zl[n])
            A(f"    ds_write_b128 v{V_T2}, v[{V_S}:{V_S+3}] offset:{PAIR*order[n]}")
    A.label(end)


def unit_k(A, sq):
    A(f"    s_add_u32 s{S_T2}, s{sq}, 1")
    A(f"    s_cmp_eq_u32 s{S_T2}, s{S_NU}")
    A(f"    s_cselect_b32 s{S_K}, s{S_KA}, 8")


def dma_entry_reads(A, addr_v):
    for i in range(4):
        A(f"    ds_read2_b32 v[{V_D+2*i}:{V_D+2*i+1}], v{addr_v} offset0:{4*i} offset1:{4*i+2}")


def s_prefetch(A, between=None):
    A(f"    v_add_u32 v{V_TMP}, s{S_PTR}, v{V_G16}")
    if between: between(0)
    A(f"    ds_read_b128 v[{V_E}:{V_E+3}], v{V_TMP}")
    for kk in range(4):
        if between: between(1 + kk)
        A(f"    ds_read_b128 v[{V_R+4*kk}:{V_R+4*kk+3}], v{V_SADDR} offset:{64*kk}")


def s_mfma(A, kk):
    c = f"v[{V_TQ}:{V_TQ+3}]" if kk == 0 else f"v[{V_S}:{V_S+3}]"
    r = V_R + 4 * (kk & 3)
    A(f"    v_mfma_f32_16x16x32_bf16 v[{V_S}:{V_S+3}], v[{r}:{r+3}], v[{V_V+4*kk}:{V_V+4*kk+3}], {c}")


def unit_front(A, par=0):
    q = ["E", "S0", "S1", "S2", "S3"]
    def wait(tag):
        idx = q.index(tag)
        return min(14, len(q) - 1 - idx)
    A(f"    v_add_u32 v{V_T1}, s{S_P2}, v{V_H4}")
    for kk in range(7):
        A(f"    s_waitcnt lgkmcnt({wait('S%d' % kk)})")
        s_mfma(A, kk)
        if kk < 4:
            r = V_R + 4 * kk
            A(f"    ds_read_b128 v[{r}:{r+3}], v{V_SADDR} offset:{64*(kk+4)}")
            q.append("S%d" % (kk + 4))
            for ft in range(4 * kk, 4 * kk + 4):
                a0 = V_SCR + 4 * ft + 2 * par
                A(f"    ds_read_b64_tr_b16 v[{a0}:{a0+1}], v{V_TE if ft % 2 == 0 else V_TO} offset:{32*ft}")
                q.append("T")
            if kk == 3:
                dma_entry_reads(A, V_T1)
                q += ["D"] * 4


def p_ops(par):
    ops = []
    for r in range(4):
        ops.append(f"    v_cmp_eq_u32_sdwa s[{S_MSK+2*r}:{S_MSK+2*r+1}], v{V_E+r}, v{V_TGT} src0_sel:BYTE_0 src1_sel:DWORD")
    grp = [ops]
    grp.append([f"    v_pk_mul_f32 v[{V_X}:{V_X+1}], v[{V_S}:{V_S+1}], s[{S_C02}:{S_C02+1}] op_sel_hi:[1,0]",
                f"    v_pk_mul_f32 v[{V_X+2}:{V_X+3}], v[{V_S+2}:{V_S+3}], s[{S_C02}:{S_C02+1}] op_sel_hi:[1,0]"])
    grp.append([f"    v_max_f32 v{V_X+r}, v{V_X+r}, v{V_S+r}" for r in range(4)])
    grp.append([f"    v_exp_f32 v{V_X+r}, v{V_X+r}" for r in range(4)])
    grp.append([f"    v_cndmask_b32 v{V_X+r}, 0, v{V_X+r}, s[{S_MSK+2*r}:{S_MSK+2*r+1}]" for r in range(4)])
    grp.append([f"    v_cvt_pk_bf16_f32 v{V_PT+2*par}, v{V_X}, v{V_X+1}",
                f"    v_cvt_pk_bf16_f32 v{V_PT+2*par+1}, v{V_X+2}, v{V_X+3}"])
    return grp


def unit_finish_plain(A, par=0):
    A("    s_waitcnt lgkmcnt(0)")
    s_mfma(A, 7)
    g = p_ops(par)
    for l in g[0]: A(l)
    A("    s_nop 3")
    for grp in g[1:]:
        for l in grp: A(l)
    A("    s_nop 1")


def agg_mfma(A, ft, first=False, k32=False):
    c = "0" if first else f"v[{V_ACC+4*ft}:{V_ACC+4*ft+3}]"
    a = V_SCR + 4 * ft
    if k32:
        A(f"    v_mfma_f32_16x16x32_bf16 v[{V_ACC+4*ft}:{V_ACC+4*ft+3}], v[{a}:{a+3}], v[{V_PT}:{V_PT+3}], {c}")
    else:
        A(f"    v_mfma_f32_16x16x16_bf16 v[{V_ACC+4*ft}:{V_ACC+4*ft+3}], v[{a}:{a+1}], v[{V_PT}:{V_PT+1}], {c}")


def den_mfma(A, first=False, k32=False):
    c = "0" if first else f"v[{V_DEN}:{V_DEN+3}]"
    if k32:
        A(f"    v_mfma_f32_16x16x32_bf16 v[{V_DEN}:{V_DEN+3}], v[{V_ONES}:{V_ONES+3}], v[{V_PT}:{V_PT+3}], {c}")
    else:
        A(f"    v_mfma_f32_16x16x16_bf16 v[{V_DEN}:{V_DEN+3}], v[{V_ONES}:{V_ONES+1}], v[{V_PT}:{V_PT+1}], {c}")


def unit_tail(A, dma, nxt, agg, first, par):
    k32 = agg == "k32"
    pend = list(range(16)) if agg else []
    def mf():
        if pend:
            agg_mfma(A, pend.pop(0), first, k32)
            return True
        return False
    g = p_ops(par)
    A("    s_waitcnt lgkmcnt(0)")
    s_mfma(A, 7)
    if dma == "full":
        for q in range(2):
            dma_one(A, q)
        for l in g[0]: A(l)
        for i, grp in enumerate(g[1:]):
            for l in grp: A(l)
            dma_one(A, 2 + i) if i < 5 else None
        dma_one(A, 7)
    elif dma == "part":
        for l in g[0]: A(l)
        dma_partial(A, S_K, False)
        A("    s_nop 1")
        for grp in g[1:]:
            for l in grp: A(l)
        A("    s_nop 1")
    else:
        for l in g[0]: A(l)
        A("    s_nop 3")
        for grp in g[1:]:
            for l in grp: A(l)
        A("    s_nop 1")
    if agg:
        den_mfma(A, first, k32)
    for q in range(8):
        mf()
    A(f"    v_add_u32 v{V_SADDR}, s{S_DELTA}, v{V_SADDR}")
    A(f"    s_add_u32 s{S_PTR}, s{S_PTR}, 64")
    if nxt:
        if dma == "part":
            wait_vm_dyn(A, S_K, 0, 1, 7)
        else:
            A(f"    s_waitcnt vmcnt({8 if dma else 0})")
        s_prefetch(A, between=lambda i: mf())
    while mf():
        pass
    A(f"    v_add_u32 v{V_TE}, s{S_DELTA}, v{V_TE}")
    A(f"    v_add_u32 v{V_TO}, s{S_DELTA}, v{V_TO}")
    A(f"    s_add_u32 s{S_M0}, s{S_M0}, s{S_DELTA}")
    A(f"    s_sub_u32 s{S_DELTA}, 0, s{S_DELTA}")
    A(f"    s_add_u32 s{S_P}, s{S_P}, 1")
    if agg:
        A(f"    s_mov_b32 s{S_FIRST}, 0")


def finalize(A, stage, after_pair=None, fs=False):
    A(f"    v_add_f32 v{V_X}, 0x3089705f, v{V_DEN}        ; + 1e-9")
    A(f"    v_rcp_f32 v{V_X}, v{V_X}")
    A("    s_nop 0")
    A(f"    v_mul_f32 v{V_X}, 0x3e800000, v{V_X}")
    if fs: fstamp(A, 1)
    for u in range(8):
        if fs and u == 4: fstamp(A, 2)
        sq = stage + 4 * (u & 3)
        for half in range(2):
            a = V_ACC + 4 * (2 * u + half)
            if opt.nopk:
                for r in range(4):
                    A(f"    v_mul_f32 v{a+r}, v{V_X}, v{a+r}")
            else:
                A(f"    v_pk_mul_f32 v[{a}:{a+1}], v[{a}:{a+1}], v[{V_X}:{V_X+1}] op_sel_hi:[1,0]")
                A(f"    v_pk_mul_f32 v[{a+2}:{a+3}], v[{a+2}:{a+3}], v[{V_X}:{V_X+1}] op_sel_hi:[1,0]")
        for half in range(2):
            a = V_ACC + 4 * (2 * u + half)
            A(f"    v_cvt_pk_bf16_f32 v{sq+2*half}, v{a}, v{a+1}")
            A(f"    v_cvt_pk_bf16_f32 v{sq+2*half+1}, v{a+2}, v{a+3}")
        ad = V_FE if u % 2 == 0 else V_FO
        A(f"    ds_write_b128 v{ad}, v[{sq}:{sq+3}] offset:{64*u}")
        if after_pair:
            after_pair(u)


def fin_addr(A, vc, vg):
    A(f"    v_and_b32 v{V_T1}, 3, v{vc}                ; h")
    A(f"    v_lshl_add_u32 v{V_FE}, v{V_T1}, 9, v{V_FE}")
    A(f"    v_and_b32 v{V_T2}, 1, v{V_T1}")
    A(f"    v_xor_b32 v{V_T2}, v{V_T2}, v{vg}")
    A(f"    v_lshl_add_u32 v{V_FE}, v{V_T2}, 4, v{V_FE}")
    A(f"    v_lshrrev_b32 v{V_T1}, 1, v{V_T1}")
    A(f"    v_lshlrev_b32 v{V_T1}, 6, v{V_T1}          ; 64*h1")
    A(f"    v_sub_u32 v{V_FO}, v{V_FE}, v{V_T1}")
    A(f"    v_add_u32 v{V_FE}, v{V_FE}, v{V_T1}")


def zero_acc(A):
    for i in range(64):
        A(f"    v_mov_b32 v{V_ACC+i}, 0")
    for i in range(4):
        A(f"    v_mov_b32 v{V_DEN+i}, 0")


def wslot(ks):
    k = ks & 15
    if k < 3:
        return 232 + 8 * k
    if k < 15:
        return 64 + 8 * (k - 3)
    return 224


def w_load(A, ks, dst, voff=V_WOFF):
    A(f"    s_add_u32 s{S_T0}, s{S_WF}, {ks*2048}")
    A(f"    buffer_load_dwordx4 v[{dst}:{dst+3}], v{voff}, s[{S_WS}:{S_WS+3}], s{S_T0} offen sc1")
    A(f"    buffer_load_dwordx4 v[{dst+4}:{dst+7}], v{voff}, s[{S_WS}:{S_WS+3}], s{S_T0} offen offset:1024 sc1")


def emit_finb(A, after_loop=True):
    l = uid("FB")
    A(f"    s_cmp_lg_u32 s{S_NB}, 0")
    A(f"    s_cbranch_scc1 {l}")
    zero_acc(A)
    A.label(l)
    A(f"    v_add_f32 v{V_X}, 0x3089705f, v{V_DEN}        ; + 1e-9")
    A(f"    v_rcp_f32 v{V_X}, v{V_X}")
    for j, m in ((1, S_J1), (2, S_J2), (3, S_J3)):
        for i in range(16):
            A(f"    v_cndmask_b32 v{V_ACC+i}, v{V_ACC+i}, v{V_ACC+16*j+i}, s[{m}:{m+1}]")
            if j == 1 and i == 0:
                A(f"    v_mul_f32 v{V_X}, 0x3e800000, v{V_X}")
    if after_loop: fstamp(A, 1)
    for i in range(8):
        a = V_ACC + 2 * i
        A(f"    v_pk_mul_f32 v[{a}:{a+1}], v[{a}:{a+1}], v[{V_X}:{V_X+1}] op_sel_hi:[1,0]")
    for i in range(8):
        a = V_ACC + 2 * i
        A(f"    v_cvt_pk_bf16_f32 v{V_SCR+i}, v{a}, v{a+1}")
    if after_loop: fstamp(A, 2)
    A(f"    ds_write_b128 v{V_FE}, v[{V_SCR}:{V_SCR+3}]")
    A(f"    ds_write_b128 v{V_FO}, v[{V_SCR+4}:{V_SCR+7}] offset:64")
    if after_loop: fstamp(A, 3)
    A(f"    v_mov_b32 v{V_TGT}, v{V_TGTA}")
    for i in range(4):
        A(f"    v_mov_b32 v{V_TQ+i}, v{V_TA}")
    lane_cg(A, V_T3, V_X + 2, V_X + 3)
    A(f"    s_and_b32 s{S_T0}, s{S_W}, 1")
    A(f"    s_lshl_b32 s{S_T0}, s{S_T0}, 7")
    A(f"    s_add_u32 s{S_T0}, s{S_T0}, s{S_REG}")
    A(f"    v_lshrrev_b32 v{V_FE}, 2, v{V_X+2}")
    A(f"    v_mul_u32_u24 v{V_FE}, {RROW}, v{V_FE}")
    A(f"    v_add_u32 v{V_FE}, s{S_T0}, v{V_FE}")
    fin_addr(A, V_X + 2, V_X + 3)
    A(f"    s_mov_b32 s{S_FIRST}, 1")
    if after_loop: fstamp(A, 4)
    A("    s_waitcnt lgkmcnt(0)")
    if after_loop: fstamp(A, 5)


def get_epoch(A, n_younger):
    A(f"    s_waitcnt vmcnt({n_younger})")
    A(f"    v_readfirstlane_b32 s{S_EN}, v2")
    A(f"    s_nop 3")
    A(f"    s_add_u32 s{S_EN}, s{S_EN}, 0x800000")
    A(f"    s_and_b32 s{S_TAG}, s{S_EN}, 0xff800000")


def publish_flag(A):
    l = uid("PF")
    A("    s_waitcnt vmcnt(0)")
    A("    s_barrier")
    A(f"    s_cmp_lg_u32 s{S_W}, 0")
    A(f"    s_cbranch_scc1 {l}")
    A(f"    s_sub_u32 s{S_T0}, s2, 64")
    A(f"    s_lshl_b32 s{S_T0}, s{S_T0}, 2")
    A(f"    s_add_u32 s{S_T0}, s{S_T0}, {WS_FLAGS}")
    A(f"    v_mov_b32 v3, s{S_EN}")
    A(f"    v_mov_b32 v4, 0")
    A(f"    s_mov_b64 exec, 1")
    A(f"    buffer_store_dword v3, v4, s[{S_WS}:{S_WS+3}], s{S_T0} offen sc1")
    A(f"    s_mov_b64 exec, -1")
    A.label(l)


def gen_roles(A):
    A("    s_cmp_ge_u32 s2, 64")
    A("    s_cbranch_scc1 ROLE_NB")
    A("    s_mul_i32 s28, s2, 10000")
    A("    v_add_u32 v30, s28, v20")
    A("    v_add_u32 v31, 8192, v30")
    A("    v_mov_b32 v29, 0x7ffffff0")
    A("    v_cmp_gt_u32 vcc, 113, v0")
    A("    s_mov_b64 s[30:31], vcc")
    A("    v_cndmask_b32 v31, v29, v31, vcc")
    A(f"    buffer_load_dwordx4 v[8:11], v30, s[{S_DST}:{S_DST+3}], 0 offen")
    A(f"    buffer_load_dwordx4 v[40:43], v31, s[{S_DST}:{S_DST+3}], 0 offen")
    A(f"    buffer_load_dwordx4 v[12:15], v30, s[{S_SRC}:{S_SRC+3}], 0 offen")
    A(f"    buffer_load_dwordx4 v[44:47], v31, s[{S_SRC}:{S_SRC+3}], 0 offen")
    for i in range(4):
        A(f"    v_mov_b32 v{4+i}, -1")
    A("    v_lshlrev_b32 v1, 2, v0")
    A("    v_mov_b32 v3, 0")
    for r in range(4):
        A(f"    ds_write_b128 v20, v[4:7] offset:{8192*r}")
    A("    ds_write_b32 v1, v3 offset:32768")
    A("    s_mov_b32 s29, 52429")
    A("    v_mov_b32 v3, 1")
    A("    v_mov_b32 v28, 34816")
    A("    s_waitcnt lgkmcnt(0)")
    A("    s_barrier")
    def tiles(D, T, R):
        for i in range(4):
            A(f"    v_mul_u32_u24 v{T+i}, s29, v{D+i}")
            A(f"    v_lshrrev_b32 v{T+i}, 21, v{T+i}       ; tile")
            A(f"    v_lshlrev_b32 v4, 2, v{T+i}")
            A(f"    ds_add_rtn_u32 v{R+i}, v4, v3 offset:32768")
    def place(D, S, T, R):
        for i in range(4):
            A(f"    v_mul_u32_u24 v4, 40, v{T+i}")
            A(f"    v_sub_u32 v4, v{D+i}, v4")
            A(f"    v_lshl_or_b32 v{S+i}, v{S+i}, 9, v4    ; entry")
            A(f"    v_cmp_gt_u32 vcc, 32, v{R+i}")
            A(f"    v_lshlrev_b32 v{T+i}, 7, v{T+i}        ; tile*128")
            A(f"    v_lshl_add_u32 v4, v{R+i}, 2, v{T+i}")
            A(f"    v_cndmask_b32 v4, v28, v4, vcc")
            A(f"    ds_write_b32 v4, v{S+i}")
    A("    s_waitcnt vmcnt(3)")
    tiles(8, 16, 24)
    A("    s_waitcnt vmcnt(2)")
    A("    s_mov_b64 exec, s[30:31]")
    A("    s_cbranch_execz ROLE_B1")
    tiles(40, 48, 52)
    A.label("ROLE_B1")
    A("    s_mov_b64 exec, -1")
    get_epoch(A, 0)
    A("    s_waitcnt lgkmcnt(0)")
    place(8, 12, 16, 24)
    A("    s_mov_b64 exec, s[30:31]")
    A("    s_cbranch_execz ROLE_B2")
    place(40, 44, 48, 52)
    A.label("ROLE_B2")
    A("    s_mov_b64 exec, -1")
    A("    s_lshl_b32 s28, s2, 7                    ; chunk*128")
    A("    v_and_b32 v2, 7, v0                      ; part")
    A("    v_lshrrev_b32 v3, 3, v0")
    A("    v_lshlrev_b32 v29, 2, v3")
    A("    v_lshlrev_b32 v4, 4, v2")
    A("    v_lshl_add_u32 v4, v3, 13, v4")
    A("    v_add_u32 v4, s28, v4")
    A("    v_cmp_eq_u32 s[32:33], 7, v2")
    A("    v_mov_b32 v5, 464")
    A("    v_cmp_gt_u32 s[34:35], v5, v0")
    A("    v_mov_b32 v5, 0x7ffffff0")
    A("    v_mov_b32 v6, -2")
    A(f"    v_mov_b32 v1, s{S_TAG}")
    A("    s_mov_b32 s29, 0x007fffff")
    A("    s_waitcnt lgkmcnt(0)")
    A("    s_barrier")
    for r in range(4):
        A(f"    ds_read_b128 v[{8+4*r}:{11+4*r}], v20 offset:{8192*r}")
        A(f"    ds_read_b32 v{24+r}, v29 offset:{32768 + 256*r}")
    for r in range(4):
        A(f"    s_waitcnt lgkmcnt({6-2*r})")
        A(f"    v_cmp_lt_u32 vcc, 32, v{24+r}")
        A(f"    s_and_b64 vcc, vcc, s[32:33]")
        A(f"    v_add_u32 v7, {64*8192*r}, v4")
        if r == 3:
            A(f"    v_cndmask_b32 v7, v5, v7, s[34:35]")
        A(f"    s_nop 0")
        A(f"    v_cndmask_b32 v{11+4*r}, v{11+4*r}, v6, vcc")
        for i in range(4):
            A(f"    v_and_or_b32 v{8+4*r+i}, v{8+4*r+i}, s29, v1")
        A(f"    buffer_store_dwordx4 v[{8+4*r}:{11+4*r}], v7, s[{S_WS}:{S_WS+3}], 0 offen sc1")
    A("    s_barrier")
    A("    s_branch ROLE_DONE")

    A.label("ROLE_NB")
    A("    s_cmp_ge_u32 s2, 80")
    A("    s_cbranch_scc1 ROLE_NW")
    srd(A, 72, 62, 524288)
    A("    s_sub_u32 s28, s2, 64")
    A("    s_lshl_b32 s30, s28, 15")
    A("    s_add_u32 s33, s30, 16384")
    A("    v_lshrrev_b32 v1, 7, v0                  ; g")
    A("    v_and_b32 v5, 127, v0                    ; fp")
    A("    v_lshlrev_b32 v3, 11, v1")
    A("    v_lshl_add_u32 v3, v5, 2, v3             ; g*2048 + fp*4")
    A("    v_add_u32 v4, 8192, v3")
    for half, so in ((0, 30), (1, 33)):
        for j in range(4):
            A(f"    buffer_load_dword v{8+8*half+j}, v3, s[72:75], s{so} offen offset:{512*j}")
        for j in range(4):
            A(f"    buffer_load_dword v{12+8*half+j}, v4, s[72:75], s{so} offen offset:{512*j}")
    A("    v_lshrrev_b32 v7, 4, v5")
    A("    v_lshlrev_b32 v7, 16, v7")
    A("    v_bfe_u32 v6, v5, 1, 1")
    A("    v_lshl_add_u32 v7, v6, 10, v7")
    A("    v_lshl_add_u32 v7, v1, 8, v7             ; 16g*16")
    A("    v_bfe_u32 v6, v5, 2, 2")
    A("    v_lshl_add_u32 v7, v6, 6, v7             ; 4*gi*16")
    A("    v_and_b32 v6, 1, v5")
    A("    v_lshl_add_u32 v7, v6, 5, v7             ; 2*(fp&1)*16")
    A("    s_lshl_b32 s31, s28, 12                  ; kp*2*2048")
    A(f"    s_add_u32 s31, s31, {WS_WF}")
    A("    s_mov_b32 s34, 0x05040100")
    A("    s_mov_b32 s35, 0x07060302")
    get_epoch(A, 16)
    for half in range(2):
        A(f"    s_waitcnt vmcnt({8 if half == 0 else 2})")
        b = 8 + 8 * half; d = 24 + 8 * half
        for i in range(4):
            A(f"    v_perm_b32 v{d+i}, v{b+1+2*i}, v{b+2*i}, s34")
            A(f"    v_perm_b32 v{d+4+i}, v{b+1+2*i}, v{b+2*i}, s35")
        A(f"    buffer_store_dwordx4 v[{d}:{d+3}], v7, s[{S_WS}:{S_WS+3}], s31 offen offset:{2048*half} sc1")
        A(f"    buffer_store_dwordx4 v[{d+4}:{d+7}], v7, s[{S_WS}:{S_WS+3}], s31 offen offset:{2048*half+16} sc1")
    publish_flag(A)
    A("    s_branch ROLE_DONE")

    A.label("ROLE_NW")
    A("    s_cmp_ge_u32 s2, 112")
    A("    s_cbranch_scc1 ROLE_X")
    A(f"    s_cmp_ge_u32 s{S_W}, 2")
    A("    s_cbranch_scc1 ROLE_VSKIP")
    srd(A, 72, 62, 524288)
    srd(A, 76, 64, 2048)
    srd(A, 80, 66, 2048)
    A("    s_sub_u32 s30, s2, 80")
    A("    s_lshl_b32 s30, s30, 1")
    A(f"    s_add_u32 s30, s30, s{S_W}")
    A("    s_lshr_b32 s31, s30, 4                   ; h")
    A("    v_and_b32 v1, 63, v0")
    A("    v_and_b32 v3, 15, v1                     ; i / c")
    A("    v_lshrrev_b32 v5, 4, v1                  ; g")
    A("    v_lshlrev_b32 v4, 9, v3")
    A("    v_lshl_add_u32 v4, v5, 4, v4             ; i*512 + g*16")
    A("    s_lshl_b32 s32, s30, 13")
    A("    v_lshlrev_b32 v7, 4, v5                  ; g*16")
    A("    s_lshl_b32 s33, s31, 9                   ; h*512")
    for kk in range(8):
        A(f"    buffer_load_dwordx4 v[{8+4*kk}:{11+4*kk}], v4, s[72:75], s32 offen offset:{64*kk}")
    A("    v_and_b32 v6, 1, v3")
    A("    v_cmp_eq_u32 vcc, 0, v6")
    A("    s_mov_b64 s[34:35], exec")
    A("    s_mov_b64 exec, vcc")
    for kk in range(8):
        A(f"    buffer_load_dwordx4 v[{40+4*kk}:{43+4*kk}], v7, s[76:79], s33 offen offset:{64*kk}")
    A("    s_andn2_b64 exec, s[34:35], vcc")
    for kk in range(8):
        A(f"    buffer_load_dwordx4 v[{40+4*kk}:{43+4*kk}], v7, s[80:83], s33 offen offset:{64*kk}")
    A("    s_mov_b64 exec, s[34:35]")
    A("    s_lshl_b32 s32, s30, 5")
    A(f"    s_add_u32 s32, s32, {WS_V}")
    A("    v_lshlrev_b32 v7, 3, v5")
    A("    v_lshl_add_u32 v7, v6, 11, v7")
    A(f"    s_mov_b32 s33, {LOG2E}")
    get_epoch(A, 24)
    A("    v_cmp_gt_u32 vcc, 2, v3")
    A("    s_waitcnt vmcnt(0)")
    for kk in range(8):
        c = "0" if kk == 0 else "v[72:75]"
        A(f"    v_mfma_f32_16x16x32_bf16 v[72:75], v[{8+4*kk}:{11+4*kk}], v[{40+4*kk}:{43+4*kk}], {c}")
    A("    s_nop 7")
    for r in range(4):
        A(f"    v_mul_f32 v{72+r}, s33, v{72+r}")
    A("    v_cvt_pk_bf16_f32 v76, v72, v73")
    A("    v_cvt_pk_bf16_f32 v77, v74, v75")
    A("    s_and_saveexec_b64 s[34:35], vcc")
    A(f"    buffer_store_dwordx2 v[76:77], v7, s[{S_WS}:{S_WS+3}], s32 offen sc1")
    A("    s_mov_b64 exec, s[34:35]")
    A("    s_branch ROLE_VPUB")
    A.label("ROLE_VSKIP")
    get_epoch(A, 0)
    A.label("ROLE_VPUB")
    publish_flag(A)
    A("    s_branch ROLE_DONE")

    A.label("ROLE_X")
    if opt.xr:
        A("    s_sub_u32 s28, s2, 112")
        A("    s_lshr_b32 s28, s28, 3                   ; j among the workgroups of this XCD (id % 8)")
        A("    s_min_u32 s28, s28, 16")
        A("    s_lshl_b32 s28, s28, 9")
        A("    v_add_u32 v1, s28, v0")
        A("    v_lshlrev_b32 v1, 7, v1")
        for r in range(opt.xr):
            A(f"    s_mov_b32 s28, {opt.xoff + r*17*512*128}")
            A(f"    buffer_load_dword v255, v1, s[{S_X}:{S_X+3}], s28 offen")
    get_epoch(A, opt.xr)
    A.label("ROLE_DONE")
    l = uid("CT")
    A(f"    s_cmp_lg_u32 s{S_W}, 0")
    A(f"    s_cbranch_scc1 {l}")
    srd(A, 72, 68, 256)
    A(f"    v_mov_b32 v3, 1")
    A(f"    v_mov_b32 v4, 0")
    A(f"    s_mov_b64 exec, 1")
    A(f"    buffer_atomic_add v3, v4, s[72:75], 0 offen")
    A(f"    s_mov_b64 exec, -1")
    A.label(l)


def gen_main(A):
    K = "gather_scatter__graph_attention_gat__graph_kernel"
    VC = 36; VG = 37; VL = 38
    A(f".globl {K}\n.p2align 8\n.type {K},@function\n{K}:")
    A(f"    s_cmp_ge_u32 s2, {NT}")
    A("    s_cbranch_scc1 MAIN_END")
    stamp(A, 0)
    A("    s_load_dwordx2 s[60:61], s[0:1], 64      ; ws")
    A("    s_load_dwordx2 s[52:53], s[0:1], 0       ; x")
    A("    s_load_dwordx2 s[54:55], s[0:1], 48      ; out")
    A("    s_load_dwordx4 s[56:59], s[0:1], 8")
    A("    s_load_dwordx2 s[62:63], s[0:1], 24      ; w")
    A("    s_load_dwordx4 s[64:67], s[0:1], 32")
    A("    s_load_dwordx2 s[68:69], s[0:1], 56")
    A(f"    v_lshrrev_b32 v1, 6, v0")
    A(f"    v_lshlrev_b32 v20, 4, v0                 ; tid*16")
    A(f"    v_readfirstlane_b32 s{S_W}, v1")
    A(f"    v_mov_b32 v1, 0")
    A(f"    s_mov_b32 s{S_T0}, {WS_EPOCH}")
    A("    s_waitcnt lgkmcnt(0)")
    srd(A, S_WS, 60, ws_bytes())
    A(f"    buffer_load_dword v2, v1, s[{S_WS}:{S_WS+3}], s{S_T0} offen sc1")
    srd(A, S_DST, 58, E * 4)
    srd(A, S_SRC, 56, E * 4)
    srd(A, S_X, 52, N * 512)
    srd(A, S_OUT, 54, N * 512)
    if opt.stamps:
        A(f"    s_mov_b32 s100, s{S_W}")
    gen_roles(A)
    stamp(A, 1)
    A(f"    v_and_b32 v{VL}, 63, v0")
    A(f"    v_and_b32 v{VC}, 15, v{VL}")
    A(f"    v_lshrrev_b32 v{VG}, 4, v{VL}")
    A(f"    v_lshlrev_b32 v20, 4, v0                 ; tid*16")
    A(f"    v_lshlrev_b32 v{V_WOFF}, 4, v{VL}        ; lane*16")
    A(f"    s_mul_i32 s{S_REG}, s{S_W}, {REGSZ}")
    A(f"    s_lshl_b32 s{S_WF}, s{S_W}, 16")
    A(f"    s_add_u32 s{S_WF}, s{S_WF}, {WS_WF}")
    A(f"    v_and_b32 v{V_T1}, 31, v{VL}")
    A(f"    v_lshlrev_b32 v{V_T1}, 4, v{V_T1}")
    A(f"    v_lshrrev_b32 v{V_T2}, 5, v{VL}")
    A(f"    v_lshlrev_b32 v{V_H4}, 2, v{V_T2}")
    A(f"    v_lshlrev_b32 v21, 9, v{V_T2}            ; hi*512")
    A(f"    v_cmp_eq_u32 vcc, 0, v{V_T2}")
    A(f"    v_lshlrev_b32 v{V_T2}, 5, v{V_T2}")
    A(f"    v_xor_b32 v{V_DMAC}, v{V_T1}, v{V_T2}    ; DMAC = ((l&31)*16) ^ ((l>>5)*32)")
    A(f"    v_add_u32 v21, v21, v{V_DMAC}")
    A(f"    v_mov_b32 v22, 0x7ffffe00")
    A(f"    v_cndmask_b32 v22, v22, v{V_DMAC}, vcc")
    A(f"    s_mul_i32 s{S_T0}, s2, {TILE*512}")
    A(f"    s_lshl_b32 s{S_T1}, s{S_W}, 11            ; 4w rows")
    A(f"    s_add_u32 s{S_T1}, s{S_T1}, s{S_T0}")
    A(f"    s_add_u32 m0, s{S_REG}, {UNIT}")
    A(f"    s_add_u32 s{S_T2}, s{S_T1}, 1024")
    A(f"    buffer_load_dwordx4 v21, s[{S_X}:{S_X+3}], s{S_T1} offen lds")
    A(f"    s_add_u32 m0, s{S_REG}, {UNIT+PAIR}")
    A(f"    s_lshl_b32 s{S_T1}, s{S_W}, 9")
    A(f"    buffer_load_dwordx4 v21, s[{S_X}:{S_X+3}], s{S_T2} offen lds")
    A(f"    s_add_u32 m0, s{S_REG}, {UNIT+2*PAIR}")
    A(f"    s_add_u32 s{S_T1}, s{S_T1}, s{S_T0}")
    A(f"    s_add_u32 s{S_T1}, s{S_T1}, {32*512}")
    A(f"    buffer_load_dwordx4 v22, s[{S_X}:{S_X+3}], s{S_T1} offen lds")
    A(f"    v_mov_b32 v28, {hex(SENT_LIST)}")
    A(f"    v_mov_b32 v29, v28\n    v_mov_b32 v30, v28\n    v_mov_b32 v31, v28")
    A(f"    v_add_u32 v22, {LISTS}, v20")
    A(f"    v_cmp_gt_u32 vcc, 352, v0")
    A(f"    v_mov_b32 v32, 0")
    A(f"    v_lshlrev_b32 v23, 2, v0")
    A(f"    v_add_u32 v23, {CNT}, v23")
    A(f"    s_and_saveexec_b64 s[{S_EX}:{S_EX+1}], vcc")
    A(f"    s_cbranch_execz MAIN_NOCNT")
    A(f"    ds_write_b128 v22, v[28:31]")
    A(f"    v_cmp_gt_u32 vcc, 32, v0")
    A(f"    s_and_b64 exec, exec, vcc")
    A(f"    s_cbranch_execz MAIN_NOCNT")
    A(f"    ds_write_b32 v23, v32")
    A.label("MAIN_NOCNT")
    A(f"    s_mov_b64 exec, s[{S_EX}:{S_EX+1}]")
    T1, T2, T3 = V_T1, V_T2, V_T3
    A(f"    v_lshlrev_b32 v{V_G16}, 4, v{VG}")
    A(f"    v_lshrrev_b32 v{T1}, 1, v{VC}")
    A(f"    v_mul_u32_u24 v{V_SADDR}, {PAIR}, v{T1}")
    A(f"    v_and_b32 v{T1}, 1, v{VC}")
    A(f"    v_lshl_add_u32 v{V_SADDR}, v{T1}, 9, v{V_SADDR}")
    A(f"    v_lshrrev_b32 v{T2}, 1, v{VG}")
    A(f"    v_xor_b32 v{T1}, v{T1}, v{T2}")
    A(f"    v_lshl_add_u32 v{V_SADDR}, v{T1}, 5, v{V_SADDR}")
    A(f"    v_and_b32 v{T1}, 1, v{VG}")
    A(f"    v_lshl_add_u32 v{V_SADDR}, v{T1}, 4, v{V_SADDR}")
    A(f"    v_add_u32 v{V_SADDR}, s{S_REG}, v{V_SADDR}")
    A(f"    v_lshrrev_b32 v{T1}, 2, v{VC}")
    A(f"    v_lshl_add_u32 v{T1}, v{VG}, 2, v{T1}      ; row")
    A(f"    v_lshrrev_b32 v{T2}, 1, v{T1}")
    A(f"    v_mul_u32_u24 v{V_TE}, {PAIR}, v{T2}")
    A(f"    v_and_b32 v{T1}, 1, v{T1}                  ; hi")
    A(f"    v_lshl_add_u32 v{V_TE}, v{T1}, 9, v{V_TE}")
    A(f"    v_and_b32 v{T2}, 3, v{VC}")
    A(f"    v_lshl_add_u32 v{V_TE}, v{T2}, 3, v{V_TE}")
    A(f"    v_add_u32 v{V_TE}, s{S_REG}, v{V_TE}")
    A(f"    v_lshlrev_b32 v{T1}, 5, v{T1}              ; 32*hi")
    A(f"    v_sub_u32 v{V_TO}, v{V_TE}, v{T1}")
    A(f"    v_add_u32 v{V_TE}, v{V_TE}, v{T1}")
    for i in range(4):
        A(f"    v_mov_b32 v{V_ONES+i}, 0x3f803f80")
    A(f"    s_mov_b32 s{S_HI}, 0xfffffe00")
    A(f"    s_mov_b32 s{S_C02}, 0x3e4ccccd")
    A(f"    s_mul_i32 s{S_ABASE}, s{S_W}, {LSZ}")
    A(f"    s_add_u32 s{S_ABASE}, s{S_ABASE}, {LISTS+192}")
    A(f"    s_mul_i32 s{S_T0}, s{S_W}, {RROW}")
    A(f"    s_add_u32 s{S_T0}, s{S_T0}, {AGG1}")
    A(f"    v_lshrrev_b32 v{V_FE}, 2, v{VC}")
    A(f"    v_lshlrev_b32 v{V_FE}, 7, v{V_FE}          ; 128*j")
    A(f"    v_add_u32 v{V_FE}, s{S_T0}, v{V_FE}")
    fin_addr(A, VC, VG)
    A(f"    v_and_b32 v{T1}, 3, v{VC}")
    A(f"    v_mul_u32_u24 v39, 576, v{T1}")
    A(f"    v_lshl_add_u32 v39, v{VG}, 4, v39")
    A(f"    v_add_u32 v39, {VLDS}, v39")
    A(f"    v_lshrrev_b32 v{T1}, 5, v{VL}")
    A(f"    s_lshl_b32 s{S_T0}, s{S_W}, 1")
    A(f"    v_add_u32 v{T1}, s{S_T0}, v{T1}")
    A(f"    v_mul_u32_u24 v52, 576, v{T1}")
    A(f"    v_and_b32 v{T1}, 31, v{VL}")
    A(f"    v_lshl_add_u32 v52, v{T1}, 4, v52")
    A(f"    v_add_u32 v52, {VLDS}, v52")
    A(f"    v_lshrrev_b32 v{T1}, 2, v{VC}")
    A(f"    s_lshl_b32 s{S_T0}, s{S_W}, 2")
    A(f"    v_add_u32 v{V_TGTA}, s{S_T0}, v{T1}")
    A(f"    s_add_u32 s{S_T0}, s{S_W}, 32")
    A(f"    v_mov_b32 v{V_TGT}, s{S_T0}")
    A(f"    s_lshl_b32 s{S_T0}, s2, 13")
    A(f"    s_mov_b32 s{S_T1}, 0")
    A(f"    s_lshr_b32 s{S_T2}, s{S_TAG}, 23")
    A.label("MAIN_SPOLL")
    A(f"    buffer_load_dwordx4 v[16:19], v20, s[{S_WS}:{S_WS+3}], s{S_T0} offen sc1")
    A(f"    s_add_u32 s{S_T1}, s{S_T1}, 1")
    A("    s_waitcnt vmcnt(0)")
    for i in range(4):
        A(f"    v_lshrrev_b32 v{28+i}, 23, v{16+i}")
    A(f"    v_cmp_ne_u32 s[62:63], s{S_T2}, v28")
    A(f"    v_cmp_ne_u32 s[64:65], s{S_T2}, v29")
    A(f"    v_cmp_ne_u32 s[66:67], s{S_T2}, v30")
    A(f"    v_cmp_ne_u32 vcc, s{S_T2}, v31")
    A(f"    s_or_b64 s[62:63], s[62:63], s[64:65]")
    A(f"    s_or_b64 vcc, vcc, s[66:67]")
    A(f"    s_cmp_gt_u32 s{S_T1}, {SPIN}")
    A("    s_cbranch_scc1 MAIN_SGOT")
    A(f"    s_or_b64 vcc, vcc, s[62:63]")
    A("    s_cbranch_vccnz MAIN_SPOLL")
    A.label("MAIN_SGOT")
    A(f"    s_mov_b32 s{S_T0}, 0x007fffff")
    for i in range(4):
        A(f"    v_and_b32 v{16+i}, s{S_T0}, v{16+i}")
    A(f"    s_cmp_lg_u32 s{S_W}, 0")
    A("    s_cbranch_scc1 MAIN_FW")
    A(f"    v_lshlrev_b32 v23, 2, v{VL}")
    A(f"    v_mov_b32 v24, 48")
    A(f"    v_cmp_gt_u32 s[62:63], v24, v{VL}")
    A(f"    s_mov_b32 s{S_T0}, {WS_FLAGS}")
    A(f"    s_mov_b32 s{S_T1}, 0")
    A.label("MAIN_FPOLL")
    A(f"    buffer_load_dword v24, v23, s[{S_WS}:{S_WS+3}], s{S_T0} offen sc1")
    A(f"    s_add_u32 s{S_T1}, s{S_T1}, 1")
    A("    s_waitcnt vmcnt(0)")
    A(f"    v_cmp_ne_u32 vcc, s{S_EN}, v24")
    A(f"    s_cmp_gt_u32 s{S_T1}, {SPIN}")
    A("    s_cbranch_scc1 MAIN_FW")
    A("    s_and_b64 vcc, vcc, s[62:63]")
    A("    s_cbranch_vccnz MAIN_FPOLL")
    A.label("MAIN_FW")
    A("    s_waitcnt lgkmcnt(0)")
    A("    s_barrier")
    A(f"    s_cmp_ge_u32 s{S_W}, 4")
    A("    s_cbranch_scc1 MAIN_NOV")
    A(f"    s_lshl_b32 s{S_T0}, s{S_W}, 10")
    A(f"    s_add_u32 s{S_T0}, s{S_T0}, {WS_V}")
    A(f"    buffer_load_dwordx4 v[48:51], v{V_WOFF}, s[{S_WS}:{S_WS+3}], s{S_T0} offen sc1")
    A.label("MAIN_NOV")
    stamp(A, 2)
    EN = 16
    NN = 20; WV = 24; RK = 28; BS = 32
    A(f"    s_mov_b64 s[62:63], 0")
    A(f"    s_mov_b32 s{S_T1}, 0x007ffffe")
    for i in range(4):
        A(f"    v_and_b32 v{NN+i}, 63, v{EN+i}")
        A(f"    v_cmp_eq_u32 vcc, s{S_T1}, v{EN+i}")
        A(f"    s_or_b64 s[62:63], s[62:63], vcc")
        A(f"    v_cmp_gt_u32 s[{64+2*i}:{65+2*i}], 40, v{NN+i}       ; valid")
        A(f"    v_cmp_le_u32 s[{72+2*i}:{73+2*i}], 32, v{NN+i}       ; group B")
        A(f"    v_lshrrev_b32 v{T1}, 2, v{NN+i}")
        A(f"    v_subrev_u32 v{T2}, 32, v{NN+i}")
        A(f"    v_subrev_u32 v{T3}, 24, v{NN+i}")
        A(f"    v_cndmask_b32 v{WV+i}, v{T1}, v{T2}, s[{72+2*i}:{73+2*i}]")
        A(f"    v_cndmask_b32 v{T1}, v{T1}, v{T3}, s[{72+2*i}:{73+2*i}]")
        A(f"    v_lshlrev_b32 v{BS+i}, 2, v{T1}")
        A(f"    v_add_u32 v{BS+i}, {CNT}, v{BS+i}")
    A(f"    v_mov_b32 v{V_TMP}, 1")
    for i in range(4):
        A(f"    s_mov_b64 exec, s[{64+2*i}:{65+2*i}]")
        A(f"    ds_add_rtn_u32 v{RK+i}, v{BS+i}, v{V_TMP}")
    A("    s_mov_b64 exec, -1")
    def v_reads():
        for kk in range(8):
            A(f"    ds_read_b128 v[{V_ACC+4*kk}:{V_ACC+4*kk+3}], v39 offset:{4*576+64*kk}")
        for kk in range(8):
            A(f"    ds_read_b128 v[{V_V+4*kk}:{V_V+4*kk+3}], v39 offset:{64*kk}")
    if not opt.vlate:
        v_reads()
    A(f"    s_mov_b32 s{S_T0}, {LSZ}")
    A(f"    v_mov_b32 v{T1}, {LISTS+192}")
    for i in range(4):
        A(f"    v_mad_u32_u24 v{BS+i}, v{WV+i}, s{S_T0}, v{T1}")
    for i in range(4):
        A(f"    s_waitcnt lgkmcnt({(3-i) if opt.vlate else min(15, 16+3-i)})")
        A(f"    v_lshlrev_b32 v{T1}, 2, v{RK+i}")
        A(f"    v_sub_u32 v{T2}, -4, v{T1}")
        A(f"    v_mov_b32 v{T3}, {CAPA}")
        A(f"    v_cndmask_b32 v{T1}, v{T1}, v{T2}, s[{72+2*i}:{73+2*i}]")
        A(f"    v_cndmask_b32 v{T3}, v{T3}, {CAPB}, s[{72+2*i}:{73+2*i}]")
        A(f"    v_add_u32 v{BS+i}, v{BS+i}, v{T1}")
        A(f"    v_cmp_lt_u32 vcc, v{RK+i}, v{T3}")
        A(f"    s_andn2_b64 s[80:81], s[{64+2*i}:{65+2*i}], vcc")
        A(f"    s_or_b64 s[62:63], s[62:63], s[80:81]")
        A(f"    s_and_b64 exec, s[{64+2*i}:{65+2*i}], vcc")
        A(f"    ds_write_b32 v{BS+i}, v{EN+i}")
        A(f"    s_mov_b64 exec, -1")
    A(f"    s_cmp_eq_u64 s[62:63], 0")
    A(f"    s_cbranch_scc1 MAIN_NOOVF")
    A(f"    v_mov_b32 v{T1}, {OVF}")
    A(f"    ds_write_b32 v{T1}, v{V_TMP}")
    A.label("MAIN_NOOVF")
    A(f"    s_cmp_ge_u32 s{S_W}, 4")
    A("    s_cbranch_scc1 MAIN_WB")
    A("    s_waitcnt vmcnt(0)")
    A(f"    ds_write_b128 v52, v[48:51]")
    A.label("MAIN_WB")
    A("    s_waitcnt lgkmcnt(0)")
    A("    s_barrier")
    stamp(A, 3)
    A(f"    s_lshl_b32 s{S_T0}, s{S_W}, 2")
    A(f"    s_add_u32 s{S_T0}, s{S_T0}, {CNT}")
    A(f"    v_mov_b32 v16, s{S_T0}")
    A(f"    v_mov_b32 v17, {OVF}")
    A(f"    ds_read_b32 v18, v16                     ; cntA")
    A(f"    ds_read_b32 v19, v16 offset:32           ; cntB")
    A(f"    ds_read_b32 v20, v17")
    A(f"    v_lshrrev_b32 v{T1}, 2, v{VC}")
    A(f"    v_cmp_eq_u32 s[{S_J1}:{S_J1+1}], 1, v{T1}")
    A(f"    v_cmp_eq_u32 s[{S_J2}:{S_J2+1}], 2, v{T1}")
    A(f"    v_cmp_eq_u32 s[{S_J3}:{S_J3+1}], 3, v{T1}")
    A("    s_waitcnt lgkmcnt(0)")
    A(f"    v_readfirstlane_b32 s{S_NA}, v18")
    A(f"    v_readfirstlane_b32 s{S_NB}, v19")
    A(f"    v_readfirstlane_b32 s{S_T0}, v20")
    A(f"    s_mov_b32 s{S_M0}, s{S_REG}")
    A(f"    s_mov_b32 s{S_DELTA}, {UNIT}")
    A(f"    s_mov_b32 s{S_P}, 0")
    A(f"    s_mov_b32 s{S_FIRST}, 1")
    A(f"    s_cmp_lg_u32 s{S_T0}, 0")
    A("    s_cbranch_scc1 MAIN_SLOW")
    A(f"    s_sub_u32 s{S_KA}, s{S_NA}, 1")
    A(f"    s_and_b32 s{S_KA}, s{S_KA}, 15")
    A(f"    s_lshr_b32 s{S_KA}, s{S_KA}, 1")
    A(f"    s_add_u32 s{S_KA}, s{S_KA}, 1")
    A(f"    s_sub_u32 s{S_KB}, s{S_NB}, 1")
    A(f"    s_and_b32 s{S_KB}, s{S_KB}, 15")
    A(f"    s_lshr_b32 s{S_KB}, s{S_KB}, 1")
    A(f"    s_add_u32 s{S_KB}, s{S_KB}, 1")
    A(f"    s_cmp_eq_u32 s{S_NA}, 0")
    A(f"    s_cselect_b32 s{S_KA}, 8, s{S_KA}")
    A(f"    s_add_u32 s{S_NA}, s{S_NA}, 15")
    A(f"    s_lshr_b32 s{S_NA}, s{S_NA}, 4")
    A(f"    s_add_u32 s{S_NB}, s{S_NB}, 15")
    A(f"    s_lshr_b32 s{S_NB}, s{S_NB}, 4")
    A(f"    s_add_u32 s{S_NU}, s{S_NA}, s{S_NB}")
    A(f"    s_lshl_b32 s{S_T0}, s{S_NB}, 6")
    A(f"    s_sub_u32 s{S_PTR}, s{S_ABASE}, s{S_T0}")
    def emit_t(A):
        for kk in range(8):
            A(f"    ds_read_b128 v[{V_SCR+4*kk}:{V_SCR+4*kk+3}], v{V_SADDR} offset:{UNIT+64*kk}")
        A(f"    v_lshlrev_b32 v{T2}, 2, v{VC}")
        A(f"    v_and_b32 v{T3}, 3, v{VC}")
        A(f"    v_add_u32 v{T3}, 16, v{T3}")
        A(f"    v_lshlrev_b32 v{T3}, 2, v{T3}              ; lane 16 + h")
        for kk in range(8):
            A(f"    s_waitcnt lgkmcnt({7-kk})")
            c = "0" if kk == 0 else f"v[{V_S}:{V_S+3}]"
            A(f"    v_mfma_f32_16x16x32_bf16 v[{V_S}:{V_S+3}], v[{V_SCR+4*kk}:{V_SCR+4*kk+3}], v[{V_ACC+4*kk}:{V_ACC+4*kk+3}], {c}")
        A("    s_nop 7")
        A(f"    v_cndmask_b32 v{V_TA}, v{V_S}, v{V_S+1}, s[{S_J1}:{S_J1+1}]")
        A(f"    v_cndmask_b32 v{V_TA}, v{V_TA}, v{V_S+2}, s[{S_J2}:{S_J2+1}]")
        A(f"    v_cndmask_b32 v{V_TA}, v{V_TA}, v{V_S+3}, s[{S_J3}:{S_J3+1}]")
        A(f"    ds_bpermute_b32 v{V_TQ}, v{T3}, v{V_S}")
        A(f"    ds_bpermute_b32 v{V_TA}, v{T2}, v{V_TA}")
        A("    s_waitcnt lgkmcnt(0)")
        for i in range(1, 4):
            A(f"    v_mov_b32 v{V_TQ+i}, v{V_TQ}")

    def zero_prep(A, buf):
        if opt.skip:
            for i in range(4):
                A(f"    v_mov_b32 v{V_S+i}, 0")
            A(f"    v_mbcnt_lo_u32_b32 v{V_T2}, -1, 0")
            A(f"    v_mbcnt_hi_u32_b32 v{V_T2}, -1, v{V_T2}")
            A(f"    v_lshlrev_b32 v{V_T2}, 4, v{V_T2}")
            A(f"    s_add_u32 s{S_T1}, s{S_REG}, {UNIT*buf}")
            A(f"    v_add_u32 v{V_T2}, s{S_T1}, v{V_T2}")

    if opt.prio == 2:
        A("    s_setprio 3")
    A(f"    s_mov_b32 s{S_K}, 0")
    A(f"    s_cmp_eq_u32 s{S_NU}, 0")
    A("    s_cbranch_scc1 MAIN_PRO_T")
    A(f"    v_add_u32 v{T1}, s{S_PTR}, v{V_H4}")
    dma_entry_reads(A, T1)
    zero_prep(A, 0)
    A(f"    s_mov_b32 s{S_T1}, 0")
    if opt.skip:
        unit_k(A, S_T1)
    A("    s_waitcnt lgkmcnt(0)")
    if opt.skip:
        A(f"    s_cmp_eq_u32 s{S_NB}, 0")
        A("    s_cbranch_scc1 MAIN_U0A")
        A(f"    s_mov_b32 s{S_K}, s{S_KB}")
        dma_partial(A, S_K, True, rev=True)
        A("    s_branch MAIN_PRO_T")
        A.label("MAIN_U0A")
        dma_partial(A, S_K, True)
    else:
        A(f"    s_mov_b32 s{S_K}, 8")
        for q in range(8):
            dma_one(A, q)
    A.label("MAIN_PRO_T")
    if opt.vlate:
        v_reads()
        A("    s_waitcnt lgkmcnt(0)")
    if opt.bar0 or opt.vlate:
        A("    s_barrier")
    emit_t(A)
    A(f"    s_mov_b32 s{S_K}, 0")
    A(f"    s_cmp_le_u32 s{S_NU}, 1")
    A("    s_cbranch_scc1 MAIN_PRO_DONE")
    A(f"    v_add_u32 v{T1}, s{S_PTR}, v{V_H4}")
    A(f"    v_add_u32 v{T1}, 64, v{T1}")
    dma_entry_reads(A, T1)
    zero_prep(A, 1)
    A(f"    s_add_u32 s{S_M0}, s{S_REG}, {UNIT}")
    A(f"    s_mov_b32 s{S_T1}, 1")
    if opt.skip:
        unit_k(A, S_T1)
    else:
        A(f"    s_mov_b32 s{S_K}, 8")
    A("    s_waitcnt lgkmcnt(0)")
    if opt.skip:
        dma_partial(A, S_K, True)
    else:
        for q in range(8):
            dma_one(A, q)
    A(f"    s_mov_b32 s{S_M0}, s{S_REG}")
    A.label("MAIN_PRO_DONE")
    stamp(A, 4)
    if opt.prio == 1:
        A(f"    s_setprio 1")
    for ks in range(opt.w3):
        w_load(A, ks, wslot(ks))
    WX = 2 * opt.w3
    A(f"    s_cmp_eq_u32 s{S_NU}, 0")
    A("    s_cbranch_scc1 MAIN_LOOP")
    wait_vm_dyn(A, S_K, WX, 0, 8)
    A("    s_waitcnt lgkmcnt(0)")
    s_prefetch(A)
    if opt.stamps and opt.ustamps:
        A("    s_memtime s[98:99]")
    A.label("MAIN_LOOP")
    A(f"    s_cmp_eq_u32 s{S_P}, s{S_NB}")
    A("    s_cbranch_scc1 MAIN_FINB")
    A.label("MAIN_LOOP2")
    A(f"    s_cmp_ge_u32 s{S_P}, s{S_NU}")
    A("    s_cbranch_scc1 MAIN_DONE")

    def dispatch(tag, agg, firsts, minleft, dest, par):
        for first in firsts:
            if len(firsts) > 1:
                if first == firsts[0]:
                    A(f"    s_cmp_eq_u32 s{S_FIRST}, 0")
                    A(f"    s_cbranch_scc0 {tag}_F1")
                else:
                    A.label(f"{tag}_F1")
            A(f"    s_cmp_ge_u32 s{S_T0}, 3")
            A(f"    s_cbranch_scc0 {tag}_{first}_R2")
            if opt.skip:
                A(f"    s_cmp_eq_u32 s{S_K}, 8")
                A(f"    s_cbranch_scc0 {tag}_{first}_PART")
            unit_tail(A, "full", True, agg, first, par)
            A(f"    s_branch {dest}")
            if opt.skip:
                A.label(f"{tag}_{first}_PART")
                unit_tail(A, "part", True, agg, first, par)
                A(f"    s_branch {dest}")
            A.label(f"{tag}_{first}_R2")
            if minleft <= 1:
                A(f"    s_cmp_eq_u32 s{S_T0}, 2")
                A(f"    s_cbranch_scc0 {tag}_{first}_R1")
            unit_tail(A, None, True, agg, first, par)
            A(f"    s_branch {dest}")
            if minleft <= 1:
                A.label(f"{tag}_{first}_R1")
                unit_tail(A, None, False, agg, first, par)
                A(f"    s_branch {dest}")

    def set_prio():
        if opt.prio == 2:
            l1 = uid("PR"); l2 = uid("PR"); le = uid("PR")
            A(f"    s_cmp_ge_u32 s{S_P}, {opt.pa}")
            A(f"    s_cbranch_scc1 {l1}")
            A("    s_setprio 3")
            A(f"    s_branch {le}")
            A.label(l1)
            A(f"    s_cmp_ge_u32 s{S_P}, {opt.pb}")
            A(f"    s_cbranch_scc1 {l2}")
            A("    s_setprio 2")
            A(f"    s_branch {le}")
            A.label(l2)
            A("    s_setprio 1")
            A.label(le)

    def k_next():
        set_prio()
        if opt.skip:
            A(f"    s_add_u32 s{S_T1}, s{S_P}, 2")
            unit_k(A, S_T1)

    pstamp(A)
    ustamp(A, opt.up, 0); ustamp(A, opt.up + 1, 4)
    A(f"    s_add_u32 s{S_P2}, s{S_PTR}, 128")
    k_next()
    unit_front(A, 0)
    ustamp(A, opt.up, 1); ustamp(A, opt.up + 1, 5)
    A(f"    s_sub_u32 s{S_T0}, s{S_NU}, s{S_P}")
    A(f"    s_add_u32 s{S_T1}, s{S_P}, 1")
    A(f"    s_cmp_eq_u32 s{S_T1}, s{S_NB}")
    A("    s_cbranch_scc1 TL_LAST")
    A(f"    s_cmp_eq_u32 s{S_T1}, s{S_NU}")
    A("    s_cbranch_scc1 TL_LAST")
    dispatch("TE", None, [0], 2, "MAIN_ODD", 0)
    A.label("TL_LAST")
    dispatch("TL", "k16", [0, 1], 1, "MAIN_NEXT", 0)
    A.label("MAIN_ODD")
    pstamp(A)
    ustamp(A, opt.up + 1, 2); ustamp(A, opt.up + 2, 6)
    ustamp(A, opt.up, 0); ustamp(A, opt.up + 1, 4)
    A(f"    s_add_u32 s{S_P2}, s{S_PTR}, 128")
    k_next()
    unit_front(A, 1)
    ustamp(A, opt.up, 1); ustamp(A, opt.up + 1, 5)
    A(f"    s_sub_u32 s{S_T0}, s{S_NU}, s{S_P}")
    dispatch("TO", "k32", [0, 1], 1, "MAIN_NEXT", 1)
    A.label("MAIN_NEXT")
    ustamp(A, opt.up + 1, 2); ustamp(A, opt.up + 2, 6)
    A("    s_branch MAIN_LOOP")

    A.label("MAIN_FINB")
    fstamp(A, 0)
    A("    s_nop 3")
    emit_finb(A)
    A("    s_branch MAIN_LOOP2")

    A.label("MAIN_DONE")
    if opt.prio:
        A("    s_setprio 0")
    stamp(A, 5)
    if opt.stamps and opt.pstamps:
        A("    s_memtime s[98:99]")
    A(f"    s_cmp_lg_u32 s{S_NA}, 0")
    A("    s_cbranch_scc1 MAIN_DONE2")
    zero_acc(A)
    A.label("MAIN_DONE2")
    VC2 = V_T2; VG2 = V_T3
    lane_cg(A, V_T1, VC2, VG2)
    A(f"    v_lshrrev_b32 v{V_TMP}, 2, v{VC2}                 ; w'")
    A(f"    v_mul_u32_u24 v1, {REGSZ}, v{V_TMP}")
    A(f"    v_and_b32 v{V_TMP}, 1, v{V_TMP}")
    A(f"    v_lshl_add_u32 v1, v{V_TMP}, 7, v1")
    A(f"    v_and_b32 v{V_TMP}, 3, v{VC2}")
    A(f"    v_mul_u32_u24 v{V_TMP}, {RROW}, v{V_TMP}")
    A(f"    v_add_u32 v1, v1, v{V_TMP}")
    A(f"    v_and_b32 v{V_TMP}, 7, v{VC2}")
    A(f"    v_mul_u32_u24 v5, {RROW}, v{V_TMP}")
    A(f"    v_add_u32 v5, {AGG1}, v5")
    A(f"    v_lshlrev_b32 v{V_TMP}, 4, v{VG2}                 ; g*16")
    A(f"    v_xor_b32 v{V_T1}, 16, v{V_TMP}                   ; (g^1)*16")
    A(f"    v_add_u32 v2, v1, v{V_T1}")
    A(f"    v_add_u32 v1, v1, v{V_TMP}")
    A(f"    v_add_u32 v3, {4*REGSZ}, v1")
    A(f"    v_add_u32 v4, {4*REGSZ}, v2")
    A(f"    v_add_u32 v6, v5, v{V_T1}")
    A(f"    v_add_u32 v5, v5, v{V_TMP}")
    A(f"    s_mul_i32 s{S_T0}, s2, {TILE*512}")
    A(f"    s_lshl_b32 s{S_T1}, s{S_W}, 6")
    A(f"    s_add_u32 s{S_T0}, s{S_T0}, s{S_T1}")
    A(f"    v_lshlrev_b32 v8, 9, v{VC2}")
    A(f"    v_lshl_add_u32 v8, v{VG2}, 4, v8")
    A(f"    v_add_u32 v8, s{S_T0}, v8")
    A(f"    v_add_u32 v9, {16*512}, v8")
    A(f"    v_add_u32 v10, {32*512}, v8")
    A(f"    v_mov_b32 v{V_TMP}, 0x7ffffff0")
    A(f"    v_cmp_gt_u32 vcc, 8, v{VC2}")
    A(f"    v_mov_b32 v7, v{V_WOFF}")
    A(f"    s_nop 0")
    A(f"    s_mov_b64 s[{S_EX}:{S_EX+1}], vcc")
    A(f"    v_cndmask_b32 v10, v{V_TMP}, v10, vcc")
    NPRE = opt.wpre
    W3 = opt.w3
    def pre(u):
        for k in range((NPRE * u) // 8, (NPRE * (u + 1)) // 8):
            w_load(A, W3 + k, wslot(W3 + k), 7)
    finalize(A, 12, after_pair=pre)
    A("    s_waitcnt lgkmcnt(0)")
    A("    s_barrier")
    stamp(A, 6)
    NB = opt.bring
    BR = V_ACC
    def b_reads(ks, zero2=False):
        h = ks >> 3; u = ks & 7; h0 = h & 1; h1 = h >> 1
        imm = h * 512 + ((u ^ h1) * 64)
        st = BR + 12 * (ks % NB)
        for T in range(3):
            if T == 2 and opt.zero2:
                A(f"    s_mov_b64 exec, s[{S_EX}:{S_EX+1}]")
            A(f"    ds_read_b128 v[{st+4*T}:{st+4*T+3}], v{1+2*T+h0} offset:{imm}")
            if T == 2 and opt.zero2:
                A(f"    s_mov_b64 exec, -1")
    if opt.zero2:
        for st_ in range(NB):
            for i in range(4):
                A(f"    v_mov_b32 v{BR+12*st_+8+i}, 0")
    for ks in range(NB - 1):
        b_reads(ks)
    q = [("w", k) for k in range(W3 + NPRE) for _ in range(2)]
    def wait_for(tag):
        idx = max(i for i, t in enumerate(q) if t == tag)
        return len(q) - 1 - idx
    nxt_w = W3 + NPRE
    nrem = 32 - nxt_w
    sched = {}
    for j in range(nrem):
        k2 = nxt_w + j
        st_ = max((j * opt.wlast) // max(nrem - 1, 1), k2 - 16)
        st_ = min(st_, k2 - opt.wmin)
        sched.setdefault(st_, []).append(k2)
    if opt.gprio:
        l = uid("GP")
        A(f"    s_cmp_lt_u32 s{S_W}, 4")
        A(f"    s_cbranch_scc1 {l}")
        A("    s_setprio 1")
        A.label(l)
    for ks in range(32):
        if opt.gprio and ks == opt.gpa:
            l = uid("GP")
            A(f"    s_cmp_lt_u32 s{S_W}, 4")
            A(f"    s_cbranch_scc0 {l}")
            A("    s_setprio 1")
            A.label(l)
        if opt.gprio and ks == opt.gpb:
            l = uid("GP")
            A(f"    s_cmp_lt_u32 s{S_W}, 4")
            A(f"    s_cbranch_scc1 {l}")
            A("    s_setprio 0")
            A.label(l)
        if ks % 4 == 0:
            gstamp(A, ks // 4)
        if ks + NB - 1 < 32:
            b_reads(ks + NB - 1, zero2=opt.zero2)
        lg = 3 * min(NB - 1, 31 - ks)
        A(f"    s_waitcnt vmcnt({min(wait_for(('w', ks)), 63)}) lgkmcnt({lg})")
        st = BR + 12 * (ks % NB)
        wb = wslot(ks)
        for T in range(3):
            for t in range(2):
                a = V_ACC2 + 4 * (2 * T + t)
                c = "0" if ks == 0 else f"v[{a}:{a+3}]"
                A(f"    v_mfma_f32_16x16x32_bf16 v[{a}:{a+3}], v[{wb+4*t}:{wb+4*t+3}], v[{st+4*T}:{st+4*T+3}], {c}")
        for k2 in sched.get(ks, []):
            assert k2 - 16 <= ks < k2
            assert k2 == nxt_w
            w_load(A, k2, wslot(k2), 7)
            q.append(("w", k2)); q.append(("w", k2))
            nxt_w += 1
    assert nxt_w == 32
    stamp(A, 7)
    gstamp(A, 8)
    A("    s_nop 7")
    for T in range(3):
        a0 = V_ACC2 + 4 * (2 * T); a1 = a0 + 4
        st = 12 + 4 * T
        A(f"    v_cvt_pk_bf16_f32 v{st}, v{a0}, v{a0+1}")
        A(f"    v_cvt_pk_bf16_f32 v{st+1}, v{a0+2}, v{a0+3}")
        A(f"    v_cvt_pk_bf16_f32 v{st+2}, v{a1}, v{a1+1}")
        A(f"    v_cvt_pk_bf16_f32 v{st+3}, v{a1+2}, v{a1+3}")
        A(f"    buffer_store_dwordx4 v[{st}:{st+3}], v{8+T}, s[{S_OUT}:{S_OUT+3}], 0 offen")
    A(f"    s_cmp_lg_u32 s2, 0")
    A(f"    s_cbranch_scc1 MAIN_NOEP")
    A(f"    s_cmp_lg_u32 s{S_W}, 0")
    A(f"    s_cbranch_scc1 MAIN_NOEP")
    A("    s_load_dwordx2 s[68:69], s[0:1], 56")
    A("    s_waitcnt lgkmcnt(0)")
    srd(A, 72, 68, 256)
    A(f"    v_mov_b32 v1, 0")
    A(f"    s_mov_b32 s{S_T1}, 0")
    A.label("MAIN_EPOLL")
    A(f"    buffer_load_dword v2, v1, s[72:75], 0 offen sc1")
    A(f"    s_add_u32 s{S_T1}, s{S_T1}, 1")
    A("    s_waitcnt vmcnt(0)")
    A(f"    v_readfirstlane_b32 s{S_T0}, v2")
    A(f"    s_cmp_gt_u32 s{S_T1}, {SPIN}")
    A("    s_cbranch_scc1 MAIN_EPW")
    A(f"    s_cmp_lt_u32 s{S_T0}, {NT}")
    A("    s_cbranch_scc1 MAIN_EPOLL")
    A.label("MAIN_EPW")
    A(f"    v_mov_b32 v2, s{S_EN}")
    A(f"    s_mov_b32 s{S_T0}, {WS_EPOCH}")
    A(f"    s_mov_b64 exec, 1")
    A(f"    buffer_store_dword v2, v1, s[{S_WS}:{S_WS+3}], s{S_T0} offen sc1")
    A(f"    s_mov_b64 exec, -1")
    A.label("MAIN_NOEP")
    if opt.stamps:
        A("    s_waitcnt vmcnt(0)")
    stamp(A, 8)
    stamp_flush(A, 60, 0)
    A("    s_endpgm")

    A.label("MAIN_SLOW")
    if opt.vlate:
        v_reads()
        A("    s_waitcnt lgkmcnt(0)")
    if opt.bar0 or opt.vlate:
        A("    s_barrier")
    A("    s_waitcnt vmcnt(0)")
    emit_t(A)
    for ks in range(opt.w3):
        w_load(A, ks, wslot(ks))
    gen_slow(A)
    A.label("MAIN_END")
    A("    s_endpgm")


def gen_slow(A):
    S_GRP = 62; S_POS = 63; S_CNT = 64; S_LO = 65; S_HIB = 66; S_BASE = 67
    A("    s_waitcnt vmcnt(0)")
    zero_acc(A)
    A(f"    s_mul_i32 s{S_BASE}, s2, {TILE}")
    A(f"    s_mov_b32 s{S_GRP}, 0")
    A(f"    s_mov_b32 s{S_NB}, 1")
    A(f"    s_mov_b32 s{S_NA}, 1")
    A.label("SLOW_GROUP")
    A(f"    s_add_u32 s{S_LO}, s{S_W}, 32")
    A(f"    s_add_u32 s{S_HIB}, s{S_LO}, 1")
    A(f"    s_cmp_eq_u32 s{S_GRP}, 0")
    A("    s_cbranch_scc1 SLOW_RANGE")
    A(f"    s_lshl_b32 s{S_LO}, s{S_W}, 2")
    A(f"    s_add_u32 s{S_HIB}, s{S_LO}, 4")
    A.label("SLOW_RANGE")
    A(f"    s_mov_b32 s{S_POS}, 0")
    A.label("SLOW_REFILL")
    L4 = V_T1; X1 = V_T2; X2 = V_T3; X3 = V_TMP
    A(f"    v_mbcnt_lo_u32_b32 v{L4}, -1, 0")
    A(f"    v_mbcnt_hi_u32_b32 v{L4}, -1, v{L4}")
    A(f"    v_lshlrev_b32 v{L4}, 2, v{L4}")
    A(f"    v_mov_b32 v{X1}, {hex(SENT_LIST)}")
    A(f"    v_add_u32 v{X2}, s{S_ABASE}, v{L4}")
    A(f"    ds_write_b32 v{X2}, v{X1}")
    A(f"    ds_write_b32 v{X2}, v{X1} offset:256")
    A(f"    s_mov_b32 s{S_CNT}, 0")
    A.label("SLOW_SCAN")
    A(f"    s_cmp_ge_u32 s{S_POS}, {E*4}")
    A("    s_cbranch_scc1 SLOW_FLUSH")
    A(f"    s_cmp_gt_u32 s{S_CNT}, 64")
    A("    s_cbranch_scc1 SLOW_FLUSH")
    A(f"    buffer_load_dword v{X1}, v{L4}, s[{S_DST}:{S_DST+3}], s{S_POS} offen")
    A(f"    buffer_load_dword v{X2}, v{L4}, s[{S_SRC}:{S_SRC+3}], s{S_POS} offen")
    A(f"    s_add_u32 s{S_POS}, s{S_POS}, 256")
    A("    s_waitcnt vmcnt(0)")
    A(f"    v_subrev_u32 v{X1}, s{S_BASE}, v{X1}")
    A(f"    v_cmp_le_u32 s[68:69], s{S_LO}, v{X1}")
    A(f"    v_cmp_gt_u32 vcc, s{S_HIB}, v{X1}")
    A(f"    s_and_b64 vcc, vcc, s[68:69]")
    A(f"    v_lshl_or_b32 v{X2}, v{X2}, 9, v{X1}")
    A(f"    s_nop 0")
    A(f"    v_mbcnt_lo_u32_b32 v{X3}, vcc_lo, 0")
    A(f"    v_mbcnt_hi_u32_b32 v{X3}, vcc_hi, v{X3}")
    A(f"    v_add_u32 v{X3}, s{S_CNT}, v{X3}")
    A(f"    v_lshlrev_b32 v{X3}, 2, v{X3}")
    A(f"    v_add_u32 v{X3}, s{S_ABASE}, v{X3}")
    A(f"    s_bcnt1_i32_b64 s{S_T0}, vcc")
    A(f"    s_add_u32 s{S_CNT}, s{S_CNT}, s{S_T0}")
    A(f"    s_and_saveexec_b64 s[{S_EX}:{S_EX+1}], vcc")
    A(f"    ds_write_b32 v{X3}, v{X2}")
    A(f"    s_mov_b64 exec, s[{S_EX}:{S_EX+1}]")
    A("    s_branch SLOW_SCAN")
    A.label("SLOW_FLUSH")
    A(f"    s_add_u32 s{S_NU}, s{S_CNT}, 15")
    A(f"    s_lshr_b32 s{S_NU}, s{S_NU}, 4")
    A(f"    s_mov_b32 s{S_P}, 0")
    A(f"    s_mov_b32 s{S_PTR}, s{S_ABASE}")
    A("    s_waitcnt lgkmcnt(0)")
    A.label("SLOW_UNIT")
    A(f"    s_cmp_ge_u32 s{S_P}, s{S_NU}")
    A("    s_cbranch_scc1 SLOW_UNITS_DONE")
    A(f"    v_add_u32 v{V_T1}, s{S_PTR}, v{V_H4}")
    dma_entry_reads(A, V_T1)
    A("    s_waitcnt lgkmcnt(0)")
    for q in range(8):
        dma_one(A, q)
    A(f"    s_mov_b32 s{S_P2}, s{S_PTR}")
    A("    s_waitcnt vmcnt(0)")
    s_prefetch(A)
    unit_front(A, 0)
    unit_finish_plain(A, 0)
    den_mfma(A)
    for ft in range(16):
        agg_mfma(A, ft)
    A(f"    s_add_u32 s{S_P}, s{S_P}, 1")
    A(f"    s_add_u32 s{S_PTR}, s{S_PTR}, 64")
    A("    s_branch SLOW_UNIT")
    A.label("SLOW_UNITS_DONE")
    A(f"    s_cmp_lt_u32 s{S_POS}, {E*4}")
    A("    s_cbranch_scc1 SLOW_REFILL")
    A(f"    s_cmp_eq_u32 s{S_GRP}, 1")
    A("    s_cbranch_scc1 MAIN_DONE")
    A("    s_nop 7")
    emit_finb(A, after_loop=False)
    zero_acc(A)
    A(f"    s_mov_b32 s{S_GRP}, 1")
    A("    s_branch SLOW_GROUP")


def kd(name, vgpr, sgpr):
    return f""".amdhsa_kernel {name}
  .amdhsa_next_free_vgpr {vgpr}
  .amdhsa_next_free_sgpr {sgpr}
  .amdhsa_accum_offset {((vgpr+3)//4)*4}
  .amdhsa_group_segment_fixed_size 0
  .amdhsa_kernarg_size 72
  .amdhsa_user_sgpr_count 2
  .amdhsa_user_sgpr_kernarg_segment_ptr 1
  .amdhsa_system_sgpr_workgroup_id_x 1
  .amdhsa_float_denorm_mode_32 3
.end_amdhsa_kernel
"""


HEADER = """; Kernarg layout for this problem (72 bytes, ptrs only, base s[0:1]):
"""


def main():
    ap = argparse.ArgumentParser()
    ap.add_argument("-o", default="fused.s")
    ap.add_argument("--stamps", action="store_true")
    ap.add_argument("--ustamps", action="store_true")
    ap.add_argument("--gstamps", action="store_true")
    ap.add_argument("--fstamps", action="store_true")
    ap.add_argument("--nopk", type=int, default=0)
    ap.add_argument("--pstamps", action="store_true")
    ap.add_argument("--clk", action="store_true")
    ap.add_argument("--up", type=int, default=1)
    ap.add_argument("--wpos", default="A")
    ap.add_argument("--copies", type=int, default=1)
    ap.add_argument("--xpre", type=int, default=0)
    ap.add_argument("--wpre", type=int, default=10)
    ap.add_argument("--w3", type=int, default=2)
    ap.add_argument("--wlast", type=int, default=24)
    ap.add_argument("--wmin", type=int, default=6)
    ap.add_argument("--prio", type=int, default=2)
    ap.add_argument("--skip", type=int, default=0)
    ap.add_argument("--bar0", type=int, default=0)
    ap.add_argument("--xt", type=int, default=0)
    ap.add_argument("--xr", type=int, default=0)
    ap.add_argument("--mall", type=int, default=0)
    ap.add_argument("--vlate", type=int, default=1)
    ap.add_argument("--gprio", type=int, default=1)
    ap.add_argument("--gpa", type=int, default=13)
    ap.add_argument("--gpb", type=int, default=19)
    ap.add_argument("--tlb", type=int, default=0)
    ap.add_argument("--xoff", type=int, default=0)
    ap.add_argument("--pa", type=int, default=2)
    ap.add_argument("--pb", type=int, default=4)
    ap.add_argument("--wlook", type=int, default=12)
    ap.add_argument("--wone", type=int, default=1)
    ap.add_argument("--zero2", type=int, default=1)
    ap.add_argument("--bring", type=int, default=4)
    ap.add_argument("--wspread", type=int, default=8)
    a = ap.parse_args()
    opt.__dict__.update(a.__dict__)
    A = Asm()
    B = Asm()
    gen_main(B)
    A(HEADER.rstrip("\n"))
    A(f"; @launch grid=({NT},1,1) block=(512,1,1) lds={LDS_MAIN}")
    A('.amdgcn_target "amdgcn-amd-amdhsa--gfx950"')
    A(".text")
    A.lines += B.lines
    A('.section .rodata,"a"')
    A(".p2align 6")
    A(kd("gather_scatter__graph_attention_gat__graph_kernel", 256, 102 if opt.stamps else 96))
    open(opt.o, "w").write(A.text())
    print("wrote", opt.o, len(A.lines), "lines")


if __name__ == "__main__":
    main()
```
